```python
import torch

def _softmax(x, axis=-1):
    return torch.softmax(x, dim=axis)
def _gelu(x):
    return torch.nn.functional.gelu(x, approximate="tanh")
def _silu(x):
    return torch.nn.functional.silu(x)
def _sigmoid(x):
    return torch.sigmoid(x)
def _layernorm(x, axis=-1, eps=1e-5):
    m = x.mean(dim=axis, keepdim=True)
    v = x.var(dim=axis, keepdim=True, unbiased=False)
    return (x - m) / torch.sqrt(v + eps)
def _scatter_add(tgt, idx, src, axis=0):
    return tgt.clone().index_add_(axis, idx, src)
def _segment_sum(src, seg, n):
    out = torch.zeros((n,) + src.shape[1:], dtype=src.dtype)
    return out.index_add_(0, seg, src)
def _pad(x, pw):
    flat = tuple(v for pair in reversed(pw) for v in pair)
    return torch.nn.functional.pad(x, flat)

kernel_name = 'sequential_preLN__sliding_block__glu_gated_geglu__prompt'

def setup_inputs():

    _w = (lambda a: (lambda t: t.to(torch.bfloat16) if t.is_floating_point() else t)(torch.as_tensor(a)))
    def _A_setup():
        B, S, D = 1, 2048, 448
        return {
            "x": _w((lambda *s: torch.randn(*s, dtype=torch.bfloat16) * 0.05)(B, S, D)),
            "wqkv": _w((lambda *s: torch.randn(*s, dtype=torch.bfloat16) * 0.05)(D, 3 * D)),
            "wo": _w((lambda *s: torch.randn(*s, dtype=torch.bfloat16) * 0.05)(D, D)),
        }
    _A_in = _A_setup()

    def _B_setup():
        B, S, Dm, Df = 1, 2048, 448, 1792
        return {
            "x": _w((lambda *s: torch.randn(*s, dtype=torch.bfloat16) * 0.05)(B, S, Dm)),
            "w_gate": _w((lambda *s: torch.randn(*s, dtype=torch.bfloat16) * 0.8)(Dm, Df) * (Dm ** -0.5)),
            "w_up": _w((lambda *s: torch.randn(*s, dtype=torch.bfloat16) * 0.8)(Dm, Df) * (Dm ** -0.5)),
            "w_down": _w((lambda *s: torch.randn(*s, dtype=torch.bfloat16) * 0.8)(Df, Dm) * (Df ** -0.5)),
        }
    _B_in = _B_setup()

    return {
        "A_x": _A_in["x"],
        "A_wqkv": _A_in["wqkv"],
        "A_wo": _A_in["wo"],
        "B_x": _B_in["x"],
        "B_w_gate": _B_in["w_gate"],
        "B_w_up": _B_in["w_up"],
        "B_w_down": _B_in["w_down"],
    }

def reference(A_x, A_wqkv, A_wo, B_x, B_w_gate, B_w_up, B_w_down):
    def _A_ref(x, wqkv, wo):
        B, S, D = x.shape
        H = 16; Dh = D // H; W = 256
        qkv = (lambda x, *d: x.permute(*d))((x @ wqkv).reshape(B, S, 3, H, Dh), 2, 0, 3, 1, 4)
        q, k, v = qkv[0], qkv[1], qkv[2]
        scores = torch.einsum("bhqd,bhkd->bhqk", q, k) * (Dh ** -0.5)
        idx = torch.arange(S)
        mask = (idx[:, None] - idx[None, :] >= 0) & (idx[:, None] - idx[None, :] < W)
        scores = torch.where(mask[None, None], scores, -1e9)
        p = _softmax(scores, axis=-1)
        o = torch.einsum("bhqk,bhkd->bhqd", p, v)
        return (lambda x, *d: x.permute(*d))(o, 0, 2, 1, 3).reshape(B, S, D) @ wo

    def _B_ref(x, w_gate, w_up, w_down):
        g = torch.einsum("bsd,df->bsf", x, w_gate)
        u = torch.einsum("bsd,df->bsf", x, w_up)
        h = _gelu(g) * u
        return torch.einsum("bsf,fd->bsd", h, w_down)

    x = A_x
    h = x + _A_ref(_layernorm(x, axis=-1), A_wqkv, A_wo)
    h2 = h + _B_ref(_layernorm(h, axis=-1), B_w_gate, B_w_up, B_w_down)
    return h2
```

```python
import re

TRANS = ('v_exp_f32', 'v_log_f32', 'v_rcp_f32', 'v_rsq_f32', 'v_sqrt_f32', 'v_sin_f32', 'v_cos_f32')
REG1 = re.compile(r'^(?:-|abs\(|\|)*([vas])(\d+)\)?\|?$')
REGN = re.compile(r'^(?:-|abs\(|\|)*([vas])\[(\d+):(\d+)\]\)?\|?$')


def regs_of(op):
    op = op.strip()
    m = REG1.match(op)
    if m:
        return [m.group(1) + m.group(2)]
    m = REGN.match(op)
    if m:
        return [m.group(1) + str(i) for i in range(int(m.group(2)), int(m.group(3)) + 1)]
    if op == 'vcc':
        return ['vcc']
    if op in ('vcc_lo', 'vcc_hi'):
        return ['vcc']
    if op in ('exec', 'exec_lo', 'exec_hi'):
        return ['exec']
    if op == 'm0':
        return ['m0']
    return []


def split_ops(s):
    out, depth, cur = [], 0, ''
    for ch in s:
        if ch in '[(':
            depth += 1
        elif ch in '])':
            depth -= 1
        if ch == ',' and depth == 0:
            out.append(cur.strip())
            cur = ''
        else:
            cur += ch
    if cur.strip():
        out.append(cur.strip())
    return out


class Ins:
    def __init__(self, text, tok=None):
        self.text = text
        self.tok = tok
        self.tag = None
        self.kind = 'other'
        self.wr, self.rd = set(), set()
        self.ab, self.c = set(), set()
        self.passes = 0
        self.mods = ''
        self.dreg = None
        self.creg = None
        self.data = set()
        self.states = 1
        t = text.split(';')[0].strip()
        if not t or t.endswith(':') or t.startswith('.'):
            self.kind = 'label' if t.endswith(':') else 'none'
            self.states = 0
            self.mnem = ''
            return
        parts = t.split(None, 1)
        self.mnem = mn = parts[0]
        ops = split_ops(parts[1]) if len(parts) > 1 else []
        if ops:
            last = ops[-1].split(None, 1)
            ops[-1] = last[0]
            self.mods = last[1] if len(last) > 1 else ''
        self.ops = ops
        R = [regs_of(o) for o in ops]
        allr = lambda idx: set(r for i in idx for r in R[i])
        n = len(ops)
        if mn.startswith('v_mfma'):
            self.kind = 'mfma'
            self.wr = set(R[0]); self.ab = allr([1, 2]); self.c = set(R[3]); self.rd = self.ab | self.c
            self.dreg, self.creg = ops[0], ops[3]
            self.passes = 8 if '32x32x16' in mn else 4 if '16x16x32' in mn else 2 if '4x4x4' in mn else 16
        elif mn.startswith('v_'):
            self.kind = 'valu'
            base = re.sub(r'_e32$|_e64$|_dpp$|_sdwa$', '', mn)
            self.base = base
            if 'permlane' in base and 'swap' in base:
                self.wr = allr([0, 1]); self.rd = allr([0, 1])
            elif re.search(r'_co_u32$', base) or base.startswith('v_div_scale'):
                self.wr = allr([0, 1]); self.rd = allr(range(2, n))
            elif base == 'v_nop':
                pass
            else:
                self.wr = set(R[0]); self.rd = allr(range(1, n))
                if base.startswith('v_fmac') or base.startswith('v_dot2c') or base.startswith('v_writelane'):
                    self.rd |= self.wr
                if base.startswith('v_cmpx'):
                    self.wr.add('exec')
                if base.startswith('v_cndmask') and n == 3:
                    self.rd.add('vcc')
            self.dpp = bool(re.search(r'quad_perm|row_|bank_mask|wave_', self.mods)) or mn.endswith('_dpp')
            if self.dpp and 'bound_ctrl' not in self.mods:
                self.rd |= self.wr
            self.trans = base in TRANS
            self.dot = base.startswith('v_dot')
        elif mn.startswith('buffer_') or mn.startswith('global_'):
            self.kind = 'vmem'
            self.lds = bool(re.search(r'\blds\b', self.mods)) or '_lds_' in mn
            if 'load' in mn and not self.lds:
                self.wr = set(R[0]); self.rd = allr(range(1, n))
            else:
                self.rd = allr(range(n))
                if self.lds:
                    self.rd.add('m0')
                if 'store' in mn:
                    self.data = set(R[0]) if mn.startswith('buffer_') else set(R[1])
                if 'atomic' in mn and re.search(r'\bsc0\b', self.mods):
                    self.wr = set(R[0])
        elif mn.startswith('ds_'):
            self.kind = 'ds'
            if 'read' in mn or 'permute' in mn or 'swizzle' in mn:
                self.wr = set(R[0]); self.rd = allr(range(1, n))
            else:
                self.rd = allr(range(n))
        elif mn.startswith('s_load') or mn.startswith('s_memtime') or mn.startswith('s_memrealtime'):
            self.kind = 'smem'
            self.wr = set(R[0]); self.rd = allr(range(1, n))
        elif mn == 's_waitcnt':
            self.kind = 'wait'
        elif mn == 's_nop':
            self.kind = 'nop'
            self.states = int(ops[0], 0) + 1
        elif mn.startswith('s_'):
            self.kind = 'salu'
            if mn.startswith('s_cmp') or mn.startswith('s_bitcmp') or mn.startswith('s_cbranch') or mn in (
                    's_branch', 's_barrier', 's_endpgm', 's_sleep', 's_setprio'):
                self.rd = allr(range(n))
                if 'vcc' in mn:
                    self.rd.add('vcc')
            else:
                self.wr = set(R[0]) if n else set(); self.rd = allr(range(1, n))
                if 'saveexec' in mn:
                    self.wr.add('exec')
        else:
            raise ValueError('unknown instruction: ' + text)


class Pseudo:
    def __init__(self, what, arg=None):
        self.what, self.arg = what, arg


def need_states(p, c):
    n = 0
    pk, ck = p.kind, c.kind
    if pk == 'valu':
        vw = {r for r in p.wr if r[0] in 'va' and r != 'vcc'}
        sw = p.wr - vw
        if ck == 'mfma' and vw & c.rd:
            n = max(n, 2)
        if ck == 'mfma' and 'exec' in sw:
            n = max(n, 4)
        if ck == 'valu':
            if p.trans and not c.trans and vw & c.rd:
                n = max(n, 1)
            if sw & c.rd:
                n = max(n, 4 if 'lane' in c.base and 'perm' not in c.base else 2)
            if vw & c.rd:
                if c.dpp or 'permlane' in c.base:
                    n = max(n, 2)
                if c.base in ('v_readlane_b32', 'v_readfirstlane_b32'):
                    n = max(n, 1)
            if 'exec' in sw and (c.dpp or 'lane' in c.base):
                n = max(n, 5)
            if 'sdwa' in p.mnem and vw & (c.rd | c.wr):
                n = max(n, 1)
        if p.dot and (vw & (c.rd | c.wr)) and ck in ('valu', 'mfma', 'vmem', 'ds'):
            same = ck == 'valu' and c.base == p.base
            if same:
                srcab = set(r for o in c.ops[1:3] for r in regs_of(o))
                if vw & srcab:
                    n = max(n, 3)
            else:
                n = max(n, 3)
        if ck == 'vmem' and sw & c.rd:
            n = max(n, 5)
    elif pk == 'mfma':
        big = {2: 5, 4: 8, 8: 12, 16: 20}[p.passes]
        if ck == 'mfma':
            if p.wr & c.ab:
                n = max(n, big)
            if p.wr & c.c:
                if c.creg == p.dreg and c.passes == p.passes:
                    n = max(n, 2 if p.passes == 2 else 0)
                else:
                    n = max(n, p.passes + 2)
            elif p.wr & c.wr and not (c.dreg == p.dreg and c.passes == p.passes):
                n = max(n, p.passes + 2)
        elif ck in ('valu', 'vmem', 'ds') and p.wr & (c.rd | c.wr):
            n = max(n, big)
        if ck in ('valu', 'vmem', 'ds') and p.c & c.wr:
            n = max(n, p.passes - 1)
    elif pk == 'salu':
        if 'm0' in p.wr and ck == 'vmem' and c.lds:
            n = max(n, 1)
    elif pk == 'vmem':
        if p.data and len(p.data) >= 3 and p.data & c.wr:
            n = max(n, 2 if ck == 'valu' else 1)
    return n


class Asm:
    def __init__(self):
        self.items = []

    def __call__(self, text, tok=None):
        for line in text.split('\n'):
            line = line.strip()
            if line:
                self.items.append(Ins(line, tok))
        return self

    def add(self, lst):
        for x in lst:
            if isinstance(x, str):
                self(x)
            else:
                self.items.append(x)

    def wait_tok(self, tok):
        self.items.append(Pseudo('wait_tok', tok))

    def begin_cond(self, tag):
        self.items.append(Pseudo('begin', tag))

    def end_cond(self):
        self.items.append(Pseudo('end'))

    def fresh(self):
        self.items.append(Pseudo('fresh'))

    def finalize(self):
        out = []
        vm, lg = [], []
        tag = None
        snap = None
        hist_start = 0

        def younger(lst, i):
            return sum(1 for o in lst[i + 1:] if o.tag is None or o.tag == tag)

        def emit(ins):
            ins.tag = tag
            need = 0
            dist = 0
            for j in range(len(out) - 1, hist_start - 1, -1):
                p = out[j]
                if dist >= 20:
                    break
                if p.kind in ('valu', 'mfma', 'salu', 'vmem'):
                    r = need_states(p, ins)
                    if r - dist > need:
                        need = r - dist
                if p.tag is None or p.tag == tag:
                    dist += p.states
            while need > 0:
                k = min(need, 16)
                nop = Ins('s_nop %d' % (k - 1)); nop.tag = tag
                out.append(nop)
                need -= k
            out.append(ins)

        def do_wait(nv, nl):
            nonlocal vm, lg
            s = []
            if nv is not None:
                nv = min(nv, 63); s.append('vmcnt(%d)' % nv)
            if nl is not None:
                nl = min(nl, 15); s.append('lgkmcnt(%d)' % nl)
            emit(Ins('s_waitcnt ' + ' '.join(s)))
            retire(nv, nl)

        def retire(nv, nl):
            nonlocal vm, lg
            if nv is not None:
                vm = [o for i, o in enumerate(vm) if younger(vm, i) < nv]
            if nl is not None:
                if nl > 0 and any(o.kind == 'smem' for o in lg):
                    pass
                else:
                    lg = [o for i, o in enumerate(lg) if younger(lg, i) < nl]

        for it in self.items:
            if isinstance(it, Pseudo):
                if it.what == 'fresh':
                    vm, lg = [], []
                    hist_start = len(out)
                elif it.what == 'begin':
                    assert tag is None
                    tag = it.arg
                    snap = (list(vm), list(lg))
                elif it.what == 'end':
                    vm = [o for o in snap[0] if o.tag != tag or o in vm] + [o for o in vm if o not in snap[0]]
                    lg = [o for o in snap[1] if o.tag != tag or o in lg] + [o for o in lg if o not in snap[1]]
                    tag = None
                elif it.what == 'wait_tok':
                    nv = nl = None
                    for i, o in enumerate(vm):
                        if o.tok == it.arg:
                            y = younger(vm, i); nv = y if nv is None else min(nv, y)
                    for i, o in enumerate(lg):
                        if o.tok == it.arg:
                            y = younger(lg, i); nl = y if nl is None else min(nl, y)
                    if nl is not None and any(o.kind == 'smem' for o in lg):
                        nl = 0
                    if nv is not None or nl is not None:
                        do_wait(nv, nl)
                continue
            ins = it
            if ins.kind == 'wait':
                m = re.search(r'vmcnt\((\d+)\)', ins.text); nv = int(m.group(1)) if m else None
                m = re.search(r'lgkmcnt\((\d+)\)', ins.text); nl = int(m.group(1)) if m else None
                emit(ins)
                retire(nv, nl)
                continue
            touch = ins.rd | ins.wr
            nv = nl = None
            if touch:
                for i, o in enumerate(vm):
                    if o.wr & touch and not (ins.kind == 'vmem' and not (o.wr & ins.rd)):
                        y = younger(vm, i); nv = y if nv is None else min(nv, y)
                for i, o in enumerate(lg):
                    if o.wr & touch and not (ins.kind == 'ds' and o.kind == 'ds' and not (o.wr & ins.rd)):
                        y = younger(lg, i); nl = y if nl is None else min(nl, y)
                if nl is not None and any(o.kind == 'smem' for o in lg):
                    nl = 0
            if nv is not None or nl is not None:
                do_wait(nv, nl)
            emit(ins)
            if ins.kind == 'vmem':
                vm.append(ins)
            elif ins.kind in ('ds', 'smem'):
                lg.append(ins)
        return '\n'.join(('' if i.kind == 'label' or i.text.startswith('.') else '    ') + i.text for i in out) + '\n'


def weave(main, side, per=None, start=0):
    def is_m(x):
        return isinstance(x, str) and x.startswith('v_mfma')
    nm = sum(1 for x in main if is_m(x)) - start
    out, k, seen = [], 0, 0
    for x in main:
        out.append(x)
        if is_m(x):
            seen += 1
            if seen > start:
                tgt = len(side) * (seen - start) // max(nm, 1) if per is None else min(len(side), per * (seen - start))
                out.extend(side[k:tgt]); k = max(k, tgt)
    return out, side[k:]
```

```python
import sys, struct
from asmlib import Asm, weave, Pseudo

NAME = 'sequential_preLN__sliding_block__glu_gated_geglu__prompt'

WS_QKV = 0
WS_O = WS_QKV + 64 * 84 * 1024
WS_HB = WS_O + 64 * 32768
WS_ST = WS_HB + 64 * 28672
WS_HH = WS_ST + 64 * 4096
WS_WGU = WS_HH + 64 * 112 * 1024
WS_CS = WS_WGU + 112 * 28672
WS_WD = WS_CS + 112 * 896
WS_WO = WS_WD + 7 * 112 * 2048
WS_FL = WS_WO + 7 * 32 * 2048
FL_F1 = 0
FL_FR = FL_F1 + 256
FL_F2 = FL_FR + 256
FL_F3 = FL_F2 + 1024
FL_F4 = FL_F3 + 1024
FL_END = FL_F4 + 4096
WS_EP = WS_FL + FL_END * 128
WS_TS = WS_EP + 128
WS_END = WS_TS + 256 * 4 * 32 * 8
assert WS_END < (1 << 28)

LDS_BYTES = 163840
SLOT = 28672
XTRA = 5 * SLOT

sB, sW, sXCD, sI, sM, sN, sR, sIDX, sEP = 's2', 's3', 's4', 's5', 's6', 's7', 's8', 's9', 's10'
SRD_X, SRD_WQKV, SRD_WS, SRD_OUT, SRD_G, SRD_U, SRD_D, SRD_DBG = (
    's[36:39]', 's[40:43]', 's[44:47]', 's[48:51]', 's[52:55]', 's[56:59]', 's[60:63]', 's[64:67]')
MASK0 = 68
vL, vL16 = 'v0', 'v1'


def f32(x):
    return '0x%08x' % struct.unpack('<I', struct.pack('<f', x))[0]


def vr(b, n=4, t='v'):
    return '%s[%d:%d]' % (t, b, b + n - 1)


def ar(b, n=4):
    return vr(b, n, 'a')


MFMA = 'v_mfma_f32_32x32x16_bf16'


class Gen:
    def __init__(self, fused=False, stamps=False):
        self.a = Asm()
        self.fused = fused
        self.stamps = stamps
        self.sc1 = ' sc1' if fused else ''
        self.nl = 0

    def label(self, s):
        self.nl += 1
        return 'L_%s_%d' % (s, self.nl)

    def prologue(self, exit_label):
        a = self.a
        a.fresh()
        a('s_cmp_ge_u32 s2, 256')
        a('s_cbranch_scc1 %s' % exit_label)
        a('s_load_dwordx16 s[16:31], s[0:1], 0')
        a('s_load_dwordx4 s[32:35], s[0:1], 64')
        a('v_lshrrev_b32 v2, 6, v0')
        a('v_and_b32 v0, 63, v0')
        a('v_readfirstlane_b32 %s, v2' % sW)
        a('v_lshlrev_b32 %s, 4, v0' % vL16)
        a('s_and_b32 %s, s2, 7' % sXCD)
        a('s_lshr_b32 %s, s2, 3' % sI)
        a('s_and_b32 s11, %s, 3' % sI)
        a('s_lshl_b32 %s, %s, 2' % (sM, sXCD))
        a('s_add_u32 %s, %s, s11' % (sM, sM))
        a('s_lshr_b32 %s, %s, 2' % (sN, sI))
        a('s_lshr_b32 %s, %s, 1' % (sR, sM))
        a('s_and_b32 s11, %s, 1' % sI)
        a('s_lshl_b32 %s, %s, 1' % (sIDX, sN))
        a('s_add_u32 %s, %s, s11' % (sIDX, sIDX))

        def srd(d, p, size):
            a('s_mov_b32 s%d, s%d' % (d, p))
            a('s_and_b32 s%d, s%d, 0xffff' % (d + 1, p + 1))
            a('s_mov_b32 s%d, %d' % (d + 2, size))
            a('s_mov_b32 s%d, 0x20000' % (d + 3))
        srd(36, 16, 2048 * 896)
        srd(40, 18, 448 * 2688)
        srd(44, 34, WS_END)
        srd(48, 30, 2048 * 896)
        srd(52, 24, 448 * 3584)
        srd(56, 26, 448 * 3584)
        srd(64, 32, 256)
        a('s_cmp_lt_u32 s2, 196')
        a('s_cselect_b32 s60, s28, s20')
        a('s_cselect_b32 s61, s29, s21')
        a('s_cselect_b32 s62, %d, %d' % (1792 * 896, 0))
        a('s_cselect_b32 s11, 0, %d' % (448 * 896))
        a('s_add_u32 s62, s62, s11')
        a('s_and_b32 s61, s61, 0xffff')
        a('s_mov_b32 s63, 0x20000')

    def stamp(self, k):
        if not self.stamps:
            return
        a = self.a
        a('s_memtime s[100:101]')
        a('s_lshl_b32 s15, s2, 2')
        a('s_add_u32 s15, s15, %s' % sW)
        a('s_lshl_b32 s15, s15, 8')
        a('s_add_u32 s15, s15, %d' % (WS_TS + k * 8))
        a('s_waitcnt lgkmcnt(0)')
        a('v_mov_b32 v254, s100')
        a('v_mov_b32 v255, s101')
        a('s_mov_b64 exec, 1')
        a('buffer_store_dwordx2 v[254:255], off, %s, s15' % SRD_WS)
        a('s_mov_b64 exec, -1')

    def tr_lane_addr(self, dst, pitch, h16, t0, t1):
        a = self.a
        a('v_lshrrev_b32 %s, 5, v0' % t0)
        a('v_lshlrev_b32 %s, 3, %s' % (t0, t0))
        a('v_bfe_u32 %s, v0, 2, 2' % t1)
        a('v_add_u32 %s, %s, %s' % (t0, t0, t1))
        a('v_mul_u32_u24 %s, %d, %s' % (dst, pitch, t0))
        a('v_bfe_u32 %s, v0, 4, 1' % t0)
        a('v_mul_u32_u24 %s, %d, %s' % (t0, h16, t0))
        a('v_add_u32 %s, %s, %s' % (dst, dst, t0))
        a('v_and_b32 %s, 1, v0' % t0)
        a('v_lshl_add_u32 %s, %s, 4, %s' % (dst, t0, dst))
        a('v_bfe_u32 %s, v0, 1, 1' % t0)
        a('v_lshl_add_u32 %s, %s, 3, %s' % (dst, t0, dst))

    P1_X = 0
    P1_W = 57344
    RP_LDS = 57344 + 3 * 24576

    def p1_wdma(self, s):
        o = []
        slot = self.P1_W + (s % 4) * 24576
        for h in range(2):
            o.append('s_add_u32 m0, s17, %d' % (slot + h * 3072))
            o.append('s_add_u32 s11, s16, %d' % ((64 * s + 8 * h) * 2688))
            for i in range(3):
                o.append(('buffer_load_dwordx4 v%d, %s, s11 offen offset:%d lds' % (5 + i, SRD_WQKV, i * 1024), 'w%d' % s))
        return o

    def emit(self, lst):
        for x in lst:
            if isinstance(x, tuple):
                self.a(x[0], tok=x[1])
            elif isinstance(x, str):
                self.a(x)
            else:
                self.a.items.append(x)

    def p1(self):
        a = self.a
        XR, ACC, XF, WF, T = 16, 72, 120, 136, 172
        a('v_lshrrev_b32 v2, 3, v0')
        a('v_and_b32 v3, 7, v0')
        a('v_mul_u32_u24 v4, 896, v2')
        a('v_lshl_add_u32 v4, v3, 4, v4')
        a('s_lshl_b32 s11, %s, 6' % sM)
        a('s_lshl_b32 s12, %s, 4' % sW)
        a('s_add_u32 s11, s11, s12')
        a('s_mul_i32 s18, s11, 896')
        a('s_add_u32 s19, s18, %d' % (8 * 896))
        for s in range(7):
            for q in range(2):
                a('buffer_load_dwordx4 %s, v4, %s, s%d offen offset:%d' % (vr(XR + (s * 2 + q) * 4), SRD_X, 18 + q, 128 * s))
        for i in range(3):
            a('v_add_u32 v8, %d, v0' % (64 * i))
            a('v_mul_u32_u24 v9, 171, v8')
            a('v_lshrrev_b32 v9, 12, v9')
            a('v_mul_u32_u24 v10, 24, v9')
            a('v_sub_u32 v10, v8, v10')
            a('v_lshlrev_b32 v11, 1, v9')
            a('v_and_b32 v11, 4, v11')
            a('v_xor_b32 v10, v10, v11')
            a('v_mul_u32_u24 v9, 2688, v9')
            a('v_lshl_add_u32 v%d, v10, 4, v9' % (5 + i))
            if i:
                a('v_subrev_u32 v%d, %d, v%d' % (5 + i, 1024 * i, 5 + i))
        a('s_mul_i32 s16, %s, %d' % (sW, 16 * 2688))
        a('s_mul_i32 s11, %s, 384' % sN)
        a('s_add_u32 s16, s16, s11')
        a('s_mul_i32 s17, %s, 6144' % sW)
        for s in range(4):
            self.emit(self.p1_wdma(s))
        self.p1_extra_setup()
        a('v_lshrrev_b32 v10, 4, v0')
        a('v_xor_b32 v10, v3, v10')
        a('v_lshlrev_b32 v11, 7, v2')
        a('s_lshl_b32 s11, %s, 11' % sW)
        a('v_add_u32 v11, s11, v11')
        a('v_lshl_add_u32 v8, v10, 4, v11')
        a('v_xor_b32 v9, 64, v8')
        a('v_add_u32 v9, 1024, v9')
        a('v_and_b32 v14, 31, v0')
        a('v_lshrrev_b32 v15, 5, v0')
        a('v_bfe_u32 v2, v0, 1, 3')
        a('v_xor_b32 v15, v15, v2')
        a('s_and_b32 s11, %s, 1' % sW)
        a('s_lshl_b32 s11, s11, 12')
        a('v_lshlrev_b32 v14, 7, v14')
        a('v_add_u32 v14, s11, v14')
        for u in range(4):
            a('v_xor_b32 v2, %d, v15' % (2 * u))
            a('v_lshl_add_u32 v%d, v2, 4, v14' % (10 + u))
        self.tr_lane_addr('v14', 384, 32, 'v2', 'v3')
        a('v_bfe_u32 v2, v0, 3, 1')
        a('s_lshr_b32 s11, %s, 1' % sW)
        a('s_mul_i32 s11, s11, 3')
        for t in range(3):
            a('s_add_u32 s12, s11, %d' % t)
            a('v_xor_b32 v3, s12, v2')
            a('v_lshl_add_u32 v%d, v3, 6, v14' % (T + t))
            a('v_add_u32 v%d, %d, v%d' % (T + t, self.P1_W, T + t))
            a('v_add_u32 v%d, 49152, v%d' % (T + 3 + t, T + t))
        ONE = T + 6
        SU, SQ = T + 8, T + 12
        a('v_mov_b32 v%d, 0x3f803f80' % ONE)
        for k in range(4):
            a('v_mov_b32 v%d, 0' % (SU + k))
            a('v_mov_b32 v%d, 0' % (SQ + k))
        for s in range(7):
            for q in range(2):
                for d in range(4):
                    x = XR + (s * 2 + q) * 4 + d
                    k = q * 2 + (d & 1)
                    a('v_dot2_f32_bf16 v%d, v%d, v%d, v%d' % (SU + k, x, ONE, SU + k))
                    a('v_dot2_f32_bf16 v%d, v%d, v%d, v%d' % (SQ + k, x, x, SQ + k))
        red = []
        for q in range(2):
            a('v_add_f32 v%d, v%d, v%d' % (SU + 2 * q, SU + 2 * q, SU + 2 * q + 1))
            a('v_add_f32 v%d, v%d, v%d' % (SQ + 2 * q, SQ + 2 * q, SQ + 2 * q + 1))
            red += [SU + 2 * q, SQ + 2 * q]
        for dpp in ('quad_perm:[1,0,3,2]', 'quad_perm:[2,3,0,1]', 'row_half_mirror'):
            for r in red:
                a('v_add_f32_dpp v%d, v%d, v%d %s row_mask:0xf bank_mask:0xf' % (r, r, r, dpp))
        RS, NB = T + 16, T + 18
        a('s_mov_b32 s11, %s' % f32(1.0 / 448))
        a('s_mov_b32 s12, %s' % f32(1e-5))
        for q in range(2):
            su, sq = SU + 2 * q, SQ + 2 * q
            a('v_mul_f32 v%d, s11, v%d' % (su, su))
            a('v_mul_f32 v%d, s11, v%d' % (sq, sq))
            a('v_fma_f32 v%d, -v%d, v%d, v%d' % (sq, su, su, sq))
            a('v_max_f32 v%d, 0, v%d' % (sq, sq))
            a('v_add_f32 v%d, s12, v%d' % (sq, sq))
            a('v_rsq_f32 v%d, v%d' % (RS + q, sq))
            a('v_mul_f32_e64 v%d, -v%d, v%d' % (NB + q, su, RS + q))
        TMP = T + 20

        def norm(s):
            o = []
            for q in range(2):
                b = XR + (s * 2 + q) * 4
                for d in range(4):
                    t0, t1 = TMP + (d & 1) * 2, TMP + (d & 1) * 2 + 1
                    o.append('v_lshlrev_b32 v%d, 16, v%d' % (t0, b + d))
                    o.append('v_and_b32 v%d, 0xffff0000, v%d' % (t1, b + d))
                    o.append('v_fma_f32 v%d, v%d, v%d, v%d' % (t0, t0, RS + q, NB + q))
                    o.append('v_fma_f32 v%d, v%d, v%d, v%d' % (t1, t1, RS + q, NB + q))
                    o.append('v_cvt_pk_bf16_f32 v%d, v%d, v%d' % (b + d, t0, t1))
                o.append('ds_write_b128 v%d, %s offset:%d' % (8 + q, vr(b), self.P1_X + s * 8192))
            return o

        def reads(ks):
            s, u = ks // 4, ks % 4
            o = ['ds_read_b128 %s, v%d offset:%d' % (vr(XF + (ks % 3) * 4), 10 + u, self.P1_X + s * 8192)]
            sl = s % 4
            for t in range(3):
                for z in range(2):
                    o.append('ds_read_b64_tr_b16 %s, v%d offset:%d' % (
                        vr(WF + (ks % 3) * 12 + t * 4 + z * 2, 2), T + t + 3 * (sl >> 1),
                        (sl & 1) * 24576 + (16 * u + 4 * z) * 384))
            return o

        def mfmas(ks):
            return ['%s %s, %s, %s, %s' % (MFMA, vr(ACC + 16 * t, 16), vr(WF + (ks % 3) * 12 + t * 4), vr(XF + (ks % 3) * 4),
                                           vr(ACC + 16 * t, 16) if ks else '0') for t in range(3)]

        def sync(s):
            o = [Pseudo('wait_tok', 'w%d' % s), 's_waitcnt lgkmcnt(0)', 's_barrier']
            if s >= 1 and s + 3 < 7:
                o += self.p1_wdma(s + 3)
            if s == 4:
                o += self.rp_issue()
            return o

        self.emit(norm(0))
        self.emit(sync(0))
        self.emit(reads(0))
        for s in range(7):
            main = []
            for u in range(3):
                ks = 4 * s + u
                main += reads(ks + 1) + mfmas(ks)
            if s < 6:
                main, rest = weave(main, norm(s + 1))
                main += rest + sync(s + 1) + reads(4 * s + 4)
            main += mfmas(4 * s + 3)
            self.emit(main)
        a('s_lshl_b32 s11, %s, 1' % sM)
        a('s_and_b32 s12, %s, 1' % sW)
        a('s_add_u32 s11, s11, s12')
        a('s_mul_i32 s11, s11, %d' % (84 * 1024))
        a('s_mul_i32 s12, %s, %d' % (sN, 12 * 1024))
        a('s_add_u32 s11, s11, s12')
        a('s_lshr_b32 s12, %s, 1' % sW)
        a('s_mul_i32 s12, s12, %d' % (6 * 1024))
        a('s_add_u32 s11, s11, s12')
        a('s_add_u32 s12, s11, 4096')
        if WS_QKV:
            raise NotImplementedError
        for t in range(3):
            for h in range(2):
                f = t * 2 + h
                for d in range(4):
                    r = ACC + 16 * t + 8 * h + 2 * d
                    a('v_cvt_pk_bf16_f32 v%d, v%d, v%d' % (XR + f * 4 + d, r, r + 1))
                a('buffer_store_dwordx4 %s, %s, %s, s%d offen offset:%d%s' % (
                    vr(XR + f * 4), vL16, SRD_WS, 11 + f // 4, (f % 4) * 1024, self.sc1))

    def p1_extra_setup(self):
        pass

    def rp_setup(self):
        a = self.a
        a('s_mul_i32 s20, s2, 293')
        a('s_lshr_b32 s20, s20, 11')
        a('s_mul_i32 s21, s20, 7')
        a('s_sub_u32 s21, s2, s21')
        a('v_lshrrev_b32 v202, 3, v0')
        a('v_and_b32 v203, 7, v0')
        a('v_mul_u32_u24 v200, 3584, v202')
        a('v_lshl_add_u32 v200, v203, 4, v200')
        a('v_mul_u32_u24 v201, 896, v202')
        a('v_lshl_add_u32 v201, v203, 4, v201')
        a('s_lshl_b32 s22, s21, 6')
        a('s_lshl_b32 s11, %s, 4' % sW)
        a('s_add_u32 s22, s22, s11')
        a('s_mul_i32 s22, s22, 3584')
        a('s_lshl_b32 s12, s20, 7')
        a('s_add_u32 s22, s22, s12')
        a('s_lshl_b32 s23, s20, 6')
        a('s_sub_u32 s12, s20, 28')
        a('s_mul_i32 s12, s12, 56')
        a('s_cmp_lt_u32 s2, 196')
        a('s_cselect_b32 s23, s23, s12')
        a('s_cselect_b32 s22, s22, 0x7fff0000')
        a('s_add_u32 s23, s23, s11')
        a('s_mul_i32 s23, s23, 896')
        a('s_lshl_b32 s12, s21, 7')
        a('s_add_u32 s23, s23, s12')
        a('s_lshl_b32 s24, %s, 11' % sW)
        a('s_add_u32 s24, s24, %d' % self.RP_LDS)

    def rp_issue(self):
        o = []
        for img, (srd, vo, so, pitch) in enumerate(((SRD_G, 200, 22, 3584), (SRD_U, 200, 22, 3584), (SRD_D, 201, 23, 896))):
            for z in range(2):
                o.append('s_add_u32 m0, s24, %d' % (img * 8192 + z * 1024))
                o.append('s_add_u32 s11, s%d, %d' % (so, z * 8 * pitch))
                o.append(('buffer_load_dwordx4 v%d, %s, s11 offen lds' % (vo, srd), 'rp'))
        return o

    def rp_process(self, done_label):
        a = self.a
        a.wait_tok('rp')
        a('s_barrier')
        a('s_cmp_ge_u32 s2, 252')
        a('s_cbranch_scc1 %s' % done_label)
        F, CSA, ONE = 120, 72, 160
        self.tr_lane_addr('v4', 128, 32, 'v2', 'v3')
        a('s_lshl_b32 s11, %s, 4' % sW)
        a('s_lshr_b32 s12, %s, 1' % sW)
        a('s_lshl_b32 s12, s12, 3')
        a('s_sub_u32 s12, s11, s12')
        a('s_cmp_lt_u32 s2, 196')
        a('s_cselect_b32 s11, s11, s12')
        a('s_lshl_b32 s11, s11, 7')
        a('s_add_u32 s11, s11, %d' % (self.RP_LDS + 16384))
        a('v_add_u32 v5, s11, v4')
        for nt in range(2):
            for z in range(2):
                a('ds_read_b64_tr_b16 %s, v5 offset:%d' % (vr(F + nt * 4 + z * 2, 2), nt * 64 + z * 512))
        a('s_mul_i32 s11, s21, 112')
        a('s_lshl_b32 s12, s21, 5')
        a('s_sub_u32 s12, s12, 112')
        a('s_cmp_lt_u32 s2, 196')
        a('s_cselect_b32 s11, s11, s12')
        a('s_cselect_b32 s12, %d, %d' % (WS_WD, 0))
        a('s_cselect_b32 s13, 0, %d' % WS_WO)
        a('s_add_u32 s12, s12, s13')
        a('s_lshl_b32 s13, s20, 2')
        a('s_add_u32 s11, s11, s13')
        a('s_add_u32 s11, s11, %s' % sW)
        a('s_lshl_b32 s11, s11, 11')
        a('s_add_u32 s11, s11, s12')
        for nt in range(2):
            a('buffer_store_dwordx4 %s, %s, %s, s11 offen offset:%d%s' % (vr(F + nt * 4), vL16, SRD_WS, nt * 1024, self.sc1))
        a('s_cmp_ge_u32 s2, 196')
        a('s_cbranch_scc1 %s' % done_label)
        self.tr_lane_addr('v4', 128, 8192, 'v2', 'v3')
        a('s_lshl_b32 s11, %s, 5' % sW)
        a('s_add_u32 s11, s11, %d' % self.RP_LDS)
        a('v_add_u32 v5, s11, v4')
        G = F + 8
        for u in range(4):
            for z in range(2):
                a('ds_read_b64_tr_b16 %s, v5 offset:%d' % (vr(G + u * 4 + z * 2, 2), (16 * u + 4 * z) * 128))
        for d in range(4):
            a('v_mov_b32 v%d, 0x3f803f80' % (ONE + d))
        a('s_lshl_b32 s13, s20, 2')
        a('s_add_u32 s13, s13, %s' % sW)
        a('s_mul_i32 s11, s13, 28672')
        a('s_lshl_b32 s12, s21, 12')
        a('s_add_u32 s11, s11, s12')
        a('s_add_u32 s11, s11, %d' % WS_WGU)
        for u in range(4):
            a('buffer_store_dwordx4 %s, %s, %s, s11 offen offset:%d%s' % (vr(G + u * 4), vL16, SRD_WS, u * 1024, self.sc1))
            a('%s %s, %s, %s, %s' % (MFMA, vr(CSA, 16), vr(G + u * 4), vr(ONE), vr(CSA, 16) if u else '0'))
        a('s_mul_i32 s11, s13, 896')
        a('s_lshl_b32 s12, s21, 7')
        a('s_add_u32 s11, s11, s12')
        a('s_add_u32 s11, s11, %d' % WS_CS)
        a('v_lshlrev_b32 v5, 1, v0')
        a('s_mov_b32 exec_lo, 1')
        a('s_mov_b32 exec_hi, 1')
        for k in range(4):
            a('buffer_store_dwordx4 %s, v5, %s, s11 offen offset:%d%s' % (vr(CSA + 4 * k), SRD_WS, k * 16, self.sc1))
        a('s_mov_b64 exec, -1')

    KV_LDS = 4 * SLOT

    def p2_setup(self):
        a = self.a
        a('s_mul_i32 s28, %s, 7' % sIDX)
        a('s_lshr_b32 s28, s28, 1')
        a('s_lshl_b32 s28, s28, 9')
        a('s_and_b32 s25, %s, 1' % sIDX)
        a('s_cmp_eq_u32 s25, 1')
        a('s_cselect_b64 s[26:27], -1, 0')
        a('v_and_b32 v2, 31, v0')
        a('v_lshrrev_b32 v3, 5, v0')
        a('v_lshlrev_b32 v3, 2, v3')
        a('v_sub_u32 v2, v2, v3')
        for r in range(16):
            a('v_cmp_le_i32 s[%d:%d], %d, v2' % (MASK0 + 2 * r, MASK0 + 2 * r + 1, (r & 3) + 8 * (r >> 2)))

    def p2_issue(self):
        a = self.a
        Q = 232
        a('v_lshrrev_b32 v2, 5, v0')
        a('v_lshlrev_b32 v2, 6, v2')
        a('v_xor_b32 v4, %s, v2' % vL16)
        a('v_xor_b32 v5, 128, v4')
        a('s_lshl_b32 s11, %s, 2' % sR)
        a('s_add_u32 s12, s11, %s' % sW)
        a('s_mul_i32 s12, s12, %d' % (84 * 1024))
        a('s_add_u32 s12, s12, s28')
        a('s_mul_i32 s13, %s, 3' % sW)
        a('s_add_u32 s11, s11, s13')
        a('s_mul_i32 s14, %s, %d' % (sW, 3 * 4096))
        for k in range(3):
            a('s_add_i32 s13, s11, %d' % (k - 8))
            a('s_max_i32 s13, s13, 0')
            a('s_mul_i32 s13, s13, %d' % (84 * 1024))
            a('s_add_u32 s13, s13, s28')
            a('s_add_u32 s%d, s13, %d' % (29 + k, 56 * 512))
        for k in range(3):
            a('s_add_u32 m0, s14, %d' % (self.KV_LDS + k * 4096))
            for t in range(2):
                a('buffer_load_dwordx4 %s, %s, s%d offen offset:%d%s lds' % (vL16, SRD_WS, 29 + k, t * 1024, self.sc1), tok='k')
        for t in range(2):
            a('buffer_load_dwordx4 %s, %s, %s, s12 offen offset:%d%s' % (vr(Q + 4 * t), vL16, SRD_WS, t * 1024, self.sc1))
        for k in range(3):
            a('s_add_u32 m0, s14, %d' % (self.KV_LDS + k * 4096 + 2048))
            a('s_add_u32 s13, s%d, %d' % (29 + k, 56 * 512))
            for t in range(2):
                a('buffer_load_dwordx4 v%d, %s, s13 offen offset:%d%s lds' % (4 + t, SRD_WS, t * 1024, self.sc1), tok='v')

    def p2(self):
        a = self.a
        S, KF, Q, VF, P, O, M = 16, 160, 232, 176, 192, 208, 224
        a('v_mov_b32 v2, 0xffff')
        a('v_mov_b32 v3, 0xffff0000')
        for p in range(8):
            a('v_cndmask_b32 v%d, 0, v2, s[%d:%d]' % (M + p, MASK0 + 4 * p, MASK0 + 4 * p + 1))
            a('v_cndmask_b32 v8, 0, v3, s[%d:%d]' % (MASK0 + 4 * p + 2, MASK0 + 4 * p + 3))
            a('v_or_b32 v%d, v%d, v8' % (M + p, M + p))
        a('s_and_b32 s12, s26, -1')
        a('s_mov_b32 s13, 0')
        a('v_cndmask_b32 v6, -1, 0, s[12:13]')
        a('s_mov_b32 s12, 0')
        a('s_not_b32 s13, s27')
        a('v_cndmask_b32 v7, -1, 0, s[12:13]')
        a('s_cmp_eq_u32 s25, 1')
        a('s_cselect_b32 s11, 0, %d' % (3 * 512 + 8))
        a('s_add_u32 s11, s11, s14')
        a('s_add_u32 s11, s11, %d' % (self.KV_LDS + 2048))
        a('v_and_b32 v8, 31, v0')
        a('v_lshlrev_b32 v8, 4, v8')
        a('v_add_u32 v8, s11, v8')
        a('v_lshrrev_b32 v9, 5, v0')
        a('v_lshl_add_u32 v9, v9, 12, v8')
        a('v_mov_b32 v10, 0x3f80')
        a('v_mov_b32 v11, 0')
        a('s_lshl_b32 s11, %s, 12' % sW)
        a('s_add_u32 s11, s11, %d' % self.KV_LDS)
        a('v_add_u32 v12, s11, %s' % vL16)
        a('v_and_b32 v2, 1, v0')
        a('v_bfe_u32 v3, v0, 4, 1')
        a('v_lshrrev_b32 v13, 5, v0')
        a('v_xor_b32 v13, v13, v2')
        a('v_lshlrev_b32 v13, 6, v13')
        a('v_lshl_add_u32 v13, v3, 7, v13')
        a('v_lshl_add_u32 v13, v2, 9, v13')
        a('v_lshl_add_u32 v13, v3, 10, v13')
        a('v_bfe_u32 v2, v0, 2, 2')
        a('v_lshl_add_u32 v13, v2, 4, v13')
        a('v_bfe_u32 v2, v0, 1, 1')
        a('v_lshl_add_u32 v13, v2, 3, v13')
        a('v_xor_b32 v14, 128, v13')
        a('s_add_u32 s11, s11, 2048')
        a('v_add_u32 v13, s11, v13')
        a('v_add_u32 v14, s11, v14')
        a('v_and_b32 v%d, v%d, v6' % (Q, Q))
        a('v_and_b32 v%d, v%d, v6' % (Q + 1, Q + 1))
        a('v_and_b32 v%d, v%d, v7' % (Q + 6, Q + 6))
        a('v_and_b32 v%d, v%d, v7' % (Q + 7, Q + 7))
        a.wait_tok('k')
        a('s_barrier')

        def kread(t):
            return ['ds_read_b128 %s, v12 offset:%d' % (vr(KF + (t % 2) * 8 + h * 4), t * 4096 + h * 1024) for h in range(2)]

        def smm(t):
            return ['%s %s, %s, %s, %s' % (MFMA, vr(S + 16 * t, 16), vr(KF + (t % 2) * 8 + h * 4), vr(Q + 4 * h),
                                           vr(S + 16 * t, 16) if h else '0') for h in range(2)]
        order = [0, 8, 1, 2, 3, 4, 5, 6, 7]
        KFI = {t: i for i, t in enumerate(order)}

        def kread(t):
            return ['ds_read_b128 %s, v12 offset:%d' % (vr(KF + (KFI[t] % 2) * 8 + h * 4), t * 4096 + h * 1024) for h in range(2)]

        def smm(t):
            return ['%s %s, %s, %s, %s' % (MFMA, vr(S + 16 * t, 16), vr(KF + (KFI[t] % 2) * 8 + h * 4), vr(Q + 4 * h),
                                           vr(S + 16 * t, 16) if h else '0') for h in range(2)]
        self.emit(kread(order[0]))
        for i, t in enumerate(order):
            if i + 1 < 9:
                self.emit(kread(order[i + 1]))
            self.emit(smm(t))
        a.wait_tok('v')
        a('ds_write_b64 v9, v[10:11]')
        a('ds_write_b64 v8, v[10:11] offset:8192')
        done = self.label('inv')
        a('s_lshl_b32 s11, %s, 2' % sR)
        a('s_add_u32 s11, s11, %s' % sW)
        a('s_cmp_ge_u32 s11, 8')
        a('s_cbranch_scc1 %s' % done)
        a.begin_cond('inv')
        for t in range(8):
            if t:
                a('s_cmp_ge_u32 s11, %d' % (8 - t))
                a('s_cbranch_scc1 %s' % done)
            for r in range(16):
                a('v_mov_b32 v%d, 0xff800000' % (S + 16 * t + r))
        a.end_cond()
        a(done + ':')
        for r in range(16):
            a('v_cndmask_b32 v%d, v%d, v%d, s[%d:%d]' % (S + r, S + r, S + 128 + r, MASK0 + 2 * r, MASK0 + 2 * r + 1))
        MX = S + 128
        for c in range(4):
            a('v_max_f32 v%d, v%d, v%d' % (MX + c, S + 2 * c, S + 2 * c + 1))
        for k in range(4, 64):
            a('v_max3_f32 v%d, v%d, v%d, v%d' % (MX + k % 4, MX + k % 4, S + 2 * k, S + 2 * k + 1))
        a('v_max3_f32 v%d, v%d, v%d, v%d' % (MX, MX, MX + 1, MX + 2))
        a('v_max_f32 v%d, v%d, v%d' % (MX, MX, MX + 3))
        a('v_mov_b32 v%d, v%d' % (MX + 1, MX))
        a('v_permlane32_swap_b32 v%d, v%d' % (MX, MX + 1))
        a('v_max_f32 v%d, v%d, v%d' % (MX, MX, MX + 1))
        c = 28 ** -0.5 * 1.4426950408889634
        a('v_mov_b32 v%d, %s' % (MX + 2, f32(c)))
        a('v_mul_f32 v%d, %s, v%d' % (MX + 4, f32(-c), MX))
        a('s_waitcnt lgkmcnt(0)')
        a('s_barrier')

        def vread(t, buf):
            return ['ds_read_b64_tr_b16 %s, v%d offset:%d' % (vr(VF + buf * 8 + k * 4 + z * 2, 2), 13 + z, t * 4096 + k * 256)
                    for k in range(2) for z in range(2)]

        def soft(t, pb):
            o = []
            b = S + 16 * t
            for p in range(8):
                o.append('v_pk_fma_f32 %s, %s, %s, %s op_sel_hi:[1,0,0]' % (
                    vr(b + 2 * p, 2), vr(b + 2 * p, 2), vr(MX + 2, 2), vr(MX + 4, 2)))
            for r in range(16):
                o.append('v_exp_f32 v%d, v%d' % (b + r, b + r))
            for p in range(8):
                o.append('v_cvt_pk_bf16_f32 v%d, v%d, v%d' % (pb + p, b + 2 * p, b + 2 * p + 1))
            return o

        first = [True]

        def pv(buf, pb):
            o = []
            for k in range(2):
                o.append('%s %s, %s, %s, %s' % (MFMA, vr(O, 16), vr(VF + buf * 8 + k * 4), vr(pb + 4 * k),
                                                '0' if first[0] else vr(O, 16)))
                first[0] = False
            return o
        self.emit(vread(0, 0) + vread(8, 1))
        self.emit(soft(0, P))
        for p in range(8):
            a('v_and_b32 v%d, v%d, v%d' % (P + 8 + p, P + p, M + p))
            a('v_bfi_b32 v%d, v%d, 0, v%d' % (P + p, M + p, P + p))
        self.emit(pv(0, P) + pv(1, P + 8))
        for t in range(1, 8):
            self.emit(vread(t, t % 2))
            pb = KF + (t % 2) * 8
            self.emit(soft(t, pb))
            self.emit(pv(t % 2, pb))
        a('v_cndmask_b32 v2, v%d, v%d, s[26:27]' % (O + 12, O))
        a('v_mov_b32 v3, v2')
        a('v_permlane32_swap_b32 v2, v3')
        a('v_cndmask_b32 v2, v3, v2, s[26:27]')
        a('v_rcp_f32 v2, v2')
        a('s_lshl_b32 s11, %s, 2' % sR)
        a('s_add_u32 s11, s11, %s' % sW)
        a('s_lshl_b32 s11, s11, 4')
        a('s_add_u32 s11, s11, %s' % sIDX)
        a('s_lshl_b32 s11, s11, 11')
        a('s_add_u32 s11, s11, %d' % WS_O)
        for p in range(8):
            a('v_pk_mul_f32 %s, %s, v[2:3] op_sel_hi:[1,0]' % (vr(O + 2 * p, 2), vr(O + 2 * p, 2)))
        for p in range(8):
            a('v_cvt_pk_bf16_f32 v%d, v%d, v%d' % (P + p, O + 2 * p, O + 2 * p + 1))
        a('v_and_b32 v%d, v%d, v6' % (P, P))
        a('v_and_b32 v%d, v%d, v6' % (P + 1, P + 1))
        a('v_and_b32 v%d, v%d, v7' % (P + 6, P + 6))
        a('v_and_b32 v%d, v%d, v7' % (P + 7, P + 7))
        for t in range(2):
            a('buffer_store_dwordx4 %s, %s, %s, s11 offen offset:%d%s' % (vr(P + 4 * t), vL16, SRD_WS, t * 1024, self.sc1))

    WO_A = 128
    HRES = 240

    def seq_loads(self, dst, n, sreg, t='v', tok=None, order=None):
        o = []
        for i in range(n):
            if i and i % 4 == 0:
                o.append('s_add_u32 %s, %s, 4096' % (sreg, sreg))
            d = dst(i) if callable(dst) else dst + 4 * i
            o.append(('buffer_load_dwordx4 %s, %s, %s, %s offen offset:%d%s' % (
                vr(d, 4, t), vL16, SRD_WS, sreg, (i % 4) * 1024, self.sc1), tok))
        return o

    def p3_weights(self):
        a = self.a
        a('s_lshr_b32 s12, %s, 1' % sW)
        a('s_lshl_b32 s11, %s, 16' % sN)
        a('s_lshl_b32 s13, s12, 15')
        a('s_add_u32 s11, s11, s13')
        a('s_add_u32 s11, s11, %d' % WS_WO)
        a('s_lshl_b32 s13, s12, 10')
        a('v_xor_b32 v2, s13, %s' % vL16)
        a('v_xor_b32 v3, 1024, v2')
        for f in range(16):
            if f and f % 2 == 0:
                a('s_add_u32 s11, s11, 4096')
            for rel in range(2):
                a('buffer_load_dwordx4 %s, v%d, %s, s11 offen offset:%d%s' % (
                    ar(self.WO_A + (f * 2 + rel) * 4), 2 + rel, SRD_WS, (f % 2) * 2048, self.sc1))

    def res_voffset(self, dst, sreg):
        a = self.a
        a('v_and_b32 %s, 31, v0' % dst)
        a('v_mul_u32_u24 %s, 896, %s' % (dst, dst))
        a('v_lshrrev_b32 v2, 5, v0')
        a('v_lshl_add_u32 %s, v2, 4, %s' % (dst, dst))
        a('s_lshl_b32 %s, %s, 1' % (sreg, sM))
        a('s_and_b32 s12, %s, 1' % sW)
        a('s_add_u32 %s, %s, s12' % (sreg, sreg))
        a('s_mul_i32 %s, %s, %d' % (sreg, sreg, 32 * 896))
        a('s_lshl_b32 s12, %s, 7' % sN)
        a('s_add_u32 %s, %s, s12' % (sreg, sreg))
        a('s_lshr_b32 s12, %s, 1' % sW)
        a('s_lshl_b32 s12, s12, 6')
        a('s_add_u32 %s, %s, s12' % (sreg, sreg))

    def unpack8(self, dst, src):
        for p in range(8):
            self.a('v_lshlrev_b32 v%d, 16, v%d' % (dst + 2 * p, src + p))
            self.a('v_and_b32 v%d, 0xffff0000, v%d' % (dst + 2 * p + 1, src + p))

    P3_ACC, P3_OF = 16, 48

    def p3_pre(self):
        a = self.a
        self.res_voffset('v4', 's11')
        for t in range(2):
            a('buffer_load_dwordx4 %s, v4, %s, s11 offen offset:%d' % (vr(8 + 4 * t), SRD_X, 32 * t))
        self.unpack8(self.P3_ACC, 8)

    def p3(self):
        a = self.a
        ACC, OF = self.P3_ACC, self.P3_OF
        EX = XTRA + 1024
        a('s_lshl_b32 s13, %s, 1' % sM)
        a('s_and_b32 s12, %s, 1' % sW)
        a('s_add_u32 s13, s13, s12')
        a('s_lshl_b32 s11, s13, 15')
        a('s_lshr_b32 s12, %s, 1' % sW)
        a('s_lshl_b32 s14, s12, 14')
        a('s_add_u32 s11, s11, s14')
        a('s_add_u32 s11, s11, %d' % WS_O)
        self.emit(self.seq_loads(OF, 16, 's11'))
        self.after_o_loads()
        a('s_xor_b32 s11, %s, 2' % sW)
        a('s_lshl_b32 s11, s11, 12')
        a('s_add_u32 s11, s11, %d' % EX)
        a('v_add_u32 v4, s11, %s' % vL16)
        a('s_lshl_b32 s11, %s, 12' % sW)
        a('s_add_u32 s11, s11, %d' % EX)
        a('v_add_u32 v5, s11, %s' % vL16)
        a('s_lshl_b32 s14, %s, 1' % sN)
        a('s_add_u32 s14, s14, s12')
        a('s_mul_i32 s11, s13, 28672')
        a('s_lshl_b32 s12, s14, 11')
        a('s_add_u32 s11, s11, s12')
        a('s_add_u32 s11, s11, %d' % WS_HB)
        a('s_lshl_b32 s29, s13, 12')
        a('s_lshl_b32 s12, s14, 8')
        a('s_add_u32 s29, s29, s12')
        a('s_add_u32 s29, s29, %d' % WS_ST)
        a('v_mov_b32 v6, 0x3f803f80')
        a('v_lshlrev_b32 v7, 3, v0')
        for f in range(16):
            for rel in (1, 0):
                a('%s %s, %s, %s, %s' % (MFMA, vr(ACC + 16 * rel, 16), ar(self.WO_A + (f * 2 + rel) * 4), vr(OF + 4 * f),
                                         '0' if (rel == 1 and f == 0) else vr(ACC + 16 * rel, 16)))
        for k in range(4):
            a('ds_write_b128 v4, %s offset:%d' % (vr(ACC + 16 + 4 * k), k * 1024))
        a('s_waitcnt lgkmcnt(0)')
        a('s_barrier')
        for k in range(4):
            a('ds_read_b128 %s, v5 offset:%d' % (vr(OF + 4 * k), k * 1024))
        H = self.HRES
        for p in range(8):
            a('v_pk_add_f32 %s, %s, %s' % (vr(ACC + 2 * p, 2), vr(ACC + 2 * p, 2), vr(OF + 2 * p, 2)))
            a('v_cvt_pk_bf16_f32 v%d, v%d, v%d' % (H + p, ACC + 2 * p, ACC + 2 * p + 1))
            if p % 4 == 3:
                a('buffer_store_dwordx4 %s, %s, %s, s11 offen offset:%d%s' % (vr(H + p - 3), vL16, SRD_WS, (p // 4) * 1024, self.sc1))
        for p in range(8):
            a('v_dot2_f32_bf16 v8, v%d, v6, %s' % (H + p, 'v8' if p else '0'))
            a('v_dot2_f32_bf16 v9, v%d, v%d, %s' % (H + p, H + p, 'v9' if p else '0'))
        a('v_mov_b32 v10, v8')
        a('v_mov_b32 v11, v9')
        a('v_permlane32_swap_b32 v8, v10')
        a('v_permlane32_swap_b32 v9, v11')
        a('v_add_f32 v8, v8, v10')
        a('v_add_f32 v9, v9, v11')
        a('s_mov_b32 exec_hi, 0')
        a('buffer_store_dwordx2 v[8:9], v7, %s, s29 offen%s' % (SRD_WS, self.sc1))
        a('s_mov_b64 exec, -1')

    def after_o_loads(self):
        pass

    def p4_wdma(self, tile):
        o = []
        for h, cnt in ((0, 4), (1, 3)):
            o.append('s_add_u32 m0, s31, %d' % ((tile % 5) * SLOT + h * 4096))
            o.append('s_add_u32 s11, s30, %d' % (tile * 28672 + h * 4096))
            for i in range(cnt):
                o.append(('buffer_load_dwordx4 %s, %s, s11 offen offset:%d%s lds' % (vL16, SRD_WS, i * 1024, self.sc1), 'g%d' % tile))
        return o

    def p4_wsetup(self):
        a = self.a
        a('s_mul_i32 s31, %s, 7168' % sW)
        a('s_mul_i32 s30, %s, %d' % (sIDX, 7 * 28672))
        a('s_add_u32 s30, s30, s31')
        a('s_add_u32 s30, s30, %d' % WS_WGU)

    def p4_cs(self):
        a = self.a
        a('s_lshl_b32 s11, %s, 1' % sW)
        a('v_lshrrev_b32 v2, 5, v0')
        a('v_add_u32 v2, s11, v2')
        a('v_min_u32 v3, 6, v2')
        a('v_mul_u32_u24 v3, 896, v3')
        a('v_and_b32 v12, 31, v0')
        a('v_lshl_add_u32 v3, v12, 2, v3')
        a('s_mul_i32 s11, %s, %d' % (sIDX, 7 * 896))
        a('s_add_u32 s11, s11, %d' % WS_CS)
        for k in range(7):
            a('buffer_load_dword v%d, v3, %s, s11 offen offset:%d%s' % (4 + k, SRD_WS, 128 * k, self.sc1))
        a('v_lshlrev_b32 v2, 7, v2')
        a('v_lshl_add_u32 v2, v12, 2, v2')
        a('v_add_u32 v2, %d, v2' % XTRA)
        for k in range(1, 7):
            a('v_add_f32 v4, v4, v%d' % (4 + k))
        a('ds_write_b32 v2, v4')

    def p4(self, T0=3):
        a = self.a
        HF, ACC, WF, CSR, TM, PK = 16, 128, 192, 208, 224, 232
        NACC = 4
        a('s_lshl_b32 s13, %s, 2' % sR)
        a('s_add_u32 s13, s13, %s' % sW)
        a('s_mul_i32 s11, s13, 28672')
        a('s_add_u32 s11, s11, %d' % WS_HB)
        self.emit(self.seq_loads(HF, 28, 's11'))
        a('v_and_b32 v2, 31, v0')
        a('v_lshlrev_b32 v2, 3, v2')
        a('v_lshrrev_b32 v3, 5, v0')
        a('v_mul_u32_u24 v4, %d, v3' % (7 * 256))
        a('v_add_u32 v2, v2, v4')
        a('s_lshl_b32 s11, s13, 12')
        a('s_add_u32 s11, s11, %d' % WS_ST)
        for k in range(7):
            a('buffer_load_dwordx2 %s, v2, %s, s11 offen offset:%d%s' % (vr(CSR + 2 * k, 2), SRD_WS, 256 * k, self.sc1))
        self.after_h_loads()
        a('v_add_u32 v5, %d, %s' % (2 * SLOT, vL16))
        a('v_add_u32 v6, %d, %s' % (4 * SLOT, vL16))
        a('v_lshlrev_b32 v7, 6, v3')
        a('v_add_u32 v7, %d, v7' % XTRA)
        a('s_mul_i32 s29, s13, %d' % (112 * 1024))
        a('s_mul_i32 s12, %s, %d' % (sIDX, 7 * 1024))
        a('s_add_u32 s29, s29, s12')
        a('s_add_u32 s29, s29, %d' % WS_HH)
        a('s_add_u32 s28, s29, 4096')
        base = [vL16, 'v5', 'v6']
        cnt = [0]

        def wread(tile, k):
            s = tile % 5
            b = WF + (cnt[0] % 4) * 4
            cnt[0] += 1
            return b, 'ds_read_b128 %s, %s offset:%d' % (vr(b), base[s >> 1], (s & 1) * SLOT + k * 1024)

        def chain(seq):
            rd = [wread(t, k) for t, k in seq]
            o = [rd[i][1] for i in range(min(3, len(rd)))]
            for i, (t, k) in enumerate(seq):
                acc = vr(ACC + 16 * (t % NACC), 16)
                o.append('%s %s, %s, %s, %s' % (MFMA, acc, vr(rd[i][0]), vr(HF + 4 * k), acc if k else '0'))
                if i + 3 < len(rd):
                    o.append(rd[i + 3][1])
            return o
        C1 = -2.0 * 1.4426950408889634 * 0.7978845608028654
        st = []
        for k in range(1, 7):
            st.append('v_add_f32 v%d, v%d, v%d' % (CSR, CSR, CSR + 2 * k))
            st.append('v_add_f32 v%d, v%d, v%d' % (CSR + 1, CSR + 1, CSR + 2 * k + 1))
        st += ['v_mov_b32 v12, v%d' % CSR, 'v_mov_b32 v13, v%d' % (CSR + 1),
               'v_permlane32_swap_b32 v%d, v12' % CSR, 'v_permlane32_swap_b32 v%d, v13' % (CSR + 1),
               'v_add_f32 v12, v12, v%d' % CSR, 'v_add_f32 v13, v13, v%d' % (CSR + 1),
               'v_mul_f32 v8, %s, v12' % f32(-1.0 / 448), 'v_mul_f32 v13, %s, v13' % f32(1.0 / 448),
               'v_fma_f32 v13, -v8, v8, v13', 'v_max_f32 v13, 0, v13', 'v_add_f32 v11, %s, v13' % f32(1e-5),
               'v_rsq_f32 v12, v11', 'v_mul_f32 v9, %s, v12' % f32(C1), 'v_mul_f32 v13, v12, v12',
               'v_mul_f32 v10, v9, v13', 'v_mul_f32 v10, %s, v10' % f32(0.044715)]

        def gelu(tile):
            b = ACC + 16 * (tile % NACC)
            pk = PK + (tile % 2) * 4
            o = ['ds_read_b128 %s, v7 offset:%d' % (vr(CSR + 4 * k), tile * 128 + 16 * k) for k in range(4)]
            for h in range(2):
                E = range(4 * h, 4 * h + 4)
                for e in E:
                    o.append('v_fma_f32 v%d, v%d, v8, v%d' % (b + e, CSR + e, b + e))
                for e in E:
                    o.append('v_mul_f32 v%d, v%d, v%d' % (TM + e % 4, b + e, b + e))
                for e in E:
                    o.append('v_fma_f32 v%d, v%d, v10, v9' % (TM + e % 4, TM + e % 4))
                for e in E:
                    o.append('v_mul_f32 v%d, v%d, v%d' % (TM + e % 4, TM + e % 4, b + e))
                for e in E:
                    o.append('v_exp_f32 v%d, v%d' % (TM + e % 4, TM + e % 4))
                    o.append('v_fma_f32 v%d, v%d, v8, v%d' % (b + 8 + e, CSR + 8 + e, b + 8 + e))
                for e in E:
                    o.append('v_fma_f32 v%d, v%d, v11, v11' % (TM + e % 4, TM + e % 4))
                for e in E:
                    o.append('v_rcp_f32 v%d, v%d' % (TM + e % 4, TM + e % 4))
                    o.append('v_mul_f32 v%d, v%d, v%d' % (b + e, b + e, b + 8 + e))
                for e in E:
                    o.append('v_mul_f32 v%d, v%d, v%d' % (b + e, b + e, TM + e % 4))
                for p in range(2):
                    o.append('v_cvt_pk_bf16_f32 v%d, v%d, v%d' % (pk + 2 * h + p, b + 4 * h + 2 * p, b + 4 * h + 2 * p + 1))
            o.append('buffer_store_dwordx4 %s, %s, %s, s%d offen offset:%d%s' % (
                vr(pk), vL16, SRD_WS, 29 if tile < 4 else 28, (tile % 4) * 1024, self.sc1))
            return o

        for t in range(5):
            a.wait_tok('g%d' % t)
        a('s_waitcnt lgkmcnt(0)')
        a('s_barrier')
        main = chain([(t, k) for k in range(28) for t in range(T0)])
        main, rest = weave(main, st, per=1, start=T0 * 28 - len(st) - 2)
        self.emit(main + rest)
        a('s_waitcnt lgkmcnt(0)')
        a('s_barrier')
        self.emit(self.p4_wdma(5) + self.p4_wdma(6))
        for t in range(T0, 7):
            if t == 5:
                a.wait_tok('g5')
                a.wait_tok('g6')
                a('s_barrier')
            main = chain([(t, k) for k in range(28)])
            main, rest = weave(main, gelu(t - T0))
            self.emit(main + rest)
        for t in range(7 - T0, 7):
            self.emit(gelu(t))

    def after_h_loads(self):
        pass

    def p5_weights(self, lo, hi):
        a = self.a
        a('s_mul_i32 s11, %s, %d' % (sN, 112 * 2048))
        a('s_mul_i32 s12, %s, %d' % (sW, 28 * 2048))
        a('s_add_u32 s11, s11, s12')
        a('s_add_u32 s11, s11, %d' % (WS_WD + lo * 2048))
        a('s_lshr_b32 s12, %s, 1' % sW)
        a('s_lshl_b32 s12, s12, 10')
        a('v_xor_b32 v14, s12, %s' % vL16)
        a('v_xor_b32 v15, 1024, v14')
        for i, f in enumerate(range(lo, hi)):
            if i and i % 2 == 0:
                a('s_add_u32 s11, s11, 4096')
            for rel in range(2):
                a('buffer_load_dwordx4 %s, v%d, %s, s11 offen offset:%d%s' % (
                    ar((f * 2 + rel) * 4), 14 + rel, SRD_WS, (i % 2) * 2048, self.sc1))

    def p5(self):
        a = self.a
        ACC, HHF, NBUF = 16, 80, 40
        a('s_and_b32 s13, %s, 1' % sW)
        a('s_lshl_b32 s14, %s, 1' % sM)
        a('s_add_u32 s11, s14, s13')
        a('s_xor_b32 s12, s11, 1')
        a('s_mul_i32 s14, %s, %d' % (sW, 28 * 1024))
        a('s_add_u32 s14, s14, %d' % WS_HH)
        for k in range(2):
            a('s_mul_i32 s%d, s%d, %d' % (11 + k, 11 + k, 112 * 1024))
            a('s_add_u32 s%d, s%d, s14' % (16 + k, 11 + k))
        seq = [(jj * 7 + tau, ra) for tau in range(7) for jj in range(4) for ra in range(2)]

        def load(i):
            f, ra = seq[i]
            return ['s_add_u32 s11, s%d, %d' % (16 + ra, (f // 4) * 4096),
                    'buffer_load_dwordx4 %s, %s, %s, s11 offen offset:%d%s' % (
                        vr(HHF + (i % NBUF) * 4), vL16, SRD_WS, (f % 4) * 1024, self.sc1)]
        for i in range(NBUF):
            self.emit(load(i))
        self.unpack8(ACC, self.HRES)
        self.res_voffset('v4', 's18')
        seen = set([(0, 0)])
        for i, (f, ra) in enumerate(seq):
            for rb in range(2):
                acc = vr(ACC + 16 * (ra + 2 * rb), 16)
                a('%s %s, %s, %s, %s' % (MFMA, acc, ar((f * 2 + rb) * 4), vr(HHF + (i % NBUF) * 4),
                                         acc if (ra, rb) in seen else '0'))
                seen.add((ra, rb))
            if i + NBUF < len(seq):
                self.emit(load(i + NBUF))
        a('s_barrier')
        for rel in range(1, 4):
            a('s_xor_b32 s11, %s, %d' % (sW, rel))
            a('s_mul_i32 s11, s11, 12288')
            a('v_add_u32 v5, s11, %s' % vL16)
            for k in range(4):
                a('ds_write_b128 v5, %s offset:%d' % (vr(ACC + 16 * rel + 4 * k), (rel - 1) * 4096 + k * 1024))
        a('s_mul_i32 s11, %s, 12288' % sW)
        a('v_add_u32 v5, s11, %s' % vL16)
        a('s_waitcnt lgkmcnt(0)')
        a('s_barrier')
        for k in range(12):
            a('ds_read_b128 %s, v5 offset:%d' % (vr(HHF + 4 * k), k * 1024))
        for rel in range(3):
            for p in range(8):
                a('v_pk_add_f32 %s, %s, %s' % (vr(ACC + 2 * p, 2), vr(ACC + 2 * p, 2), vr(HHF + 16 * rel + 2 * p, 2)))
        for p in range(8):
            a('v_cvt_pk_bf16_f32 v%d, v%d, v%d' % (8 + p, ACC + 2 * p, ACC + 2 * p + 1))
            if p % 4 == 3:
                a('buffer_store_dwordx4 %s, v4, %s, s18 offen offset:%d' % (vr(8 + p - 3), SRD_OUT, (p // 4) * 32))

    def kernel_header(self, name):
        self.a('.globl %s\n.p2align 8\n.type %s,@function\n%s:' % (name, name, name))

    def build_multi(self):
        a = self.a
        names = ['p1_kernel', 'p2_kernel', 'p3_kernel', 'p4_kernel', 'p5_kernel']
        for nm in names:
            ex = 'L_exit_' + nm
            self.kernel_header(nm)
            self.prologue(ex)
            if nm == 'p1_kernel':
                self.rp_setup()
                a('s_cmp_ge_u32 %s, 7' % sN)
                a('s_cbranch_scc1 L_p1_idle')
                self.p1()
                a('L_p1_join:')
                self.rp_process(ex)
                a('s_branch %s' % ex)
                a('L_p1_idle:')
                a.fresh()
                self.emit(self.rp_issue())
                a('s_waitcnt vmcnt(0)')
                a('s_branch L_p1_join')
            elif nm == 'p2_kernel':
                self.p2_setup()
                self.p2_issue()
                self.p2()
            elif nm == 'p3_kernel':
                a('s_cmp_ge_u32 %s, 7' % sN)
                a('s_cbranch_scc1 %s' % ex)
                self.p3_weights()
                self.p3_pre()
                self.p3()
            elif nm == 'p4_kernel':
                self.p4_wsetup()
                for t in range(5):
                    self.emit(self.p4_wdma(t))
                self.p4_cs()
                self.p4()
            elif nm == 'p5_kernel':
                a('s_cmp_ge_u32 %s, 7' % sN)
                a('s_cbranch_scc1 %s' % ex)
                a('s_lshl_b32 s13, %s, 1' % sM)
                a('s_and_b32 s12, %s, 1' % sW)
                a('s_add_u32 s13, s13, s12')
                a('s_mul_i32 s11, s13, 28672')
                a('s_lshl_b32 s14, %s, 1' % sN)
                a('s_lshr_b32 s12, %s, 1' % sW)
                a('s_add_u32 s14, s14, s12')
                a('s_lshl_b32 s14, s14, 11')
                a('s_add_u32 s11, s11, s14')
                a('s_add_u32 s11, s11, %d' % WS_HB)
                self.emit(self.seq_loads(self.HRES, 2, 's11'))
                self.p5_weights(0, 28)
                a('s_waitcnt vmcnt(20)')
                self.p5()
            a(ex + ':')
            a('s_endpgm')
        return self.finish(names)

    def finish(self, names):
        hdr = open('cdna_kernels/%s.s.ref' % NAME).read().split('; Override launch')[0]
        if len(names) == 1:
            hdr += '; @launch grid=(256,1,1) block=(256,1,1) lds=%d\n' % LDS_BYTES
        else:
            for nm in names:
                hdr += '; @launch kernel=%s grid=(256,1,1) block=(256,1,1) lds=%d\n' % (nm, LDS_BYTES)
        hdr += '.amdgcn_target "amdgcn-amd-amdhsa--gfx950"\n.text\n'
        body = self.a.finalize()
        tail = '.section .rodata,"a"\n'
        for nm in names:
            tail += ('.p2align 6\n.amdhsa_kernel %s\n  .amdhsa_next_free_vgpr 512\n  .amdhsa_next_free_sgpr 102\n'
                     '  .amdhsa_accum_offset 256\n  .amdhsa_group_segment_fixed_size 0\n  .amdhsa_kernarg_size 80\n'
                     '  .amdhsa_user_sgpr_count 2\n  .amdhsa_user_sgpr_kernarg_segment_ptr 1\n'
                     '  .amdhsa_system_sgpr_workgroup_id_x 1\n.end_amdhsa_kernel\n' % nm)
        return hdr + body + tail


if __name__ == '__main__':
    mode = sys.argv[1] if len(sys.argv) > 1 else 'multi'
    out = sys.argv[2] if len(sys.argv) > 2 else 'cdna_kernels/%s.s' % NAME
    if mode == 'multi':
        txt = Gen(fused=False).build_multi()
    open(out, 'w').write(txt)
    print('wrote', out, len(txt), 'bytes')
```

```python
import re

TRANS = ('v_exp_f32', 'v_log_f32', 'v_rcp_f32', 'v_rsq_f32', 'v_sqrt_f32', 'v_sin_f32', 'v_cos_f32')
REG1 = re.compile(r'^(?:-|abs\(|\|)*([vas])(\d+)\)?\|?$')
REGN = re.compile(r'^(?:-|abs\(|\|)*([vas])\[(\d+):(\d+)\]\)?\|?$')


def regs_of(op):
    op = op.strip()
    m = REG1.match(op)
    if m:
        return [m.group(1) + m.group(2)]
    m = REGN.match(op)
    if m:
        return [m.group(1) + str(i) for i in range(int(m.group(2)), int(m.group(3)) + 1)]
    if op == 'vcc':
        return ['vcc']
    if op in ('vcc_lo', 'vcc_hi'):
        return ['vcc']
    if op in ('exec', 'exec_lo', 'exec_hi'):
        return ['exec']
    if op == 'm0':
        return ['m0']
    return []


def split_ops(s):
    out, depth, cur = [], 0, ''
    for ch in s:
        if ch in '[(':
            depth += 1
        elif ch in '])':
            depth -= 1
        if ch == ',' and depth == 0:
            out.append(cur.strip())
            cur = ''
        else:
            cur += ch
    if cur.strip():
        out.append(cur.strip())
    return out


class Ins:
    def __init__(self, text, tok=None):
        self.text = text
        self.tok = tok
        self.tag = None
        self.kind = 'other'
        self.wr, self.rd = set(), set()
        self.ab, self.c = set(), set()
        self.passes = 0
        self.mods = ''
        self.dreg = None
        self.creg = None
        self.data = set()
        self.states = 1
        t = text.split(';')[0].strip()
        if not t or t.endswith(':') or t.startswith('.'):
            self.kind = 'label' if t.endswith(':') else 'none'
            self.states = 0
            self.mnem = ''
            return
        parts = t.split(None, 1)
        self.mnem = mn = parts[0]
        ops = split_ops(parts[1]) if len(parts) > 1 else []
        if ops:
            last = ops[-1].split(None, 1)
            ops[-1] = last[0]
            self.mods = last[1] if len(last) > 1 else ''
        self.ops = ops
        R = [regs_of(o) for o in ops]
        allr = lambda idx: set(r for i in idx for r in R[i])
        n = len(ops)
        if mn.startswith('v_mfma'):
            self.kind = 'mfma'
            self.wr = set(R[0]); self.ab = allr([1, 2]); self.c = set(R[3]); self.rd = self.ab | self.c
            self.dreg, self.creg = ops[0], ops[3]
            self.passes = 8 if '32x32x16' in mn else 4 if '16x16x32' in mn else 2 if '4x4x4' in mn else 16
        elif mn.startswith('v_'):
            self.kind = 'valu'
            base = re.sub(r'_e32$|_e64$|_dpp$|_sdwa$', '', mn)
            self.base = base
            if 'permlane' in base and 'swap' in base:
                self.wr = allr([0, 1]); self.rd = allr([0, 1])
            elif re.search(r'_co_u32$', base) or base.startswith('v_div_scale'):
                self.wr = allr([0, 1]); self.rd = allr(range(2, n))
            elif base == 'v_nop':
                pass
            else:
                self.wr = set(R[0]); self.rd = allr(range(1, n))
                if base.startswith('v_fmac') or base.startswith('v_dot2c') or base.startswith('v_writelane'):
                    self.rd |= self.wr
                if base.startswith('v_cmpx'):
                    self.wr.add('exec')
                if base.startswith('v_cndmask') and n == 3:
                    self.rd.add('vcc')
            self.dpp = bool(re.search(r'quad_perm|row_|bank_mask|wave_', self.mods)) or mn.endswith('_dpp')
            if self.dpp and 'bound_ctrl' not in self.mods:
                self.rd |= self.wr
            self.trans = base in TRANS
            self.dot = base.startswith('v_dot')
        elif mn.startswith('buffer_') or mn.startswith('global_'):
            self.kind = 'vmem'
            self.lds = bool(re.search(r'\blds\b', self.mods)) or '_lds_' in mn
            if 'load' in mn and not self.lds:
                self.wr = set(R[0]); self.rd = allr(range(1, n))
            else:
                self.rd = allr(range(n))
                if self.lds:
                    self.rd.add('m0')
                if 'store' in mn:
                    self.data = set(R[0]) if mn.startswith('buffer_') else set(R[1])
                if 'atomic' in mn and re.search(r'\bsc0\b', self.mods):
                    self.wr = set(R[0])
        elif mn.startswith('ds_'):
            self.kind = 'ds'
            if 'read' in mn or 'permute' in mn or 'swizzle' in mn:
                self.wr = set(R[0]); self.rd = allr(range(1, n))
            else:
                self.rd = allr(range(n))
        elif mn.startswith('s_load') or mn.startswith('s_memtime') or mn.startswith('s_memrealtime'):
            self.kind = 'smem'
            self.wr = set(R[0]); self.rd = allr(range(1, n))
        elif mn == 's_waitcnt':
            self.kind = 'wait'
        elif mn == 's_nop':
            self.kind = 'nop'
            self.states = int(ops[0], 0) + 1
        elif mn.startswith('s_'):
            self.kind = 'salu'
            if mn.startswith('s_cmp') or mn.startswith('s_bitcmp') or mn.startswith('s_cbranch') or mn in (
                    's_branch', 's_barrier', 's_endpgm', 's_sleep', 's_setprio'):
                self.rd = allr(range(n))
                if 'vcc' in mn:
                    self.rd.add('vcc')
            else:
                self.wr = set(R[0]) if n else set(); self.rd = allr(range(1, n))
                if 'saveexec' in mn:
                    self.wr.add('exec')
        else:
            raise ValueError('unknown instruction: ' + text)


class Pseudo:
    def __init__(self, what, arg=None):
        self.what, self.arg = what, arg


def need_states(p, c):
    n = 0
    pk, ck = p.kind, c.kind
    if pk == 'valu':
        vw = {r for r in p.wr if r[0] in 'va' and r != 'vcc'}
        sw = p.wr - vw
        if ck == 'mfma' and vw & c.rd:
            n = max(n, 2)
        if ck == 'mfma' and 'exec' in sw:
            n = max(n, 4)
        if ck == 'valu':
            if p.trans and not c.trans and vw & c.rd:
                n = max(n, 1)
            if sw & c.rd:
                n = max(n, 4 if 'lane' in c.base and 'perm' not in c.base else 2)
            if vw & c.rd:
                if c.dpp or 'permlane' in c.base:
                    n = max(n, 2)
                if c.base in ('v_readlane_b32', 'v_readfirstlane_b32'):
                    n = max(n, 1)
            if 'exec' in sw and (c.dpp or 'lane' in c.base):
                n = max(n, 5)
            if 'sdwa' in p.mnem and vw & (c.rd | c.wr):
                n = max(n, 1)
        if p.dot and (vw & (c.rd | c.wr)) and ck in ('valu', 'mfma', 'vmem', 'ds'):
            same = ck == 'valu' and c.base == p.base
            if same:
                srcab = set(r for o in c.ops[1:3] for r in regs_of(o))
                if vw & srcab:
                    n = max(n, 3)
            else:
                n = max(n, 3)
        if ck == 'vmem' and sw & c.rd:
            n = max(n, 5)
    elif pk == 'mfma':
        big = {2: 5, 4: 8, 8: 12, 16: 20}[p.passes]
        if ck == 'mfma':
            if p.wr & c.ab:
                n = max(n, big)
            if p.wr & c.c:
                if c.creg == p.dreg and c.passes == p.passes:
                    n = max(n, 2 if p.passes == 2 else 0)
                else:
                    n = max(n, p.passes + 2)
            elif p.wr & c.wr and not (c.dreg == p.dreg and c.passes == p.passes):
                n = max(n, p.passes + 2)
        elif ck in ('valu', 'vmem', 'ds') and p.wr & (c.rd | c.wr):
            n = max(n, big)
        if ck in ('valu', 'vmem', 'ds') and p.c & c.wr:
            n = max(n, p.passes - 1)
    elif pk == 'salu':
        if 'm0' in p.wr and ck == 'vmem' and c.lds:
            n = max(n, 1)
    elif pk == 'vmem':
        if p.data and len(p.data) >= 3 and p.data & c.wr:
            n = max(n, 2 if ck == 'valu' else 1)
    return n


class Asm:
    def __init__(self):
        self.items = []

    def __call__(self, text, tok=None):
        for line in text.split('\n'):
            line = line.strip()
            if line:
                self.items.append(Ins(line, tok))
        return self

    def add(self, lst):
        for x in lst:
            if isinstance(x, str):
                self(x)
            else:
                self.items.append(x)

    def raw(self, text):
        self.items.append(Pseudo('raw', text))

    def wait_tok(self, tok):
        self.items.append(Pseudo('wait_tok', tok))

    def begin_cond(self, tag):
        self.items.append(Pseudo('begin', tag))

    def end_cond(self):
        self.items.append(Pseudo('end'))

    def fresh(self):
        self.items.append(Pseudo('fresh'))

    def finalize(self):
        out = []
        vm, lg = [], []
        tag = None
        snap = None
        hist_start = 0

        def younger(lst, i):
            return sum(1 for o in lst[i + 1:] if o.tag is None or o.tag == tag)

        def emit(ins):
            ins.tag = tag
            need = 0
            dist = 0
            for j in range(len(out) - 1, hist_start - 1, -1):
                p = out[j]
                if dist >= 20:
                    break
                if p.kind in ('valu', 'mfma', 'salu', 'vmem'):
                    r = need_states(p, ins)
                    if r - dist > need:
                        need = r - dist
                if p.tag is None or p.tag == tag:
                    dist += p.states
            while need > 0:
                k = min(need, 16)
                nop = Ins('s_nop %d' % (k - 1)); nop.tag = tag
                out.append(nop)
                need -= k
            out.append(ins)

        def do_wait(nv, nl):
            nonlocal vm, lg
            s = []
            if nv is not None:
                nv = min(nv, 63); s.append('vmcnt(%d)' % nv)
            if nl is not None:
                nl = min(nl, 15); s.append('lgkmcnt(%d)' % nl)
            emit(Ins('s_waitcnt ' + ' '.join(s)))
            retire(nv, nl)

        def retire(nv, nl):
            nonlocal vm, lg
            if nv is not None:
                vm = [o for i, o in enumerate(vm) if younger(vm, i) < nv]
            if nl is not None:
                if nl > 0 and any(o.kind == 'smem' for o in lg):
                    pass
                else:
                    lg = [o for i, o in enumerate(lg) if younger(lg, i) < nl]

        for it in self.items:
            if isinstance(it, Pseudo):
                if it.what == 'raw':
                    r = Ins(it.arg); r.kind = 'none'; r.states = 0
                    out.append(r)
                elif it.what == 'fresh':
                    vm, lg = [], []
                    hist_start = len(out)
                elif it.what == 'begin':
                    assert tag is None
                    tag = it.arg
                    snap = (list(vm), list(lg))
                elif it.what == 'end':
                    vm = [o for o in snap[0] if o.tag != tag or o in vm] + [o for o in vm if o not in snap[0]]
                    lg = [o for o in snap[1] if o.tag != tag or o in lg] + [o for o in lg if o not in snap[1]]
                    tag = None
                elif it.what == 'wait_tok':
                    nv = nl = None
                    for i, o in enumerate(vm):
                        if o.tok == it.arg:
                            y = younger(vm, i); nv = y if nv is None else min(nv, y)
                    for i, o in enumerate(lg):
                        if o.tok == it.arg:
                            y = younger(lg, i); nl = y if nl is None else min(nl, y)
                    if nl is not None and any(o.kind == 'smem' for o in lg):
                        nl = 0
                    if nv is not None or nl is not None:
                        do_wait(nv, nl)
                continue
            ins = it
            if ins.kind == 'wait':
                m = re.search(r'vmcnt\((\d+)\)', ins.text); nv = int(m.group(1)) if m else None
                m = re.search(r'lgkmcnt\((\d+)\)', ins.text); nl = int(m.group(1)) if m else None
                emit(ins)
                retire(nv, nl)
                continue
            touch = ins.rd | ins.wr
            nv = nl = None
            if touch:
                for i, o in enumerate(vm):
                    if o.wr & touch and not (ins.kind == 'vmem' and not (o.wr & ins.rd)):
                        y = younger(vm, i); nv = y if nv is None else min(nv, y)
                for i, o in enumerate(lg):
                    if o.wr & touch and not (ins.kind == 'ds' and o.kind == 'ds' and not (o.wr & ins.rd)):
                        y = younger(lg, i); nl = y if nl is None else min(nl, y)
                if nl is not None and any(o.kind == 'smem' for o in lg):
                    nl = 0
            if nv is not None or nl is not None:
                do_wait(nv, nl)
            emit(ins)
            if ins.kind == 'vmem':
                vm.append(ins)
            elif ins.kind in ('ds', 'smem'):
                lg.append(ins)
        return '\n'.join(('' if i.kind == 'label' or i.text.startswith('.') else '    ') + i.text for i in out) + '\n'


def weave(main, side, per=None, start=0):
    def is_m(x):
        return isinstance(x, str) and x.startswith('v_mfma')
    nm = sum(1 for x in main if is_m(x)) - start
    out, k, seen = [], 0, 0
    for x in main:
        out.append(x)
        if is_m(x):
            seen += 1
            if seen > start:
                tgt = len(side) * (seen - start) // max(nm, 1) if per is None else min(len(side), per * (seen - start))
                out.extend(side[k:tgt]); k = max(k, tgt)
    return out, side[k:]
```

```python
import sys, struct
from asmlib import Asm, weave, Pseudo

NAME = 'sequential_preLN__sliding_block__glu_gated_geglu__prompt'

WS_QKV = 0
WS_O = WS_QKV + 64 * 84 * 1024
WS_HB = WS_O + 64 * 32768
WS_ST = WS_HB + 64 * 28672
WS_HH = WS_ST + 64 * 4096
WS_WGU = WS_HH + 64 * 112 * 1024
WS_CS = WS_WGU + 112 * 28672
WS_WD = WS_CS + 112 * 512
WS_WO = WS_WD + 7 * 112 * 2048
WS_FL = WS_WO + 7 * 32 * 2048
FS, FSH = 512, 9
FL_F1 = 0
FL_FG = FL_F1 + 1024
FL_FD = FL_FG + 32
FL_F2 = FL_FD + 32
FL_F3 = FL_F2 + 1024
FL_F4 = FL_F3 + 1024
FL_END = FL_F4 + 3072
WS_EP = WS_FL + FL_END * FS
WS_TS = WS_EP + 128
WS_END = WS_TS + 256 * 4 * 256
OOB = 0x7ff00000

LDS_BYTES = 163840
SLOT = 28672
XTRA = 5 * SLOT

sW, sXCD, sI, sM, sN, sR, sHD, sCT = 's3', 's4', 's5', 's6', 's7', 's8', 's9', 's10'
SRD_X, SRD_WS, SRD_OUT = 's[36:39]', 's[40:43]', 's[44:47]'
SRD_WQKV, SRD_G, SRD_U, SRD_D = 's[52:55]', 's[56:59]', 's[60:63]', 's[64:67]'
PT = 52
sBK, sBK2, sR4, sJ = 's48', 's49', 's4', 's5'
sEP, sEP2 = 's50', 's[50:51]'
DBGP, WSP = 's[32:33]', 's[34:35]'
MASK0 = 68
vL16 = 'v1'
vXA, vXB, vFL = 'v248', 'v249', 250


def f32(x):
    return '0x%08x' % struct.unpack('<I', struct.pack('<f', x))[0]


def vr(b, n=4, t='v'):
    return '%s[%d:%d]' % (t, b, b + n - 1)


def ar(b, n=4):
    return vr(b, n, 'a')


MFMA = 'v_mfma_f32_32x32x16_bf16'


def sprinkle(main, groups, lo=0.0, hi=1.0):
    n = len(main)
    a, b = int(n * lo), int(n * hi)
    out, k = [], 0
    for i, x in enumerate(main):
        while k < len(groups) and i >= a + (b - a) * k // max(len(groups), 1):
            out.extend(groups[k]); k += 1
        out.append(x)
    for g in groups[k:]:
        out.extend(g)
    return out


class Gen:
    def __init__(self, stamps=False, **opt):
        self.a = Asm()
        self.stamps = stamps
        self.nl = 0
        self.cold = []
        self.opt = dict(p2map='A', p4map='A', rot=1, T0=3, nA=24, codepf=1, nt=1)
        self.opt.update(opt)

    def label(self, s):
        self.nl += 1
        return 'L_%s_%d' % (s, self.nl)

    def emit(self, lst):
        for x in lst:
            if isinstance(x, tuple):
                self.a(x[0], tok=x[1])
            elif isinstance(x, str):
                self.a(x)
            elif isinstance(x, list):
                self.emit(x)
            else:
                self.a.items.append(x)

    def stamp(self, k):
        if self.stamps:
            self.a('s_memtime s[100:101]\ns_waitcnt lgkmcnt(0)\nv_writelane_b32 v254, s100, %d' % k)

    def stamp_out(self):
        if self.stamps:
            a = self.a
            a('s_lshl_b32 s11, s2, 2')
            a('s_add_u32 s11, s11, %s' % sW)
            a('s_lshl_b32 s11, s11, 8')
            a('s_add_u32 s11, s11, %d' % WS_TS)
            a('v_lshlrev_b32 v2, 2, v0')
            a('buffer_store_dword v254, v2, %s, s11 offen' % SRD_WS)

    def srd(self, d, p, size):
        a = self.a
        a('s_mov_b32 s%d, s%d' % (d, p))
        a('s_and_b32 s%d, s%d, 0xffff' % (d + 1, p + 1))
        a('s_mov_b32 s%d, %d' % (d + 2, size))
        a('s_mov_b32 s%d, 0x20000' % (d + 3))

    def flag_set(self, sidx, base):
        return ['s_lshl_b32 %s, %s, %d' % (sidx, sidx, FSH),
                's_add_u32 %s, %s, %d' % (sidx, sidx, WS_FL + base * FS),
                's_mov_b32 exec_hi, 0',
                'buffer_store_dwordx4 %s, %s, %s, %s offen sc1' % (vr(vFL), vL16, SRD_WS, sidx),
                's_mov_b32 exec_hi, -1']

    def poll_loads(self, items, first=True):
        items = list(items)
        if len(items) % 2:
            items.append(items[-1])
        assert len(items) <= 16
        base = WSP if first else 's[14:15]'
        return ['s_load_dword s%d, %s, %s offset:%d' % (PT + k, base, so, imm * FS) for k, (so, imm) in enumerate(items)]

    def poll_check(self, items):
        a = self.a
        n = (len(items) + 1) // 2
        top, done, slow = self.label('poll'), self.label('pdone'), self.label('pslow')
        a('s_mov_b64 s[14:15], %s' % WSP)
        a('s_mov_b32 s13, %d' % (FS // 64 - 1))
        a(top + ':')
        a('s_waitcnt lgkmcnt(0)')
        for k in range(n):
            p = 's[%d:%d]' % (PT + 2 * k, PT + 2 * k + 1)
            a('s_xor_b64 %s, %s, %s' % (p, p, sEP2))
            if k:
                a('s_or_b64 s[%d:%d], s[%d:%d], %s' % (PT, PT + 1, PT, PT + 1, p))
        a('s_cbranch_scc0 %s' % done)
        a.raw('s_sub_u32 s13, s13, 1')
        a.raw('s_cbranch_scc1 %s' % slow)
        a.raw('s_add_u32 s14, s14, 64')
        a.raw('s_addc_u32 s15, s15, 0')
        for x in self.poll_loads(items, first=False):
            a.raw(x)
        a.raw('s_branch %s' % top)
        a(done + ':')
        o = [slow + ':', 'v_mov_b32 v255, 0']
        for k, (so, imm) in enumerate(items):
            o += ['s_add_u32 s13, %s, %d' % (so, imm * FS), 'v_writelane_b32 v255, s13, %d' % k]
        o += ['s_mov_b64 exec, 0x%x' % ((1 << len(items)) - 1), slow + '_l:',
              'buffer_load_dword v253, v255, %s, 0 offen sc1' % SRD_WS, 's_waitcnt vmcnt(0)',
              'v_cmp_ne_u32 vcc, %s, v253' % sEP, 's_nop 4', 's_cbranch_vccz %s_d' % slow,
              's_sub_u32 %s, %s, 1' % (sCT, sCT), 's_cbranch_scc1 L_exit', 's_branch %s_l' % slow,
              slow + '_d:', 'v_mov_b32 v253, %s' % sEP, 's_mov_b64 exec, -1', 's_nop 4', 's_branch %s' % done]
        self.cold += o

    def poll(self, items):
        self.emit(self.poll_loads(items))
        self.poll_check(items)

    def epoch_issue(self):
        self.a('s_load_dword %s, %s, 0x0' % (sEP, DBGP))

    def flag_set_wg(self, base):
        a = self.a
        skip = self.label('fw')
        a('s_cmp_lg_u32 %s, 0' % sW)
        a('s_cbranch_scc1 %s' % skip)
        a.begin_cond(skip)
        a('s_mov_b32 s11, %s' % sM)
        self.emit(self.flag_set('s11', base))
        a.end_cond()
        a(skip + ':')

    def get_epoch(self, issued=False):
        a = self.a
        top, done = self.label('ep'), self.label('epd')
        if not issued:
            self.epoch_issue()
        a('s_waitcnt lgkmcnt(0)')
        a('s_cmp_lg_u32 %s, 0' % sEP)
        a('s_cbranch_scc0 %s' % top)
        a(done + ':')
        self.cold += [top + ':', 'v_mov_b32 v255, 0', top + '_l:', 'global_load_dword v253, v255, %s sc1' % DBGP,
                      's_waitcnt vmcnt(0)', 'v_readfirstlane_b32 %s, v253' % sEP, 's_nop 4', 's_cmp_lg_u32 %s, 0' % sEP,
                      's_cbranch_scc1 %s' % done, 's_sub_u32 %s, %s, 1' % (sCT, sCT), 's_cbranch_scc1 L_exit',
                      's_branch %s_l' % top]
        a('s_mov_b32 s51, s50')
        for k in range(4):
            a('v_mov_b32 v%d, %s' % (vFL + k, sEP))

    def tr_lane_addr(self, dst, pitch, h16, t0, t1):
        a = self.a
        a('v_lshrrev_b32 %s, 5, v0' % t0)
        a('v_lshlrev_b32 %s, 3, %s' % (t0, t0))
        a('v_bfe_u32 %s, v0, 2, 2' % t1)
        a('v_add_u32 %s, %s, %s' % (t0, t0, t1))
        a('v_mul_u32_u24 %s, %d, %s' % (dst, pitch, t0))
        a('v_bfe_u32 %s, v0, 4, 1' % t0)
        a('v_mul_u32_u24 %s, %d, %s' % (t0, h16, t0))
        a('v_add_u32 %s, %s, %s' % (dst, dst, t0))
        a('v_and_b32 %s, 1, v0' % t0)
        a('v_lshl_add_u32 %s, %s, 4, %s' % (dst, t0, dst))
        a('v_bfe_u32 %s, v0, 1, 1' % t0)
        a('v_lshl_add_u32 %s, %s, 3, %s' % (dst, t0, dst))

    def prologue(self):
        a = self.a
        a.fresh()
        a('s_cmp_ge_u32 s2, 256')
        a('s_cbranch_scc1 L_exit')
        a('s_load_dwordx16 s[16:31], s[0:1], 0')
        a('s_load_dwordx4 s[32:35], s[0:1], 64')
        a('v_lshrrev_b32 v2, 6, v0')
        a('v_and_b32 v0, 63, v0')
        a('v_readfirstlane_b32 %s, v2' % sW)
        a('v_lshlrev_b32 %s, 4, v0' % vL16)
        if self.stamps:
            a('v_mov_b32 v254, 0')
            self.stamp(0)
        a('s_and_b32 %s, s2, 7' % sXCD)
        a('s_lshr_b32 %s, s2, 3' % sI)
        a('s_and_b32 s11, %s, 3' % sI)
        a('s_lshl_b32 %s, %s, 2' % (sM, sXCD))
        a('s_add_u32 %s, %s, s11' % (sM, sM))
        a('s_lshr_b32 %s, %s, 2' % (sN, sI))
        a('s_mov_b32 %s, 0x40000' % sCT)

    def roles(self):
        a = self.a
        self.srd(40, 34, WS_END)
        self.srd(44, 30, 2048 * 896)
        a('s_and_b32 s11, %s, 1' % sI)
        a('s_lshl_b32 s12, %s, 1' % sN)
        a('s_add_u32 s12, s12, s11')
        a('s_lshr_b32 s13, %s, 1' % sM)
        if self.opt['p2map'] == 'A':
            a('s_mov_b32 %s, s13' % sR)
            a('s_mov_b32 %s, s12' % sHD)
        else:
            a('s_lshr_b32 %s, %s, 1' % (sR, sI))
            a('s_lshl_b32 %s, %s, 1' % (sHD, sXCD))
            a('s_add_u32 %s, %s, s11' % (sHD, sHD))
        if self.opt['p4map'] == 'A':
            a('s_mov_b32 %s, s13' % sR4)
            a('s_mov_b32 %s, s12' % sJ)
        else:
            a('s_and_b32 s11, %s, 1' % sXCD)
            a('s_lshl_b32 s11, s11, 3')
            a('s_add_u32 s11, s11, %s' % sN)
            a('s_lshr_b32 s12, %s, 1' % sXCD)
            a('s_lshl_b32 s12, s12, 2')
            a('s_and_b32 s13, %s, 3' % sI)
            a('s_add_u32 %s, s12, s13' % sR4)
            a('s_mov_b32 %s, s11' % sJ)
        a('s_lshr_b32 s11, %s, 1' % sW)
        a('s_lshl_b32 s11, s11, 10')
        a('v_xor_b32 %s, s11, %s' % (vXA, vL16))
        a('v_xor_b32 %s, 1024, %s' % (vXB, vXA))

    def code_prefetch(self, dst):
        if not self.opt['codepf']:
            return
        a = self.a
        skip = self.label('cpf')
        a('s_lshr_b32 s11, s2, 3')
        a('s_lshl_b32 s11, s11, 2')
        a('s_add_u32 s11, s11, %s' % sW)
        a('s_lshl_b32 s11, s11, 10')
        a('s_cmp_ge_u32 s11, L_code_end-L_code_pc-1024')
        a('s_cbranch_scc1 %s' % skip)
        a.begin_cond(skip)
        a('s_getpc_b64 s[12:13]')
        if not hasattr(self, 'pc_done'):
            a('L_code_pc:')
            self.pc_done = True
        else:
            lab = self.label('pc')
            a(lab + ':')
            a('s_sub_u32 s12, s12, %s-L_code_pc' % lab)
            a('s_subb_u32 s13, s13, 0')
        a('s_add_u32 s12, s12, s11')
        a('s_addc_u32 s13, s13, 0')
        a('v_mov_b32 v%d, s13' % (dst + 1))
        a('v_add_co_u32 v%d, vcc, s12, %s' % (dst, vL16))
        a('v_addc_co_u32 v%d, vcc, 0, v%d, vcc' % (dst + 1, dst + 1))
        a('global_load_dwordx4 %s, %s, off' % (vr(dst + 2), vr(dst, 2)))
        a.end_cond()
        a(skip + ':')

    P1_X = 0
    P1_W = 57344

    def p1_wdma(self, s):
        o = []
        slot = self.P1_W + (s % 4) * 24576
        for h in range(2):
            g = ['s_add_u32 m0, s17, %d' % (slot + h * 3072)]
            if h == 0:
                g += ['s_mul_i32 s27, s%d, 1344' % (20 + s), 's_add_u32 s27, s27, s16']
            else:
                g += ['s_add_u32 s27, s27, %d' % (8 * 2688)]
            for i in range(3):
                g.append(('buffer_load_dwordx4 v%d, %s, s27 offen offset:%d lds' % (5 + i, SRD_WQKV, i * 1024), 'w%d' % s))
            o.append(g)
        return o

    def p1(self):
        a = self.a
        XR, ACC, XF, WF, T = 16, 72, 120, 136, 184
        NB_ = 4
        a('v_lshrrev_b32 v2, 3, v0')
        a('v_and_b32 v3, 7, v0')
        a('v_mul_u32_u24 v4, 896, v2')
        a('v_lshl_add_u32 v4, v3, 4, v4')
        a('v_add_u32 v15, %d, v4' % (8 * 896))
        a('s_lshl_b32 s11, %s, 6' % sM)
        a('s_lshl_b32 s12, %s, 4' % sW)
        a('s_add_u32 s11, s11, s12')
        a('s_mul_i32 s14, s11, 896')
        if self.opt['rot']:
            a('s_and_b32 s15, %s, 3' % sI)
            a('s_lshl_b32 s15, s15, 1')
            a('s_add_u32 s15, s15, %s' % sXCD)
            a('s_add_u32 s15, s15, %s' % sN)
            a('s_mul_i32 s11, s15, 37')
            a('s_lshr_b32 s11, s11, 8')
            a('s_mul_i32 s11, s11, 7')
            a('s_sub_u32 s15, s15, s11')
            a('s_lshl_b32 s15, s15, 7')
        else:
            a('s_mov_b32 s15, 0')
        self.srd(36, 16, 2048 * 896)
        self.srd(52, 18, 448 * 2688)
        self.roles()
        for s in range(7):
            a('s_mov_b32 s%d, s15' % (20 + s))
            a('s_add_u32 s11, s14, s15')
            for q in range(2):
                a('buffer_load_dwordx4 %s, v%d, %s, s11 offen' % (vr(XR + (s * 2 + q) * 4), 15 if q else 4, SRD_X))
            if s < 6:
                a('s_add_u32 s15, s15, 128')
                a('s_cmp_eq_u32 s15, 896')
                a('s_cselect_b32 s15, 0, s15')
        for i in range(3):
            a('v_add_u32 v8, %d, v0' % (64 * i))
            a('v_mul_u32_u24 v9, 171, v8')
            a('v_lshrrev_b32 v9, 12, v9')
            a('v_mul_u32_u24 v10, 24, v9')
            a('v_sub_u32 v10, v8, v10')
            a('v_lshlrev_b32 v11, 1, v9')
            a('v_and_b32 v11, 4, v11')
            a('v_xor_b32 v10, v10, v11')
            a('v_mul_u32_u24 v9, 2688, v9')
            a('v_lshl_add_u32 v%d, v10, 4, v9' % (5 + i))
            if i:
                a('v_subrev_u32 v%d, %d, v%d' % (5 + i, 1024 * i, 5 + i))
        a('s_mul_i32 s16, %s, %d' % (sW, 16 * 2688))
        a('s_mul_i32 s11, %s, 384' % sN)
        a('s_add_u32 s16, s16, s11')
        a('s_mul_i32 s17, %s, 6144' % sW)
        a('v_lshrrev_b32 v10, 4, v0')
        a('v_xor_b32 v10, v3, v10')
        a('v_lshlrev_b32 v11, 7, v2')
        a('s_lshl_b32 s11, %s, 11' % sW)
        a('v_add_u32 v11, s11, v11')
        a('v_lshl_add_u32 v8, v10, 4, v11')
        a('v_xor_b32 v9, 64, v8')
        a('v_add_u32 v9, 1024, v9')
        a('v_and_b32 v14, 31, v0')
        a('v_lshrrev_b32 v15, 5, v0')
        a('v_bfe_u32 v2, v0, 1, 3')
        a('v_xor_b32 v15, v15, v2')
        a('s_and_b32 s11, %s, 1' % sW)
        a('s_lshl_b32 s11, s11, 12')
        a('v_lshlrev_b32 v14, 7, v14')
        a('v_add_u32 v14, s11, v14')
        for u in range(4):
            a('v_xor_b32 v2, %d, v15' % (2 * u))
            a('v_lshl_add_u32 v%d, v2, 4, v14' % (10 + u))
        self.tr_lane_addr('v14', 384, 32, 'v2', 'v3')
        a('v_bfe_u32 v2, v0, 3, 1')
        a('s_lshr_b32 s11, %s, 1' % sW)
        a('s_mul_i32 s11, s11, 3')
        for t in range(3):
            a('s_add_u32 s12, s11, %d' % t)
            a('v_xor_b32 v3, s12, v2')
            a('v_lshl_add_u32 v%d, v3, 6, v14' % (T + t))
            a('v_add_u32 v%d, %d, v%d' % (T + t, self.P1_W, T + t))
            a('v_add_u32 v%d, 49152, v%d' % (T + 3 + t, T + t))
        ONE, SU, SQ, RS, NB, TMP = T + 6, T + 8, T + 12, T + 16, T + 18, T + 20
        a('v_mov_b32 v%d, 0x3f803f80' % ONE)
        self.stamp(1)
        st = []
        for s in range(7):
            for q in range(2):
                for d in range(4):
                    x = XR + (s * 2 + q) * 4 + d
                    k = q * 2 + (d & 1)
                    first = s == 0 and d < 2
                    st.append('v_dot2_f32_bf16 v%d, v%d, v%d, %s' % (SU + k, x, ONE, '0' if first else 'v%d' % (SU + k)))
                    st.append('v_dot2_f32_bf16 v%d, v%d, v%d, %s' % (SQ + k, x, x, '0' if first else 'v%d' % (SQ + k)))
        red = []
        for q in range(2):
            st.append('v_add_f32 v%d, v%d, v%d' % (SU + 2 * q, SU + 2 * q, SU + 2 * q + 1))
            st.append('v_add_f32 v%d, v%d, v%d' % (SQ + 2 * q, SQ + 2 * q, SQ + 2 * q + 1))
            red += [SU + 2 * q, SQ + 2 * q]
        for dpp in ('quad_perm:[1,0,3,2]', 'quad_perm:[2,3,0,1]', 'row_half_mirror'):
            for r in red:
                st.append('v_add_f32_dpp v%d, v%d, v%d %s row_mask:0xf bank_mask:0xf' % (r, r, r, dpp))
        for q in range(2):
            su, sq = SU + 2 * q, SQ + 2 * q
            st += ['v_mul_f32 v%d, %s, v%d' % (su, f32(1.0 / 448), su),
                   'v_mul_f32 v%d, %s, v%d' % (sq, f32(1.0 / 448), sq),
                   'v_fma_f32 v%d, -v%d, v%d, v%d' % (sq, su, su, sq),
                   'v_max_f32 v%d, 0, v%d' % (sq, sq),
                   'v_add_f32 v%d, %s, v%d' % (sq, f32(1e-5), sq),
                   'v_rsq_f32 v%d, v%d' % (RS + q, sq),
                   'v_mul_f32_e64 v%d, -v%d, v%d' % (NB + q, su, RS + q)]

        def norm(s):
            o = []
            for q in range(2):
                b = XR + (s * 2 + q) * 4
                for d in range(4):
                    t0, t1 = TMP + (d & 1) * 2, TMP + (d & 1) * 2 + 1
                    o.append('v_lshlrev_b32 v%d, 16, v%d' % (t0, b + d))
                    o.append('v_and_b32 v%d, 0xffff0000, v%d' % (t1, b + d))
                    o.append('v_fma_f32 v%d, v%d, v%d, v%d' % (t0, t0, RS + q, NB + q))
                    o.append('v_fma_f32 v%d, v%d, v%d, v%d' % (t1, t1, RS + q, NB + q))
                    o.append('v_cvt_pk_bf16_f32 v%d, v%d, v%d' % (b + d, t0, t1))
                o.append('ds_write_b128 v%d, %s offset:%d' % (8 + q, vr(b), self.P1_X + s * 8192))
            return o

        def reads(ks):
            s, u = ks // 4, ks % 4
            o = ['ds_read_b128 %s, v%d offset:%d' % (vr(XF + (ks % NB_) * 4), 10 + u, self.P1_X + s * 8192)]
            sl = s % 4
            for t in range(3):
                for z in range(2):
                    o.append('ds_read_b64_tr_b16 %s, v%d offset:%d' % (
                        vr(WF + (ks % NB_) * 12 + t * 4 + z * 2, 2), T + t + 3 * (sl >> 1),
                        (sl & 1) * 24576 + (16 * u + 4 * z) * 384))
            return o

        def mfmas(ks):
            return ['%s %s, %s, %s, %s' % (MFMA, vr(ACC + 16 * t, 16), vr(WF + (ks % NB_) * 12 + t * 4), vr(XF + (ks % NB_) * 4),
                                           vr(ACC + 16 * t, 16) if ks else '0') for t in range(3)]

        def sync(s):
            o = [Pseudo('wait_tok', 'w%d' % s), 's_waitcnt lgkmcnt(0)', 's_barrier']
            if s >= 1 and s + 3 < 7:
                o += [x for g in self.p1_wdma(s + 3) for x in g]
            return o
        self.code_prefetch(ACC)
        wg = [g for s in range(4) for g in self.p1_wdma(s)]
        self.emit(sprinkle(st + norm(0) + norm(1), wg, 0.0, 0.9))
        self.stamp(2)
        self.emit(sync(0))
        self.stamp(3)
        self.emit(reads(0) + reads(1))
        for s in range(7):
            k0 = 4 * s
            main = reads(k0 + 2) + mfmas(k0) + reads(k0 + 3) + mfmas(k0 + 1)
            tail = []
            if s < 6:
                tail = sync(s + 1) + reads(k0 + 4)
            tail += mfmas(k0 + 2)
            if s < 6:
                tail += reads(k0 + 5)
            tail += mfmas(k0 + 3)
            if s + 2 < 7:
                nm = norm(s + 2)
                main, r1 = weave(main, nm[:21])
                tail, r2 = weave(tail, nm[21:])
                main += r1
                tail += r2
            self.emit(main + tail)
        self.stamp(4)
        self.epoch_issue()
        a('s_lshl_b32 s13, %s, 1' % sM)
        a('s_and_b32 s12, %s, 1' % sW)
        a('s_add_u32 s13, s13, s12')
        a('s_lshl_b32 s14, %s, 1' % sN)
        a('s_lshr_b32 s12, %s, 1' % sW)
        a('s_add_u32 s14, s14, s12')
        a('s_mul_i32 s11, s13, %d' % (84 * 1024))
        a('s_mul_i32 s12, s14, %d' % (6 * 1024))
        a('s_add_u32 s11, s11, s12')
        a('s_add_u32 s12, s11, 4096')
        a('s_lshl_b32 s16, s13, 4')
        a('s_add_u32 s16, s16, s14')
        for t in range(3):
            for h in range(2):
                f = t * 2 + h
                for d in range(4):
                    r = ACC + 16 * t + 8 * h + 2 * d
                    a('v_cvt_pk_bf16_f32 v%d, v%d, v%d' % (XR + f * 4 + d, r, r + 1))
                a('buffer_store_dwordx4 %s, %s, %s, s%d offen offset:%d sc1' % (
                    vr(XR + f * 4), vL16, SRD_WS, 11 + f // 4, (f % 4) * 1024), tok='qkv')

    def repack(self):
        a = self.a
        nt = ' nt' if self.opt['nt'] else ''
        self.srd(56, 24, 448 * 3584)
        self.srd(60, 26, 448 * 3584)
        a('s_cmp_lt_u32 %s, 28' % sM)
        a('s_cselect_b32 s64, s28, s20')
        a('s_cselect_b32 s65, s29, s21')
        a('s_cselect_b32 s66, %d, 0' % (1792 * 896))
        a('s_cselect_b32 s11, 0, %d' % (448 * 896))
        a('s_add_u32 s66, s66, s11')
        a('s_and_b32 s65, s65, 0xffff')
        a('s_mov_b32 s67, 0x20000')
        self.srd(36, 16, 2048 * 896)
        self.code_prefetch(200)
        self.roles()
        noep = self.label('noep')
        a('s_lshl_b32 s11, s2, 2')
        a('s_add_u32 s11, s11, %s' % sW)
        a('s_cmp_lg_u32 s11, 1020')
        a('s_cbranch_scc1 %s' % noep)
        a.begin_cond(noep)
        a('s_mov_b32 s11, %d' % WS_EP)
        a('s_load_dword s12, %s, s11' % WSP)
        a('s_add_u32 s12, s12, 1')
        a('s_max_u32 s12, s12, 1')
        a('v_mov_b32 v2, s12')
        a('v_mov_b32 v3, 0')
        a('s_mov_b64 exec, 1')
        a('buffer_store_dword v2, off, %s, s11 sc1' % SRD_WS)
        a('global_store_dword v3, v2, %s sc1' % DBGP)
        a('s_mov_b64 exec, -1')
        a.end_cond()
        a(noep + ':')
        a('s_mul_i32 s17, %s, 40960' % sW)
        DOFF = 24576
        F, CSA, ONE = 16, 80, 144
        self.tr_lane_addr('v6', 896, 32, 'v2', 'v3')
        a('v_add_u32 v6, s17, v6')

        def d_issue(srow):
            o = []
            for k in range(14):
                if k % 4 == 0:
                    o.append('s_add_u32 m0, s17, %d' % (DOFF + k * 1024))
                    if k:
                        o.append('s_add_u32 %s, %s, 4096' % (srow, srow))
                o.append(('buffer_load_dwordx4 %s, %s, %s offen offset:%d%s lds' % (vL16, SRD_D, srow, (k % 4) * 1024, nt), 'd'))
            return o

        def d_process(sdst, nstride):
            a.wait_tok('d')
            for ct in range(14):
                for z in range(2):
                    a('ds_read_b64_tr_b16 %s, v6 offset:%d' % (vr(F + ct * 4 + z * 2, 2), DOFF + ct * 64 + z * 4 * 896))
            for ct in range(14):
                if ct and ct % 2 == 0:
                    a('s_add_u32 %s, %s, %d' % (sdst, sdst, nstride))
                a('buffer_store_dwordx4 %s, %s, %s, %s offen offset:%d sc1' % (vr(F + ct * 4), vL16, SRD_WS, sdst, (ct % 2) * 1024), tok='ds')

        wo = self.label('rpwo')
        a('s_cmp_ge_u32 %s, 28' % sM)
        a('s_cbranch_scc1 %s' % wo)
        pos = lambda b: (DOFF if b == 0 else (b - 1) * 4096)
        a('v_lshrrev_b32 v2, 3, v0')
        a('v_and_b32 v3, 7, v0')
        a('v_mul_u32_u24 v4, 3584, v2')
        a('v_lshl_add_u32 v4, v3, 4, v4')
        a('v_add_u32 v5, %d, v4' % (8 * 3584 - 1024))
        a('s_mul_i32 s16, %s, %d' % (sW, 16 * 3584))
        a('s_lshl_b32 s11, %s, 7' % sM)
        a('s_add_u32 s16, s16, s11')

        def g_issue(b):
            o = ['s_add_u32 s11, s16, %d' % (b * 64 * 3584)]
            for img, srd in enumerate((SRD_G, SRD_U)):
                o.append('s_add_u32 m0, s17, %d' % (pos(b) + img * 2048))
                for z in range(2):
                    o.append(('buffer_load_dwordx4 v%d, %s, s11 offen offset:%d%s lds' % (4 + z, srd, z * 1024, nt), 'g%d' % b))
            return o
        DEPTH = 3
        for b in range(DEPTH):
            self.emit(g_issue(b))
        self.tr_lane_addr('v7', 128, 2048, 'v2', 'v3')
        a('v_add_u32 v7, s17, v7')
        for d in range(4):
            a('v_mov_b32 v%d, 0x3f803f80' % (ONE + d))
        a('s_mul_i32 s18, %s, %d' % (sM, 4 * 28672))
        a('s_lshl_b32 s11, %s, 10' % sW)
        a('s_add_u32 s18, s18, s11')
        a('s_add_u32 s18, s18, %d' % WS_WGU)
        a('s_lshl_b32 s19, %s, 6' % sM)
        a('s_lshl_b32 s11, %s, 4' % sW)
        a('s_add_u32 s19, s19, s11')
        a('s_mul_i32 s19, s19, 896')
        for b in range(7):
            a.wait_tok('g%d' % b)
            fb = F + (b % 2) * 16
            for t in range(4):
                for z in range(2):
                    a('ds_read_b64_tr_b16 %s, v7 offset:%d' % (vr(fb + t * 4 + z * 2, 2), pos(b) + t * 32 + z * 512))
            if b + DEPTH < 7:
                self.emit(g_issue(b + DEPTH))
            for t in range(4):
                a('s_add_u32 s11, s18, %d' % (t * 28672 + b * 4096))
                a('buffer_store_dwordx4 %s, %s, %s, s11 offen sc1' % (vr(fb + t * 4), vL16, SRD_WS), tok='gs')
                a('%s %s, %s, %s, %s' % (MFMA, vr(CSA + 16 * t, 16), vr(fb + t * 4), vr(ONE), vr(CSA + 16 * t, 16) if b else '0'))
            if b == 7 - DEPTH:
                self.emit(d_issue('s19'))
        a('s_lshl_b32 s11, %s, 11' % sM)
        a('s_lshl_b32 s12, %s, 7' % sW)
        a('s_add_u32 s11, s11, s12')
        a('s_add_u32 s11, s11, %d' % WS_CS)
        a('v_lshlrev_b32 v5, 1, v0')
        a('s_mov_b32 exec_lo, 1')
        a('s_mov_b32 exec_hi, 1')
        for t in range(4):
            for k in range(4):
                a('buffer_store_dwordx4 %s, v5, %s, s11 offen offset:%d sc1' % (vr(CSA + 16 * t + 4 * k), SRD_WS, t * 512 + k * 16), tok='gs')
        a('s_mov_b64 exec, -1')
        self.get_epoch()
        a('s_lshl_b32 s18, %s, 2' % sM)
        a('s_add_u32 s18, s18, %s' % sW)
        a('s_lshl_b32 s18, s18, 11')
        a('s_add_u32 s18, s18, %d' % WS_WD)
        d_process('s18', 112 * 2048)
        a.wait_tok('gs')
        a('s_barrier')
        self.flag_set_wg(FL_FG)
        a('s_waitcnt vmcnt(0)')
        a('s_barrier')
        self.flag_set_wg(FL_FD)
        a('s_branch L_rp_done')
        a(wo + ':')
        a.fresh()
        self.get_epoch()
        for hpo in range(2):
            a('s_sub_u32 s12, %s, 28' % sM)
            a('s_lshl_b32 s12, s12, 1')
            a('s_add_u32 s12, s12, %d' % hpo)
            a('s_mul_i32 s19, s12, 56')
            a('s_lshl_b32 s11, %s, 4' % sW)
            a('s_add_u32 s19, s19, s11')
            a('s_lshr_b32 s11, %s, 1' % sW)
            a('s_lshl_b32 s11, s11, 3')
            a('s_sub_u32 s19, s19, s11')
            a('s_mul_i32 s19, s19, 896')
            a('s_lshl_b32 s18, s12, 2')
            a('s_add_u32 s18, s18, %s' % sW)
            a('s_lshl_b32 s18, s18, 11')
            a('s_add_u32 s18, s18, %d' % WS_WO)
            self.emit(d_issue('s19'))
            d_process('s18', 32 * 2048)
        a('s_waitcnt vmcnt(0)')
        a('s_barrier')
        self.flag_set_wg(FL_FG)
        a('L_rp_done:')

    KV_LDS = 4 * SLOT

    def p2_setup(self):
        a = self.a
        M = 224
        a('s_mul_i32 s28, %s, 7' % sHD)
        a('s_lshr_b32 s28, s28, 1')
        a('s_lshl_b32 s11, %s, 2' % sR)
        a('s_add_u32 s12, s11, %s' % sW)
        a('s_mul_i32 s13, %s, 3' % sW)
        a('s_add_u32 s11, s11, s13')
        a('s_sub_i32 s18, s11, 8')
        a('s_max_i32 s13, s18, 0')
        a('s_lshl_b32 s13, s13, %d' % (FSH + 4))
        a('s_add_u32 s13, s13, %d' % (WS_FL + FL_F1 * FS))
        a('s_lshl_b32 s14, s12, %d' % (FSH + 4))
        a('s_add_u32 s14, s14, %d' % (WS_FL + FL_F1 * FS))
        for k, (add, base) in enumerate(((56, 's13'), (59, 's13'), (112, 's13'), (115, 's13'), (0, 's14'), (3, 's14'))):
            a('s_add_u32 s15, s28, %d' % add)
            a('s_mul_i32 s15, s15, 171')
            a('s_lshr_b32 s15, s15, 11')
            a('s_lshl_b32 s15, s15, %d' % FSH)
            a('s_add_u32 s%d, s15, %s' % (20 + k, base))
        a('s_lshl_b32 s28, s28, 9')
        a('s_mul_i32 s19, s12, %d' % (84 * 1024))
        a('s_add_u32 s19, s19, s28')
        for k in range(3):
            a('s_add_i32 s13, s18, %d' % k)
            a('s_mul_i32 s14, s13, %d' % (84 * 1024))
            a('s_add_u32 s14, s14, s28')
            a('s_add_u32 s14, s14, %d' % (56 * 512))
            a('s_cmp_lt_i32 s13, 0')
            a('s_cselect_b32 s%d, %d, s14' % (29 + k, OOB))
        a('s_mul_i32 s17, %s, %d' % (sW, 3 * 4096))
        a('s_bitcmp1_b32 %s, 0' % sHD)
        a('s_cselect_b64 s[26:27], -1, 0')
        a('s_cselect_b32 s18, 0, %d' % (3 * 512 + 8))
        a('v_and_b32 v2, 31, v0')
        a('v_lshrrev_b32 v3, 5, v0')
        a('v_lshlrev_b32 v3, 2, v3')
        a('v_sub_u32 v2, v2, v3')
        for r in range(16):
            a('v_cmp_le_i32 s[%d:%d], %d, v2' % (MASK0 + 2 * r, MASK0 + 2 * r + 1, (r & 3) + 8 * (r >> 2)))
        a('v_lshrrev_b32 v2, 5, v0')
        a('v_lshlrev_b32 v2, 6, v2')
        a('v_xor_b32 v4, %s, v2' % vL16)
        a('v_xor_b32 v5, 128, v4')
        a('v_mov_b32 v2, 0xffff')
        a('v_mov_b32 v3, 0xffff0000')
        for p in range(8):
            a('v_cndmask_b32 v%d, 0, v2, s[%d:%d]' % (M + p, MASK0 + 4 * p, MASK0 + 4 * p + 1))
            a('v_cndmask_b32 v8, 0, v3, s[%d:%d]' % (MASK0 + 4 * p + 2, MASK0 + 4 * p + 3))
            a('v_or_b32 v%d, v%d, v8' % (M + p, M + p))
        a('s_mov_b32 s12, s26')
        a('s_mov_b32 s13, 0')
        a('v_cndmask_b32 v6, -1, 0, s[12:13]')
        a('s_mov_b32 s14, 0')
        a('s_not_b32 s15, s27')
        a('v_cndmask_b32 v7, -1, 0, s[14:15]')
        a('s_add_u32 s11, s18, s17')
        a('s_add_u32 s11, s11, %d' % (self.KV_LDS + 2048))
        a('v_and_b32 v8, 31, v0')
        a('v_lshlrev_b32 v8, 4, v8')
        a('v_add_u32 v8, s11, v8')
        a('v_lshrrev_b32 v9, 5, v0')
        a('v_lshl_add_u32 v9, v9, 12, v8')
        a('v_mov_b32 v10, 0x3f80')
        a('v_mov_b32 v11, 0')
        a('s_lshl_b32 s11, %s, 12' % sW)
        a('s_add_u32 s11, s11, %d' % self.KV_LDS)
        a('v_add_u32 v12, s11, %s' % vL16)
        a('v_and_b32 v2, 1, v0')
        a('v_bfe_u32 v3, v0, 4, 1')
        a('v_lshrrev_b32 v13, 5, v0')
        a('v_xor_b32 v13, v13, v2')
        a('v_lshlrev_b32 v13, 6, v13')
        a('v_lshl_add_u32 v13, v3, 7, v13')
        a('v_lshl_add_u32 v13, v2, 9, v13')
        a('v_lshl_add_u32 v13, v3, 10, v13')
        a('v_bfe_u32 v2, v0, 2, 2')
        a('v_lshl_add_u32 v13, v2, 4, v13')
        a('v_bfe_u32 v2, v0, 1, 1')
        a('v_lshl_add_u32 v13, v2, 3, v13')
        a('v_xor_b32 v14, 128, v13')
        a('s_add_u32 s11, s11, 2048')
        a('v_add_u32 v13, s11, v13')
        a('v_add_u32 v14, s11, v14')

    def p2(self):
        a = self.a
        S, KF, Q, VF, P, O, M = 16, 160, 232, 176, 192, 208, 224
        a('s_barrier')
        self.poll([('s%d' % (20 + g), k * 16) for g in range(4) for k in range(3)] + [('s24', 0), ('s25', 0)])
        self.stamp(7)
        for k in range(3):
            a('s_add_u32 m0, s17, %d' % (self.KV_LDS + k * 4096))
            for t in range(2):
                a('buffer_load_dwordx4 %s, %s, s%d offen offset:%d sc1 lds' % (vL16, SRD_WS, 29 + k, t * 1024), tok='k')
        for t in range(2):
            a('buffer_load_dwordx4 %s, %s, %s, s19 offen offset:%d sc1' % (vr(Q + 4 * t), vL16, SRD_WS, t * 1024))
        for k in range(3):
            a('s_add_u32 m0, s17, %d' % (self.KV_LDS + k * 4096 + 2048))
            a('s_add_u32 s13, s%d, %d' % (29 + k, 56 * 512))
            for t in range(2):
                a('buffer_load_dwordx4 v%d, %s, s13 offen offset:%d sc1 lds' % (4 + t, SRD_WS, t * 1024), tok='v')
        self.res_voffset('v15', 's11')
        for t in range(2):
            a('buffer_load_dwordx4 %s, v15, %s, s11 offen offset:%d' % (vr(self.HRES + 4 * t), SRD_X, 32 * t))
        self.p4_wsetup()
        a('s_mul_i32 s20, %s, 7' % sJ)
        a('s_lshr_b32 s20, s20, 2')
        a('s_min_u32 s20, s20, 25')
        a('s_lshl_b32 s20, s20, %d' % FSH)
        a('s_add_u32 s20, s20, %d' % (WS_FL + FL_FG * FS))
        a('s_mov_b32 s21, %d' % (WS_FL + (FL_FG + 28) * FS))
        fr = [('s20', k) for k in range(3)] + [('s21', k) for k in range(4)]
        a('v_and_b32 v%d, v%d, v6' % (Q, Q))
        a('v_and_b32 v%d, v%d, v6' % (Q + 1, Q + 1))
        a('v_and_b32 v%d, v%d, v7' % (Q + 6, Q + 6))
        a('v_and_b32 v%d, v%d, v7' % (Q + 7, Q + 7))
        a.wait_tok('k')
        a('s_barrier')
        self.stamp(8)
        order = [0, 8, 1, 2, 3, 4, 5, 6, 7]
        KB = [KF, KF + 8, VF, VF + 8]

        def kread(i):
            return ['ds_read_b128 %s, v12 offset:%d' % (vr(KB[i % 4] + h * 4), order[i] * 4096 + h * 1024) for h in range(2)]

        def smm(i):
            t = order[i]
            return ['%s %s, %s, %s, %s' % (MFMA, vr(S + 16 * t, 16), vr(KB[i % 4] + h * 4), vr(Q + 4 * h),
                                           vr(S + 16 * t, 16) if h else '0') for h in range(2)]
        self.emit(kread(0) + kread(1) + kread(2))
        for i in range(9):
            self.emit(smm(i))
            if i + 3 < 9:
                self.emit(kread(i + 3))
        self.emit(self.poll_loads(fr))
        done = self.label('inv')
        a('s_lshl_b32 s11, %s, 2' % sR)
        a('s_add_u32 s11, s11, %s' % sW)
        a('s_cmp_ge_u32 s11, 8')
        a('s_cbranch_scc1 %s' % done)
        a.begin_cond('inv')
        for t in range(8):
            if t:
                a('s_cmp_ge_u32 s11, %d' % (8 - t))
                a('s_cbranch_scc1 %s' % done)
            for r in range(16):
                a('v_mov_b32 v%d, 0xff800000' % (S + 16 * t + r))
        a.end_cond()
        a(done + ':')
        for r in range(16):
            a('v_cndmask_b32 v%d, v%d, v%d, s[%d:%d]' % (S + r, S + r, S + 128 + r, MASK0 + 2 * r, MASK0 + 2 * r + 1))
        MX = S + 128
        for c in range(4):
            a('v_max_f32 v%d, v%d, v%d' % (MX + c, S + 2 * c, S + 2 * c + 1))
        for k in range(4, 64):
            a('v_max3_f32 v%d, v%d, v%d, v%d' % (MX + k % 4, MX + k % 4, S + 2 * k, S + 2 * k + 1))
        a.wait_tok('v')
        a('ds_write_b64 v9, v[10:11]')
        a('ds_write_b64 v8, v[10:11] offset:8192')
        a('v_max3_f32 v%d, v%d, v%d, v%d' % (MX, MX, MX + 1, MX + 2))
        a('v_max_f32 v%d, v%d, v%d' % (MX, MX, MX + 3))
        a('v_mov_b32 v%d, v%d' % (MX + 1, MX))
        a('v_permlane32_swap_b32 v%d, v%d' % (MX, MX + 1))
        a('v_max_f32 v%d, v%d, v%d' % (MX, MX, MX + 1))
        c = 28 ** -0.5 * 1.4426950408889634
        a('v_mov_b32 v%d, %s' % (MX + 2, f32(c)))
        a('v_mul_f32 v%d, %s, v%d' % (MX + 4, f32(-c), MX))
        self.poll_check(fr)
        a('s_barrier')
        self.stamp(9)

        def vread(t, buf):
            return ['ds_read_b64_tr_b16 %s, v%d offset:%d' % (vr(VF + buf * 8 + k * 4 + z * 2, 2), 13 + z, t * 4096 + k * 256)
                    for k in range(2) for z in range(2)]

        def soft(t, pb):
            o = []
            b = S + 16 * t
            for p in range(8):
                o.append('v_pk_fma_f32 %s, %s, %s, %s op_sel_hi:[1,0,0]' % (
                    vr(b + 2 * p, 2), vr(b + 2 * p, 2), vr(MX + 2, 2), vr(MX + 4, 2)))
            for r in range(16):
                o.append('v_exp_f32 v%d, v%d' % (b + r, b + r))
            for p in range(8):
                o.append('v_cvt_pk_bf16_f32 v%d, v%d, v%d' % (pb + p, b + 2 * p, b + 2 * p + 1))
            return o
        first = [True]

        def pv(buf, pb):
            o = []
            for k in range(2):
                o.append('%s %s, %s, %s, %s' % (MFMA, vr(O, 16), vr(VF + buf * 8 + k * 4), vr(pb + 4 * k),
                                                '0' if first[0] else vr(O, 16)))
                first[0] = False
            return o
        body = vread(0, 0) + vread(8, 1) + soft(0, P)
        for p in range(8):
            body.append('v_and_b32 v%d, v%d, v%d' % (P + 8 + p, P + p, M + p))
            body.append('v_bfi_b32 v%d, v%d, 0, v%d' % (P + p, M + p, P + p))
        pend = pv(0, P) + pv(1, P + 8)
        for t in range(1, 8):
            pb = KF + (t % 2) * 8
            sf = soft(t, pb)
            blk = sf[:8]
            ex = sf[8:24]
            step = len(ex) // len(pend)
            for i, m_ in enumerate(pend):
                blk += [m_] + ex[i * step:(i + 1) * step]
            blk += vread(t, t % 2) + sf[24:]
            body += blk
            pend = pv(t % 2, pb)
        body += pend
        wo = self.wo_bulk()
        nA = self.opt['nA']
        self.emit(sprinkle(body, wo[:nA], 0.0, 0.85))
        self.wo_rest = wo[nA:]
        self.stamp(10)
        a('v_cndmask_b32 v2, v%d, v%d, s[26:27]' % (O + 12, O))
        a('v_mov_b32 v3, v2')
        a('v_permlane32_swap_b32 v2, v3')
        a('v_cndmask_b32 v2, v3, v2, s[26:27]')
        a('v_rcp_f32 v2, v2')
        a('s_lshl_b32 s16, %s, 2' % sR)
        a('s_add_u32 s16, s16, %s' % sW)
        a('s_lshl_b32 s16, s16, 4')
        a('s_add_u32 s16, s16, %s' % sHD)
        a('s_lshl_b32 s11, s16, 11')
        a('s_add_u32 s11, s11, %d' % WS_O)
        for p in range(8):
            a('v_pk_mul_f32 %s, %s, v[2:3] op_sel_hi:[1,0]' % (vr(O + 2 * p, 2), vr(O + 2 * p, 2)))
        for p in range(8):
            a('v_cvt_pk_bf16_f32 v%d, v%d, v%d' % (P + p, O + 2 * p, O + 2 * p + 1))
        a('v_and_b32 v%d, v%d, v6' % (P, P))
        a('v_and_b32 v%d, v%d, v6' % (P + 1, P + 1))
        a('v_and_b32 v%d, v%d, v7' % (P + 6, P + 6))
        a('v_and_b32 v%d, v%d, v7' % (P + 7, P + 7))
        for t in range(2):
            a('buffer_store_dwordx4 %s, %s, %s, s11 offen offset:%d sc1' % (vr(P + 4 * t), vL16, SRD_WS, t * 1024), tok='o')

    WO_A = 128
    HRES = 240

    def wo_bulk(self):
        g0 = ['s_lshr_b32 %s, %s, 1' % (sBK2, sW), 's_lshl_b32 %s, %s, 15' % (sBK2, sBK2),
              's_lshl_b32 %s, %s, 16' % (sBK, sN), 's_add_u32 %s, %s, %s' % (sBK, sBK, sBK2),
              's_add_u32 %s, %s, %d' % (sBK, sBK, WS_WO),
              's_cmp_ge_u32 %s, 7' % sN, 's_cselect_b32 %s, %d, %s' % (sBK, OOB, sBK)]
        out = []
        for f in range(16):
            for rel in range(2):
                g = g0 if (f == 0 and rel == 0) else []
                if f and f % 2 == 0 and rel == 0:
                    g = ['s_add_u32 %s, %s, 4096' % (sBK, sBK)]
                out.append(g + ['buffer_load_dwordx4 %s, %s, %s, %s offen offset:%d sc1' % (
                    ar(self.WO_A + (f * 2 + rel) * 4), (vXA, vXB)[rel], SRD_WS, sBK, (f % 2) * 2048)])
        return out

    def wd_bulk(self):
        g0 = ['s_mul_i32 %s, %s, %d' % (sBK, sN, 112 * 2048), 's_mul_i32 %s, %s, %d' % (sBK2, sW, 28 * 2048),
              's_add_u32 %s, %s, %s' % (sBK, sBK, sBK2), 's_add_u32 %s, %s, %d' % (sBK, sBK, WS_WD),
              's_cmp_ge_u32 %s, 7' % sN, 's_cselect_b32 %s, %d, %s' % (sBK, OOB, sBK)]
        out = []
        for f in range(28):
            for rel in range(2):
                g = g0 if (f == 0 and rel == 0) else []
                if f and f % 2 == 0 and rel == 0:
                    g = ['s_add_u32 %s, %s, 4096' % (sBK, sBK)]
                out.append(g + ['buffer_load_dwordx4 %s, %s, %s, %s offen offset:%d sc1' % (
                    ar((f * 2 + rel) * 4), (vXA, vXB)[rel], SRD_WS, sBK, (f % 2) * 2048)])
        return out

    def gu_bulk(self, tile):
        o = []
        for i in range(7):
            g = []
            if i % 4 == 0:
                g = ['s_add_u32 m0, s31, %d' % ((tile % 5) * SLOT + i * 1024),
                     's_add_u32 %s, s30, %d' % (sBK2, tile * 28672 + i * 1024)]
            o.append(g + [('buffer_load_dwordx4 %s, %s, %s offen offset:%d sc1 lds' % (vL16, SRD_WS, sBK2, (i % 4) * 1024), 'g%d' % tile)])
        return o

    def p4_wsetup(self):
        a = self.a
        a('s_mul_i32 s31, %s, 7168' % sW)
        a('s_mul_i32 s30, %s, %d' % (sJ, 7 * 28672))
        a('s_add_u32 s30, s30, s31')
        a('s_add_u32 s30, s30, %d' % WS_WGU)

    def seq_loads(self, dst, n, sreg):
        o = []
        for i in range(n):
            if i and i % 4 == 0:
                o.append('s_add_u32 %s, %s, 4096' % (sreg, sreg))
            o.append('buffer_load_dwordx4 %s, %s, %s, %s offen offset:%d sc1' % (
                vr(dst + 4 * i), vL16, SRD_WS, sreg, (i % 4) * 1024))
        return o

    def res_voffset(self, dst, sreg):
        a = self.a
        a('v_and_b32 %s, 31, v0' % dst)
        a('v_mul_u32_u24 %s, 896, %s' % (dst, dst))
        a('v_lshrrev_b32 v2, 5, v0')
        a('v_lshl_add_u32 %s, v2, 4, %s' % (dst, dst))
        a('s_lshl_b32 %s, %s, 1' % (sreg, sM))
        a('s_and_b32 s12, %s, 1' % sW)
        a('s_add_u32 %s, %s, s12' % (sreg, sreg))
        a('s_mul_i32 %s, %s, %d' % (sreg, sreg, 32 * 896))
        a('s_lshl_b32 s12, %s, 7' % sN)
        a('s_add_u32 %s, %s, s12' % (sreg, sreg))
        a('s_lshr_b32 s12, %s, 1' % sW)
        a('s_lshl_b32 s12, s12, 6')
        a('s_add_u32 %s, %s, s12' % (sreg, sreg))

    def unpack8(self, dst, src):
        for p in range(8):
            self.a('v_lshlrev_b32 v%d, 16, v%d' % (dst + 2 * p, src + p))
            self.a('v_and_b32 v%d, 0xffff0000, v%d' % (dst + 2 * p + 1, src + p))

    P3_ACC, P3_OF = 16, 48

    def p3_setup(self):
        a = self.a
        EX = XTRA + 1024
        self.unpack8(self.P3_ACC, self.HRES)
        a('s_lshl_b32 s13, %s, 1' % sM)
        a('s_and_b32 s12, %s, 1' % sW)
        a('s_add_u32 s13, s13, s12')
        a('s_lshr_b32 s12, %s, 1' % sW)
        a('s_lshl_b32 s18, s13, 1')
        a('s_add_u32 s18, s18, s12')
        a('s_lshl_b32 s20, s18, %d' % (FSH + 3))
        a('s_add_u32 s20, s20, %d' % (WS_FL + FL_F2 * FS))
        a('s_lshl_b32 s18, s18, 14')
        a('s_add_u32 s18, s18, %d' % WS_O)
        a('s_xor_b32 s11, %s, 2' % sW)
        a('s_lshl_b32 s11, s11, 12')
        a('s_add_u32 s11, s11, %d' % EX)
        a('v_add_u32 v4, s11, %s' % vL16)
        a('s_lshl_b32 s11, %s, 12' % sW)
        a('s_add_u32 s11, s11, %d' % EX)
        a('v_add_u32 v5, s11, %s' % vL16)
        a('s_lshl_b32 s14, %s, 1' % sN)
        a('s_add_u32 s14, s14, s12')
        a('s_mul_i32 s19, s13, 28672')
        a('s_lshl_b32 s12, s14, 11')
        a('s_add_u32 s19, s19, s12')
        a('s_add_u32 s19, s19, %d' % WS_HB)
        a('s_lshl_b32 s17, s13, 4')
        a('s_add_u32 s17, s17, s14')
        a('s_lshl_b32 s29, s17, 8')
        a('s_add_u32 s29, s29, %d' % WS_ST)
        a('v_mov_b32 v6, 0x3f803f80')
        a('v_lshlrev_b32 v7, 3, v0')

    def p3(self):
        a = self.a
        ACC, OF = self.P3_ACC, self.P3_OF
        self.poll([('s20', k) for k in range(8)])
        self.stamp(12)
        self.emit(self.seq_loads(OF, 16, 's18'))
        for f in range(16):
            for rel in (1, 0):
                a('%s %s, %s, %s, %s' % (MFMA, vr(ACC + 16 * rel, 16), ar(self.WO_A + (f * 2 + rel) * 4), vr(OF + 4 * f),
                                         '0' if (rel == 1 and f == 0) else vr(ACC + 16 * rel, 16)))
        self.stamp(13)
        for k in range(4):
            a('ds_write_b128 v4, %s offset:%d' % (vr(ACC + 16 + 4 * k), k * 1024))
        a('s_waitcnt lgkmcnt(0)')
        a('s_barrier')
        for k in range(4):
            a('ds_read_b128 %s, v5 offset:%d' % (vr(OF + 4 * k), k * 1024))
        H = self.HRES
        for p in range(8):
            a('v_pk_add_f32 %s, %s, %s' % (vr(ACC + 2 * p, 2), vr(ACC + 2 * p, 2), vr(OF + 2 * p, 2)))
            a('v_cvt_pk_bf16_f32 v%d, v%d, v%d' % (H + p, ACC + 2 * p, ACC + 2 * p + 1))
            if p % 4 == 3:
                a('buffer_store_dwordx4 %s, %s, %s, s19 offen offset:%d sc1' % (vr(H + p - 3), vL16, SRD_WS, (p // 4) * 1024), tok='h')
        for p in range(8):
            a('v_dot2_f32_bf16 v8, v%d, v6, %s' % (H + p, 'v8' if p else '0'))
            a('v_dot2_f32_bf16 v9, v%d, v%d, %s' % (H + p, H + p, 'v9' if p else '0'))
        a('v_mov_b32 v10, v8')
        a('v_mov_b32 v11, v9')
        a('v_permlane32_swap_b32 v8, v10')
        a('v_permlane32_swap_b32 v9, v11')
        a('v_add_f32 v8, v8, v10')
        a('v_add_f32 v9, v9, v11')
        a('s_mov_b32 exec_hi, 0')
        a('buffer_store_dwordx2 v[8:9], v7, %s, s29 offen sc1' % SRD_WS, tok='h')
        a('s_mov_b64 exec, -1')

    def p4_cs_issue(self):
        a = self.a
        a('s_lshl_b32 s11, %s, 1' % sW)
        a('v_lshrrev_b32 v112, 5, v0')
        a('v_add_u32 v112, s11, v112')
        a('v_min_u32 v113, 6, v112')
        a('v_lshlrev_b32 v113, 9, v113')
        a('v_and_b32 v114, 31, v0')
        a('v_lshl_add_u32 v113, v114, 2, v113')
        a('s_mul_i32 s11, %s, %d' % (sJ, 7 * 512))
        a('s_add_u32 s11, s11, %d' % WS_CS)
        for k in range(4):
            a('buffer_load_dword v%d, v113, %s, s11 offen offset:%d sc1' % (116 + k, SRD_WS, 128 * k))
        a('v_lshlrev_b32 v112, 7, v112')
        a('v_lshl_add_u32 v112, v114, 2, v112')
        a('v_add_u32 v112, %d, v112' % XTRA)

    def p4_cs_finish(self):
        a = self.a
        a('v_add_f32 v116, v116, v117')
        a('v_add_f32 v118, v118, v119')
        a('v_add_f32 v116, v116, v118')
        a('ds_write_b32 v112, v116')

    def p4_setup(self):
        a = self.a
        a('s_lshl_b32 s13, %s, 2' % sR4)
        a('s_add_u32 s13, s13, %s' % sW)
        a('s_mul_i32 s18, s13, 28672')
        a('s_add_u32 s18, s18, %d' % WS_HB)
        a('s_lshl_b32 s20, s13, %d' % (FSH + 4))
        a('s_add_u32 s20, s20, %d' % (WS_FL + FL_F3 * FS))
        a('v_and_b32 v2, 31, v0')
        a('v_lshlrev_b32 v2, 3, v2')
        a('v_lshrrev_b32 v3, 5, v0')
        a('v_mul_u32_u24 v4, %d, v3' % (7 * 256))
        a('v_add_u32 v14, v2, v4')
        a('s_lshl_b32 s19, s13, 12')
        a('s_add_u32 s19, s19, %d' % WS_ST)
        a('v_add_u32 v5, %d, %s' % (2 * SLOT, vL16))
        a('v_add_u32 v6, %d, %s' % (4 * SLOT, vL16))
        a('v_lshlrev_b32 v7, 6, v3')
        a('v_add_u32 v7, %d, v7' % XTRA)
        a('s_mul_i32 s29, s13, %d' % (112 * 1024))
        a('s_mul_i32 s12, %s, %d' % (sJ, 7 * 1024))
        a('s_add_u32 s29, s29, s12')
        a('s_add_u32 s29, s29, %d' % WS_HH)
        a('s_add_u32 s28, s29, 4096')
        a('s_lshl_b32 s27, s13, 4')
        a('s_add_u32 s27, s27, %s' % sJ)

    def f4_set(self, stage):
        return ['s_mov_b32 s11, s27'] + self.flag_set('s11', FL_F4 + stage * 1024)

    def p4(self, wd_rest):
        a = self.a
        T0 = self.opt['T0']
        HF, ACC, WF, CSR, TM, PK = 16, 128, 192, 208, 224, 232
        NACC = 4
        self.poll([('s20', k) for k in range(14)])
        self.stamp(16)
        hl = self.seq_loads(HF, 28, 's18')
        for k in range(7):
            hl.append('buffer_load_dwordx2 %s, v14, %s, s19 offen offset:%d sc1' % (vr(CSR + 2 * k, 2), SRD_WS, 256 * k))
        base = [vL16, 'v5', 'v6']
        cnt = [0]

        def wread(tile, k):
            s = tile % 5
            b = WF + (cnt[0] % 4) * 4
            cnt[0] += 1
            return b, 'ds_read_b128 %s, %s offset:%d' % (vr(b), base[s >> 1], (s & 1) * SLOT + k * 1024)

        def chain(seq):
            rd = [wread(t, k) for t, k in seq]
            o = [rd[i][1] for i in range(min(3, len(rd)))]
            for i, (t, k) in enumerate(seq):
                acc = vr(ACC + 16 * (t % NACC), 16)
                o.append('%s %s, %s, %s, %s' % (MFMA, acc, vr(rd[i][0]), vr(HF + 4 * k), acc if k else '0'))
                if i + 3 < len(rd):
                    o.append(rd[i + 3][1])
            return o
        C1 = -2.0 * 1.4426950408889634 * 0.7978845608028654
        st = []
        for k in range(1, 7):
            st.append('v_add_f32 v%d, v%d, v%d' % (CSR, CSR, CSR + 2 * k))
            st.append('v_add_f32 v%d, v%d, v%d' % (CSR + 1, CSR + 1, CSR + 2 * k + 1))
        st += ['v_mov_b32 v12, v%d' % CSR, 'v_mov_b32 v13, v%d' % (CSR + 1),
               'v_permlane32_swap_b32 v%d, v12' % CSR, 'v_permlane32_swap_b32 v%d, v13' % (CSR + 1),
               'v_add_f32 v12, v12, v%d' % CSR, 'v_add_f32 v13, v13, v%d' % (CSR + 1),
               'v_mul_f32 v8, %s, v12' % f32(-1.0 / 448), 'v_mul_f32 v13, %s, v13' % f32(1.0 / 448),
               'v_fma_f32 v13, -v8, v8, v13', 'v_max_f32 v13, 0, v13', 'v_add_f32 v11, %s, v13' % f32(1e-5),
               'v_rsq_f32 v12, v11', 'v_mul_f32 v9, %s, v12' % f32(C1), 'v_mul_f32 v13, v12, v12',
               'v_mul_f32 v10, v9, v13', 'v_mul_f32 v10, %s, v10' % f32(0.044715)]

        def gelu(tile):
            b = ACC + 16 * (tile % NACC)
            pk = PK + (tile % 2) * 4
            o = ['ds_read_b128 %s, v7 offset:%d' % (vr(CSR + 4 * k), tile * 128 + 16 * k) for k in range(4)]
            for h in range(2):
                E = range(4 * h, 4 * h + 4)
                for e in E:
                    o.append('v_fma_f32 v%d, v%d, v8, v%d' % (b + e, CSR + e, b + e))
                for e in E:
                    o.append('v_mul_f32 v%d, v%d, v%d' % (TM + e % 4, b + e, b + e))
                for e in E:
                    o.append('v_fma_f32 v%d, v%d, v10, v9' % (TM + e % 4, TM + e % 4))
                for e in E:
                    o.append('v_mul_f32 v%d, v%d, v%d' % (TM + e % 4, TM + e % 4, b + e))
                for e in E:
                    o.append('v_exp_f32 v%d, v%d' % (TM + e % 4, TM + e % 4))
                    o.append('v_fma_f32 v%d, v%d, v8, v%d' % (b + 8 + e, CSR + 8 + e, b + 8 + e))
                for e in E:
                    o.append('v_fma_f32 v%d, v%d, v11, v11' % (TM + e % 4, TM + e % 4))
                for e in E:
                    o.append('v_rcp_f32 v%d, v%d' % (TM + e % 4, TM + e % 4))
                    o.append('v_mul_f32 v%d, v%d, v%d' % (b + e, b + e, b + 8 + e))
                for e in E:
                    o.append('v_mul_f32 v%d, v%d, v%d' % (b + e, b + e, TM + e % 4))
                for p in range(2):
                    o.append('v_cvt_pk_bf16_f32 v%d, v%d, v%d' % (pk + 2 * h + p, b + 4 * h + 2 * p, b + 4 * h + 2 * p + 1))
            o.append(('buffer_store_dwordx4 %s, %s, %s, s%d offen offset:%d sc1' % (
                vr(pk), vL16, SRD_WS, 29 if tile < 4 else 28, (tile % 4) * 1024), 'hh%d' % tile))
            return o
        nup = 15
        self.emit(hl[:nup])
        for t in range(5):
            a.wait_tok('g%d' % t)
        a('s_waitcnt lgkmcnt(0)')
        a('s_barrier')
        main = chain([(t, k) for k in range(28) for t in range(T0)])
        main, rest = weave(main, hl[nup:], per=1)
        main, rest = weave(main + rest, st, per=1, start=T0 * 28 - len(st) - 2)
        self.emit(main + rest)
        self.stamp(17)
        a('s_waitcnt lgkmcnt(0)')
        a('s_barrier')
        bulk = self.gu_bulk(5) + self.gu_bulk(6) + wd_rest
        nwin = 7 - T0
        share = [14] + [(len(bulk) - 14 + nwin - 2) // (nwin - 1)] * (nwin - 1)
        for t in range(T0, 7):
            if t == 5:
                a.wait_tok('g5')
                a.wait_tok('g6')
                a('s_barrier')
            main = chain([(t, k) for k in range(28)])
            main, rest = weave(main, gelu(t - T0))
            n = share[t - T0]
            main = sprinkle(main + rest, bulk[:n], 0.0, 0.9)
            bulk = bulk[n:]
            self.emit(main)
            self.stamp(18 + t - T0)
        assert not bulk
        a.wait_tok('hh2')
        self.emit(self.f4_set(0))
        for t in range(7 - T0, 7):
            self.emit(gelu(t))
        a.wait_tok('hh4')
        self.emit(self.f4_set(1))

    def p5(self):
        a = self.a
        ACC, HHF, NBUF = 16, 80, 40
        a('s_and_b32 s13, %s, 1' % sW)
        a('s_lshl_b32 s14, %s, 1' % sM)
        a('s_lshl_b32 s20, s14, %d' % (FSH + 4))
        a('s_lshl_b32 s15, %s, %d' % (sW, FSH + 2))
        a('s_add_u32 s20, s20, s15')
        a('s_add_u32 s20, s20, %d' % (WS_FL + FL_F4 * FS))
        a('s_add_u32 s21, s20, %d' % (1024 * FS))
        a('s_add_u32 s22, s20, %d' % (2048 * FS))
        fl = lambda st: [('s%d' % (20 + st), r * 16 + jj) for r in range(2) for jj in range(4)]
        self.emit(self.poll_loads(fl(0)))
        a('s_add_u32 s11, s14, s13')
        a('s_xor_b32 s12, s11, 1')
        a('s_mul_i32 s14, %s, %d' % (sW, 28 * 1024))
        a('s_add_u32 s14, s14, %d' % WS_HH)
        for k in range(2):
            a('s_mul_i32 s%d, s%d, %d' % (11 + k, 11 + k, 112 * 1024))
            a('s_add_u32 s%d, s%d, s14' % (16 + k, 11 + k))
        self.unpack8(ACC, self.HRES)
        self.res_voffset('v4', 's18')
        seq = [(jj * 7 + tau, ra) for tau in range(7) for jj in range(4) for ra in range(2)]

        def load(i):
            f, ra = seq[i]
            return ['s_add_u32 s11, s%d, %d' % (16 + ra, (f // 4) * 4096),
                    'buffer_load_dwordx4 %s, %s, %s, s11 offen offset:%d sc1' % (
                        vr(HHF + (i % NBUF) * 4), vL16, SRD_WS, (f % 4) * 1024)]
        self.poll_check(fl(0))
        self.stamp(23)
        AHEAD = 14
        nxt = [0]

        def issue_upto(n):
            while nxt[0] < min(n, len(seq)):
                i = nxt[0]
                if i == 12:
                    a.wait_tok('hh6')
                    self.emit(self.f4_set(2))
                if i == 16:
                    self.emit(self.poll_loads(fl(1)))
                if i == 24:
                    self.poll_check(fl(1))
                if i == 32:
                    self.emit(self.poll_loads(fl(2)))
                if i == 40:
                    self.poll_check(fl(2))
                self.emit(load(i))
                nxt[0] += 1
        issue_upto(AHEAD)
        seen = set([(0, 0)])
        for i, (f, ra) in enumerate(seq):
            for rb in range(2):
                acc = vr(ACC + 16 * (ra + 2 * rb), 16)
                a('%s %s, %s, %s, %s' % (MFMA, acc, ar((f * 2 + rb) * 4), vr(HHF + (i % NBUF) * 4),
                                         acc if (ra, rb) in seen else '0'))
                seen.add((ra, rb))
            issue_upto(i + 1 + AHEAD)
        self.stamp(24)
        a('s_barrier')
        for rel in range(1, 4):
            a('s_xor_b32 s11, %s, %d' % (sW, rel))
            a('s_mul_i32 s11, s11, 12288')
            a('v_add_u32 v5, s11, %s' % vL16)
            for k in range(4):
                a('ds_write_b128 v5, %s offset:%d' % (vr(ACC + 16 * rel + 4 * k), (rel - 1) * 4096 + k * 1024))
        a('s_mul_i32 s11, %s, 12288' % sW)
        a('v_add_u32 v5, s11, %s' % vL16)
        a('s_waitcnt lgkmcnt(0)')
        a('s_barrier')
        for k in range(12):
            a('ds_read_b128 %s, v5 offset:%d' % (vr(HHF + 4 * k), k * 1024))
        for rel in range(3):
            for p in range(8):
                a('v_pk_add_f32 %s, %s, %s' % (vr(ACC + 2 * p, 2), vr(ACC + 2 * p, 2), vr(HHF + 16 * rel + 2 * p, 2)))
        for p in range(8):
            a('v_cvt_pk_bf16_f32 v%d, v%d, v%d' % (8 + p, ACC + 2 * p, ACC + 2 * p + 1))
            if p % 4 == 3:
                a('buffer_store_dwordx4 %s, v4, %s, s18 offen offset:%d' % (vr(8 + p - 3), SRD_OUT, (p // 4) * 32))
        self.stamp(25)

    def build(self):
        a = self.a
        nm = NAME + '_kernel'
        a('.globl %s\n.p2align 8\n.type %s,@function\n%s:' % (nm, nm, nm))
        self.prologue()
        a('s_cmp_ge_u32 %s, 7' % sN)
        a('s_cbranch_scc1 L_idle1')
        self.p1()
        self.p2_setup()
        self.get_epoch(issued=True)
        self.stamp(5)
        a.wait_tok('qkv')
        self.emit(self.flag_set('s16', FL_F1))
        a('L_join1:')
        self.stamp(6)
        self.p2()
        self.emit(self.wo_rest)
        self.p3_setup()
        a.wait_tok('o')
        self.emit(self.flag_set('s16', FL_F2))
        self.stamp(11)
        self.emit(self.gu_bulk(0))
        self.p4_cs_issue()
        a('s_barrier')
        a('s_cmp_ge_u32 %s, 7' % sN)
        a('s_cbranch_scc1 L_skip3')
        a.begin_cond('p3')
        self.p3()
        a.end_cond()
        a('L_skip3:')
        self.stamp(14)
        self.emit(self.gu_bulk(1))
        self.p4_cs_finish()
        a('s_cmp_ge_u32 %s, 7' % sN)
        a('s_cbranch_scc1 L_skip3b')
        a.begin_cond('p3')
        a.wait_tok('h')
        self.emit(self.flag_set('s17', FL_F3))
        a.end_cond()
        a('L_skip3b:')
        self.stamp(15)
        self.emit(self.gu_bulk(2) + self.gu_bulk(3) + self.gu_bulk(4))
        self.p4_setup()
        a('s_mul_i32 s21, %s, %d' % (sW, 7 * FS))
        a('s_add_u32 s21, s21, %d' % (WS_FL + FL_FD * FS))
        self.poll([('s21', k) for k in range(7)])
        self.p4(self.wd_bulk())
        self.stamp(22)
        a('s_cmp_ge_u32 %s, 7' % sN)
        a('s_cbranch_scc1 L_idle5')
        self.p5()
        self.stamp_out()
        a('L_exit:')
        a('s_endpgm')
        a('L_idle5:')
        a.fresh()
        a('s_waitcnt vmcnt(0)')
        self.emit(self.f4_set(2))
        self.stamp_out()
        a('s_endpgm')
        a('L_idle1:')
        a.fresh()
        a('s_waitcnt lgkmcnt(0)')
        self.repack()
        self.p2_setup()
        a('s_waitcnt vmcnt(0) lgkmcnt(0)')
        a('s_branch L_join1')
        a('L_code_end:')
        for x in self.cold:
            a.raw(x)
        hdr = open('cdna_kernels/%s.s.ref' % NAME).read().split('; Override launch')[0]
        hdr += '; @launch grid=(256,1,1) block=(256,1,1) lds=%d\n' % LDS_BYTES
        hdr += '.amdgcn_target "amdgcn-amd-amdhsa--gfx950"\n.text\n'
        body = a.finalize()
        tail = ('.section .rodata,"a"\n.p2align 6\n.amdhsa_kernel %s\n  .amdhsa_next_free_vgpr 512\n  .amdhsa_next_free_sgpr 102\n'
                '  .amdhsa_accum_offset 256\n  .amdhsa_group_segment_fixed_size 0\n  .amdhsa_kernarg_size 80\n'
                '  .amdhsa_user_sgpr_count 2\n  .amdhsa_user_sgpr_kernarg_segment_ptr 1\n'
                '  .amdhsa_system_sgpr_workgroup_id_x 1\n.end_amdhsa_kernel\n' % nm)
        return hdr + body + tail


if __name__ == '__main__':
    out = sys.argv[1]
    opt = {}
    for x in sys.argv[2:]:
        if '=' in x:
            k, v = x.split('=')
            opt[k] = int(v) if v.lstrip('-').isdigit() else v
    txt = Gen(stamps='--ts' in sys.argv, **opt).build()
    open(out, 'w').write(txt)
    print('wrote', out, len(txt), 'bytes')
```

```python
import sys, struct
from asmlib import Asm, weave, Pseudo

NAME = 'sequential_preLN__sliding_block__glu_gated_geglu__prompt'

WS_QKV = 0
WS_O = WS_QKV + 64 * 84 * 1024
WS_HB = WS_O + 64 * 32768
WS_ST = WS_HB + 64 * 28672
WS_HH = WS_ST + 64 * 4096
WS_WGU = WS_HH + 64 * 112 * 1024
WS_CS = WS_WGU + 112 * 28672
WS_WD = WS_CS + 112 * 512
WS_WO = WS_WD + 7 * 112 * 2048
WS_FL = WS_WO + 7 * 32 * 2048
FS, FSH = 512, 9
FL_F1 = 0
FL_FG = FL_F1 + 1024
FL_FD = FL_FG + 32
FL_F2 = FL_FD + 32
FL_F3 = FL_F2 + 1024
FL_F4 = FL_F3 + 1024
FL_END = FL_F4 + 3072
WS_EP = WS_FL + FL_END * FS
WS_TS = WS_EP + 128
WS_END = WS_TS + 256 * 4 * 256
OOB = 0x7ff00000

LDS_BYTES = 163840
SLOT = 28672
XTRA = 5 * SLOT

sW, sXCD, sI, sM, sN, sR, sHD, sCT = 's3', 's4', 's5', 's6', 's7', 's8', 's9', 's10'
SRD_X, SRD_WS, SRD_OUT = 's[36:39]', 's[40:43]', 's[44:47]'
SRD_WQKV, SRD_G, SRD_U, SRD_D = 's[52:55]', 's[56:59]', 's[60:63]', 's[64:67]'
PT = 52
sBK, sBK2, sR4, sJ = 's48', 's49', 's4', 's5'
sEP, sEP2 = 's50', 's[50:51]'
DBGP, WSP = 's[32:33]', 's[34:35]'
MASK0 = 68
vL16 = 'v1'
vXA, vXB, vFL = 'v248', 'v249', 250


def f32(x):
    return '0x%08x' % struct.unpack('<I', struct.pack('<f', x))[0]


def vr(b, n=4, t='v'):
    return '%s[%d:%d]' % (t, b, b + n - 1)


def ar(b, n=4):
    return vr(b, n, 'a')


MFMA = 'v_mfma_f32_32x32x16_bf16'


def sprinkle(main, groups, lo=0.0, hi=1.0):
    n = len(main)
    a, b = int(n * lo), int(n * hi)
    out, k = [], 0
    for i, x in enumerate(main):
        while k < len(groups) and i >= a + (b - a) * k // max(len(groups), 1):
            out.extend(groups[k]); k += 1
        out.append(x)
    for g in groups[k:]:
        out.extend(g)
    return out


class Gen:
    def __init__(self, stamps=False, **opt):
        self.a = Asm()
        self.stamps = stamps
        self.nl = 0
        self.cold = []
        self.opt = dict(p2map='A', p4map='A', rot=1, T0=3, nA=24, codepf=1, nt=1)
        self.opt.update(opt)

    def label(self, s):
        self.nl += 1
        return 'L_%s_%d' % (s, self.nl)

    def emit(self, lst):
        for x in lst:
            if isinstance(x, tuple):
                self.a(x[0], tok=x[1])
            elif isinstance(x, str):
                self.a(x)
            elif isinstance(x, list):
                self.emit(x)
            else:
                self.a.items.append(x)

    def stamp(self, k):
        if self.stamps:
            self.a('s_memtime s[100:101]\ns_waitcnt lgkmcnt(0)\nv_writelane_b32 v254, s100, %d' % k)

    def stamp_out(self):
        if self.stamps:
            a = self.a
            a('s_lshl_b32 s11, s2, 2')
            a('s_add_u32 s11, s11, %s' % sW)
            a('s_lshl_b32 s11, s11, 8')
            a('s_add_u32 s11, s11, %d' % WS_TS)
            a('v_lshlrev_b32 v2, 2, v0')
            a('buffer_store_dword v254, v2, %s, s11 offen' % SRD_WS)
            if self.opt.get('dbg'):
                skip = self.label('dbg')
                a('s_memrealtime s[100:101]')
                a('s_lshl_b32 s11, s2, 2')
                a('s_add_u32 s11, s11, %s' % sW)
                a('s_cmp_lg_u32 s11, %d' % (self.opt['dbg'] * 4))
                a('s_cbranch_scc1 %s' % skip)
                a('v_readlane_b32 s12, v254, 0')
                a('v_readlane_b32 s14, v254, 63')
                for k, st in enumerate([1, 2, 4, 6, 7, 8, 9, 11, 12, 15, 16, 17, 22, 25]):
                    a('v_readlane_b32 s13, v254, %d' % st)
                    a('s_nop 3')
                    a('s_sub_u32 s13, s13, s12')
                    a('v_writelane_b32 v3, s13, %d' % (k + 1))
                a('s_waitcnt lgkmcnt(0)')
                a('s_sub_u32 s13, s100, s14')
                a('v_writelane_b32 v3, s13, 15')
                a('s_mov_b64 exec, 0xfffe')
                a('global_store_dword v2, v3, %s' % DBGP)
                a('s_mov_b64 exec, -1')
                a(skip + ':')

    def srd(self, d, p, size):
        a = self.a
        a('s_mov_b32 s%d, s%d' % (d, p))
        a('s_and_b32 s%d, s%d, 0xffff' % (d + 1, p + 1))
        a('s_mov_b32 s%d, %d' % (d + 2, size))
        a('s_mov_b32 s%d, 0x20000' % (d + 3))

    def flag_set(self, sidx, base):
        return ['s_lshl_b32 %s, %s, %d' % (sidx, sidx, FSH),
                's_add_u32 %s, %s, %d' % (sidx, sidx, WS_FL + base * FS),
                's_mov_b32 exec_hi, 0',
                'buffer_store_dwordx4 %s, %s, %s, %s offen sc1' % (vr(vFL), vL16, SRD_WS, sidx),
                's_mov_b32 exec_hi, -1']

    def poll_loads(self, items, first=True):
        items = list(items)
        if len(items) % 2:
            items.append(items[-1])
        assert len(items) <= 16
        base = WSP if first else 's[14:15]'
        return ['s_load_dword s%d, %s, %s offset:%d' % (PT + k, base, so, imm * FS) for k, (so, imm) in enumerate(items)]

    def poll_check(self, items):
        a = self.a
        n = (len(items) + 1) // 2
        top, done, slow = self.label('poll'), self.label('pdone'), self.label('pslow')
        a('s_mov_b64 s[14:15], %s' % WSP)
        a('s_mov_b32 s13, %d' % (FS // 64 - 1))
        a(top + ':')
        a('s_waitcnt lgkmcnt(0)')
        for k in range(n):
            p = 's[%d:%d]' % (PT + 2 * k, PT + 2 * k + 1)
            a('s_xor_b64 %s, %s, %s' % (p, p, sEP2))
            if k:
                a('s_or_b64 s[%d:%d], s[%d:%d], %s' % (PT, PT + 1, PT, PT + 1, p))
        a('s_cbranch_scc0 %s' % done)
        a.raw('s_sub_u32 s13, s13, 1')
        a.raw('s_cbranch_scc1 %s' % slow)
        a.raw('s_add_u32 s14, s14, 64')
        a.raw('s_addc_u32 s15, s15, 0')
        for x in self.poll_loads(items, first=False):
            a.raw(x)
        a.raw('s_branch %s' % top)
        a(done + ':')
        o = [slow + ':', 'v_mov_b32 v255, 0']
        for k, (so, imm) in enumerate(items):
            o += ['s_add_u32 s13, %s, %d' % (so, imm * FS), 'v_writelane_b32 v255, s13, %d' % k]
        o += ['s_mov_b64 exec, 0x%x' % ((1 << len(items)) - 1), slow + '_l:',
              'buffer_load_dword v253, v255, %s, 0 offen sc1' % SRD_WS, 's_waitcnt vmcnt(0)',
              'v_cmp_ne_u32 vcc, %s, v253' % sEP, 's_nop 4', 's_cbranch_vccz %s_d' % slow,
              's_sub_u32 %s, %s, 1' % (sCT, sCT), 's_cbranch_scc1 L_exit', 's_branch %s_l' % slow,
              slow + '_d:', 'v_mov_b32 v253, %s' % sEP, 's_mov_b64 exec, -1', 's_nop 4', 's_branch %s' % done]
        self.cold += o

    def poll(self, items):
        self.emit(self.poll_loads(items))
        self.poll_check(items)

    def epoch_issue(self):
        self.a('s_load_dword %s, %s, 0x0' % (sEP, DBGP))

    def flag_set_wg(self, base):
        a = self.a
        skip = self.label('fw')
        a('s_cmp_lg_u32 %s, 0' % sW)
        a('s_cbranch_scc1 %s' % skip)
        a.begin_cond(skip)
        a('s_mov_b32 s11, %s' % sM)
        self.emit(self.flag_set('s11', base))
        a.end_cond()
        a(skip + ':')

    def get_epoch(self, issued=False):
        a = self.a
        top, done = self.label('ep'), self.label('epd')
        if not issued:
            self.epoch_issue()
        a('s_waitcnt lgkmcnt(0)')
        a('s_cmp_lg_u32 %s, 0' % sEP)
        a('s_cbranch_scc0 %s' % top)
        a(done + ':')
        self.cold += [top + ':', 'v_mov_b32 v255, 0', top + '_l:', 'global_load_dword v253, v255, %s sc1' % DBGP,
                      's_waitcnt vmcnt(0)', 'v_readfirstlane_b32 %s, v253' % sEP, 's_nop 4', 's_cmp_lg_u32 %s, 0' % sEP,
                      's_cbranch_scc1 %s' % done, 's_sub_u32 %s, %s, 1' % (sCT, sCT), 's_cbranch_scc1 L_exit',
                      's_branch %s_l' % top]
        a('s_mov_b32 s51, s50')
        for k in range(4):
            a('v_mov_b32 v%d, %s' % (vFL + k, sEP))

    def tr_lane_addr(self, dst, pitch, h16, t0, t1):
        a = self.a
        a('v_lshrrev_b32 %s, 5, v0' % t0)
        a('v_lshlrev_b32 %s, 3, %s' % (t0, t0))
        a('v_bfe_u32 %s, v0, 2, 2' % t1)
        a('v_add_u32 %s, %s, %s' % (t0, t0, t1))
        a('v_mul_u32_u24 %s, %d, %s' % (dst, pitch, t0))
        a('v_bfe_u32 %s, v0, 4, 1' % t0)
        a('v_mul_u32_u24 %s, %d, %s' % (t0, h16, t0))
        a('v_add_u32 %s, %s, %s' % (dst, dst, t0))
        a('v_and_b32 %s, 1, v0' % t0)
        a('v_lshl_add_u32 %s, %s, 4, %s' % (dst, t0, dst))
        a('v_bfe_u32 %s, v0, 1, 1' % t0)
        a('v_lshl_add_u32 %s, %s, 3, %s' % (dst, t0, dst))

    def prologue(self):
        a = self.a
        a.fresh()
        a('s_cmp_ge_u32 s2, 256')
        a('s_cbranch_scc1 L_exit')
        a('s_load_dwordx16 s[16:31], s[0:1], 0')
        a('s_load_dwordx4 s[32:35], s[0:1], 64')
        a('v_lshrrev_b32 v2, 6, v0')
        a('v_and_b32 v0, 63, v0')
        a('v_readfirstlane_b32 %s, v2' % sW)
        a('v_lshlrev_b32 %s, 4, v0' % vL16)
        if self.stamps:
            a('v_mov_b32 v254, 0')
            self.stamp(0)
            a('s_memrealtime s[100:101]\ns_waitcnt lgkmcnt(0)\nv_writelane_b32 v254, s100, 63')
        a('s_and_b32 %s, s2, 7' % sXCD)
        a('s_lshr_b32 %s, s2, 3' % sI)
        a('s_and_b32 s11, %s, 3' % sI)
        a('s_lshl_b32 %s, %s, 2' % (sM, sXCD))
        a('s_add_u32 %s, %s, s11' % (sM, sM))
        a('s_lshr_b32 %s, %s, 2' % (sN, sI))
        a('s_mov_b32 %s, 0x40000' % sCT)

    def roles(self):
        a = self.a
        self.srd(40, 34, WS_END)
        self.srd(44, 30, 2048 * 896)
        a('s_and_b32 s11, %s, 1' % sI)
        a('s_lshl_b32 s12, %s, 1' % sN)
        a('s_add_u32 s12, s12, s11')
        a('s_lshr_b32 s13, %s, 1' % sM)
        if self.opt['p2map'] == 'A':
            a('s_mov_b32 %s, s13' % sR)
            a('s_mov_b32 %s, s12' % sHD)
        else:
            a('s_lshr_b32 %s, %s, 1' % (sR, sI))
            a('s_lshl_b32 %s, %s, 1' % (sHD, sXCD))
            a('s_add_u32 %s, %s, s11' % (sHD, sHD))
        if self.opt['p4map'] == 'A':
            a('s_mov_b32 %s, s13' % sR4)
            a('s_mov_b32 %s, s12' % sJ)
        else:
            a('s_and_b32 s11, %s, 1' % sXCD)
            a('s_lshl_b32 s11, s11, 3')
            a('s_add_u32 s11, s11, %s' % sN)
            a('s_lshr_b32 s12, %s, 1' % sXCD)
            a('s_lshl_b32 s12, s12, 2')
            a('s_and_b32 s13, %s, 3' % sI)
            a('s_add_u32 %s, s12, s13' % sR4)
            a('s_mov_b32 %s, s11' % sJ)
        a('s_lshr_b32 s11, %s, 1' % sW)
        a('s_lshl_b32 s11, s11, 10')
        a('v_xor_b32 %s, s11, %s' % (vXA, vL16))
        a('v_xor_b32 %s, 1024, %s' % (vXB, vXA))

    def code_prefetch(self, dst):
        if not self.opt['codepf']:
            return
        a = self.a
        skip = self.label('cpf')
        a('s_lshr_b32 s11, s2, 3')
        a('s_lshl_b32 s11, s11, 2')
        a('s_add_u32 s11, s11, %s' % sW)
        a('s_lshl_b32 s11, s11, 10')
        a('s_cmp_ge_u32 s11, L_code_end-L_code_pc-1024')
        a('s_cbranch_scc1 %s' % skip)
        a.begin_cond(skip)
        a('s_getpc_b64 s[12:13]')
        if not hasattr(self, 'pc_done'):
            a('L_code_pc:')
            self.pc_done = True
        else:
            lab = self.label('pc')
            a(lab + ':')
            a('s_sub_u32 s12, s12, %s-L_code_pc' % lab)
            a('s_subb_u32 s13, s13, 0')
        a('s_add_u32 s12, s12, s11')
        a('s_addc_u32 s13, s13, 0')
        a('v_mov_b32 v%d, s13' % (dst + 1))
        a('v_add_co_u32 v%d, vcc, s12, %s' % (dst, vL16))
        a('v_addc_co_u32 v%d, vcc, 0, v%d, vcc' % (dst + 1, dst + 1))
        a('global_load_dwordx4 %s, %s, off' % (vr(dst + 2), vr(dst, 2)))
        a.end_cond()
        a(skip + ':')

    P1_X = 0
    P1_W = 57344

    def p1_wdma(self, s):
        o = []
        slot = self.P1_W + (s % 4) * 24576
        for h in range(2):
            g = ['s_add_u32 m0, s17, %d' % (slot + h * 3072)]
            if h == 0:
                g += ['s_mul_i32 s27, s%d, 1344' % (20 + s), 's_add_u32 s27, s27, s16']
            else:
                g += ['s_add_u32 s27, s27, %d' % (8 * 2688)]
            for i in range(3):
                g.append(('buffer_load_dwordx4 v%d, %s, s27 offen offset:%d lds' % (5 + i, SRD_WQKV, i * 1024), 'w%d' % s))
            o.append(g)
        return o

    def p1(self):
        a = self.a
        XR, ACC, XF, WF, T = 16, 72, 120, 136, 184
        NB_ = 4
        a('v_lshrrev_b32 v2, 3, v0')
        a('v_and_b32 v3, 7, v0')
        a('v_mul_u32_u24 v4, 896, v2')
        a('v_lshl_add_u32 v4, v3, 4, v4')
        a('v_add_u32 v15, %d, v4' % (8 * 896))
        a('s_lshl_b32 s11, %s, 6' % sM)
        a('s_lshl_b32 s12, %s, 4' % sW)
        a('s_add_u32 s11, s11, s12')
        a('s_mul_i32 s14, s11, 896')
        if self.opt['rot']:
            a('s_and_b32 s15, %s, 3' % sI)
            a('s_lshl_b32 s15, s15, 1')
            a('s_add_u32 s15, s15, %s' % sXCD)
            a('s_add_u32 s15, s15, %s' % sN)
            a('s_mul_i32 s11, s15, 37')
            a('s_lshr_b32 s11, s11, 8')
            a('s_mul_i32 s11, s11, 7')
            a('s_sub_u32 s15, s15, s11')
            a('s_lshl_b32 s15, s15, 7')
        else:
            a('s_mov_b32 s15, 0')
        self.srd(36, 16, 2048 * 896)
        self.srd(52, 18, 448 * 2688)
        self.roles()
        for s in range(7):
            a('s_mov_b32 s%d, s15' % (20 + s))
            a('s_add_u32 s11, s14, s15')
            for q in range(2):
                a('buffer_load_dwordx4 %s, v%d, %s, s11 offen' % (vr(XR + (s * 2 + q) * 4), 15 if q else 4, SRD_X))
            if s < 6:
                a('s_add_u32 s15, s15, 128')
                a('s_cmp_eq_u32 s15, 896')
                a('s_cselect_b32 s15, 0, s15')
        for i in range(3):
            a('v_add_u32 v8, %d, v0' % (64 * i))
            a('v_mul_u32_u24 v9, 171, v8')
            a('v_lshrrev_b32 v9, 12, v9')
            a('v_mul_u32_u24 v10, 24, v9')
            a('v_sub_u32 v10, v8, v10')
            a('v_lshlrev_b32 v11, 1, v9')
            a('v_and_b32 v11, 4, v11')
            a('v_xor_b32 v10, v10, v11')
            a('v_mul_u32_u24 v9, 2688, v9')
            a('v_lshl_add_u32 v%d, v10, 4, v9' % (5 + i))
            if i:
                a('v_subrev_u32 v%d, %d, v%d' % (5 + i, 1024 * i, 5 + i))
        a('s_mul_i32 s16, %s, %d' % (sW, 16 * 2688))
        a('s_mul_i32 s11, %s, 384' % sN)
        a('s_add_u32 s16, s16, s11')
        a('s_mul_i32 s17, %s, 6144' % sW)
        a('v_lshrrev_b32 v10, 4, v0')
        a('v_xor_b32 v10, v3, v10')
        a('v_lshlrev_b32 v11, 7, v2')
        a('s_lshl_b32 s11, %s, 11' % sW)
        a('v_add_u32 v11, s11, v11')
        a('v_lshl_add_u32 v8, v10, 4, v11')
        a('v_xor_b32 v9, 64, v8')
        a('v_add_u32 v9, 1024, v9')
        a('v_and_b32 v14, 31, v0')
        a('v_lshrrev_b32 v15, 5, v0')
        a('v_bfe_u32 v2, v0, 1, 3')
        a('v_xor_b32 v15, v15, v2')
        a('s_and_b32 s11, %s, 1' % sW)
        a('s_lshl_b32 s11, s11, 12')
        a('v_lshlrev_b32 v14, 7, v14')
        a('v_add_u32 v14, s11, v14')
        for u in range(4):
            a('v_xor_b32 v2, %d, v15' % (2 * u))
            a('v_lshl_add_u32 v%d, v2, 4, v14' % (10 + u))
        self.tr_lane_addr('v14', 384, 32, 'v2', 'v3')
        a('v_bfe_u32 v2, v0, 3, 1')
        a('s_lshr_b32 s11, %s, 1' % sW)
        a('s_mul_i32 s11, s11, 3')
        for t in range(3):
            a('s_add_u32 s12, s11, %d' % t)
            a('v_xor_b32 v3, s12, v2')
            a('v_lshl_add_u32 v%d, v3, 6, v14' % (T + t))
            a('v_add_u32 v%d, %d, v%d' % (T + t, self.P1_W, T + t))
            a('v_add_u32 v%d, 49152, v%d' % (T + 3 + t, T + t))
        ONE, SU, SQ, RS, NB, TMP = T + 6, T + 8, T + 12, T + 16, T + 18, T + 20
        a('v_mov_b32 v%d, 0x3f803f80' % ONE)
        self.stamp(1)
        st = []
        for s in range(7):
            for q in range(2):
                for d in range(4):
                    x = XR + (s * 2 + q) * 4 + d
                    k = q * 2 + (d & 1)
                    first = s == 0 and d < 2
                    st.append('v_dot2_f32_bf16 v%d, v%d, v%d, %s' % (SU + k, x, ONE, '0' if first else 'v%d' % (SU + k)))
                    st.append('v_dot2_f32_bf16 v%d, v%d, v%d, %s' % (SQ + k, x, x, '0' if first else 'v%d' % (SQ + k)))
        red = []
        for q in range(2):
            st.append('v_add_f32 v%d, v%d, v%d' % (SU + 2 * q, SU + 2 * q, SU + 2 * q + 1))
            st.append('v_add_f32 v%d, v%d, v%d' % (SQ + 2 * q, SQ + 2 * q, SQ + 2 * q + 1))
            red += [SU + 2 * q, SQ + 2 * q]
        for dpp in ('quad_perm:[1,0,3,2]', 'quad_perm:[2,3,0,1]', 'row_half_mirror'):
            for r in red:
                st.append('v_add_f32_dpp v%d, v%d, v%d %s row_mask:0xf bank_mask:0xf' % (r, r, r, dpp))
        for q in range(2):
            su, sq = SU + 2 * q, SQ + 2 * q
            st += ['v_mul_f32 v%d, %s, v%d' % (su, f32(1.0 / 448), su),
                   'v_mul_f32 v%d, %s, v%d' % (sq, f32(1.0 / 448), sq),
                   'v_fma_f32 v%d, -v%d, v%d, v%d' % (sq, su, su, sq),
                   'v_max_f32 v%d, 0, v%d' % (sq, sq),
                   'v_add_f32 v%d, %s, v%d' % (sq, f32(1e-5), sq),
                   'v_rsq_f32 v%d, v%d' % (RS + q, sq),
                   'v_mul_f32_e64 v%d, -v%d, v%d' % (NB + q, su, RS + q)]

        def norm(s):
            o = []
            for q in range(2):
                b = XR + (s * 2 + q) * 4
                for d in range(4):
                    t0, t1 = TMP + (d & 1) * 2, TMP + (d & 1) * 2 + 1
                    o.append('v_lshlrev_b32 v%d, 16, v%d' % (t0, b + d))
                    o.append('v_and_b32 v%d, 0xffff0000, v%d' % (t1, b + d))
                    o.append('v_fma_f32 v%d, v%d, v%d, v%d' % (t0, t0, RS + q, NB + q))
                    o.append('v_fma_f32 v%d, v%d, v%d, v%d' % (t1, t1, RS + q, NB + q))
                    o.append('v_cvt_pk_bf16_f32 v%d, v%d, v%d' % (b + d, t0, t1))
                o.append('ds_write_b128 v%d, %s offset:%d' % (8 + q, vr(b), self.P1_X + s * 8192))
            return o

        def reads(ks):
            s, u = ks // 4, ks % 4
            o = ['ds_read_b128 %s, v%d offset:%d' % (vr(XF + (ks % NB_) * 4), 10 + u, self.P1_X + s * 8192)]
            sl = s % 4
            for t in range(3):
                for z in range(2):
                    o.append('ds_read_b64_tr_b16 %s, v%d offset:%d' % (
                        vr(WF + (ks % NB_) * 12 + t * 4 + z * 2, 2), T + t + 3 * (sl >> 1),
                        (sl & 1) * 24576 + (16 * u + 4 * z) * 384))
            return o

        def mfmas(ks):
            return ['%s %s, %s, %s, %s' % (MFMA, vr(ACC + 16 * t, 16), vr(WF + (ks % NB_) * 12 + t * 4), vr(XF + (ks % NB_) * 4),
                                           vr(ACC + 16 * t, 16) if ks else '0') for t in range(3)]

        def sync(s):
            o = [Pseudo('wait_tok', 'w%d' % s), 's_waitcnt lgkmcnt(0)', 's_barrier']
            if s >= 1 and s + 3 < 7:
                o += [x for g in self.p1_wdma(s + 3) for x in g]
            return o
        self.code_prefetch(ACC)
        wg = [g for s in range(4) for g in self.p1_wdma(s)]
        self.emit(sprinkle(st + norm(0) + norm(1), wg, 0.0, 0.9))
        self.stamp(2)
        self.emit(sync(0))
        self.stamp(3)
        self.emit(reads(0) + reads(1))
        for s in range(7):
            k0 = 4 * s
            main = reads(k0 + 2) + mfmas(k0) + reads(k0 + 3) + mfmas(k0 + 1)
            tail = []
            if s < 6:
                tail = sync(s + 1) + reads(k0 + 4)
            tail += mfmas(k0 + 2)
            if s < 6:
                tail += reads(k0 + 5)
            tail += mfmas(k0 + 3)
            if s + 2 < 7:
                nm = norm(s + 2)
                main, r1 = weave(main, nm[:21])
                tail, r2 = weave(tail, nm[21:])
                main += r1
                tail += r2
            self.emit(main + tail)
        self.stamp(4)
        self.epoch_issue()
        a('s_lshl_b32 s13, %s, 1' % sM)
        a('s_and_b32 s12, %s, 1' % sW)
        a('s_add_u32 s13, s13, s12')
        a('s_lshl_b32 s14, %s, 1' % sN)
        a('s_lshr_b32 s12, %s, 1' % sW)
        a('s_add_u32 s14, s14, s12')
        a('s_mul_i32 s11, s13, %d' % (84 * 1024))
        a('s_mul_i32 s12, s14, %d' % (6 * 1024))
        a('s_add_u32 s11, s11, s12')
        a('s_add_u32 s12, s11, 4096')
        a('s_lshl_b32 s16, s13, 4')
        a('s_add_u32 s16, s16, s14')
        for t in range(3):
            for h in range(2):
                f = t * 2 + h
                for d in range(4):
                    r = ACC + 16 * t + 8 * h + 2 * d
                    a('v_cvt_pk_bf16_f32 v%d, v%d, v%d' % (XR + f * 4 + d, r, r + 1))
                a('buffer_store_dwordx4 %s, %s, %s, s%d offen offset:%d sc1' % (
                    vr(XR + f * 4), vL16, SRD_WS, 11 + f // 4, (f % 4) * 1024), tok='qkv')

    def repack(self):
        a = self.a
        nt = ' nt' if self.opt['nt'] else ''
        self.srd(56, 24, 448 * 3584)
        self.srd(60, 26, 448 * 3584)
        a('s_cmp_lt_u32 %s, 28' % sM)
        a('s_cselect_b32 s64, s28, s20')
        a('s_cselect_b32 s65, s29, s21')
        a('s_cselect_b32 s66, %d, 0' % (1792 * 896))
        a('s_cselect_b32 s11, 0, %d' % (448 * 896))
        a('s_add_u32 s66, s66, s11')
        a('s_and_b32 s65, s65, 0xffff')
        a('s_mov_b32 s67, 0x20000')
        self.srd(36, 16, 2048 * 896)
        self.code_prefetch(200)
        self.roles()
        noep = self.label('noep')
        a('s_lshl_b32 s11, s2, 2')
        a('s_add_u32 s11, s11, %s' % sW)
        a('s_cmp_lg_u32 s11, 1020')
        a('s_cbranch_scc1 %s' % noep)
        a.begin_cond(noep)
        a('s_mov_b32 s11, %d' % WS_EP)
        a('s_load_dword s12, %s, s11' % WSP)
        a('s_add_u32 s12, s12, 1')
        a('s_max_u32 s12, s12, 1')
        a('v_mov_b32 v2, s12')
        a('v_mov_b32 v3, 0')
        a('s_mov_b64 exec, 1')
        a('buffer_store_dword v2, off, %s, s11 sc1' % SRD_WS)
        a('global_store_dword v3, v2, %s sc1' % DBGP)
        a('s_mov_b64 exec, -1')
        a.end_cond()
        a(noep + ':')
        a('s_mul_i32 s17, %s, 40960' % sW)
        DOFF = 24576
        F, CSA, ONE = 16, 80, 144
        self.tr_lane_addr('v6', 896, 32, 'v2', 'v3')
        a('v_add_u32 v6, s17, v6')

        def d_issue(srow):
            o = []
            for k in range(14):
                if k % 4 == 0:
                    o.append('s_add_u32 m0, s17, %d' % (DOFF + k * 1024))
                    if k:
                        o.append('s_add_u32 %s, %s, 4096' % (srow, srow))
                o.append(('buffer_load_dwordx4 %s, %s, %s offen offset:%d%s lds' % (vL16, SRD_D, srow, (k % 4) * 1024, nt), 'd'))
            return o

        def d_process(sdst, nstride):
            a.wait_tok('d')
            for ct in range(14):
                for z in range(2):
                    a('ds_read_b64_tr_b16 %s, v6 offset:%d' % (vr(F + ct * 4 + z * 2, 2), DOFF + ct * 64 + z * 4 * 896))
            for ct in range(14):
                if ct and ct % 2 == 0:
                    a('s_add_u32 %s, %s, %d' % (sdst, sdst, nstride))
                a('buffer_store_dwordx4 %s, %s, %s, %s offen offset:%d sc1' % (vr(F + ct * 4), vL16, SRD_WS, sdst, (ct % 2) * 1024), tok='ds')

        wo = self.label('rpwo')
        a('s_cmp_ge_u32 %s, 28' % sM)
        a('s_cbranch_scc1 %s' % wo)
        pos = lambda b: (DOFF if b == 0 else (b - 1) * 4096)
        a('v_lshrrev_b32 v2, 3, v0')
        a('v_and_b32 v3, 7, v0')
        a('v_mul_u32_u24 v4, 3584, v2')
        a('v_lshl_add_u32 v4, v3, 4, v4')
        a('v_add_u32 v5, %d, v4' % (8 * 3584 - 1024))
        a('s_mul_i32 s16, %s, %d' % (sW, 16 * 3584))
        a('s_lshl_b32 s11, %s, 7' % sM)
        a('s_add_u32 s16, s16, s11')

        def g_issue(b):
            o = ['s_add_u32 s11, s16, %d' % (b * 64 * 3584)]
            for img, srd in enumerate((SRD_G, SRD_U)):
                o.append('s_add_u32 m0, s17, %d' % (pos(b) + img * 2048))
                for z in range(2):
                    o.append(('buffer_load_dwordx4 v%d, %s, s11 offen offset:%d%s lds' % (4 + z, srd, z * 1024, nt), 'g%d' % b))
            return o
        DEPTH = 3
        for b in range(DEPTH):
            self.emit(g_issue(b))
        self.tr_lane_addr('v7', 128, 2048, 'v2', 'v3')
        a('v_add_u32 v7, s17, v7')
        for d in range(4):
            a('v_mov_b32 v%d, 0x3f803f80' % (ONE + d))
        a('s_mul_i32 s18, %s, %d' % (sM, 4 * 28672))
        a('s_lshl_b32 s11, %s, 10' % sW)
        a('s_add_u32 s18, s18, s11')
        a('s_add_u32 s18, s18, %d' % WS_WGU)
        a('s_lshl_b32 s19, %s, 6' % sM)
        a('s_lshl_b32 s11, %s, 4' % sW)
        a('s_add_u32 s19, s19, s11')
        a('s_mul_i32 s19, s19, 896')
        for b in range(7):
            a.wait_tok('g%d' % b)
            fb = F + (b % 2) * 16
            for t in range(4):
                for z in range(2):
                    a('ds_read_b64_tr_b16 %s, v7 offset:%d' % (vr(fb + t * 4 + z * 2, 2), pos(b) + t * 32 + z * 512))
            if b + DEPTH < 7:
                self.emit(g_issue(b + DEPTH))
            for t in range(4):
                a('s_add_u32 s11, s18, %d' % (t * 28672 + b * 4096))
                a('buffer_store_dwordx4 %s, %s, %s, s11 offen sc1' % (vr(fb + t * 4), vL16, SRD_WS), tok='gs')
                a('%s %s, %s, %s, %s' % (MFMA, vr(CSA + 16 * t, 16), vr(fb + t * 4), vr(ONE), vr(CSA + 16 * t, 16) if b else '0'))
            if b == 7 - DEPTH:
                self.emit(d_issue('s19'))
        a('s_lshl_b32 s11, %s, 11' % sM)
        a('s_lshl_b32 s12, %s, 7' % sW)
        a('s_add_u32 s11, s11, s12')
        a('s_add_u32 s11, s11, %d' % WS_CS)
        a('v_lshlrev_b32 v5, 1, v0')
        a('s_mov_b32 exec_lo, 1')
        a('s_mov_b32 exec_hi, 1')
        for t in range(4):
            for k in range(4):
                a('buffer_store_dwordx4 %s, v5, %s, s11 offen offset:%d sc1' % (vr(CSA + 16 * t + 4 * k), SRD_WS, t * 512 + k * 16), tok='gs')
        a('s_mov_b64 exec, -1')
        self.get_epoch()
        a('s_lshl_b32 s18, %s, 2' % sM)
        a('s_add_u32 s18, s18, %s' % sW)
        a('s_lshl_b32 s18, s18, 11')
        a('s_add_u32 s18, s18, %d' % WS_WD)
        d_process('s18', 112 * 2048)
        a.wait_tok('gs')
        a('s_barrier')
        self.flag_set_wg(FL_FG)
        a('s_waitcnt vmcnt(0)')
        a('s_barrier')
        self.flag_set_wg(FL_FD)
        a('s_branch L_rp_done')
        a(wo + ':')
        a.fresh()
        self.get_epoch()
        for hpo in range(2):
            a('s_sub_u32 s12, %s, 28' % sM)
            a('s_lshl_b32 s12, s12, 1')
            a('s_add_u32 s12, s12, %d' % hpo)
            a('s_mul_i32 s19, s12, 56')
            a('s_lshl_b32 s11, %s, 4' % sW)
            a('s_add_u32 s19, s19, s11')
            a('s_lshr_b32 s11, %s, 1' % sW)
            a('s_lshl_b32 s11, s11, 3')
            a('s_sub_u32 s19, s19, s11')
            a('s_mul_i32 s19, s19, 896')
            a('s_lshl_b32 s18, s12, 2')
            a('s_add_u32 s18, s18, %s' % sW)
            a('s_lshl_b32 s18, s18, 11')
            a('s_add_u32 s18, s18, %d' % WS_WO)
            self.emit(d_issue('s19'))
            d_process('s18', 32 * 2048)
        a('s_waitcnt vmcnt(0)')
        a('s_barrier')
        self.flag_set_wg(FL_FG)
        a('L_rp_done:')

    KV_LDS = 4 * SLOT

    def p2_setup(self):
        a = self.a
        M = 224
        a('s_mul_i32 s28, %s, 7' % sHD)
        a('s_lshr_b32 s28, s28, 1')
        a('s_lshl_b32 s11, %s, 2' % sR)
        a('s_add_u32 s12, s11, %s' % sW)
        a('s_mul_i32 s13, %s, 3' % sW)
        a('s_add_u32 s11, s11, s13')
        a('s_sub_i32 s18, s11, 8')
        a('s_max_i32 s13, s18, 0')
        a('s_lshl_b32 s13, s13, %d' % (FSH + 4))
        a('s_add_u32 s13, s13, %d' % (WS_FL + FL_F1 * FS))
        a('s_lshl_b32 s14, s12, %d' % (FSH + 4))
        a('s_add_u32 s14, s14, %d' % (WS_FL + FL_F1 * FS))
        for k, (add, base) in enumerate(((56, 's13'), (59, 's13'), (112, 's13'), (115, 's13'), (0, 's14'), (3, 's14'))):
            a('s_add_u32 s15, s28, %d' % add)
            a('s_mul_i32 s15, s15, 171')
            a('s_lshr_b32 s15, s15, 11')
            a('s_lshl_b32 s15, s15, %d' % FSH)
            a('s_add_u32 s%d, s15, %s' % (20 + k, base))
        a('s_lshl_b32 s28, s28, 9')
        a('s_mul_i32 s19, s12, %d' % (84 * 1024))
        a('s_add_u32 s19, s19, s28')
        for k in range(3):
            a('s_add_i32 s13, s18, %d' % k)
            a('s_mul_i32 s14, s13, %d' % (84 * 1024))
            a('s_add_u32 s14, s14, s28')
            a('s_add_u32 s14, s14, %d' % (56 * 512))
            a('s_cmp_lt_i32 s13, 0')
            a('s_cselect_b32 s%d, %d, s14' % (29 + k, OOB))
        a('s_mul_i32 s17, %s, %d' % (sW, 3 * 4096))
        a('s_bitcmp1_b32 %s, 0' % sHD)
        a('s_cselect_b64 s[26:27], -1, 0')
        a('s_cselect_b32 s18, 0, %d' % (3 * 512 + 8))
        a('v_and_b32 v2, 31, v0')
        a('v_lshrrev_b32 v3, 5, v0')
        a('v_lshlrev_b32 v3, 2, v3')
        a('v_sub_u32 v2, v2, v3')
        for r in range(16):
            a('v_cmp_le_i32 s[%d:%d], %d, v2' % (MASK0 + 2 * r, MASK0 + 2 * r + 1, (r & 3) + 8 * (r >> 2)))
        a('v_lshrrev_b32 v2, 5, v0')
        a('v_lshlrev_b32 v2, 6, v2')
        a('v_xor_b32 v4, %s, v2' % vL16)
        a('v_xor_b32 v5, 128, v4')
        a('v_mov_b32 v2, 0xffff')
        a('v_mov_b32 v3, 0xffff0000')
        for p in range(8):
            a('v_cndmask_b32 v%d, 0, v2, s[%d:%d]' % (M + p, MASK0 + 4 * p, MASK0 + 4 * p + 1))
            a('v_cndmask_b32 v8, 0, v3, s[%d:%d]' % (MASK0 + 4 * p + 2, MASK0 + 4 * p + 3))
            a('v_or_b32 v%d, v%d, v8' % (M + p, M + p))
        a('s_mov_b32 s12, s26')
        a('s_mov_b32 s13, 0')
        a('v_cndmask_b32 v6, -1, 0, s[12:13]')
        a('s_mov_b32 s14, 0')
        a('s_not_b32 s15, s27')
        a('v_cndmask_b32 v7, -1, 0, s[14:15]')
        a('s_add_u32 s11, s18, s17')
        a('s_add_u32 s11, s11, %d' % (self.KV_LDS + 2048))
        a('v_and_b32 v8, 31, v0')
        a('v_lshlrev_b32 v8, 4, v8')
        a('v_add_u32 v8, s11, v8')
        a('v_lshrrev_b32 v9, 5, v0')
        a('v_lshl_add_u32 v9, v9, 12, v8')
        a('v_mov_b32 v10, 0x3f80')
        a('v_mov_b32 v11, 0')
        a('s_lshl_b32 s11, %s, 12' % sW)
        a('s_add_u32 s11, s11, %d' % self.KV_LDS)
        a('v_add_u32 v12, s11, %s' % vL16)
        a('v_and_b32 v2, 1, v0')
        a('v_bfe_u32 v3, v0, 4, 1')
        a('v_lshrrev_b32 v13, 5, v0')
        a('v_xor_b32 v13, v13, v2')
        a('v_lshlrev_b32 v13, 6, v13')
        a('v_lshl_add_u32 v13, v3, 7, v13')
        a('v_lshl_add_u32 v13, v2, 9, v13')
        a('v_lshl_add_u32 v13, v3, 10, v13')
        a('v_bfe_u32 v2, v0, 2, 2')
        a('v_lshl_add_u32 v13, v2, 4, v13')
        a('v_bfe_u32 v2, v0, 1, 1')
        a('v_lshl_add_u32 v13, v2, 3, v13')
        a('v_xor_b32 v14, 128, v13')
        a('s_add_u32 s11, s11, 2048')
        a('v_add_u32 v13, s11, v13')
        a('v_add_u32 v14, s11, v14')

    def p2(self):
        a = self.a
        S, KF, Q, VF, P, O, M = 16, 160, 232, 176, 192, 208, 224
        a('s_barrier')
        self.poll([('s%d' % (20 + g), k * 16) for g in range(4) for k in range(3)] + [('s24', 0), ('s25', 0)])
        self.stamp(7)
        for k in range(3):
            a('s_add_u32 m0, s17, %d' % (self.KV_LDS + k * 4096))
            for t in range(2):
                a('buffer_load_dwordx4 %s, %s, s%d offen offset:%d sc1 lds' % (vL16, SRD_WS, 29 + k, t * 1024), tok='k')
        for t in range(2):
            a('buffer_load_dwordx4 %s, %s, %s, s19 offen offset:%d sc1' % (vr(Q + 4 * t), vL16, SRD_WS, t * 1024))
        for k in range(3):
            a('s_add_u32 m0, s17, %d' % (self.KV_LDS + k * 4096 + 2048))
            a('s_add_u32 s13, s%d, %d' % (29 + k, 56 * 512))
            for t in range(2):
                a('buffer_load_dwordx4 v%d, %s, s13 offen offset:%d sc1 lds' % (4 + t, SRD_WS, t * 1024), tok='v')
        self.res_voffset('v15', 's11')
        for t in range(2):
            a('buffer_load_dwordx4 %s, v15, %s, s11 offen offset:%d' % (vr(self.HRES + 4 * t), SRD_X, 32 * t))
        self.p4_wsetup()
        a('s_mul_i32 s20, %s, 7' % sJ)
        a('s_lshr_b32 s20, s20, 2')
        a('s_min_u32 s20, s20, 25')
        a('s_lshl_b32 s20, s20, %d' % FSH)
        a('s_add_u32 s20, s20, %d' % (WS_FL + FL_FG * FS))
        a('s_mov_b32 s21, %d' % (WS_FL + (FL_FG + 28) * FS))
        fr = [('s20', k) for k in range(3)] + [('s21', k) for k in range(4)]
        a('v_and_b32 v%d, v%d, v6' % (Q, Q))
        a('v_and_b32 v%d, v%d, v6' % (Q + 1, Q + 1))
        a('v_and_b32 v%d, v%d, v7' % (Q + 6, Q + 6))
        a('v_and_b32 v%d, v%d, v7' % (Q + 7, Q + 7))
        a.wait_tok('k')
        a('s_barrier')
        self.stamp(8)
        order = [0, 8, 1, 2, 3, 4, 5, 6, 7]
        KB = [KF, KF + 8, VF, VF + 8]

        def kread(i):
            return ['ds_read_b128 %s, v12 offset:%d' % (vr(KB[i % 4] + h * 4), order[i] * 4096 + h * 1024) for h in range(2)]

        def smm(i):
            t = order[i]
            return ['%s %s, %s, %s, %s' % (MFMA, vr(S + 16 * t, 16), vr(KB[i % 4] + h * 4), vr(Q + 4 * h),
                                           vr(S + 16 * t, 16) if h else '0') for h in range(2)]
        self.emit(kread(0) + kread(1) + kread(2))
        for i in range(9):
            self.emit(smm(i))
            if i + 3 < 9:
                self.emit(kread(i + 3))
        self.emit(self.poll_loads(fr))
        done = self.label('inv')
        a('s_lshl_b32 s11, %s, 2' % sR)
        a('s_add_u32 s11, s11, %s' % sW)
        a('s_cmp_ge_u32 s11, 8')
        a('s_cbranch_scc1 %s' % done)
        a.begin_cond('inv')
        for t in range(8):
            if t:
                a('s_cmp_ge_u32 s11, %d' % (8 - t))
                a('s_cbranch_scc1 %s' % done)
            for r in range(16):
                a('v_mov_b32 v%d, 0xff800000' % (S + 16 * t + r))
        a.end_cond()
        a(done + ':')
        for r in range(16):
            a('v_cndmask_b32 v%d, v%d, v%d, s[%d:%d]' % (S + r, S + r, S + 128 + r, MASK0 + 2 * r, MASK0 + 2 * r + 1))
        MX = S + 128
        for c in range(4):
            a('v_max_f32 v%d, v%d, v%d' % (MX + c, S + 2 * c, S + 2 * c + 1))
        for k in range(4, 64):
            a('v_max3_f32 v%d, v%d, v%d, v%d' % (MX + k % 4, MX + k % 4, S + 2 * k, S + 2 * k + 1))
        a.wait_tok('v')
        a('ds_write_b64 v9, v[10:11]')
        a('ds_write_b64 v8, v[10:11] offset:8192')
        a('v_max3_f32 v%d, v%d, v%d, v%d' % (MX, MX, MX + 1, MX + 2))
        a('v_max_f32 v%d, v%d, v%d' % (MX, MX, MX + 3))
        a('v_mov_b32 v%d, v%d' % (MX + 1, MX))
        a('v_permlane32_swap_b32 v%d, v%d' % (MX, MX + 1))
        a('v_max_f32 v%d, v%d, v%d' % (MX, MX, MX + 1))
        c = 28 ** -0.5 * 1.4426950408889634
        a('v_mov_b32 v%d, %s' % (MX + 2, f32(c)))
        a('v_mul_f32 v%d, %s, v%d' % (MX + 4, f32(-c), MX))
        self.poll_check(fr)
        a('s_barrier')
        self.stamp(9)

        def vread(t, buf):
            return ['ds_read_b64_tr_b16 %s, v%d offset:%d' % (vr(VF + buf * 8 + k * 4 + z * 2, 2), 13 + z, t * 4096 + k * 256)
                    for k in range(2) for z in range(2)]

        def soft(t, pb):
            o = []
            b = S + 16 * t
            for p in range(8):
                o.append('v_pk_fma_f32 %s, %s, %s, %s op_sel_hi:[1,0,0]' % (
                    vr(b + 2 * p, 2), vr(b + 2 * p, 2), vr(MX + 2, 2), vr(MX + 4, 2)))
            for r in range(16):
                o.append('v_exp_f32 v%d, v%d' % (b + r, b + r))
            for p in range(8):
                o.append('v_cvt_pk_bf16_f32 v%d, v%d, v%d' % (pb + p, b + 2 * p, b + 2 * p + 1))
            return o
        first = [True]

        def pv(buf, pb):
            o = []
            for k in range(2):
                o.append('%s %s, %s, %s, %s' % (MFMA, vr(O, 16), vr(VF + buf * 8 + k * 4), vr(pb + 4 * k),
                                                '0' if first[0] else vr(O, 16)))
                first[0] = False
            return o
        body = vread(0, 0) + vread(8, 1) + soft(0, P)
        for p in range(8):
            body.append('v_and_b32 v%d, v%d, v%d' % (P + 8 + p, P + p, M + p))
            body.append('v_bfi_b32 v%d, v%d, 0, v%d' % (P + p, M + p, P + p))
        pend = pv(0, P) + pv(1, P + 8)
        for t in range(1, 8):
            pb = KF + (t % 2) * 8
            sf = soft(t, pb)
            blk = sf[:8]
            ex = sf[8:24]
            step = len(ex) // len(pend)
            for i, m_ in enumerate(pend):
                blk += [m_] + ex[i * step:(i + 1) * step]
            blk += vread(t, t % 2) + sf[24:]
            body += blk
            pend = pv(t % 2, pb)
        body += pend
        wo = self.wo_bulk()
        nA = self.opt['nA']
        self.emit(sprinkle(body, wo[:nA], 0.0, 0.85))
        self.wo_rest = wo[nA:]
        self.stamp(10)
        a('v_cndmask_b32 v2, v%d, v%d, s[26:27]' % (O + 12, O))
        a('v_mov_b32 v3, v2')
        a('v_permlane32_swap_b32 v2, v3')
        a('v_cndmask_b32 v2, v3, v2, s[26:27]')
        a('v_rcp_f32 v2, v2')
        a('s_lshl_b32 s16, %s, 2' % sR)
        a('s_add_u32 s16, s16, %s' % sW)
        a('s_lshl_b32 s16, s16, 4')
        a('s_add_u32 s16, s16, %s' % sHD)
        a('s_lshl_b32 s11, s16, 11')
        a('s_add_u32 s11, s11, %d' % WS_O)
        for p in range(8):
            a('v_pk_mul_f32 %s, %s, v[2:3] op_sel_hi:[1,0]' % (vr(O + 2 * p, 2), vr(O + 2 * p, 2)))
        for p in range(8):
            a('v_cvt_pk_bf16_f32 v%d, v%d, v%d' % (P + p, O + 2 * p, O + 2 * p + 1))
        a('v_and_b32 v%d, v%d, v6' % (P, P))
        a('v_and_b32 v%d, v%d, v6' % (P + 1, P + 1))
        a('v_and_b32 v%d, v%d, v7' % (P + 6, P + 6))
        a('v_and_b32 v%d, v%d, v7' % (P + 7, P + 7))
        for t in range(2):
            a('buffer_store_dwordx4 %s, %s, %s, s11 offen offset:%d sc1' % (vr(P + 4 * t), vL16, SRD_WS, t * 1024), tok='o')

    WO_A = 128
    HRES = 240

    def wo_bulk(self):
        g0 = ['s_lshr_b32 %s, %s, 1' % (sBK2, sW), 's_lshl_b32 %s, %s, 15' % (sBK2, sBK2),
              's_lshl_b32 %s, %s, 16' % (sBK, sN), 's_add_u32 %s, %s, %s' % (sBK, sBK, sBK2),
              's_add_u32 %s, %s, %d' % (sBK, sBK, WS_WO),
              's_cmp_ge_u32 %s, 7' % sN, 's_cselect_b32 %s, %d, %s' % (sBK, OOB, sBK)]
        out = []
        for f in range(16):
            for rel in range(2):
                g = g0 if (f == 0 and rel == 0) else []
                if f and f % 2 == 0 and rel == 0:
                    g = ['s_add_u32 %s, %s, 4096' % (sBK, sBK)]
                out.append(g + ['buffer_load_dwordx4 %s, %s, %s, %s offen offset:%d sc1' % (
                    ar(self.WO_A + (f * 2 + rel) * 4), (vXA, vXB)[rel], SRD_WS, sBK, (f % 2) * 2048)])
        return out

    def wd_bulk(self):
        g0 = ['s_mul_i32 %s, %s, %d' % (sBK, sN, 112 * 2048), 's_mul_i32 %s, %s, %d' % (sBK2, sW, 28 * 2048),
              's_add_u32 %s, %s, %s' % (sBK, sBK, sBK2), 's_add_u32 %s, %s, %d' % (sBK, sBK, WS_WD),
              's_cmp_ge_u32 %s, 7' % sN, 's_cselect_b32 %s, %d, %s' % (sBK, OOB, sBK)]
        out = []
        for f in range(28):
            for rel in range(2):
                g = g0 if (f == 0 and rel == 0) else []
                if f and f % 2 == 0 and rel == 0:
                    g = ['s_add_u32 %s, %s, 4096' % (sBK, sBK)]
                out.append(g + ['buffer_load_dwordx4 %s, %s, %s, %s offen offset:%d sc1' % (
                    ar((f * 2 + rel) * 4), (vXA, vXB)[rel], SRD_WS, sBK, (f % 2) * 2048)])
        return out

    def gu_bulk(self, tile):
        o = []
        for i in range(7):
            g = []
            if i % 4 == 0:
                g = ['s_add_u32 m0, s31, %d' % ((tile % 5) * SLOT + i * 1024),
                     's_add_u32 %s, s30, %d' % (sBK2, tile * 28672 + i * 1024)]
            o.append(g + [('buffer_load_dwordx4 %s, %s, %s offen offset:%d sc1 lds' % (vL16, SRD_WS, sBK2, (i % 4) * 1024), 'g%d' % tile)])
        return o

    def p4_wsetup(self):
        a = self.a
        a('s_mul_i32 s31, %s, 7168' % sW)
        a('s_mul_i32 s30, %s, %d' % (sJ, 7 * 28672))
        a('s_add_u32 s30, s30, s31')
        a('s_add_u32 s30, s30, %d' % WS_WGU)

    def seq_loads(self, dst, n, sreg):
        o = []
        for i in range(n):
            if i and i % 4 == 0:
                o.append('s_add_u32 %s, %s, 4096' % (sreg, sreg))
            o.append('buffer_load_dwordx4 %s, %s, %s, %s offen offset:%d sc1' % (
                vr(dst + 4 * i), vL16, SRD_WS, sreg, (i % 4) * 1024))
        return o

    def res_voffset(self, dst, sreg):
        a = self.a
        a('v_and_b32 %s, 31, v0' % dst)
        a('v_mul_u32_u24 %s, 896, %s' % (dst, dst))
        a('v_lshrrev_b32 v2, 5, v0')
        a('v_lshl_add_u32 %s, v2, 4, %s' % (dst, dst))
        a('s_lshl_b32 %s, %s, 1' % (sreg, sM))
        a('s_and_b32 s12, %s, 1' % sW)
        a('s_add_u32 %s, %s, s12' % (sreg, sreg))
        a('s_mul_i32 %s, %s, %d' % (sreg, sreg, 32 * 896))
        a('s_lshl_b32 s12, %s, 7' % sN)
        a('s_add_u32 %s, %s, s12' % (sreg, sreg))
        a('s_lshr_b32 s12, %s, 1' % sW)
        a('s_lshl_b32 s12, s12, 6')
        a('s_add_u32 %s, %s, s12' % (sreg, sreg))

    def unpack8(self, dst, src):
        for p in range(8):
            self.a('v_lshlrev_b32 v%d, 16, v%d' % (dst + 2 * p, src + p))
            self.a('v_and_b32 v%d, 0xffff0000, v%d' % (dst + 2 * p + 1, src + p))

    P3_ACC, P3_OF = 16, 48

    def p3_setup(self):
        a = self.a
        EX = XTRA + 1024
        self.unpack8(self.P3_ACC, self.HRES)
        a('s_lshl_b32 s13, %s, 1' % sM)
        a('s_and_b32 s12, %s, 1' % sW)
        a('s_add_u32 s13, s13, s12')
        a('s_lshr_b32 s12, %s, 1' % sW)
        a('s_lshl_b32 s18, s13, 1')
        a('s_add_u32 s18, s18, s12')
        a('s_lshl_b32 s20, s18, %d' % (FSH + 3))
        a('s_add_u32 s20, s20, %d' % (WS_FL + FL_F2 * FS))
        a('s_lshl_b32 s18, s18, 14')
        a('s_add_u32 s18, s18, %d' % WS_O)
        a('s_xor_b32 s11, %s, 2' % sW)
        a('s_lshl_b32 s11, s11, 12')
        a('s_add_u32 s11, s11, %d' % EX)
        a('v_add_u32 v4, s11, %s' % vL16)
        a('s_lshl_b32 s11, %s, 12' % sW)
        a('s_add_u32 s11, s11, %d' % EX)
        a('v_add_u32 v5, s11, %s' % vL16)
        a('s_lshl_b32 s14, %s, 1' % sN)
        a('s_add_u32 s14, s14, s12')
        a('s_mul_i32 s19, s13, 28672')
        a('s_lshl_b32 s12, s14, 11')
        a('s_add_u32 s19, s19, s12')
        a('s_add_u32 s19, s19, %d' % WS_HB)
        a('s_lshl_b32 s17, s13, 4')
        a('s_add_u32 s17, s17, s14')
        a('s_lshl_b32 s29, s17, 8')
        a('s_add_u32 s29, s29, %d' % WS_ST)
        a('v_mov_b32 v6, 0x3f803f80')
        a('v_lshlrev_b32 v7, 3, v0')

    def p3(self):
        a = self.a
        ACC, OF = self.P3_ACC, self.P3_OF
        self.poll([('s20', k) for k in range(8)])
        self.stamp(12)
        self.emit(self.seq_loads(OF, 16, 's18'))
        for f in range(16):
            for rel in (1, 0):
                a('%s %s, %s, %s, %s' % (MFMA, vr(ACC + 16 * rel, 16), ar(self.WO_A + (f * 2 + rel) * 4), vr(OF + 4 * f),
                                         '0' if (rel == 1 and f == 0) else vr(ACC + 16 * rel, 16)))
        self.stamp(13)
        for k in range(4):
            a('ds_write_b128 v4, %s offset:%d' % (vr(ACC + 16 + 4 * k), k * 1024))
        a('s_waitcnt lgkmcnt(0)')
        a('s_barrier')
        for k in range(4):
            a('ds_read_b128 %s, v5 offset:%d' % (vr(OF + 4 * k), k * 1024))
        H = self.HRES
        for p in range(8):
            a('v_pk_add_f32 %s, %s, %s' % (vr(ACC + 2 * p, 2), vr(ACC + 2 * p, 2), vr(OF + 2 * p, 2)))
            a('v_cvt_pk_bf16_f32 v%d, v%d, v%d' % (H + p, ACC + 2 * p, ACC + 2 * p + 1))
            if p % 4 == 3:
                a('buffer_store_dwordx4 %s, %s, %s, s19 offen offset:%d sc1' % (vr(H + p - 3), vL16, SRD_WS, (p // 4) * 1024), tok='h')
        for p in range(8):
            a('v_dot2_f32_bf16 v8, v%d, v6, %s' % (H + p, 'v8' if p else '0'))
            a('v_dot2_f32_bf16 v9, v%d, v%d, %s' % (H + p, H + p, 'v9' if p else '0'))
        a('v_mov_b32 v10, v8')
        a('v_mov_b32 v11, v9')
        a('v_permlane32_swap_b32 v8, v10')
        a('v_permlane32_swap_b32 v9, v11')
        a('v_add_f32 v8, v8, v10')
        a('v_add_f32 v9, v9, v11')
        a('s_mov_b32 exec_hi, 0')
        a('buffer_store_dwordx2 v[8:9], v7, %s, s29 offen sc1' % SRD_WS, tok='h')
        a('s_mov_b64 exec, -1')

    def p4_cs_issue(self):
        a = self.a
        a('s_lshl_b32 s11, %s, 1' % sW)
        a('v_lshrrev_b32 v112, 5, v0')
        a('v_add_u32 v112, s11, v112')
        a('v_min_u32 v113, 6, v112')
        a('v_lshlrev_b32 v113, 9, v113')
        a('v_and_b32 v114, 31, v0')
        a('v_lshl_add_u32 v113, v114, 2, v113')
        a('s_mul_i32 s11, %s, %d' % (sJ, 7 * 512))
        a('s_add_u32 s11, s11, %d' % WS_CS)
        for k in range(4):
            a('buffer_load_dword v%d, v113, %s, s11 offen offset:%d sc1' % (116 + k, SRD_WS, 128 * k))
        a('v_lshlrev_b32 v112, 7, v112')
        a('v_lshl_add_u32 v112, v114, 2, v112')
        a('v_add_u32 v112, %d, v112' % XTRA)

    def p4_cs_finish(self):
        a = self.a
        a('v_add_f32 v116, v116, v117')
        a('v_add_f32 v118, v118, v119')
        a('v_add_f32 v116, v116, v118')
        a('ds_write_b32 v112, v116')

    def p4_setup(self):
        a = self.a
        a('s_lshl_b32 s13, %s, 2' % sR4)
        a('s_add_u32 s13, s13, %s' % sW)
        a('s_mul_i32 s18, s13, 28672')
        a('s_add_u32 s18, s18, %d' % WS_HB)
        a('s_lshl_b32 s20, s13, %d' % (FSH + 4))
        a('s_add_u32 s20, s20, %d' % (WS_FL + FL_F3 * FS))
        a('v_and_b32 v2, 31, v0')
        a('v_lshlrev_b32 v2, 3, v2')
        a('v_lshrrev_b32 v3, 5, v0')
        a('v_mul_u32_u24 v4, %d, v3' % (7 * 256))
        a('v_add_u32 v14, v2, v4')
        a('s_lshl_b32 s19, s13, 12')
        a('s_add_u32 s19, s19, %d' % WS_ST)
        a('v_add_u32 v5, %d, %s' % (2 * SLOT, vL16))
        a('v_add_u32 v6, %d, %s' % (4 * SLOT, vL16))
        a('v_lshlrev_b32 v7, 6, v3')
        a('v_add_u32 v7, %d, v7' % XTRA)
        a('s_mul_i32 s29, s13, %d' % (112 * 1024))
        a('s_mul_i32 s12, %s, %d' % (sJ, 7 * 1024))
        a('s_add_u32 s29, s29, s12')
        a('s_add_u32 s29, s29, %d' % WS_HH)
        a('s_add_u32 s28, s29, 4096')
        a('s_lshl_b32 s27, s13, 4')
        a('s_add_u32 s27, s27, %s' % sJ)

    def f4_set(self, stage):
        return ['s_mov_b32 s11, s27'] + self.flag_set('s11', FL_F4 + stage * 1024)

    def p4(self, wd_rest):
        a = self.a
        T0 = self.opt['T0']
        HF, ACC, WF, CSR, TM, PK = 16, 128, 192, 208, 224, 232
        NACC = 4
        self.poll([('s20', k) for k in range(14)])
        self.stamp(16)
        hl = self.seq_loads(HF, 28, 's18')
        for k in range(7):
            hl.append('buffer_load_dwordx2 %s, v14, %s, s19 offen offset:%d sc1' % (vr(CSR + 2 * k, 2), SRD_WS, 256 * k))
        base = [vL16, 'v5', 'v6']
        cnt = [0]

        def wread(tile, k):
            s = tile % 5
            b = WF + (cnt[0] % 4) * 4
            cnt[0] += 1
            return b, 'ds_read_b128 %s, %s offset:%d' % (vr(b), base[s >> 1], (s & 1) * SLOT + k * 1024)

        def chain(seq):
            rd = [wread(t, k) for t, k in seq]
            o = [rd[i][1] for i in range(min(3, len(rd)))]
            for i, (t, k) in enumerate(seq):
                acc = vr(ACC + 16 * (t % NACC), 16)
                o.append('%s %s, %s, %s, %s' % (MFMA, acc, vr(rd[i][0]), vr(HF + 4 * k), acc if k else '0'))
                if i + 3 < len(rd):
                    o.append(rd[i + 3][1])
            return o
        C1 = -2.0 * 1.4426950408889634 * 0.7978845608028654
        st = []
        for k in range(1, 7):
            st.append('v_add_f32 v%d, v%d, v%d' % (CSR, CSR, CSR + 2 * k))
            st.append('v_add_f32 v%d, v%d, v%d' % (CSR + 1, CSR + 1, CSR + 2 * k + 1))
        st += ['v_mov_b32 v12, v%d' % CSR, 'v_mov_b32 v13, v%d' % (CSR + 1),
               'v_permlane32_swap_b32 v%d, v12' % CSR, 'v_permlane32_swap_b32 v%d, v13' % (CSR + 1),
               'v_add_f32 v12, v12, v%d' % CSR, 'v_add_f32 v13, v13, v%d' % (CSR + 1),
               'v_mul_f32 v8, %s, v12' % f32(-1.0 / 448), 'v_mul_f32 v13, %s, v13' % f32(1.0 / 448),
               'v_fma_f32 v13, -v8, v8, v13', 'v_max_f32 v13, 0, v13', 'v_add_f32 v11, %s, v13' % f32(1e-5),
               'v_rsq_f32 v12, v11', 'v_mul_f32 v9, %s, v12' % f32(C1), 'v_mul_f32 v13, v12, v12',
               'v_mul_f32 v10, v9, v13', 'v_mul_f32 v10, %s, v10' % f32(0.044715)]

        def gelu(tile):
            b = ACC + 16 * (tile % NACC)
            pk = PK + (tile % 2) * 4
            o = ['ds_read_b128 %s, v7 offset:%d' % (vr(CSR + 4 * k), tile * 128 + 16 * k) for k in range(4)]
            for h in range(2):
                E = range(4 * h, 4 * h + 4)
                for e in E:
                    o.append('v_fma_f32 v%d, v%d, v8, v%d' % (b + e, CSR + e, b + e))
                for e in E:
                    o.append('v_mul_f32 v%d, v%d, v%d' % (TM + e % 4, b + e, b + e))
                for e in E:
                    o.append('v_fma_f32 v%d, v%d, v10, v9' % (TM + e % 4, TM + e % 4))
                for e in E:
                    o.append('v_mul_f32 v%d, v%d, v%d' % (TM + e % 4, TM + e % 4, b + e))
                for e in E:
                    o.append('v_exp_f32 v%d, v%d' % (TM + e % 4, TM + e % 4))
                    o.append('v_fma_f32 v%d, v%d, v8, v%d' % (b + 8 + e, CSR + 8 + e, b + 8 + e))
                for e in E:
                    o.append('v_fma_f32 v%d, v%d, v11, v11' % (TM + e % 4, TM + e % 4))
                for e in E:
                    o.append('v_rcp_f32 v%d, v%d' % (TM + e % 4, TM + e % 4))
                    o.append('v_mul_f32 v%d, v%d, v%d' % (b + e, b + e, b + 8 + e))
                for e in E:
                    o.append('v_mul_f32 v%d, v%d, v%d' % (b + e, b + e, TM + e % 4))
                for p in range(2):
                    o.append('v_cvt_pk_bf16_f32 v%d, v%d, v%d' % (pk + 2 * h + p, b + 4 * h + 2 * p, b + 4 * h + 2 * p + 1))
            o.append(('buffer_store_dwordx4 %s, %s, %s, s%d offen offset:%d sc1' % (
                vr(pk), vL16, SRD_WS, 29 if tile < 4 else 28, (tile % 4) * 1024), 'hh%d' % tile))
            return o
        nup = 15
        self.emit(hl[:nup])
        for t in range(5):
            a.wait_tok('g%d' % t)
        a('s_waitcnt lgkmcnt(0)')
        a('s_barrier')
        main = chain([(t, k) for k in range(28) for t in range(T0)])
        main, rest = weave(main, hl[nup:], per=1)
        main, rest = weave(main + rest, st, per=1, start=T0 * 28 - len(st) - 2)
        self.emit(main + rest)
        self.stamp(17)
        a('s_waitcnt lgkmcnt(0)')
        a('s_barrier')
        bulk = self.gu_bulk(5) + self.gu_bulk(6) + wd_rest
        nwin = 7 - T0
        share = [14] + [(len(bulk) - 14 + nwin - 2) // (nwin - 1)] * (nwin - 1)
        for t in range(T0, 7):
            if t == 5:
                a.wait_tok('g5')
                a.wait_tok('g6')
                a('s_barrier')
            main = chain([(t, k) for k in range(28)])
            main, rest = weave(main, gelu(t - T0))
            n = share[t - T0]
            main = sprinkle(main + rest, bulk[:n], 0.0, 0.9)
            bulk = bulk[n:]
            self.emit(main)
            self.stamp(18 + t - T0)
        assert not bulk
        a.wait_tok('hh2')
        self.emit(self.f4_set(0))
        for t in range(7 - T0, 7):
            self.emit(gelu(t))
        a.wait_tok('hh4')
        self.emit(self.f4_set(1))

    def p5(self):
        a = self.a
        ACC, HHF, NBUF = 16, 80, 40
        a('s_and_b32 s13, %s, 1' % sW)
        a('s_lshl_b32 s14, %s, 1' % sM)
        a('s_lshl_b32 s20, s14, %d' % (FSH + 4))
        a('s_lshl_b32 s15, %s, %d' % (sW, FSH + 2))
        a('s_add_u32 s20, s20, s15')
        a('s_add_u32 s20, s20, %d' % (WS_FL + FL_F4 * FS))
        a('s_add_u32 s21, s20, %d' % (1024 * FS))
        a('s_add_u32 s22, s20, %d' % (2048 * FS))
        fl = lambda st: [('s%d' % (20 + st), r * 16 + jj) for r in range(2) for jj in range(4)]
        self.emit(self.poll_loads(fl(0)))
        a('s_add_u32 s11, s14, s13')
        a('s_xor_b32 s12, s11, 1')
        a('s_mul_i32 s14, %s, %d' % (sW, 28 * 1024))
        a('s_add_u32 s14, s14, %d' % WS_HH)
        for k in range(2):
            a('s_mul_i32 s%d, s%d, %d' % (11 + k, 11 + k, 112 * 1024))
            a('s_add_u32 s%d, s%d, s14' % (16 + k, 11 + k))
        self.unpack8(ACC, self.HRES)
        self.res_voffset('v4', 's18')
        seq = [(jj * 7 + tau, ra) for tau in range(7) for jj in range(4) for ra in range(2)]

        def load(i):
            f, ra = seq[i]
            return ['s_add_u32 s11, s%d, %d' % (16 + ra, (f // 4) * 4096),
                    'buffer_load_dwordx4 %s, %s, %s, s11 offen offset:%d sc1' % (
                        vr(HHF + (i % NBUF) * 4), vL16, SRD_WS, (f % 4) * 1024)]
        self.poll_check(fl(0))
        self.stamp(23)
        AHEAD = 14
        nxt = [0]

        def issue_upto(n):
            while nxt[0] < min(n, len(seq)):
                i = nxt[0]
                if i == 12:
                    a.wait_tok('hh6')
                    self.emit(self.f4_set(2))
                if i == 16:
                    self.emit(self.poll_loads(fl(1)))
                if i == 24:
                    self.poll_check(fl(1))
                if i == 32:
                    self.emit(self.poll_loads(fl(2)))
                if i == 40:
                    self.poll_check(fl(2))
                self.emit(load(i))
                nxt[0] += 1
        issue_upto(AHEAD)
        seen = set([(0, 0)])
        for i, (f, ra) in enumerate(seq):
            for rb in range(2):
                acc = vr(ACC + 16 * (ra + 2 * rb), 16)
                a('%s %s, %s, %s, %s' % (MFMA, acc, ar((f * 2 + rb) * 4), vr(HHF + (i % NBUF) * 4),
                                         acc if (ra, rb) in seen else '0'))
                seen.add((ra, rb))
            issue_upto(i + 1 + AHEAD)
        self.stamp(24)
        a('s_barrier')
        for rel in range(1, 4):
            a('s_xor_b32 s11, %s, %d' % (sW, rel))
            a('s_mul_i32 s11, s11, 12288')
            a('v_add_u32 v5, s11, %s' % vL16)
            for k in range(4):
                a('ds_write_b128 v5, %s offset:%d' % (vr(ACC + 16 * rel + 4 * k), (rel - 1) * 4096 + k * 1024))
        a('s_mul_i32 s11, %s, 12288' % sW)
        a('v_add_u32 v5, s11, %s' % vL16)
        a('s_waitcnt lgkmcnt(0)')
        a('s_barrier')
        for k in range(12):
            a('ds_read_b128 %s, v5 offset:%d' % (vr(HHF + 4 * k), k * 1024))
        for rel in range(3):
            for p in range(8):
                a('v_pk_add_f32 %s, %s, %s' % (vr(ACC + 2 * p, 2), vr(ACC + 2 * p, 2), vr(HHF + 16 * rel + 2 * p, 2)))
        for p in range(8):
            a('v_cvt_pk_bf16_f32 v%d, v%d, v%d' % (8 + p, ACC + 2 * p, ACC + 2 * p + 1))
            if p % 4 == 3:
                a('buffer_store_dwordx4 %s, v4, %s, s18 offen offset:%d' % (vr(8 + p - 3), SRD_OUT, (p // 4) * 32))
        self.stamp(25)

    def build(self):
        a = self.a
        nm = NAME + '_kernel'
        a('.globl %s\n.p2align 8\n.type %s,@function\n%s:' % (nm, nm, nm))
        self.prologue()
        a('s_cmp_ge_u32 %s, 7' % sN)
        a('s_cbranch_scc1 L_idle1')
        self.p1()
        self.p2_setup()
        self.get_epoch(issued=True)
        self.stamp(5)
        a.wait_tok('qkv')
        self.emit(self.flag_set('s16', FL_F1))
        a('L_join1:')
        self.stamp(6)
        self.p2()
        self.emit(self.wo_rest)
        self.p3_setup()
        a.wait_tok('o')
        self.emit(self.flag_set('s16', FL_F2))
        self.stamp(11)
        self.emit(self.gu_bulk(0))
        self.p4_cs_issue()
        a('s_barrier')
        a('s_cmp_ge_u32 %s, 7' % sN)
        a('s_cbranch_scc1 L_skip3')
        a.begin_cond('p3')
        self.p3()
        a.end_cond()
        a('L_skip3:')
        self.stamp(14)
        self.emit(self.gu_bulk(1))
        self.p4_cs_finish()
        a('s_cmp_ge_u32 %s, 7' % sN)
        a('s_cbranch_scc1 L_skip3b')
        a.begin_cond('p3')
        a.wait_tok('h')
        self.emit(self.flag_set('s17', FL_F3))
        a.end_cond()
        a('L_skip3b:')
        self.stamp(15)
        self.emit(self.gu_bulk(2) + self.gu_bulk(3) + self.gu_bulk(4))
        self.p4_setup()
        a('s_mul_i32 s21, %s, %d' % (sW, 7 * FS))
        a('s_add_u32 s21, s21, %d' % (WS_FL + FL_FD * FS))
        self.poll([('s21', k) for k in range(7)])
        self.p4(self.wd_bulk())
        self.stamp(22)
        a('s_cmp_ge_u32 %s, 7' % sN)
        a('s_cbranch_scc1 L_idle5')
        self.p5()
        self.stamp_out()
        a('L_exit:')
        a('s_endpgm')
        a('L_idle5:')
        a.fresh()
        a('s_waitcnt vmcnt(0)')
        self.emit(self.f4_set(2))
        self.stamp_out()
        a('s_endpgm')
        a('L_idle1:')
        a.fresh()
        a('s_waitcnt lgkmcnt(0)')
        self.repack()
        self.p2_setup()
        a('s_waitcnt vmcnt(0) lgkmcnt(0)')
        a('s_branch L_join1')
        a('L_code_end:')
        for x in self.cold:
            a.raw(x)
        hdr = open('cdna_kernels/%s.s.ref' % NAME).read().split('; Override launch')[0]
        hdr += '; @launch grid=(256,1,1) block=(256,1,1) lds=%d\n' % LDS_BYTES
        hdr += '.amdgcn_target "amdgcn-amd-amdhsa--gfx950"\n.text\n'
        body = a.finalize()
        tail = ('.section .rodata,"a"\n.p2align 6\n.amdhsa_kernel %s\n  .amdhsa_next_free_vgpr 512\n  .amdhsa_next_free_sgpr 102\n'
                '  .amdhsa_accum_offset 256\n  .amdhsa_group_segment_fixed_size 0\n  .amdhsa_kernarg_size 80\n'
                '  .amdhsa_user_sgpr_count 2\n  .amdhsa_user_sgpr_kernarg_segment_ptr 1\n'
                '  .amdhsa_system_sgpr_workgroup_id_x 1\n.end_amdhsa_kernel\n' % nm)
        return hdr + body + tail


if __name__ == '__main__':
    out = sys.argv[1]
    opt = {}
    for x in sys.argv[2:]:
        if '=' in x:
            k, v = x.split('=')
            opt[k] = int(v) if v.lstrip('-').isdigit() else v
    txt = Gen(stamps='--ts' in sys.argv, **opt).build()
    open(out, 'w').write(txt)
    print('wrote', out, len(txt), 'bytes')
```

```python
import sys, struct
from asmlib import Asm, weave, Pseudo

NAME = 'sequential_preLN__sliding_block__glu_gated_geglu__prompt'

WS_QKV = 0
WS_O = WS_QKV + 64 * 84 * 1024
WS_HB = WS_O + 64 * 32768
WS_ST = WS_HB + 64 * 28672
WS_HH = WS_ST + 64 * 4096
WS_WGU = WS_HH + 64 * 112 * 1024
WS_CS = WS_WGU + 112 * 28672
WS_WD = WS_CS + 112 * 896
WS_WO = WS_WD + 7 * 112 * 2048
WS_CQ = WS_WO + 7 * 32 * 2048
WS_FL = WS_CQ + 8192
FS, FSH = 256, 8
FL_F1 = 0
FL_FG = FL_F1 + 1024
FL_FO = FL_FG + 224
FL_FC = FL_FO + 32
FL_FD = FL_FC + 32
FL_F2 = FL_FD + 32
FL_F3 = FL_F2 + 1024
FL_F4 = FL_F3 + 1024
FL_END = FL_F4 + 3072
WS_EP = WS_FL + FL_END * FS
WS_TS = WS_EP + 128
WS_END = WS_TS + 256 * 4 * 256
OOB = 0x7ff00000

LDS_BYTES = 163840
SLOT = 28672
XTRA = 5 * SLOT

sW, sXCD, sI, sM, sN, sR, sHD, sCT = 's3', 's4', 's5', 's6', 's7', 's8', 's9', 's10'
SRD_X, SRD_WS, SRD_OUT = 's[36:39]', 's[40:43]', 's[44:47]'
SRD_WQKV, SRD_G, SRD_U, SRD_D = 's[52:55]', 's[56:59]', 's[60:63]', 's[64:67]'
PT = 52
sBK, sBK2, sR4, sJ = 's48', 's49', 's4', 's5'
sEP, sEP2 = 's50', 's[50:51]'
DBGP, WSP = 's[32:33]', 's[34:35]'
MASK0 = 68
vL16 = 'v1'
vXA, vXB, vFL = 'v248', 'v249', 250


def f32(x):
    return '0x%08x' % struct.unpack('<I', struct.pack('<f', x))[0]


def vr(b, n=4, t='v'):
    return '%s[%d:%d]' % (t, b, b + n - 1)


def ar(b, n=4):
    return vr(b, n, 'a')


MFMA = 'v_mfma_f32_32x32x16_bf16'


def sprinkle(main, groups, lo=0.0, hi=1.0):
    n = len(main)
    a, b = int(n * lo), int(n * hi)
    out, k = [], 0
    for i, x in enumerate(main):
        while k < len(groups) and i >= a + (b - a) * k // max(len(groups), 1):
            out.extend(groups[k]); k += 1
        out.append(x)
    for g in groups[k:]:
        out.extend(g)
    return out


class Gen:
    def __init__(self, stamps=False, **opt):
        self.a = Asm()
        self.stamps = stamps
        self.nl = 0
        self.cold = []
        self.PT = PT
        self.opt = dict(p2map='C', p4map='B', rot=3, T0=3, nA=24, codepf=1, nt=0)
        self.opt.update(opt)

    def label(self, s):
        self.nl += 1
        return 'L_%s_%d' % (s, self.nl)

    def emit(self, lst):
        for x in lst:
            if isinstance(x, tuple):
                self.a(x[0], tok=x[1])
            elif isinstance(x, str):
                self.a(x)
            elif isinstance(x, list):
                self.emit(x)
            else:
                self.a.items.append(x)

    def capture(self, fn, *args):
        keep = self.a
        self.a = Asm()
        fn(*args)
        items = self.a.items
        self.a = keep
        return items

    def stamp(self, k):
        if self.stamps:
            self.a('s_memtime s[100:101]\ns_waitcnt lgkmcnt(0)\nv_writelane_b32 v254, s100, %d' % k)

    def stamp_out(self):
        if self.stamps:
            a = self.a
            a('s_lshl_b32 s11, s2, 2')
            a('s_add_u32 s11, s11, %s' % sW)
            a('s_lshl_b32 s11, s11, 8')
            a('s_add_u32 s11, s11, %d' % WS_TS)
            a('v_lshlrev_b32 v2, 2, v0')
            a('buffer_store_dword v254, v2, %s, s11 offen' % SRD_WS)
            if self.opt.get('dbg'):
                skip = self.label('dbg')
                a('s_memrealtime s[100:101]')
                a('s_lshl_b32 s11, s2, 2')
                a('s_add_u32 s11, s11, %s' % sW)
                a('s_cmp_lg_u32 s11, %d' % (self.opt['dbg'] * 4))
                a('s_cbranch_scc1 %s' % skip)
                a('v_readlane_b32 s12, v254, 0')
                a('v_readlane_b32 s14, v254, 63')
                for k, st in enumerate([1, 2, 4, 6, 7, 8, 9, 11, 12, 15, 16, 17, 22, 25]):
                    a('v_readlane_b32 s13, v254, %d' % st)
                    a('s_nop 3')
                    a('s_sub_u32 s13, s13, s12')
                    a('v_writelane_b32 v3, s13, %d' % (k + 1))
                a('s_waitcnt lgkmcnt(0)')
                a('s_sub_u32 s13, s100, s14')
                a('v_writelane_b32 v3, s13, 15')
                a('s_mov_b64 exec, 0xfffe')
                a('global_store_dword v2, v3, %s' % DBGP)
                a('s_mov_b64 exec, -1')
                a(skip + ':')

    def srd(self, d, p, size):
        a = self.a
        a('s_mov_b32 s%d, s%d' % (d, p))
        a('s_and_b32 s%d, s%d, 0xffff' % (d + 1, p + 1))
        a('s_mov_b32 s%d, %d' % (d + 2, size))
        a('s_mov_b32 s%d, 0x20000' % (d + 3))

    def flag_set(self, sidx, base):
        return ['s_lshl_b32 %s, %s, %d' % (sidx, sidx, FSH),
                's_add_u32 %s, %s, %d' % (sidx, sidx, WS_FL + base * FS),
                's_mov_b64 exec, 0xffff',
                'buffer_store_dwordx4 %s, %s, %s, %s offen sc1' % (vr(vFL), vL16, SRD_WS, sidx),
                's_mov_b64 exec, -1']

    def poll_loads(self, items, first=True):
        items = list(items)
        if len(items) % 2:
            items.append(items[-1])
        assert len(items) <= 16
        base = WSP if first else 's[14:15]'
        return ['s_load_dword s%d, %s, %s offset:%d' % (self.PT + k, base, so, imm * FS) for k, (so, imm) in enumerate(items)]

    def poll_check(self, items):
        a = self.a
        n = (len(items) + 1) // 2
        top, done, slow = self.label('poll'), self.label('pdone'), self.label('pslow')
        a('s_mov_b64 s[14:15], %s' % WSP)
        a('s_mov_b32 s13, %d' % (FS // 64 - 1))
        a(top + ':')
        a('s_waitcnt lgkmcnt(0)')
        for k in range(n):
            p = 's[%d:%d]' % (self.PT + 2 * k, self.PT + 2 * k + 1)
            a('s_xor_b64 %s, %s, %s' % (p, p, sEP2))
            if k:
                a('s_or_b64 s[%d:%d], s[%d:%d], %s' % (self.PT, self.PT + 1, self.PT, self.PT + 1, p))
        a('s_cbranch_scc0 %s' % done)
        a.raw('s_sub_u32 s13, s13, 1')
        a.raw('s_cbranch_scc1 %s' % slow)
        a.raw('s_sleep %d' % self.opt.get('sl1', 4))
        a.raw('s_add_u32 s14, s14, 64')
        a.raw('s_addc_u32 s15, s15, 0')
        for x in self.poll_loads(items, first=False):
            a.raw(x)
        a.raw('s_branch %s' % top)
        a(done + ':')
        o = [slow + ':', 'v_mov_b32 v255, 0']
        for k, (so, imm) in enumerate(items):
            o += ['s_add_u32 s13, %s, %d' % (so, imm * FS), 'v_writelane_b32 v255, s13, %d' % k]
        o += ['s_mov_b64 exec, 0x%x' % ((1 << len(items)) - 1), slow + '_l:',
              'buffer_load_dword v253, v255, %s, 0 offen sc1' % SRD_WS, 's_waitcnt vmcnt(0)',
              'v_cmp_ne_u32 vcc, %s, v253' % sEP, 's_nop 4', 's_cbranch_vccz %s_d' % slow,
              's_sub_u32 %s, %s, 1' % (sCT, sCT), 's_cbranch_scc1 L_exit', 's_sleep %d' % self.opt.get('sl2', 6), 's_branch %s_l' % slow,
              slow + '_d:', 'v_mov_b32 v253, %s' % sEP, 's_mov_b64 exec, -1', 's_nop 4', 's_branch %s' % done]
        self.cold += o

    def poll(self, items):
        self.emit(self.poll_loads(items))
        self.poll_check(items)

    def prewait(self, soff):
        a = self.a
        top, done = self.label('pw'), self.label('pwd')
        a('s_waitcnt vmcnt(0)')
        a(top + ':')
        a.raw('buffer_load_dword v255, off, %s, %s offset:%d sc1' % (SRD_WS, soff, FS - 64))
        a.raw('s_waitcnt vmcnt(0)')
        a.raw('v_cmp_ne_u32 vcc, %s, v255' % sEP)
        a.raw('s_nop 4')
        a.raw('s_cbranch_vccz %s' % done)
        a.raw('s_sub_u32 %s, %s, 1' % (sCT, sCT))
        a.raw('s_cbranch_scc1 L_exit')
        a.raw('s_sleep %d' % self.opt.get('sl3', 8))
        a.raw('s_branch %s' % top)
        a(done + ':')

    def epoch_issue(self):
        self.a('s_load_dword %s, %s, 0x0' % (sEP, DBGP))

    def flag_set_wg(self, sidx, base):
        o = self.flag_set(sidx, base)
        self.emit(o[:2] + ['s_cmp_eq_u32 %s, 0' % sW, 's_cselect_b32 %s, %s, %d' % (sidx, sidx, OOB)] + o[2:])

    def get_epoch(self, issued=False):
        a = self.a
        top, done = self.label('ep'), self.label('epd')
        if not issued:
            self.epoch_issue()
        a('s_waitcnt lgkmcnt(0)')
        a('s_cmp_lg_u32 %s, 0' % sEP)
        a('s_cbranch_scc0 %s' % top)
        a(done + ':')
        self.cold += [top + ':', 'v_mov_b32 v255, 0', top + '_l:', 'global_load_dword v253, v255, %s sc1' % DBGP,
                      's_waitcnt vmcnt(0)', 'v_readfirstlane_b32 %s, v253' % sEP, 's_nop 4', 's_cmp_lg_u32 %s, 0' % sEP,
                      's_cbranch_scc1 %s' % done, 's_sub_u32 %s, %s, 1' % (sCT, sCT), 's_cbranch_scc1 L_exit',
                      's_sleep 4', 's_branch %s_l' % top]
        a('s_mov_b32 s51, s50')
        for k in range(4):
            a('v_mov_b32 v%d, %s' % (vFL + k, sEP))

    def tr_lane_addr(self, dst, pitch, h16, t0, t1):
        a = self.a
        a('v_lshrrev_b32 %s, 5, v0' % t0)
        a('v_lshlrev_b32 %s, 3, %s' % (t0, t0))
        a('v_bfe_u32 %s, v0, 2, 2' % t1)
        a('v_add_u32 %s, %s, %s' % (t0, t0, t1))
        a('v_mul_u32_u24 %s, %d, %s' % (dst, pitch, t0))
        a('v_bfe_u32 %s, v0, 4, 1' % t0)
        a('v_mul_u32_u24 %s, %d, %s' % (t0, h16, t0))
        a('v_add_u32 %s, %s, %s' % (dst, dst, t0))
        a('v_and_b32 %s, 1, v0' % t0)
        a('v_lshl_add_u32 %s, %s, 4, %s' % (dst, t0, dst))
        a('v_bfe_u32 %s, v0, 1, 1' % t0)
        a('v_lshl_add_u32 %s, %s, 3, %s' % (dst, t0, dst))

    def prologue(self):
        a = self.a
        a.fresh()
        a('s_cmp_ge_u32 s2, 256')
        a('s_cbranch_scc1 L_exit')
        a('s_load_dwordx16 s[16:31], s[0:1], 0')
        a('s_load_dwordx4 s[32:35], s[0:1], 64')
        self.code_prefetch(232)
        a('v_lshrrev_b32 v2, 6, v0')
        a('v_and_b32 v0, 63, v0')
        a('v_readfirstlane_b32 %s, v2' % sW)
        a('v_lshlrev_b32 %s, 4, v0' % vL16)
        if self.stamps:
            a('v_mov_b32 v254, 0')
            self.stamp(0)
            a('s_memrealtime s[100:101]\ns_waitcnt lgkmcnt(0)\nv_writelane_b32 v254, s100, 63')
        a('s_and_b32 %s, s2, 7' % sXCD)
        a('s_lshr_b32 %s, s2, 3' % sI)
        a('s_and_b32 s11, %s, 3' % sI)
        a('s_lshl_b32 %s, %s, 2' % (sM, sXCD))
        a('s_add_u32 %s, %s, s11' % (sM, sM))
        a('s_lshr_b32 %s, %s, 2' % (sN, sI))
        a('s_mov_b32 %s, 0x40000' % sCT)

    def roles(self):
        a = self.a
        self.srd(40, 34, WS_END)
        self.srd(44, 30, 2048 * 896)
        a('s_and_b32 s11, %s, 1' % sI)
        a('s_lshl_b32 s12, %s, 1' % sN)
        a('s_add_u32 s12, s12, s11')
        a('s_lshr_b32 s13, %s, 1' % sM)
        if self.opt['p2map'] == 'A':
            a('s_mov_b32 %s, s13' % sR)
            a('s_mov_b32 %s, s12' % sHD)
        else:
            a('s_lshr_b32 %s, %s, 1' % (sR, sI))
            a('s_lshl_b32 %s, %s, 1' % (sHD, sXCD))
            a('s_add_u32 %s, %s, s11' % (sHD, sHD))
        if self.opt['p4map'] == 'A':
            a('s_mov_b32 %s, s13' % sR4)
            a('s_mov_b32 %s, s12' % sJ)
        else:
            a('s_and_b32 s11, %s, 1' % sXCD)
            a('s_lshl_b32 s11, s11, 3')
            a('s_add_u32 s11, s11, %s' % sN)
            a('s_lshr_b32 s12, %s, 1' % sXCD)
            a('s_lshl_b32 s12, s12, 2')
            a('s_and_b32 s13, %s, 3' % sI)
            a('s_add_u32 %s, s12, s13' % sR4)
            a('s_mov_b32 %s, s11' % sJ)
        a('s_lshr_b32 s11, %s, 1' % sW)
        a('s_lshl_b32 s11, s11, 10')
        a('v_xor_b32 %s, s11, %s' % (vXA, vL16))
        a('v_xor_b32 %s, 1024, %s' % (vXB, vXA))

    def code_prefetch(self, dst):
        if not self.opt['codepf']:
            return
        a = self.a
        a('s_getpc_b64 s[12:13]')
        a('L_code_pc:')
        a('s_lshr_b32 s11, s2, 3')
        a('s_lshl_b32 s11, s11, 12')
        a('v_lshl_add_u32 v%d, v0, 4, s11' % dst)
        a('v_min_u32 v%d, L_code_end-L_code_pc-16, v%d' % (dst, dst))
        a('v_mov_b32 v%d, s13' % (dst + 1))
        a('v_add_co_u32 v%d, vcc, s12, v%d' % (dst, dst))
        a('v_addc_co_u32 v%d, vcc, 0, v%d, vcc' % (dst + 1, dst + 1))
        a('global_load_dwordx4 %s, %s, off' % (vr(dst + 2), vr(dst, 2)))

    P1_X = 4 * SLOT
    P1_SL = [0, 1, 2, 3, 0, 1]
    RP_LDS = 3 * SLOT

    def p1_wdma(self, ss):
        g, h = ss // 2, ss % 2
        o = []
        for i in range(7):
            pre = ['s_add_u32 m0, s19, %d' % (self.P1_SL[ss] * SLOT + i * 1024)] if i % 4 == 0 else []
            o.append(pre + [('buffer_load_dwordx4 v%d, %s, s%d offen offset:%d lds' % (180 + g, SRD_WQKV, 68 + 7 * h + i, (i % 4) * 1024), 'w%d' % ss)])
        return o

    def p1(self):
        a = self.a
        XR, ACC, WF, PKR, T = 16, 72, 104, 136, 152
        VX, VX2 = 178, 179
        a('v_lshrrev_b32 v2, 3, v0')
        a('v_and_b32 v3, 7, v0')
        a('v_mul_u32_u24 v%d, 896, v2' % VX)
        a('v_lshl_add_u32 v%d, v3, 4, v%d' % (VX, VX))
        a('v_add_u32 v%d, %d, v%d' % (VX2, 8 * 896, VX))
        a('s_lshl_b32 s11, %s, 6' % sM)
        a('s_lshl_b32 s12, %s, 4' % sW)
        a('s_add_u32 s11, s11, s12')
        a('s_mul_i32 s14, s11, 896')
        if self.opt['rot'] == 2:
            a('s_cmp_eq_u32 %s, 7' % sXCD)
            a('s_cselect_b32 s15, 3, %s' % sXCD)
            a('s_lshl_b32 s15, s15, 7')
        elif self.opt['rot'] >= 3:
            a('s_add_u32 s15, %s, %s' % (sXCD if self.opt['rot'] == 3 else '0', sN))
            a('s_sub_u32 s13, s15, 7')
            a('s_cselect_b32 s15, s15, s13')
            a('s_lshl_b32 s15, s15, 7')
        elif self.opt['rot']:
            a('s_and_b32 s15, %s, 3' % sI)
            a('s_lshl_b32 s15, s15, 1')
            a('s_add_u32 s15, s15, %s' % sXCD)
            a('s_add_u32 s15, s15, %s' % sN)
            a('s_mul_i32 s11, s15, 37')
            a('s_lshr_b32 s11, s11, 8')
            a('s_mul_i32 s11, s11, 7')
            a('s_sub_u32 s15, s15, s11')
            a('s_lshl_b32 s15, s15, 7')
        else:
            a('s_mov_b32 s15, 0')
        self.srd(36, 16, 2048 * 896)
        self.stamp(34)
        NX0 = self.opt.get('nx0', 5)

        def xload(s):
            a('s_add_u32 s11, s14, s%d' % (92 + s))
            for q in range(2):
                a('buffer_load_dwordx4 %s, v%d, %s, s11 offen' % (vr(XR + (s * 2 + q) * 4), VX2 if q else VX, SRD_X))
        for s in range(7):
            a('s_mov_b32 s%d, s15' % (92 + s))
            if s < NX0:
                xload(s)
            if s < 6:
                a('s_add_u32 s15, s15, 128')
                a('s_cmp_eq_u32 s15, 896')
                a('s_cselect_b32 s15, 0, s15')
        self.stamp(26)
        a('s_sub_u32 s18, s18, 4096')
        a('s_subb_u32 s19, s19, 0')
        self.srd(52, 18, 448 * 2688 + 4096)
        self.srd(56, 24, 448 * 3584)
        self.srd(60, 26, 448 * 3584)
        a('s_add_u32 s15, %s, %s' % (sM if self.opt['rot'] == 1 else '0', sXCD))
        a('s_mul_i32 s11, s15, 43')
        a('s_lshr_b32 s11, s11, 7')
        a('s_mul_i32 s11, s11, 3')
        a('s_sub_u32 s15, s15, s11')
        if self.opt['rot'] in (0, 4):
            a('s_mov_b32 s15, 0')
        self.roles()
        a('s_add_u32 %s, s14, s98' % sBK)
        a('s_add_u32 s31, s14, s97')
        a('s_mul_i32 s11, %s, %d' % (sW, 8 * 2688))
        a('s_mul_i32 s12, %s, 384' % sN)
        a('s_add_u32 s11, s11, s12')
        for s in range(7):
            a('s_mul_i32 s%d, s%d, 1344' % (92 + s, 92 + s))
        for h in range(2):
            for i in range(7):
                B = 28 * h + 4 * i
                a('s_add_u32 s%d, s%d, %d' % (68 + 7 * h + i, 92 + (B >> 3), (B & 7) * 8 * 2688 + 4096 - (i % 4) * 1024))
        a('s_mul_i32 s19, %s, 7168' % sW)
        a('v_bfe_u32 v176, v0, 4, 1')
        a('v_lshlrev_b32 v176, 2, v176')
        a('v_xor_b32 v176, v176, v3')
        a('v_mul_u32_u24 v177, 2688, v2')
        a('v_lshl_add_u32 v176, v176, 4, v177')
        a('v_add_u32 v176, s11, v176')
        for g in range(3):
            a('s_lshl_b32 s%d, s15, 7' % (16 + g))
            a('v_add_u32 v%d, s%d, v176' % (180 + g, 16 + g))
            if g < 2:
                a('s_add_u32 s15, s15, 1')
                a('s_cmp_eq_u32 s15, 3')
                a('s_cselect_b32 s15, 0, s15')
        a('v_lshrrev_b32 v10, 4, v0')
        a('v_xor_b32 v10, v3, v10')
        a('v_lshlrev_b32 v11, 7, v2')
        a('s_lshl_b32 s11, %s, 11' % sW)
        a('s_add_u32 s11, s11, %d' % self.P1_X)
        a('v_add_u32 v11, s11, v11')
        a('v_lshl_add_u32 v%d, v10, 4, v11' % T)
        a('v_xor_b32 v%d, 64, v%d' % (T + 1, T))
        a('v_add_u32 v%d, 1024, v%d' % (T + 1, T + 1))
        a('v_and_b32 v14, 31, v0')
        a('v_lshrrev_b32 v15, 5, v0')
        a('v_bfe_u32 v2, v0, 1, 3')
        a('v_xor_b32 v15, v15, v2')
        a('s_and_b32 s11, %s, 1' % sW)
        a('s_lshl_b32 s11, s11, 12')
        a('s_add_u32 s11, s11, %d' % self.P1_X)
        a('v_lshlrev_b32 v14, 7, v14')
        a('v_add_u32 v14, s11, v14')
        for u in range(4):
            a('v_xor_b32 v2, %d, v15' % (2 * u))
            a('v_lshl_add_u32 v%d, v2, 4, v14' % (T + 2 + u))
        self.tr_lane_addr('v14', 128, 32, 'v2', 'v3')
        a('v_bfe_u32 v2, v0, 3, 1')
        a('s_lshr_b32 s11, %s, 1' % sW)
        a('v_xor_b32 v2, s11, v2')
        a('v_lshl_add_u32 v%d, v2, 6, v14' % (T + 6))
        a('v_lshrrev_b32 v2, 5, v0')
        a('v_mul_u32_u24 v2, %d, v2' % (7168 - 1024))
        a('v_add_u32 v%d, v2, v%d' % (T + 6, T + 6))
        a('v_add_u32 v%d, %d, v%d' % (T + 7, 2 * SLOT, T + 6))
        ONE, SU, SQ, RS, NB, TMP = T + 9, ACC, ACC + 4, T + 10, T + 14, T + 18
        a('v_mov_b32 v%d, 0x3f803f80' % ONE)
        a('v_mov_b32 v%d, 0xffff0000' % TMP)
        st = []
        for s in range(7):
            for q in range(2):
                for d in range(4):
                    x = XR + (s * 2 + q) * 4 + d
                    k = q * 2 + (d & 1)
                    first = s == 0 and d < 2
                    st.append('v_dot2_f32_bf16 v%d, v%d, v%d, %s' % (SU + k, x, ONE, '0' if first else 'v%d' % (SU + k)))
                    st.append('v_dot2_f32_bf16 v%d, v%d, v%d, %s' % (SQ + k, x, x, '0' if first else 'v%d' % (SQ + k)))
        red = []
        for q in range(2):
            st.append('v_add_f32 v%d, v%d, v%d' % (SU + 2 * q, SU + 2 * q, SU + 2 * q + 1))
            st.append('v_add_f32 v%d, v%d, v%d' % (SQ + 2 * q, SQ + 2 * q, SQ + 2 * q + 1))
            red += [SU + 2 * q, SQ + 2 * q]
        for dpp in ('quad_perm:[1,0,3,2]', 'quad_perm:[2,3,0,1]', 'row_half_mirror'):
            for r in red:
                st.append('v_add_f32_dpp v%d, v%d, v%d %s row_mask:0xf bank_mask:0xf' % (r, r, r, dpp))
        for q in range(2):
            su, sq = SU + 2 * q, SQ + 2 * q
            st += ['v_mul_f32 v%d, %s, v%d' % (su, f32(1.0 / 448), su),
                   'v_mul_f32 v%d, %s, v%d' % (sq, f32(1.0 / 448), sq),
                   'v_fma_f32 v%d, -v%d, v%d, v%d' % (sq, su, su, sq),
                   'v_max_f32 v%d, 0, v%d' % (sq, sq),
                   'v_add_f32 v%d, %s, v%d' % (sq, f32(1e-5), sq),
                   'v_rsq_f32 v%d, v%d' % (RS + 2 * q, sq),
                   'v_mul_f32_e64 v%d, -v%d, v%d' % (NB + 2 * q, su, RS + 2 * q)]

        def norm(s, pk):
            o = []
            for q in range(2):
                b = XR + (s * 2 + q) * 4
                tb_ = PKR + q * 8
                for d in range(4):
                    o.append('v_lshlrev_b32 v%d, 16, v%d' % (tb_ + 2 * d, b + d))
                    o.append('v_and_b32 v%d, v%d, v%d' % (tb_ + 2 * d + 1, TMP, b + d))
                for d in range(4):
                    t0 = tb_ + 2 * d
                    if pk:
                        o.append('v_pk_fma_f32 %s, %s, %s, %s op_sel_hi:[1,0,0]' % (
                            vr(t0, 2), vr(t0, 2), vr(RS + 2 * q, 2), vr(NB + 2 * q, 2)))
                    else:
                        o.append('v_fma_f32 v%d, v%d, v%d, v%d' % (t0, t0, RS + 2 * q, NB + 2 * q))
                        o.append('v_fma_f32 v%d, v%d, v%d, v%d' % (t0 + 1, t0 + 1, RS + 2 * q, NB + 2 * q))
                for d in range(4):
                    o.append('v_cvt_pk_bf16_f32 v%d, v%d, v%d' % (b + d, tb_ + 2 * d, tb_ + 2 * d + 1))
                if s == 6 and q == 0:
                    o.append('s_barrier')
                o.append('ds_write_b128 v%d, %s offset:%d' % (T + q, vr(b), (s % 6) * 8192))
            return o

        def xread(ks):
            return 'ds_read_b128 %s, v%d offset:%d' % (ar(4 * ks), T + 2 + ks % 4, ((ks // 4) % 6) * 8192)

        cnt = [0]

        def wread(ss, k):
            b = WF + (cnt[0] % 8) * 4
            cnt[0] += 1
            sl = self.P1_SL[ss]
            return b, ['ds_read_b64_tr_b16 %s, v%d offset:%d' % (vr(b + 2 * z, 2), T + 6 + (sl >> 1), (sl & 1) * SLOT + (k & 1) * 14336 + (k >> 1) * 1024 + z * 512)
                       for z in range(2)]

        D = 6

        def store(g):
            so = ['s11', 'vcc_lo', 'vcc_hi'][g]
            o = ['s_lshl_b32 s11, s16, 5', 's_add_u32 s11, s11, s29'] if g == 0 else []
            for h in range(2):
                pk = PKR + (g % 2) * 8 + 4 * h
                for d in range(4):
                    r = ACC + 16 * (g % 2) + 8 * h + 2 * d
                    o.append('v_cvt_pk_bf16_f32 v%d, v%d, v%d' % (pk + d, r, r + 1))
                o.append(('buffer_store_dwordx4 %s, %s, %s, %s offen offset:%d sc1' % (vr(pk), vL16, SRD_WS, so, h * 1024), 'qkv'))
            return o

        def sync(ss):
            return [Pseudo('wait_tok', 'w%d' % ss), 's_waitcnt lgkmcnt(0)', 's_barrier']
        a('s_lshl_b32 s13, %s, 1' % sM)
        a('s_and_b32 s12, %s, 1' % sW)
        a('s_add_u32 s13, s13, s12')
        a('s_lshr_b32 s12, %s, 1' % sW)
        a('s_mul_i32 s29, s13, %d' % (84 * 1024))
        a('s_mul_i32 s11, %s, %d' % (sN, 12 * 1024))
        a('s_add_u32 s29, s29, s11')
        a('s_lshl_b32 s11, s12, 11')
        a('s_add_u32 s29, s29, s11')
        a('s_lshl_b32 %s, s13, 4' % sBK2)
        a('s_lshl_b32 s11, %s, 1' % sN)
        a('s_add_u32 %s, %s, s11' % (sBK2, sBK2))
        a('s_add_u32 %s, %s, s12' % (sBK2, sBK2))
        a('s_lshl_b32 s11, s17, 5')
        a('s_add_u32 vcc_lo, s11, s29')
        a('s_lshl_b32 s11, s18, 5')
        a('s_add_u32 vcc_hi, s11, s29')
        self.stamp(1)
        for s_ in range(NX0, 7):
            for q in range(2):
                a('buffer_load_dwordx4 %s, v%d, %s, %s offen' % (vr(XR + (2 * s_ + q) * 4), VX2 if q else VX, SRD_X, sBK if s_ == 6 else 's31'))
        wg = self.p1_wdma(0) + self.p1_wdma(1) + self.p1_wdma(2) + self.p1_wdma(3)
        k = 0
        for s in range(7):
            blk = st[16 * s:16 * s + 16]
            self.emit(blk[:9])
            if s in (0, 3, 6):
                self.stamp(42 + s // 3)
            if k < self.opt.get('n0', 14):
                self.emit(wg[k] + blk[9:] + wg[k + 1])
                k += 2
            else:
                self.emit(blk[9:])
        n1 = self.opt.get('n1', 20)
        self.emit(sprinkle(st[112:] + norm(0, True) + norm(1, True) + ['s_load_dword %s, %s, 0x0' % (sEP, DBGP)] + norm(2, True) + norm(3, True), wg[k:n1], 0.3, 1.0))
        self.stamp(2)
        self.emit(sync(0))
        self.get_epoch(issued=True)
        self.stamp(3)
        seq = [(ss, kk) for ss in range(6) for kk in range(14)]

        def rds(i):
            ss, kk = seq[i]
            b, r = wread(ss, kk)
            o = sync(ss) if (kk == 0 and ss) else []
            if ss < 2:
                o.append(xread(14 * ss + kk))
            return b, o + r
        rd = [rds(i) for i in range(len(seq))]
        for i in range(D):
            self.emit(rd[i][1])
        p2s = self.p2_setup_s()
        for ss in range(6):
            g, h = ss // 2, ss % 2
            acc = vr(ACC + 16 * (g % 2), 16)
            A, B = [], []
            for kk in range(14):
                i = 14 * ss + kk
                m_ = '%s %s, %s, %s, %s' % (MFMA, acc, vr(rd[i][0]), ar(4 * (14 * h + kk)), acc if (kk or h) else '0')
                (A if kk <= 14 - D else B).append(m_)
                if i + D < len(seq):
                    (A if kk < 14 - D else B).extend(rd[i + D][1])
            sa, sb = [], []
            if ss == 0:
                sa = sprinkle([x for s in range(4, 7) for x in norm(s, self.opt.get('pk0', 0))], wg[n1:], 0.0, 0.9)
            if ss in (2, 4):
                sa = ['s_nop 0'] * 0 + store(ss // 2 - 1)
            fl = lambda gs: [x for g_ in gs for x in g_]
            if ss == 0:
                sb = fl(self.p1_wdma(4)[:4])
            if ss == 1:
                sa = fl(self.p1_wdma(4)[4:])
                sb = fl(self.p1_wdma(5)[:4])
            if ss == 2:
                sa = fl(self.p1_wdma(5)[4:]) + sa
            if ss == 3:
                sa = p2s[:24]
                sb = p2s[24:40]
            if ss == 4:
                sb = p2s[40:56]
            if ss == 5:
                sa = p2s[56:]
                sb = self.poll_loads(self.fo_items())
            A, r1 = weave(A, sa, start=1 if ss in (2, 4) else 0)
            if ss == 5:
                B = B[:2] + ['s_waitcnt lgkmcnt(0)'] + sb + B[2:]
                r2 = []
            else:
                B, r2 = weave(B, sb)
            self.emit(A + r1 + B + r2)
            self.stamp(27 + ss)
        self.emit(store(2))
        a('s_mov_b32 s16, %s' % sBK2)

    def fo_items(self):
        return [('s18', k) for k in range(2)]

    def rp_load(self):
        a = self.a
        a('v_lshrrev_b32 v2, 3, v0')
        a('v_and_b32 v3, 7, v0')
        a('v_mul_u32_u24 v2, 3584, v2')
        a('v_lshl_add_u32 v2, v3, 4, v2')
        a('v_add_u32 v3, %d, v2' % (8 * 3584 - 1024))
        a('s_lshl_b32 s13, %s, 6' % sN)
        a('s_lshl_b32 s11, %s, 4' % sW)
        a('s_add_u32 s13, s13, s11')
        a('s_mul_i32 s13, s13, 3584')
        a('s_lshl_b32 s12, %s, 7' % sM)
        a('s_add_u32 s13, s13, s12')
        a('s_cmp_lt_u32 %s, 28' % sM)
        a('s_cselect_b32 s13, s13, %d' % OOB)
        a('s_lshl_b32 s11, %s, 11' % sW)
        for img, srd in enumerate((SRD_G, SRD_U)):
            a('s_add_u32 m0, s11, %d' % (self.RP_LDS + img * 8192))
            for z in range(2):
                a('buffer_load_dwordx4 v%d, %s, s13 offen offset:%d lds' % (2 + z, srd, z * 1024), tok='rp')

    def rp_prep(self):
        a = self.a
        self.tr_lane_addr('v15', 128, 8192, 'v2', 'v3')
        a('s_lshl_b32 s11, %s, 5' % sW)
        a('s_add_u32 s11, s11, %d' % self.RP_LDS)
        a('v_add_u32 v15, s11, v15')
        a('s_lshl_b32 s13, %s, 2' % sM)
        a('s_add_u32 s13, s13, %s' % sW)
        a('s_mul_i32 s0, s13, 28672')
        a('s_lshl_b32 s12, %s, 12' % sN)
        a('s_add_u32 s0, s0, s12')
        a('s_add_u32 s0, s0, %d' % WS_WGU)
        a('s_mul_i32 s1, s13, 896')
        a('s_lshl_b32 s12, %s, 7' % sN)
        a('s_add_u32 s1, s1, s12')
        a('s_add_u32 s1, s1, %d' % WS_CS)
        a('s_lshl_b32 s12, %s, 2' % sN)
        a('s_max_u32 s12, s12, %s' % sM)
        a('s_cmp_lt_u32 s12, 28')
        a('s_cselect_b32 s0, s0, %d' % OOB)
        a('s_cselect_b32 s1, s1, %d' % OOB)

    def rp_parts(self):
        G, CSA, ONE = 16, 32, 48
        p1 = ['ds_read_b64_tr_b16 %s, v15 offset:%d' % (vr(G + u * 4 + z * 2, 2), (16 * u + 4 * z) * 128) for u in range(4) for z in range(2)]
        p1 += ['v_mov_b32 v%d, 0x3f803f80' % (ONE + d) for d in range(4)] + ['v_lshlrev_b32 v52, 1, v0']
        p2 = []
        for u in range(4):
            p2.append(('buffer_store_dwordx4 %s, %s, %s, s0 offen offset:%d sc1' % (vr(G + u * 4), vL16, SRD_WS, u * 1024), 'rs'))
            p2.append('%s %s, %s, %s, %s' % (MFMA, vr(CSA, 16), vr(G + u * 4), vr(ONE), vr(CSA, 16) if u else '0'))
        p3 = ['s_mov_b32 exec_lo, 1', 's_mov_b32 exec_hi, 1']
        p3 += [('buffer_store_dwordx4 %s, v52, %s, s1 offen offset:%d sc1' % (vr(CSA + 4 * k), SRD_WS, k * 16), 'rs') for k in range(4)]
        p3 += ['s_mov_b64 exec, -1']
        return p1, p2, p3

    def fg_set(self):
        a = self.a
        a('s_mul_i32 s11, %s, 7' % sM)
        a('s_add_u32 s11, s11, %s' % sN)
        a('s_cmp_ge_u32 %s, 7' % sN)
        a('s_cselect_b32 s11, 223, s11')
        self.flag_set_wg('s11', FL_FG)

    def idle1(self):
        a = self.a
        self.srd(36, 16, 2048 * 896)
        self.srd(40, 34, WS_END)
        noep = self.label('noep')
        a('s_lshl_b32 s13, s2, 2')
        a('s_add_u32 s13, s13, %s' % sW)
        a('s_cmp_lg_u32 s13, 1020')
        a('s_cbranch_scc1 %s' % noep)
        a.begin_cond(noep)
        a('s_mov_b32 s13, %d' % WS_EP)
        a('s_load_dword s12, %s, s13' % WSP)
        a('s_add_u32 s12, s12, 1')
        a('s_max_u32 s12, s12, 1')
        a('v_mov_b32 v8, s12')
        a('v_mov_b32 v9, 0')
        a('s_mov_b64 exec, 1')
        a('buffer_store_dword v8, off, %s, s13 sc1' % SRD_WS)
        a('global_store_dword v9, v8, %s sc1' % DBGP)
        a('s_mov_b64 exec, -1')
        a.end_cond()
        a(noep + ':')
        a('v_lshrrev_b32 v2, 3, v0')
        a('v_and_b32 v3, 7, v0')
        a('s_mul_i32 s17, %s, 40960' % sW)
        self.srd(56, 24, 448 * 3584)
        self.srd(60, 26, 448 * 3584)
        self.srd(52, 28, 1792 * 896)
        self.srd(64, 20, 448 * 896)
        self.roles()
        a('v_mul_u32_u24 v4, 896, v2')
        a('v_lshl_add_u32 v4, v3, 4, v4')
        a('s_and_b32 s12, %s, 3' % sM)
        a('s_mul_i32 s19, s12, 112')
        a('s_lshl_b32 s11, %s, 4' % sW)
        a('s_add_u32 s19, s19, s11')
        a('s_lshr_b32 s11, %s, 1' % sW)
        a('s_lshl_b32 s11, s11, 3')
        a('s_sub_u32 s19, s19, s11')
        a('s_mul_i32 s19, s19, 896')
        a('s_lshr_b32 s13, %s, 2' % sM)
        a('s_lshl_b32 s11, s13, 7')
        a('s_add_u32 s19, s19, s11')
        a('s_lshl_b32 s18, s13, 5')
        a('s_lshl_b32 s11, s12, 3')
        a('s_add_u32 s18, s18, s11')
        a('s_add_u32 s18, s18, %s' % sW)
        a('s_lshl_b32 s18, s18, 11')
        a('s_add_u32 s18, s18, %d' % WS_WO)
        a('s_lshl_b32 s20, %s, 2' % sM)
        a('s_add_u32 s20, s20, %s' % sW)
        a('s_lshl_b32 s21, s20, 11')
        a('s_add_u32 s21, s21, %d' % WS_WD)
        a('s_cmp_lt_u32 %s, 28' % sM)
        a('s_cselect_b32 s19, s19, %d' % OOB)
        a('s_cselect_b32 s18, s18, %d' % OOB)
        a('s_cselect_b32 s21, s21, %d' % OOB)
        for k in range(4):
            a('s_add_u32 m0, s17, %d' % (14336 + k * 1024))
            a('s_add_u32 s11, s19, %d' % (((k >> 1) * 56 + (k & 1) * 8) * 896))
            a('buffer_load_dwordx4 v4, %s, s11 offen lds' % SRD_D, tok='j2')
        self.tr_lane_addr('v6', 128, 32, 'v2', 'v3')
        a('v_add_u32 v6, s17, v6')
        self.tr_lane_addr('v7', 896, 32, 'v2', 'v3')
        a('v_add_u32 v7, s17, v7')

        def j3():
            a('s_mul_i32 s11, s20, 12544')
            for k in range(13):
                if k and k % 4 == 0:
                    a('s_add_u32 s11, s11, 4096')
                for srd in (SRD_G, SRD_U):
                    a('buffer_load_dwordx4 v[40:43], %s, %s, s11 offen offset:%d' % (vL16, srd, (k % 4) * 1024))

        def j4():
            a('s_mul_i32 s22, s20, %d' % (16 * 896))
            for k in range(14):
                if k % 4 == 0:
                    a('s_add_u32 m0, s17, %d' % (18432 + k * 1024))
                    if k:
                        a('s_add_u32 s22, s22, 4096')
                a('buffer_load_dwordx4 %s, %s, s22 offen offset:%d lds' % (vL16, SRD_WQKV, (k % 4) * 1024), tok='j4')

        def j2p():
            a.wait_tok('j2')
            for k in range(4):
                for z in range(2):
                    a('ds_read_b64_tr_b16 %s, v6 offset:%d' % (vr(24 + k * 4 + z * 2, 2), 14336 + (k >> 1) * 2048 + (k & 1) * 64 + z * 512))
            a('s_add_u32 s19, s18, 8192')
            for k in range(4):
                a('buffer_store_dwordx4 %s, %s, %s, s%d offen offset:%d sc1' % (vr(24 + k * 4), vL16, SRD_WS, 18 + (k >> 1), (k & 1) * 1024), tok='c2')

        def j4p():
            a.wait_tok('j4')
            for ct in range(14):
                for z in range(2):
                    a('ds_read_b64_tr_b16 %s, v7 offset:%d' % (vr(48 + ct * 4 + z * 2, 2), 18432 + ct * 64 + z * 4 * 896))
            for ct in range(14):
                if ct and ct % 2 == 0:
                    a('s_add_u32 s21, s21, %d' % (112 * 2048))
                a('buffer_store_dwordx4 %s, %s, %s, s21 offen offset:%d sc1' % (vr(48 + ct * 4), vL16, SRD_WS, (ct % 2) * 1024), tok='c4')

        def flag(tok, base):
            a.wait_tok(tok)
            a('s_barrier')
            a('s_mov_b32 s11, %s' % sM)
            self.flag_set_wg('s11', base)
        jo = self.opt.get('jo', 24)
        if jo == 34:
            j2p(); j3(); self.get_epoch(); flag('c2', FL_FO); self.stamp(1); j4(); j4p(); self.stamp(2)
        elif jo == 243:
            j2p(); j4(); self.get_epoch(); flag('c2', FL_FO); self.stamp(1); j4p(); j3(); self.stamp(2)
        elif jo == 24:
            j2p(); j4(); self.get_epoch(); flag('c2', FL_FO); self.stamp(1); j4p(); self.stamp(2)
        elif jo == 43:
            j4(); j2p(); j4p(); self.get_epoch(); flag('c2', FL_FO); self.stamp(1); j3(); self.stamp(2)
        else:
            j4(); j2p(); j4p(); self.get_epoch(); flag('c2', FL_FO); self.stamp(1)
        flag('c4', FL_FD)
        self.stamp(3)
        self.emit(self.p2_setup_s())
        self.prewait('s24')

    KV_LDS = 4 * SLOT

    def p2_setup_s(self):
        o = []
        a = o.append
        a('s_mul_i32 s28, %s, 7' % sHD)
        a('s_lshr_b32 s28, s28, 1')
        a('s_lshl_b32 s11, %s, 2' % sR)
        a('s_add_u32 s12, s11, %s' % sW)
        a('s_mul_i32 s13, %s, 3' % sW)
        a('s_add_u32 s11, s11, s13')
        a('s_sub_i32 s18, s11, 8')
        a('s_max_i32 s13, s18, 0')
        a('s_lshl_b32 s13, s13, %d' % (FSH + 4))
        a('s_add_u32 s13, s13, %d' % (WS_FL + FL_F1 * FS))
        a('s_lshl_b32 s14, s12, %d' % (FSH + 4))
        a('s_add_u32 s14, s14, %d' % (WS_FL + FL_F1 * FS))
        for k, (add, base) in enumerate(((56, 's13'), (59, 's13'), (112, 's13'), (115, 's13'), (0, 's14'), (3, 's14'))):
            a('s_add_u32 s15, s28, %d' % add)
            a('s_bfe_u32 s11, s15, 0x10002')
            a('s_mul_i32 s15, s15, 171')
            a('s_lshr_b32 s15, s15, 12')
            a('s_lshl1_add_u32 s15, s15, s11')
            a('s_lshl_b32 s15, s15, %d' % FSH)
            a('s_add_u32 s%d, s15, %s' % (20 + k, base))
        a('s_lshl_b32 s28, s28, 9')
        a('s_mul_i32 s19, s12, %d' % (84 * 1024))
        a('s_add_u32 s19, s19, s28')
        for k in range(3):
            a('s_add_i32 s13, s18, %d' % k)
            a('s_mul_i32 s14, s13, %d' % (84 * 1024))
            a('s_add_u32 s14, s14, s28')
            a('s_add_u32 s14, s14, %d' % (56 * 512))
            a('s_cmp_lt_i32 s13, 0')
            a('s_cselect_b32 s%d, %d, s14' % (29 + k, OOB))
        a('s_mul_i32 s17, %s, %d' % (sW, 3 * 4096))
        a('v_lshrrev_b32 v5, 5, v0')
        a('v_lshlrev_b32 v5, 6, v5')
        a('v_xor_b32 v4, %s, v5' % vL16)
        a('v_xor_b32 v5, 128, v4')
        a('s_bitcmp1_b32 %s, 0' % sHD)
        a('s_cselect_b64 s[26:27], -1, 0')
        a('s_min_u32 s18, %s, 6' % sN)
        a('s_lshl_b32 s18, s18, 2')
        a('s_and_b32 s11, %s, 2' % sW)
        a('s_add_u32 s18, s18, s11')
        a('s_lshl_b32 s18, s18, %d' % FSH)
        a('s_add_u32 s18, s18, %d' % (WS_FL + FL_FO * FS))
        return o

    def p2_setup_v(self):
        a = self.a
        M = 224
        a('v_and_b32 v2, 31, v0')
        a('v_lshrrev_b32 v3, 5, v0')
        a('v_lshlrev_b32 v3, 2, v3')
        a('v_sub_u32 v2, v2, v3')
        for r in range(16):
            a('v_cmp_le_i32 s[%d:%d], %d, v2' % (MASK0 + 2 * r, MASK0 + 2 * r + 1, (r & 3) + 8 * (r >> 2)))
        a('v_mov_b32 v2, 0xffff')
        a('v_mov_b32 v3, 0xffff0000')
        for p in range(8):
            a('v_cndmask_b32 v%d, 0, v2, s[%d:%d]' % (M + p, MASK0 + 4 * p, MASK0 + 4 * p + 1))
            a('v_cndmask_b32 v8, 0, v3, s[%d:%d]' % (MASK0 + 4 * p + 2, MASK0 + 4 * p + 3))
            a('v_or_b32 v%d, v%d, v8' % (M + p, M + p))
        a('s_bitcmp1_b32 %s, 0' % sHD)
        a('s_cselect_b32 s12, -1, 0')
        a('s_mov_b32 s13, 0')
        a('v_cndmask_b32 v6, -1, 0, s[12:13]')
        a('s_cselect_b32 s13, 0, -1')
        a('s_mov_b32 s12, 0')
        a('v_cndmask_b32 v7, -1, 0, s[12:13]')
        a('s_cselect_b32 s11, 0, %d' % (3 * 512 + 8))
        a('s_mul_i32 s12, %s, %d' % (sW, 3 * 4096))
        a('s_add_u32 s11, s11, s12')
        a('s_add_u32 s11, s11, %d' % (self.KV_LDS + 2048))
        a('v_and_b32 v8, 31, v0')
        a('v_lshlrev_b32 v8, 4, v8')
        a('v_add_u32 v8, s11, v8')
        a('v_lshrrev_b32 v9, 5, v0')
        a('v_lshl_add_u32 v9, v9, 12, v8')
        a('v_mov_b32 v10, 0x3f80')
        a('v_mov_b32 v11, 0')
        a('s_lshl_b32 s11, %s, 12' % sW)
        a('s_add_u32 s11, s11, %d' % self.KV_LDS)
        a('v_add_u32 v12, s11, %s' % vL16)
        a('v_and_b32 v2, 1, v0')
        a('v_bfe_u32 v3, v0, 4, 1')
        a('v_lshrrev_b32 v13, 5, v0')
        a('v_xor_b32 v13, v13, v2')
        a('v_lshlrev_b32 v13, 6, v13')
        a('v_lshl_add_u32 v13, v3, 7, v13')
        a('v_lshl_add_u32 v13, v2, 9, v13')
        a('v_lshl_add_u32 v13, v3, 10, v13')
        a('v_bfe_u32 v2, v0, 2, 2')
        a('v_lshl_add_u32 v13, v2, 4, v13')
        a('v_bfe_u32 v2, v0, 1, 1')
        a('v_lshl_add_u32 v13, v2, 3, v13')
        a('v_xor_b32 v14, 128, v13')
        a('s_add_u32 s11, s11, 2048')
        a('v_add_u32 v13, s11, v13')
        a('v_add_u32 v14, s11, v14')

    def p2(self):
        a = self.a
        S, KF, Q, VF, P, O, M = 16, 160, 232, 176, 192, 208, 224
        self.PT = 84
        self.poll([('s%d' % (20 + g), k * 16) for g in range(4) for k in range(3)] + [('s24', 0), ('s25', 0)])
        self.PT = PT
        self.stamp(7)
        for k in range(3):
            a('s_add_u32 m0, s17, %d' % (self.KV_LDS + k * 4096))
            for t in range(2):
                a('buffer_load_dwordx4 %s, %s, s%d offen offset:%d sc1 lds' % (vL16, SRD_WS, 29 + k, t * 1024), tok='k')
        for t in range(2):
            a('buffer_load_dwordx4 %s, %s, %s, s19 offen offset:%d sc1' % (vr(Q + 4 * t), vL16, SRD_WS, t * 1024))
        for k in range(3):
            a('s_add_u32 m0, s17, %d' % (self.KV_LDS + k * 4096 + 2048))
            a('s_add_u32 s13, s%d, %d' % (29 + k, 56 * 512))
            for t in range(2):
                a('buffer_load_dwordx4 v%d, %s, s13 offen offset:%d sc1 lds' % (4 + t, SRD_WS, t * 1024), tok='v')
        self.rp_load()
        self.stamp(41)
        self.p2_setup_v()
        self.p4_wsetup()
        fg, fd = self.fg_items()
        a('v_and_b32 v%d, v%d, v6' % (Q, Q))
        a('v_and_b32 v%d, v%d, v6' % (Q + 1, Q + 1))
        a('v_and_b32 v%d, v%d, v7' % (Q + 6, Q + 6))
        a('v_and_b32 v%d, v%d, v7' % (Q + 7, Q + 7))
        a('s_lshl_b32 s24, %s, 2' % sR)
        a('s_add_u32 s24, s24, %s' % sW)
        a.wait_tok('k')
        a('s_barrier')
        self.stamp(8)
        order = [0, 8, 1, 2, 3, 4, 5, 6, 7]
        KB = [KF, KF + 8, VF, VF + 8]
        MX = 216

        def kread(i):
            return ['ds_read_b128 %s, v12 offset:%d' % (vr(KB[i % 4] + h * 4), order[i] * 4096 + h * 1024) for h in range(2)]

        def smm(i):
            t = order[i]
            return ['%s %s, %s, %s, %s' % (MFMA, vr(S + 16 * t, 16), vr(KB[i % 4] + h * 4), vr(Q + 4 * h),
                                           vr(S + 16 * t, 16) if h else '0') for h in range(2)]

        def fill(t):
            lab = self.label('fill')
            self.cold += [lab + ':', 's_nop 15'] + ['v_mov_b32 v%d, 0xff800000' % (S + 16 * t + r) for r in range(16)] + ['s_branch %s_r' % lab]
            return ['s_cmp_lt_u32 s24, %d' % (8 - t), 's_cbranch_scc1 %s' % lab, lab + '_r:']

        def mx(t):
            o = fill(t)
            if t == 0:
                o += ['v_cndmask_b32 v%d, v%d, v%d, s[%d:%d]' % (S + r, S + r, S + 128 + r, MASK0 + 2 * r, MASK0 + 2 * r + 1) for r in range(16)]
            for k in range(8 * t, 8 * t + 8):
                if k < 4:
                    o.append('v_max_f32 v%d, v%d, v%d' % (MX + k, S + 2 * k, S + 2 * k + 1))
                else:
                    o.append('v_max3_f32 v%d, v%d, v%d, v%d' % (MX + k % 4, MX + k % 4, S + 2 * k, S + 2 * k + 1))
            return o
        wo = self.wo_rest
        self.emit(kread(0) + kread(1) + kread(2))
        for i in range(9):
            m0_, m1_ = smm(i)
            v = mx(i - 4) if i >= 4 else []
            h_ = len(v) // 2 + 2 if v else 0
            self.emit([m0_] + (kread(i + 3) if i + 3 < 9 else []) + v[:h_] + [m1_] + v[h_:])
        self.emit(self.poll_loads(fd))
        for t in range(5, 8):
            self.emit(mx(t))
        a.wait_tok('v')
        a('ds_write_b64 v9, v[10:11]')
        a('ds_write_b64 v8, v[10:11] offset:8192')
        CC = S + 128
        a('v_max3_f32 v%d, v%d, v%d, v%d' % (MX, MX, MX + 1, MX + 2))
        a('v_max_f32 v%d, v%d, v%d' % (MX, MX, MX + 3))
        a('v_mov_b32 v%d, v%d' % (MX + 1, MX))
        c = 28 ** -0.5 * 1.4426950408889634
        a('v_mov_b32 v%d, %s' % (CC + 2, f32(c)))
        self.poll_check(fd)
        a('v_permlane32_swap_b32 v%d, v%d' % (MX, MX + 1))
        a('s_barrier')
        a('v_max_f32 v%d, v%d, v%d' % (MX, MX, MX + 1))
        a('v_mul_f32 v%d, %s, v%d' % (CC + 4, f32(-c), MX))
        self.stamp(9)
        VA = 184

        def vread(t):
            return ['ds_read_b64_tr_b16 %s, v%d offset:%d' % (ar(VA + t * 8 + k * 4 + z * 2, 2), 13 + z, t * 4096 + k * 256)
                    for k in range(2) for z in range(2)]

        def pkf(t):
            b = S + 16 * t
            return ['v_pk_fma_f32 %s, %s, %s, %s op_sel_hi:[1,0,0]' % (vr(b + 2 * p, 2), vr(b + 2 * p, 2), vr(CC + 2, 2), vr(CC + 4, 2))
                    for p in range(8)]

        def exps(t):
            return ['v_exp_f32 v%d, v%d' % (S + 16 * t + r, S + 16 * t + r) for r in range(16)]

        def cvt(t, pb):
            b = S + 16 * t
            return ['v_cvt_pk_bf16_f32 v%d, v%d, v%d' % (pb + p, b + 2 * p, b + 2 * p + 1) for p in range(8)]
        first = [True]

        def pv(t, pb):
            o = []
            for k in range(2):
                o.append('%s %s, %s, %s, %s' % (MFMA, vr(O, 16), ar(VA + t * 8 + k * 4), vr(pb + 4 * k), '0' if first[0] else vr(O, 16)))
                first[0] = False
            return o
        PB = lambda t: P if t == 0 else KF + (t % 3) * 8
        vr_all = [x for t in order for x in vread(t)]
        self.emit(pkf(0))
        fgt = self.opt.get('fgt', 4)
        rpp = self.rp_parts()
        nb = self.opt.get('nb', 4)
        for t in range(8):
            side = []
            if t >= 1:
                side += cvt(t - 1, PB(t - 1))
                if t == 1:
                    for p in range(8):
                        side.append('v_and_b32 v%d, v%d, v%d' % (P + 8 + p, P + p, M + p))
                        side.append('v_bfi_b32 v%d, v%d, 0, v%d' % (P + p, M + p, P + p))
            if t < 3:
                side = vr_all[12 * t:12 * t + 12] + side
            pk_ = pkf(t + 1) if t < 7 else []
            mm = []
            if t == 1:
                mm = pv(0, P) + pv(8, P + 8)
            elif t > 1:
                mm = pv(t - 1, PB(t - 1))
            ex = exps(t)
            blk = []
            pre = pk_ + side
            n1_ = 16 - 3 * len(mm) if mm else 16
            for r in range(n1_):
                blk.append(ex[r])
                blk += pre[len(pre) * r // n1_:len(pre) * (r + 1) // n1_]
            for k, m_ in enumerate(mm):
                blk += [m_] + ex[n1_ + 3 * k:n1_ + 3 * k + 3]
            if t == fgt:
                a.wait_tok('rp')
                a('s_barrier')
                self.stamp(45)
                blk = sprinkle(blk, [[x] for x in rpp[0]], 0.0, 0.9)
            if t == fgt + 1:
                blk = sprinkle(blk, [rpp[1][2 * u:2 * u + 2] for u in range(4)], 0.45, 0.8)
            if t == fgt + 2:
                blk = [rpp[2]] + blk
            src = wo if wo else self.wd
            take_ = src[:nb] if t < self.opt.get('tb', 5) else []
            del src[:len(take_)]
            self.emit(sprinkle(blk, take_, 0.1, 0.95))
        self.fg = fg
        assert not wo
        self.emit(cvt(7, PB(7)) + pv(7, PB(7)))
        self.stamp(10)
        a('v_cndmask_b32 v2, v%d, v%d, s[26:27]' % (O + 12, O))
        a('v_mov_b32 v3, v2')
        a('v_permlane32_swap_b32 v2, v3')
        a('v_cndmask_b32 v2, v3, v2, s[26:27]')
        a('v_rcp_f32 v2, v2')
        a('s_lshl_b32 s16, %s, 2' % sR)
        a('s_add_u32 s16, s16, %s' % sW)
        a('s_lshl_b32 s16, s16, 4')
        a('s_add_u32 s16, s16, %s' % sHD)
        a('s_lshl_b32 s11, s16, 11')
        a('s_add_u32 s11, s11, %d' % WS_O)
        for p in range(8):
            a('v_pk_mul_f32 %s, %s, v[2:3] op_sel_hi:[1,0]' % (vr(O + 2 * p, 2), vr(O + 2 * p, 2)))
        for p in range(8):
            a('v_cvt_pk_bf16_f32 v%d, v%d, v%d' % (P + p, O + 2 * p, O + 2 * p + 1))
        a('v_and_b32 v%d, v%d, v6' % (P, P))
        a('v_and_b32 v%d, v%d, v6' % (P + 1, P + 1))
        a('v_and_b32 v%d, v%d, v7' % (P + 6, P + 6))
        a('v_and_b32 v%d, v%d, v7' % (P + 7, P + 7))
        for t in range(2):
            a('buffer_store_dwordx4 %s, %s, %s, s11 offen offset:%d sc1' % (vr(P + 4 * t), vL16, SRD_WS, t * 1024), tok='o')

    WO_A = 112
    HRES = 240

    WO_LDS = 0

    def wo_bulk(self):
        g0 = ['s_lshl_b32 %s, %s, 14' % (sBK2, sW), 's_lshl_b32 %s, %s, 16' % (sBK, sN), 's_add_u32 %s, %s, %s' % (sBK, sBK, sBK2),
              's_add_u32 %s, %s, %d' % (sBK, sBK, WS_WO), 's_cmp_ge_u32 %s, 7' % sN, 's_cselect_b32 %s, %d, %s' % (sBK, OOB, sBK)]
        out = []
        for i in range(16):
            g = list(g0) if i == 0 else (['s_add_u32 %s, %s, 4096' % (sBK, sBK)] if i % 4 == 0 else [])
            if i % 4 == 0:
                g.append('s_add_u32 m0, %s, %d' % (sBK2, self.WO_LDS + i * 1024))
            out.append(g + [('buffer_load_dwordx4 %s, %s, %s offen offset:%d sc1 lds' % (vL16, SRD_WS, sBK, (i % 4) * 1024), 'wo')])
        return out

    def wo_read(self):
        a = self.a
        a('s_lshr_b32 s11, %s, 1' % sW)
        a('s_lshl_b32 s11, s11, 15')
        a('s_add_u32 s11, s11, %d' % self.WO_LDS)
        a('v_add_u32 v2, s11, %s' % vXA)
        a('v_add_u32 v3, s11, %s' % vXB)
        for f in range(16):
            for rel in range(2):
                a('ds_read_b128 %s, v%d offset:%d' % (vr(self.WO_A + (f * 2 + rel) * 4), 2 + rel, f * 2048))

    def wd_bulk(self):
        g0 = ['s_mul_i32 %s, %s, %d' % (sBK, sN, 112 * 2048), 's_mul_i32 %s, %s, %d' % (sBK2, sW, 28 * 2048),
              's_add_u32 %s, %s, %s' % (sBK, sBK, sBK2), 's_add_u32 %s, %s, %d' % (sBK, sBK, WS_WD),
              's_cmp_ge_u32 %s, 7' % sN, 's_cselect_b32 %s, %d, %s' % (sBK, OOB, sBK)]
        out = []
        for f in range(28):
            for rel in range(2):
                g = g0 if (f == 0 and rel == 0) else []
                if f and f % 2 == 0 and rel == 0:
                    g = ['s_add_u32 %s, %s, 4096' % (sBK, sBK)]
                out.append(g + ['buffer_load_dwordx4 %s, %s, %s, %s offen offset:%d sc1' % (
                    ar((f * 2 + rel) * 4), (vXA, vXB)[rel], SRD_WS, sBK, (f % 2) * 2048)])
        return out

    def gu_bulk(self, tile):
        o = []
        for i in range(7):
            g = []
            if i % 4 == 0:
                g = ['s_add_u32 m0, s31, %d' % ((tile % 5) * SLOT + i * 1024),
                     's_add_u32 %s, s30, %d' % (sBK2, tile * 28672 + i * 1024)]
            o.append(g + [('buffer_load_dwordx4 %s, %s, %s offen offset:%d sc1 lds' % (vL16, SRD_WS, sBK2, (i % 4) * 1024), 'g%d' % tile)])
        return o

    def warm(self):
        return ['s_lshr_b32 s11, s2, 3', 's_and_b32 s11, s11, 3', 's_lshl_b32 s11, s11, 7',
                'v_lshlrev_b32 v15, 9, v0',
                's_mul_i32 s12, %s, %d' % (sJ, 7 * 28672), 's_lshl_b32 s13, %s, 15' % sW, 's_add_u32 s12, s12, s13',
                's_add_u32 s12, s12, s11', 's_add_u32 s12, s12, %d' % WS_WGU,
                'buffer_load_dword v2, v15, %s, s12 offen' % SRD_WS]

    def p4_wsetup(self):
        a = self.a
        a('s_mul_i32 s31, %s, 7168' % sW)
        a('s_mul_i32 s30, %s, %d' % (sJ, 7 * 28672))
        a('s_add_u32 s30, s30, s31')
        a('s_add_u32 s30, s30, %d' % WS_WGU)

    def seq_loads(self, dst, n, sreg):
        o = []
        for i in range(n):
            if i and i % 4 == 0:
                o.append('s_add_u32 %s, %s, 4096' % (sreg, sreg))
            o.append('buffer_load_dwordx4 %s, %s, %s, %s offen offset:%d sc1' % (
                vr(dst + 4 * i), vL16, SRD_WS, sreg, (i % 4) * 1024))
        return o

    def res_voffset(self, dst, sreg):
        a = self.a
        a('v_and_b32 %s, 31, v0' % dst)
        a('v_mul_u32_u24 %s, 896, %s' % (dst, dst))
        a('v_lshrrev_b32 v2, 5, v0')
        a('v_lshl_add_u32 %s, v2, 4, %s' % (dst, dst))
        a('s_lshl_b32 %s, %s, 1' % (sreg, sM))
        a('s_and_b32 s12, %s, 1' % sW)
        a('s_add_u32 %s, %s, s12' % (sreg, sreg))
        a('s_mul_i32 %s, %s, %d' % (sreg, sreg, 32 * 896))
        a('s_lshl_b32 s12, %s, 7' % sN)
        a('s_add_u32 %s, %s, s12' % (sreg, sreg))
        a('s_lshr_b32 s12, %s, 1' % sW)
        a('s_lshl_b32 s12, s12, 6')
        a('s_add_u32 %s, %s, s12' % (sreg, sreg))

    def unpack8(self, dst, src):
        for p in range(8):
            self.a('v_lshlrev_b32 v%d, 16, v%d' % (dst + 2 * p, src + p))
            self.a('v_and_b32 v%d, 0xffff0000, v%d' % (dst + 2 * p + 1, src + p))

    P3_ACC, P3_OF = 16, 48

    def p3_setup(self):
        a = self.a
        EX = XTRA + 1024
        self.unpack8(self.P3_ACC, self.HRES)
        a('s_lshl_b32 s13, %s, 1' % sM)
        a('s_and_b32 s12, %s, 1' % sW)
        a('s_add_u32 s13, s13, s12')
        a('s_lshr_b32 s12, %s, 1' % sW)
        a('s_lshl_b32 s18, s13, 1')
        a('s_add_u32 s18, s18, s12')
        a('s_lshl_b32 s20, s18, %d' % (FSH + 3))
        a('s_add_u32 s20, s20, %d' % (WS_FL + FL_F2 * FS))
        a('s_lshl_b32 s18, s18, 14')
        a('s_add_u32 s18, s18, %d' % WS_O)
        a('s_xor_b32 s11, %s, 2' % sW)
        a('s_lshl_b32 s11, s11, 12')
        a('s_add_u32 s11, s11, %d' % EX)
        a('v_add_u32 v4, s11, %s' % vL16)
        a('s_lshl_b32 s11, %s, 12' % sW)
        a('s_add_u32 s11, s11, %d' % EX)
        a('v_add_u32 v5, s11, %s' % vL16)
        a('s_lshl_b32 s14, %s, 1' % sN)
        a('s_add_u32 s14, s14, s12')
        a('s_mul_i32 s19, s13, 28672')
        a('s_lshl_b32 s12, s14, 11')
        a('s_add_u32 s19, s19, s12')
        a('s_add_u32 s19, s19, %d' % WS_HB)
        a('s_lshl_b32 s17, s13, 4')
        a('s_add_u32 s17, s17, s14')
        a('s_lshl_b32 s29, s17, 8')
        a('s_add_u32 s29, s29, %d' % WS_ST)
        a('v_mov_b32 v6, 0x3f803f80')
        a('v_lshlrev_b32 v7, 3, v0')

    def p3(self):
        a = self.a
        ACC, OF = self.P3_ACC, self.P3_OF
        self.poll([('s20', k) for k in range(8)])
        self.stamp(12)
        self.emit(self.seq_loads(OF, 16, 's18'))
        for f in range(16):
            for rel in (1, 0):
                a('%s %s, %s, %s, %s' % (MFMA, vr(ACC + 16 * rel, 16), vr(self.WO_A + (f * 2 + rel) * 4), vr(OF + 4 * f),
                                         '0' if (rel == 1 and f == 0) else vr(ACC + 16 * rel, 16)))
        self.stamp(13)
        for k in range(4):
            a('ds_write_b128 v4, %s offset:%d' % (vr(ACC + 16 + 4 * k), k * 1024))
        a('s_waitcnt lgkmcnt(0)')
        a('s_barrier')
        for k in range(4):
            a('ds_read_b128 %s, v5 offset:%d' % (vr(OF + 4 * k), k * 1024))
        H = self.HRES
        for p in range(8):
            a('v_pk_add_f32 %s, %s, %s' % (vr(ACC + 2 * p, 2), vr(ACC + 2 * p, 2), vr(OF + 2 * p, 2)))
            a('v_cvt_pk_bf16_f32 v%d, v%d, v%d' % (H + p, ACC + 2 * p, ACC + 2 * p + 1))
            if p % 4 == 3:
                a('buffer_store_dwordx4 %s, %s, %s, s19 offen offset:%d sc1' % (vr(H + p - 3), vL16, SRD_WS, (p // 4) * 1024), tok='h')
        for p in range(8):
            a('v_dot2_f32_bf16 v8, v%d, v6, %s' % (H + p, 'v8' if p else '0'))
            a('v_dot2_f32_bf16 v9, v%d, v%d, %s' % (H + p, H + p, 'v9' if p else '0'))
        a('v_mov_b32 v10, v8')
        a('v_mov_b32 v11, v9')
        a('v_permlane32_swap_b32 v8, v10')
        a('v_permlane32_swap_b32 v9, v11')
        a('v_add_f32 v8, v8, v10')
        a('v_add_f32 v9, v9, v11')
        a('s_mov_b32 exec_hi, 0')
        a('buffer_store_dwordx2 v[8:9], v7, %s, s29 offen sc1' % SRD_WS, tok='h')
        a('s_mov_b64 exec, -1')

    def p4_cs_issue(self):
        a = self.a
        a('s_lshl_b32 s11, %s, 1' % sW)
        a('v_lshrrev_b32 v112, 5, v0')
        a('v_add_u32 v112, s11, v112')
        a('v_min_u32 v113, 6, v112')
        a('v_mul_u32_u24 v113, 896, v113')
        a('v_and_b32 v114, 31, v0')
        a('v_lshl_add_u32 v113, v114, 2, v113')
        a('s_mul_i32 s11, %s, %d' % (sJ, 7 * 896))
        a('s_add_u32 s11, s11, %d' % WS_CS)
        for k in range(7):
            a('buffer_load_dword v%d, v113, %s, s11 offen offset:%d sc1' % (116 + k, SRD_WS, 128 * k))
        a('v_lshlrev_b32 v112, 7, v112')
        a('v_lshl_add_u32 v112, v114, 2, v112')
        a('v_add_u32 v112, %d, v112' % XTRA)

    def p4_cs_finish(self):
        a = self.a
        for k in range(1, 7):
            a('v_add_f32 v116, v116, v%d' % (116 + k))
        a('ds_write_b32 v112, v116')

    def fg_items(self):
        a = self.a
        a('s_mul_i32 s23, %s, 7' % sJ)
        a('s_lshr_b32 s23, s23, 2')
        a('s_min_u32 s23, s23, 25')
        a('s_mul_i32 s23, s23, 7')
        a('s_mul_i32 s11, %s, 7' % sW)
        a('s_lshr_b32 s11, s11, 2')
        a('s_min_u32 s11, s11, 4')
        a('s_add_u32 s23, s23, s11')
        a('s_lshl_b32 s23, s23, %d' % FSH)
        a('s_add_u32 s23, s23, %d' % (WS_FL + FL_FG * FS))
        a('s_mul_i32 s22, %s, %d' % (sW, 7 * FS))
        a('s_add_u32 s22, s22, %d' % (WS_FL + FL_FD * FS))
        return [('s23', 7 * g + k) for g in range(3) for k in range(3)], [('s22', k) for k in range(7)]

    def p4_setup(self):
        a = self.a
        a('s_lshl_b32 s13, %s, 2' % sR4)
        a('s_add_u32 s13, s13, %s' % sW)
        a('s_mul_i32 s18, s13, 28672')
        a('s_add_u32 s18, s18, %d' % WS_HB)
        a('s_lshl_b32 s20, s13, %d' % (FSH + 4))
        a('s_add_u32 s20, s20, %d' % (WS_FL + FL_F3 * FS))
        a('v_and_b32 v2, 31, v0')
        a('v_lshlrev_b32 v2, 3, v2')
        a('v_lshrrev_b32 v3, 5, v0')
        a('v_mul_u32_u24 v4, %d, v3' % (7 * 256))
        a('v_add_u32 v14, v2, v4')
        a('s_lshl_b32 s19, s13, 12')
        a('s_add_u32 s19, s19, %d' % WS_ST)
        a('v_add_u32 v5, %d, %s' % (2 * SLOT, vL16))
        a('v_add_u32 v6, %d, %s' % (4 * SLOT, vL16))
        a('v_lshlrev_b32 v7, 6, v3')
        a('v_add_u32 v7, %d, v7' % XTRA)
        a('s_mul_i32 s29, s13, %d' % (112 * 1024))
        a('s_mul_i32 s12, %s, %d' % (sJ, 7 * 1024))
        a('s_add_u32 s29, s29, s12')
        a('s_add_u32 s29, s29, %d' % WS_HH)
        a('s_add_u32 s28, s29, 4096')
        a('s_lshl_b32 s27, s13, 4')
        a('s_add_u32 s27, s27, %s' % sJ)

    def f4_set(self, stage):
        return ['s_mov_b32 s11, s27'] + self.flag_set('s11', FL_F4 + stage * 1024)

    def p4(self, wd_rest):
        a = self.a
        T0 = self.opt['T0']
        HF, ACC, WF, CSR, TM, PK = 16, 128, 192, 208, 224, 232
        NACC = 4
        self.poll([('s20', k) for k in range(14)])
        self.stamp(16)
        hl = self.seq_loads(HF, 28, 's18')
        for k in range(7):
            hl.append('buffer_load_dwordx2 %s, v14, %s, s19 offen offset:%d sc1' % (vr(CSR + 2 * k, 2), SRD_WS, 256 * k))
        base = [vL16, 'v5', 'v6']
        cnt = [0]

        def wread(tile, k):
            s = tile % 5
            b = 224 + (cnt[0] % 8) * 4
            cnt[0] += 1
            return b, ('ds_read_b128 %s, %s offset:%d' % (ar(b), base[s >> 1], (s & 1) * SLOT + k * 1024), 'wr%d' % cnt[0])

        D = 7

        def chain(seq):
            rd = [wread(t, k) for t, k in seq]
            o = [rd[i][1] for i in range(min(D, len(rd)))]
            for i, (t, k) in enumerate(seq):
                acc = vr(ACC + 16 * (t % NACC), 16)
                if i % 2 == 0 and i + 1 < len(rd):
                    o.append(Pseudo('wait_tok', rd[i + 1][1][1]))
                o.append('%s %s, %s, %s, %s' % (MFMA, acc, ar(rd[i][0]), vr(HF + 4 * k), acc if k else '0'))
                if i + D < len(rd):
                    o.append(rd[i + D][1])
            return o
        C1 = -2.0 * 1.4426950408889634 * 0.7978845608028654
        st = []
        for k in range(1, 7):
            st.append('v_add_f32 v%d, v%d, v%d' % (CSR, CSR, CSR + 2 * k))
            st.append('v_add_f32 v%d, v%d, v%d' % (CSR + 1, CSR + 1, CSR + 2 * k + 1))
        st += ['v_mov_b32 v12, v%d' % CSR, 'v_mov_b32 v13, v%d' % (CSR + 1),
               'v_permlane32_swap_b32 v%d, v12' % CSR, 'v_permlane32_swap_b32 v%d, v13' % (CSR + 1),
               'v_add_f32 v12, v12, v%d' % CSR, 'v_add_f32 v13, v13, v%d' % (CSR + 1),
               'v_mul_f32 v8, %s, v12' % f32(-1.0 / 448), 'v_mul_f32 v13, %s, v13' % f32(1.0 / 448),
               'v_fma_f32 v13, -v8, v8, v13', 'v_max_f32 v13, 0, v13', 'v_add_f32 v11, %s, v13' % f32(1e-5),
               'v_rsq_f32 v12, v11', 'v_mul_f32 v9, %s, v12' % f32(C1), 'v_mul_f32 v13, v12, v12',
               'v_mul_f32 v10, v9, v13', 'v_mul_f32 v10, %s, v10' % f32(0.044715)]

        def gelu(tile):
            b = ACC + 16 * (tile % NACC)
            pk = PK + (tile % 2) * 4
            o = ['ds_read_b128 %s, v7 offset:%d' % (vr(CSR + 4 * k), tile * 128 + 16 * k) for k in range(4)]
            for h in range(2):
                E = range(4 * h, 4 * h + 4)
                for e in E:
                    o.append('v_fmac_f32 v%d, v%d, v8' % (b + e, CSR + e))
                for e in E:
                    o.append('v_mul_f32 v%d, v%d, v%d' % (TM + e % 4, b + e, b + e))
                for e in E:
                    o.append('v_fma_f32 v%d, v%d, v10, v9' % (TM + e % 4, TM + e % 4))
                for e in E:
                    o.append('v_mul_f32 v%d, v%d, v%d' % (TM + e % 4, TM + e % 4, b + e))
                for e in E:
                    o.append('v_exp_f32 v%d, v%d' % (TM + e % 4, TM + e % 4))
                    o.append('v_fmac_f32 v%d, v%d, v8' % (b + 8 + e, CSR + 8 + e))
                for e in E:
                    o.append('v_fma_f32 v%d, v%d, v11, v11' % (TM + e % 4, TM + e % 4))
                for e in E:
                    o.append('v_rcp_f32 v%d, v%d' % (TM + e % 4, TM + e % 4))
                    o.append('v_mul_f32 v%d, v%d, v%d' % (b + e, b + e, b + 8 + e))
                for e in E:
                    o.append('v_mul_f32 v%d, v%d, v%d' % (b + e, b + e, TM + e % 4))
                for p in range(2):
                    o.append('v_cvt_pk_bf16_f32 v%d, v%d, v%d' % (pk + 2 * h + p, b + 4 * h + 2 * p, b + 4 * h + 2 * p + 1))
            o.append(('buffer_store_dwordx4 %s, %s, %s, s%d offen offset:%d sc1' % (
                vr(pk), vL16, SRD_WS, 29 if tile < 4 else 28, (tile % 4) * 1024), 'hh%d' % tile))
            return o
        nup = 15
        self.emit(hl[:nup])
        for t in range(T0):
            a.wait_tok('g%d' % t)
        a('s_waitcnt lgkmcnt(0)')
        a('s_barrier')
        self.stamp(40)
        main = chain([(t, k) for k in range(28) for t in range(T0)])
        nw1 = self.opt.get('nw1', 18)
        side = [[x] for x in hl[nup:]]
        main, rest = weave(main, side, per=1)
        main, rest = weave(main + rest, wd_rest[:nw1], start=len(side) + 6)
        main, rest = weave(main + rest, st, per=1, start=T0 * 28 - len(st) - 2)
        self.emit(main + rest)
        self.stamp(17)
        for t in range(T0, 5):
            a.wait_tok('g%d' % t)
        a('s_waitcnt lgkmcnt(0)')
        a('s_barrier')
        bulk = self.gu_bulk(5) + self.gu_bulk(6) + wd_rest[nw1:]
        nwin = 7 - T0
        share = [14] + [(len(bulk) - 14 + nwin - 2) // (nwin - 1)] * (nwin - 1)
        for t in range(T0, 7):
            if t == 5:
                a.wait_tok('g5')
                a.wait_tok('g6')
                a('s_barrier')
            main = chain([(t, k) for k in range(28)])
            main, rest = weave(main, gelu(t - T0))
            n = share[t - T0]
            main = sprinkle(main + rest, bulk[:n], 0.0, 0.9)
            bulk = bulk[n:]
            self.emit(main)
            self.stamp(18 + t - T0)
        assert not bulk
        a.wait_tok('hh2')
        self.emit(self.f4_set(0))
        for t in range(7 - T0, 7):
            self.emit(gelu(t))
        a.wait_tok('hh4')
        self.emit(self.f4_set(1))

    def p5(self):
        a = self.a
        ACC, HHF, NBUF = 16, 80, 40
        a('s_and_b32 s13, %s, 1' % sW)
        a('s_lshl_b32 s14, %s, 1' % sM)
        a('s_lshl_b32 s20, s14, %d' % (FSH + 4))
        a('s_lshl_b32 s15, %s, %d' % (sW, FSH + 2))
        a('s_add_u32 s20, s20, s15')
        a('s_add_u32 s20, s20, %d' % (WS_FL + FL_F4 * FS))
        a('s_add_u32 s21, s20, %d' % (1024 * FS))
        a('s_add_u32 s22, s20, %d' % (2048 * FS))
        fl = lambda st: [('s%d' % (20 + st), r * 16 + jj) for r in range(2) for jj in range(4)]
        self.emit(self.poll_loads(fl(0)))
        a('s_add_u32 s11, s14, s13')
        a('s_xor_b32 s12, s11, 1')
        a('s_mul_i32 s14, %s, %d' % (sW, 28 * 1024))
        a('s_add_u32 s14, s14, %d' % WS_HH)
        for k in range(2):
            a('s_mul_i32 s%d, s%d, %d' % (11 + k, 11 + k, 112 * 1024))
            a('s_add_u32 s%d, s%d, s14' % (16 + k, 11 + k))
        self.unpack8(ACC, self.HRES)
        self.res_voffset('v4', 's18')
        seq = [(jj * 7 + tau, ra) for tau in range(7) for jj in range(4) for ra in range(2)]

        def load(i):
            f, ra = seq[i]
            return ['s_add_u32 s11, s%d, %d' % (16 + ra, (f // 4) * 4096),
                    'buffer_load_dwordx4 %s, %s, %s, s11 offen offset:%d sc1' % (
                        vr(HHF + (i % NBUF) * 4), vL16, SRD_WS, (f % 4) * 1024)]
        self.poll_check(fl(0))
        self.stamp(23)
        AHEAD = 14
        nxt = [0]

        def issue_upto(n):
            while nxt[0] < min(n, len(seq)):
                i = nxt[0]
                if i == 12:
                    a.wait_tok('hh6')
                    self.emit(self.f4_set(2))
                if i == 16:
                    self.emit(self.poll_loads(fl(1)))
                if i == 24:
                    self.poll_check(fl(1))
                if i == 32:
                    self.emit(self.poll_loads(fl(2)))
                if i == 40:
                    self.poll_check(fl(2))
                self.emit(load(i))
                nxt[0] += 1
        issue_upto(AHEAD)
        seen = set([(0, 0)])
        for i, (f, ra) in enumerate(seq):
            for rb in range(2):
                acc = vr(ACC + 16 * (ra + 2 * rb), 16)
                a('%s %s, %s, %s, %s' % (MFMA, acc, ar((f * 2 + rb) * 4), vr(HHF + (i % NBUF) * 4),
                                         acc if (ra, rb) in seen else '0'))
                seen.add((ra, rb))
            issue_upto(i + 1 + AHEAD)
        self.stamp(24)
        a('s_barrier')
        for rel in range(1, 4):
            a('s_xor_b32 s11, %s, %d' % (sW, rel))
            a('s_mul_i32 s11, s11, 12288')
            a('v_add_u32 v5, s11, %s' % vL16)
            for k in range(4):
                a('ds_write_b128 v5, %s offset:%d' % (vr(ACC + 16 * rel + 4 * k), (rel - 1) * 4096 + k * 1024))
        a('s_mul_i32 s11, %s, 12288' % sW)
        a('v_add_u32 v5, s11, %s' % vL16)
        a('s_waitcnt lgkmcnt(0)')
        a('s_barrier')
        for k in range(12):
            a('ds_read_b128 %s, v5 offset:%d' % (vr(HHF + 4 * k), k * 1024))
        for rel in range(3):
            for p in range(8):
                a('v_pk_add_f32 %s, %s, %s' % (vr(ACC + 2 * p, 2), vr(ACC + 2 * p, 2), vr(HHF + 16 * rel + 2 * p, 2)))
        for p in range(8):
            a('v_cvt_pk_bf16_f32 v%d, v%d, v%d' % (8 + p, ACC + 2 * p, ACC + 2 * p + 1))
            if p % 4 == 3:
                a('buffer_store_dwordx4 %s, v4, %s, s18 offen offset:%d' % (vr(8 + p - 3), SRD_OUT, (p // 4) * 32))
        self.stamp(25)

    def build(self):
        a = self.a
        nm = NAME + '_kernel'
        a('.globl %s\n.p2align 8\n.type %s,@function\n%s:' % (nm, nm, nm))
        self.prologue()
        a('s_cmp_ge_u32 %s, 7' % sN)
        a('s_cbranch_scc1 L_idle1')
        self.p1()
        self.stamp(5)
        a.wait_tok('qkv')
        self.emit(self.flag_set('s16', FL_F1))
        self.stamp(36)
        self.poll_check(self.fo_items())
        a('s_barrier')
        a('L_join1:')
        self.wd = self.wd_bulk()
        wo = self.wo_bulk()
        w2 = self.opt.get('w2', 8)
        assert w2 % 4 == 0
        self.res_voffset('v15', 's11')
        for t in range(2):
            a('buffer_load_dwordx4 %s, v15, %s, s11 offen offset:%d' % (vr(self.HRES + 4 * t), SRD_X, 32 * t))
        self.emit(wo[:w2])
        self.rp_prep()
        self.wo_rest = wo[w2:]
        self.stamp(6)
        self.p2()
        self.p3_setup()
        a.wait_tok('wo')
        a('s_barrier')
        self.wo_read()
        a.wait_tok('o')
        self.emit(self.flag_set('s16', FL_F2))
        self.stamp(11)
        a('s_waitcnt lgkmcnt(0)')
        a('s_barrier')
        self.fg_set()
        self.stamp(37)
        b = [self.opt.get('b%d' % k, d) for k, d in ((2, 10), (4, 6), (5, 15))]
        self.emit(self.wd[:b[0]])
        del self.wd[:b[0]]
        Q = [g for t in range(5) for g in self.gu_bulk(t)] + self.wd

        def take(n):
            self.emit(Q[:n])
            del Q[:n]
        self.stamp(38)
        a('s_cmp_ge_u32 %s, 7' % sN)
        a('s_cbranch_scc1 L_idle3')
        a.begin_cond('p3')
        self.p3()
        a.end_cond()
        a('L_skip3:')
        self.stamp(14)
        self.poll(self.fg)
        self.stamp(46)
        take(b[1])
        a('s_cmp_ge_u32 %s, 7' % sN)
        a('s_cbranch_scc1 L_skip3b')
        a.begin_cond('p3')
        a.wait_tok('h')
        self.emit(self.flag_set('s17', FL_F3))
        a.end_cond()
        a('L_skip3b:')
        self.stamp(15)
        a('s_barrier')
        self.p4_cs_issue()
        take(b[2])
        assert b[1] + b[2] >= 21
        self.p4_cs_finish()
        self.p4_setup()
        self.stamp(39)
        a('s_cmp_ge_u32 %s, 7' % sN)
        a('s_cbranch_scc1 L_idle3b')
        a('L_go4:')
        self.p4(Q)
        self.stamp(22)
        a('s_cmp_ge_u32 %s, 7' % sN)
        a('s_cbranch_scc1 L_idle5')
        self.p5()
        self.stamp_out()
        a('L_exit:')
        a('s_endpgm')
        a('L_idle5:')
        a.fresh()
        a('s_waitcnt vmcnt(0)')
        self.emit(self.f4_set(2))
        self.stamp_out()
        a('s_endpgm')
        a('L_idle3:')
        a.fresh()
        self.prewait('s20')
        a('s_branch L_skip3')
        a('L_idle3b:')
        a.fresh()
        self.prewait('s20')
        a('s_branch L_go4')
        a('L_idle1:')
        a.fresh()
        a('s_waitcnt lgkmcnt(0)')
        self.idle1()
        a('s_waitcnt vmcnt(0) lgkmcnt(0)')
        a('s_branch L_join1')
        a('L_code_end:')
        for x in self.cold:
            a.raw(x)
        hdr = open('cdna_kernels/%s.s.ref' % NAME).read().split('; Override launch')[0]
        hdr += '; @launch grid=(256,1,1) block=(256,1,1) lds=%d\n' % LDS_BYTES
        hdr += '.amdgcn_target "amdgcn-amd-amdhsa--gfx950"\n.text\n'
        body = a.finalize()
        tail = ('.section .rodata,"a"\n.p2align 6\n.amdhsa_kernel %s\n  .amdhsa_next_free_vgpr 512\n  .amdhsa_next_free_sgpr 102\n'
                '  .amdhsa_accum_offset 256\n  .amdhsa_group_segment_fixed_size 0\n  .amdhsa_kernarg_size 80\n'
                '  .amdhsa_user_sgpr_count 2\n  .amdhsa_user_sgpr_kernarg_segment_ptr 1\n'
                '  .amdhsa_system_sgpr_workgroup_id_x 1\n.end_amdhsa_kernel\n' % nm)
        return hdr + body + tail


if __name__ == '__main__':
    out = sys.argv[1]
    opt = {}
    for x in sys.argv[2:]:
        if '=' in x:
            k, v = x.split('=')
            opt[k] = int(v) if v.lstrip('-').isdigit() else v
    txt = Gen(stamps='--ts' in sys.argv, **opt).build()
    open(out, 'w').write(txt)
    print('wrote', out, len(txt), 'bytes')
```

```python
import sys, struct
from asmlib import Asm, weave, Pseudo

NAME = 'sequential_preLN__sliding_block__glu_gated_geglu__prompt'

WS_QKV = 0
WS_O = WS_QKV + 64 * 84 * 1024
WS_HB = WS_O + 64 * 32768
WS_ST = WS_HB + 64 * 28672
WS_HH = WS_ST + 64 * 4096
WS_WGU = WS_HH + 64 * 112 * 1024
WS_CS = WS_WGU + 112 * 28672
WS_WD = WS_CS + 112 * 896
WS_WO = WS_WD + 7 * 112 * 2048
WS_CQ = WS_WO + 7 * 32 * 2048
WS_FL = WS_CQ + 8192
FS, FSH = (512, 9) if 'fs=512' in sys.argv else (256, 8)
FL_F1 = 0
FL_F3 = 3
FL_F4 = 4096
FL_F2 = FL_F4 + 4096
FL_FG = FL_F2 + 1024
FL_FO = FL_FG + 224
FL_FD = FL_FO + 32
FL_END = FL_FD + 32
WS_EP = WS_FL + FL_END * FS
WS_TS = 28 << 20
WS_END = WS_TS + 256 * 4 * 256
OOB = 0x7ff00000

LDS_BYTES = 163840
SLOT = 28672
XTRA = 5 * SLOT

sW, sXCD, sI, sM, sN, sR, sHD, sCT = 's3', 's4', 's5', 's6', 's7', 's8', 's9', 's10'
SRD_X, SRD_WS, SRD_OUT = 's[36:39]', 's[40:43]', 's[44:47]'
SRD_WQKV, SRD_D, SRD_G, SRD_U = 's[52:55]', 's[56:59]', 's[60:63]', 's[64:67]'
PT = 52
sBK, sBK2, sR4, sJ = 's48', 's49', 's4', 's5'
sEP, sEP2 = 's50', 's[50:51]'
DBGP, WSP = 's[32:33]', 's[34:35]'
MASK0 = 68
vL16 = 'v1'
vXA, vXB, vFL = 'v248', 'v249', 250


def f32(x):
    return '0x%08x' % struct.unpack('<I', struct.pack('<f', x))[0]


def vr(b, n=4, t='v'):
    return '%s[%d:%d]' % (t, b, b + n - 1)


def ar(b, n=4):
    return vr(b, n, 'a')


MFMA = 'v_mfma_f32_32x32x16_bf16'


def sprinkle(main, groups, lo=0.0, hi=1.0):
    n = len(main)
    a, b = int(n * lo), int(n * hi)
    out, k = [], 0
    for i, x in enumerate(main):
        while k < len(groups) and i >= a + (b - a) * k // max(len(groups), 1):
            out.extend(groups[k]); k += 1
        out.append(x)
    for g in groups[k:]:
        out.extend(g)
    return out


def cost(x):
    if isinstance(x, list):
        return sum(cost(y) for y in x)
    if isinstance(x, tuple):
        x = x[0]
    if not isinstance(x, str):
        return 4.2 if getattr(x, 'what', '') == 'wait_tok' else 0
    m = x.split()[0]
    if m.endswith(':'):
        return 0
    if m.startswith('v_mfma'):
        return 8
    if m in ('v_exp_f32', 'v_rcp_f32', 'v_rsq_f32'):
        return 8.4
    if m.startswith('buffer_'):
        return 10
    if m.startswith('v_pk_') or m.startswith('v_cvt_pk') or m.startswith('v_max3'):
        return 5.2
    if m.startswith('v_fma') and not m.startswith('v_fmac'):
        return 4.6
    return 4.2


def cweave(gaps, side, skip=0):
    n = len(gaps) - skip
    base = [cost(g) for g in gaps]
    tot = sum(base[skip:]) + cost(list(side))
    out, k, acc = [], 0, 0.0
    for i, g in enumerate(gaps):
        if i < skip:
            out += g
            continue
        acc += base[i]
        tgt = tot * (i - skip + 1) / n
        ins = []
        while k < len(side) and (acc + cost(side[k]) / 2 <= tgt or i == len(gaps) - 1):
            acc += cost(side[k]); ins.append(side[k]); k += 1
        out += g[:2] + ins + g[2:]
    return out


class Gen:
    def __init__(self, stamps=False, **opt):
        self.a = Asm()
        self.stamps = stamps
        self.nl = 0
        self.cold = []
        self.side = Asm()
        self.PT = PT
        self.opt = dict(p2map='C', p4map='B', rot=3, T0=3, nA=24, codepf=1, nt=0)
        self.opt.update(opt)

    def label(self, s):
        self.nl += 1
        return 'L_%s_%d' % (s, self.nl)

    def emit(self, lst):
        for x in lst:
            if isinstance(x, tuple):
                self.a(x[0], tok=x[1])
            elif isinstance(x, str):
                self.a(x)
            elif isinstance(x, list):
                self.emit(x)
            else:
                self.a.items.append(x)

    def capture(self, fn, *args):
        keep = self.a
        self.a = Asm()
        fn(*args)
        items = self.a.items
        self.a = keep
        return items

    def stamp(self, k):
        rt = {3: 50, 32: 51, 9: 52, 10: 53, 40: 54, 17: 55, 21: 56, 23: 57, 24: 58}
        if self.stamps and self.opt.get('lite') == 2 and k in rt:
            self.a('s_memtime s[100:101]\ns_waitcnt lgkmcnt(0)\nv_writelane_b32 v254, s100, %d' % k)
            self.a('s_memrealtime s[100:101]\ns_waitcnt lgkmcnt(0)\nv_writelane_b32 v254, s100, %d' % rt[k])
        if self.stamps and (k == 0 or not self.opt.get('lite')):
            self.a('s_memtime s[100:101]\ns_waitcnt lgkmcnt(0)\nv_writelane_b32 v254, s100, %d' % k)

    def stamp_out(self):
        if self.stamps:
            a = self.a
            a('s_waitcnt vmcnt(0)')
            a('s_memrealtime s[100:101]\ns_waitcnt lgkmcnt(0)\nv_writelane_b32 v254, s100, 62')
            a('s_memtime s[100:101]\ns_waitcnt lgkmcnt(0)\nv_writelane_b32 v254, s100, 61')
            a('s_lshl_b32 s11, s2, 2')
            a('s_add_u32 s11, s11, %s' % sW)
            a('s_lshl_b32 s11, s11, 8')
            a('s_add_u32 s11, s11, %d' % WS_TS)
            a('v_lshlrev_b32 v2, 2, v0')
            a('buffer_store_dword v254, v2, %s, s11 offen' % SRD_WS)
            if self.opt.get('dbg'):
                skip = self.label('dbg')
                a('s_memrealtime s[100:101]')
                a('s_lshl_b32 s11, s2, 2')
                a('s_add_u32 s11, s11, %s' % sW)
                a('s_cmp_lg_u32 s11, %d' % (self.opt['dbg'] * 4))
                a('s_cbranch_scc1 %s' % skip)
                a('v_readlane_b32 s12, v254, 0')
                a('v_readlane_b32 s14, v254, 63')
                for k, st in enumerate([1, 2, 4, 6, 7, 8, 9, 11, 12, 15, 16, 17, 22, 25]):
                    a('v_readlane_b32 s13, v254, %d' % st)
                    a('s_nop 3')
                    a('s_sub_u32 s13, s13, s12')
                    a('v_writelane_b32 v3, s13, %d' % (k + 1))
                a('s_waitcnt lgkmcnt(0)')
                a('s_sub_u32 s13, s100, s14')
                a('v_writelane_b32 v3, s13, 15')
                a('s_mov_b64 exec, 0xfffe')
                a('global_store_dword v2, v3, %s' % DBGP)
                a('s_mov_b64 exec, -1')
                a(skip + ':')

    def srd(self, d, p, size):
        a = self.a
        a('s_mov_b32 s%d, s%d' % (d, p))
        a('s_and_b32 s%d, s%d, 0xffff' % (d + 1, p + 1))
        a('s_mov_b32 s%d, %d' % (d + 2, size))
        a('s_mov_b32 s%d, 0x20000' % (d + 3))

    def flag_set(self, sidx, base, sh=0):
        return ['s_lshl_b32 %s, %s, %d' % (sidx, sidx, FSH + sh),
                's_add_u32 %s, %s, %d' % (sidx, sidx, WS_FL + base * FS),
                's_mov_b64 exec, 0xffff' if FS == 256 else 's_mov_b32 exec_hi, 0',
                'buffer_store_dwordx4 %s, %s, %s, %s offen sc1' % (vr(vFL), vL16, SRD_WS, sidx),
                's_mov_b64 exec, -1']

    def poll_loads(self, items, first=True):
        items = list(items)
        if len(items) % 2:
            items.append(items[-1])
        assert len(items) <= 16
        base = WSP if first else 's[14:15]'
        return ['s_load_dword s%d, %s, %s offset:%d' % (self.PT + k, base, so, imm * FS) for k, (so, imm) in enumerate(items)]

    def poll_check(self, items, onfail=None, tries=None):
        a = self.a
        n = (len(items) + 1) // 2
        top, done, slow = self.label('poll'), self.label('pdone'), self.label('pslow')
        a('s_mov_b64 s[14:15], %s' % WSP)
        a('s_mov_b32 s13, %d' % (tries if tries is not None else FS // 64 - 1))
        a(top + ':')
        a('s_waitcnt lgkmcnt(0)')
        for k in range(n):
            p = 's[%d:%d]' % (self.PT + 2 * k, self.PT + 2 * k + 1)
            a('s_xor_b64 %s, %s, %s' % (p, p, sEP2))
            if k:
                a('s_or_b64 s[%d:%d], s[%d:%d], %s' % (self.PT, self.PT + 1, self.PT, self.PT + 1, p))
        a('s_cbranch_scc0 %s' % done)
        if onfail:
            a.raw('s_cmp_lg_u32 s13, %d' % (FS // 64 - 1))
            a.raw('s_cbranch_scc1 %s_nf' % top)
            for x in ['s_waitcnt vmcnt(0)'] + onfail:
                a.raw(x)
            a.raw('%s_nf:' % top)
        a.raw('s_sub_u32 s13, s13, 1')
        a.raw('s_cbranch_scc1 %s' % slow)
        a.raw('s_sleep %d' % self.opt.get('sl1', 4))
        a.raw('s_add_u32 s14, s14, 64')
        a.raw('s_addc_u32 s15, s15, 0')
        for x in self.poll_loads(items, first=False):
            a.raw(x)
        a.raw('s_branch %s' % top)
        a(done + ':')
        o = [slow + ':', 'v_mov_b32 v255, 0']
        for k, (so, imm) in enumerate(items):
            o += ['s_add_u32 s13, %s, %d' % (so, imm * FS), 'v_writelane_b32 v255, s13, %d' % k]
        o += ['s_mov_b64 exec, 0x%x' % ((1 << len(items)) - 1), slow + '_l:',
              'buffer_load_dword v253, v255, %s, 0 offen sc1' % SRD_WS, 's_waitcnt vmcnt(0)',
              'v_cmp_ne_u32 vcc, %s, v253' % sEP, 's_nop 4', 's_cbranch_vccz %s_d' % slow,
              's_sub_u32 %s, %s, 1' % (sCT, sCT), 's_cbranch_scc1 L_exit', 's_sleep %d' % self.opt.get('sl2', 6), 's_branch %s_l' % slow,
              slow + '_d:', 'v_mov_b32 v253, %s' % sEP, 's_mov_b64 exec, -1', 's_nop 4', 's_branch %s' % done]
        self.cold += o

    def poll(self, items):
        self.emit(self.poll_loads(items))
        self.poll_check(items)

    def prewait(self, soff):
        a = self.a
        top, done = self.label('pw'), self.label('pwd')
        a('s_waitcnt vmcnt(0)')
        a(top + ':')
        a.raw('buffer_load_dword v255, off, %s, %s offset:%d sc1' % (SRD_WS, soff, FS - 64))
        a.raw('s_waitcnt vmcnt(0)')
        a.raw('v_cmp_ne_u32 vcc, %s, v255' % sEP)
        a.raw('s_nop 4')
        a.raw('s_cbranch_vccz %s' % done)
        a.raw('s_sub_u32 %s, %s, 1' % (sCT, sCT))
        a.raw('s_cbranch_scc1 L_exit')
        a.raw('s_sleep %d' % self.opt.get('sl3', 8))
        a.raw('s_branch %s' % top)
        a(done + ':')

    def epoch_issue(self):
        self.a('s_load_dword %s, %s, 0x0' % (sEP, DBGP))

    def flag_set_wg(self, sidx, base):
        o = self.flag_set(sidx, base)
        self.emit(o[:2] + ['s_cmp_eq_u32 %s, 0' % sW, 's_cselect_b32 %s, %s, %d' % (sidx, sidx, OOB)] + o[2:])

    def get_epoch(self, issued=False):
        a = self.a
        top, done = self.label('ep'), self.label('epd')
        if not issued:
            self.epoch_issue()
        a('s_waitcnt lgkmcnt(0)')
        a('s_cmp_lg_u32 %s, 0' % sEP)
        a('s_cbranch_scc0 %s' % top)
        a(done + ':')
        self.cold += [top + ':', 'v_mov_b32 v255, 0', top + '_l:', 'global_load_dword v253, v255, %s sc1' % DBGP,
                      's_waitcnt vmcnt(0)', 'v_readfirstlane_b32 %s, v253' % sEP, 's_nop 4', 's_cmp_lg_u32 %s, 0' % sEP,
                      's_cbranch_scc1 %s' % done, 's_sub_u32 %s, %s, 1' % (sCT, sCT), 's_cbranch_scc1 L_exit',
                      's_sleep 4', 's_branch %s_l' % top]
        a('s_mov_b32 s51, s50')
        for k in range(4):
            a('v_mov_b32 v%d, %s' % (vFL + k, sEP))

    def tr_lane_addr(self, dst, pitch, h16, t0, t1):
        a = self.a
        a('v_lshrrev_b32 %s, 5, v0' % t0)
        a('v_lshlrev_b32 %s, 3, %s' % (t0, t0))
        a('v_bfe_u32 %s, v0, 2, 2' % t1)
        a('v_add_u32 %s, %s, %s' % (t0, t0, t1))
        a('v_mul_u32_u24 %s, %d, %s' % (dst, pitch, t0))
        a('v_bfe_u32 %s, v0, 4, 1' % t0)
        a('v_mul_u32_u24 %s, %d, %s' % (t0, h16, t0))
        a('v_add_u32 %s, %s, %s' % (dst, dst, t0))
        a('v_and_b32 %s, 1, v0' % t0)
        a('v_lshl_add_u32 %s, %s, 4, %s' % (dst, t0, dst))
        a('v_bfe_u32 %s, v0, 1, 1' % t0)
        a('v_lshl_add_u32 %s, %s, 3, %s' % (dst, t0, dst))

    def prologue(self):
        a = self.a
        a.fresh()
        a('s_cmp_ge_u32 s2, 256')
        a('s_cbranch_scc1 L_exit')
        if self.stamps:
            a('v_mov_b32 v254, 0')
            a('s_memrealtime s[100:101]\ns_waitcnt lgkmcnt(0)\nv_writelane_b32 v254, s100, 63')
            self.stamp(0)
        a('s_load_dwordx16 s[16:31], s[0:1], 0')
        a('s_load_dwordx4 s[32:35], s[0:1], 64')
        self.code_prefetch(232)
        a('v_lshrrev_b32 v2, 6, v0')
        a('v_and_b32 v0, 63, v0')
        a('v_readfirstlane_b32 %s, v2' % sW)
        a('v_lshlrev_b32 %s, 4, v0' % vL16)
        a('s_and_b32 %s, s2, 7' % sXCD)
        a('s_lshr_b32 %s, s2, 3' % sI)
        a('s_and_b32 s11, %s, 3' % sI)
        a('s_lshl_b32 %s, %s, 2' % (sM, sXCD))
        a('s_add_u32 %s, %s, s11' % (sM, sM))
        a('s_lshr_b32 %s, %s, 2' % (sN, sI))
        a('s_mov_b32 %s, 0x40000' % sCT)

    def roles(self):
        a = self.a
        self.srd(40, 34, WS_END)
        self.srd(44, 30, 2048 * 896)
        a('s_and_b32 s11, %s, 1' % sI)
        a('s_lshl_b32 s12, %s, 1' % sN)
        a('s_add_u32 s12, s12, s11')
        a('s_lshr_b32 s13, %s, 1' % sM)
        if self.opt['p2map'] == 'A':
            a('s_mov_b32 %s, s13' % sR)
            a('s_mov_b32 %s, s12' % sHD)
        else:
            a('s_lshr_b32 %s, %s, 1' % (sR, sI))
            a('s_lshl_b32 %s, %s, 1' % (sHD, sXCD))
            a('s_add_u32 %s, %s, s11' % (sHD, sHD))
        if self.opt['p4map'] == 'A':
            a('s_mov_b32 %s, s13' % sR4)
            a('s_mov_b32 %s, s12' % sJ)
        else:
            a('s_and_b32 s11, %s, 1' % sXCD)
            a('s_lshl_b32 s11, s11, 3')
            a('s_add_u32 s11, s11, %s' % sN)
            a('s_lshr_b32 s12, %s, 1' % sXCD)
            a('s_lshl_b32 s12, s12, 2')
            a('s_and_b32 s13, %s, 3' % sI)
            a('s_add_u32 %s, s12, s13' % sR4)
            a('s_mov_b32 %s, s11' % sJ)
        a('s_lshr_b32 s11, %s, 1' % sW)
        a('s_lshl_b32 s11, s11, 10')
        a('v_xor_b32 %s, s11, %s' % (vXA, vL16))
        a('v_xor_b32 %s, 1024, %s' % (vXB, vXA))

    def code_prefetch(self, dst):
        if not self.opt['codepf']:
            return
        a = self.a
        a('s_getpc_b64 s[12:13]')
        a('L_code_pc:')
        a('s_lshr_b32 s11, s2, 3')
        a('s_lshl_b32 s11, s11, 12')
        a('v_lshl_add_u32 v%d, v0, 4, s11' % dst)
        a('v_min_u32 v%d, L_code_end-L_code_pc-16, v%d' % (dst, dst))
        a('v_mov_b32 v%d, s13' % (dst + 1))
        a('v_add_co_u32 v%d, vcc, s12, v%d' % (dst, dst))
        a('v_addc_co_u32 v%d, vcc, 0, v%d, vcc' % (dst + 1, dst + 1))
        a('global_load_dwordx4 %s, %s, off' % (vr(dst + 2), vr(dst, 2)))

    P1_X = 4 * SLOT
    P1_SL = [0, 1, 2, 3, 0, 1]
    RP_LDS = 3 * SLOT

    def p1_wdma(self, ss):
        g, h = ss // 2, ss % 2
        o = []
        for i in range(7):
            pre = ['s_add_u32 m0, s83, %d' % (self.P1_SL[ss] * SLOT + i * 1024)] if i % 4 == 0 else []
            o.append(pre + [('buffer_load_dwordx4 v%d, %s, s%d offen offset:%d lds' % (180 + g, SRD_WQKV, 68 + 7 * h + i, (i % 4) * 1024), 'w%d' % ss)])
        return o

    def p1(self):
        a = self.a
        XR, ACC, WF, PKR, T = 16, 72, 104, 136, 152
        VX, VX2 = 178, 179
        a('v_lshrrev_b32 v2, 3, v0')
        a('v_and_b32 v3, 7, v0')
        a('v_mul_u32_u24 v%d, 896, v2' % VX)
        a('v_lshl_add_u32 v%d, v3, 4, v%d' % (VX, VX))
        a('v_add_u32 v%d, %d, v%d' % (VX2, 8 * 896, VX))
        a('s_lshl_b32 s11, %s, 6' % sM)
        a('s_lshl_b32 s12, %s, 4' % sW)
        a('s_add_u32 s11, s11, s12')
        a('s_mul_i32 s14, s11, 896')
        a('s_add_u32 s15, %s, %s' % (sXCD if self.opt['rot'] == 3 else '0', sN))
        a('s_sub_u32 s13, s15, 7')
        a('s_cselect_b32 s15, s15, s13')
        a('s_lshl_b32 s15, s15, 7')
        for s in range(7):
            a('s_add_u32 s%d, s14, s15' % (92 + s))
            a('s_mul_i32 s%d, s15, 1344' % (84 + s))
            if s < 6:
                a('s_add_u32 s15, s15, 128')
                a('s_cmp_eq_u32 s15, 896')
                a('s_cselect_b32 s15, 0, s15')

        def wtab(h):
            for i in range(7):
                B = 28 * h + 4 * i
                a('s_add_u32 s%d, s%d, %d' % (68 + 7 * h + i, 84 + (B >> 3), (B & 7) * 8 * 2688 + 4096 - (i % 4) * 1024))
        wtab(0)
        a('s_mul_i32 s83, %s, 7168' % sW)
        a('s_mul_i32 s11, %s, %d' % (sW, 8 * 2688))
        a('s_lshl_b32 s12, %s, 7' % sN)
        a('s_add_u32 s11, s11, s12')
        a('v_bfe_u32 v176, v0, 4, 1')
        a('v_lshlrev_b32 v176, 2, v176')
        a('v_xor_b32 v176, v176, v3')
        a('v_mul_u32_u24 v177, 2688, v2')
        a('v_lshl_add_u32 v176, v176, 4, v177')
        a('v_add_u32 v181, s11, v176')
        a('v_add_u32 v180, 896, v181')
        self.srd(36, 16, 2048 * 896)
        self.stamp(34)
        NX0, NWF = self.opt.get('nx0', 5), self.opt.get('nwf', 0)

        def xload(s):
            return ['buffer_load_dwordx4 %s, v%d, %s, s%d offen' % (vr(XR + (s * 2 + q) * 4), VX2 if q else VX, SRD_X, 92 + s) for q in range(2)]
        for s in range(NX0):
            self.emit(xload(s))
        a('s_sub_u32 s18, s18, 4096')
        a('s_subb_u32 s19, s19, 0')
        self.srd(52, 18, 448 * 2688 + 4096)
        if self.opt.get('aw', 1):
            a('s_lshl_b32 s11, s2, 2')
            a('s_add_u32 s11, s11, %s' % sW)
            a('s_mul_i32 s11, s11, 1344')
            a('s_add_u32 s11, s11, 4096')
            a('v_lshlrev_b32 v190, 7, v0')
            a('s_mov_b64 exec, 0x7ff')
            a('buffer_load_dword v191, v190, %s, s11 offen' % SRD_WQKV)
            a('s_mov_b64 exec, -1')
        wg = self.p1_wdma(0) + self.p1_wdma(1) + self.p1_wdma(2) + self.p1_wdma(3)
        self.emit(wg[:min(NWF, 7)])
        wtab(1)
        self.emit(wg[7:NWF])
        self.stamp(26)
        self.srd(60, 24, 448 * 3584)
        self.srd(64, 26, 448 * 3584)
        self.roles()
        a('v_add_u32 v182, 1792, v181')
        a('v_lshrrev_b32 v10, 4, v0')
        a('v_xor_b32 v10, v3, v10')
        a('v_lshlrev_b32 v11, 7, v2')
        a('s_lshl_b32 s11, %s, 11' % sW)
        a('s_add_u32 s11, s11, %d' % self.P1_X)
        a('v_add_u32 v11, s11, v11')
        a('v_lshl_add_u32 v%d, v10, 4, v11' % T)
        a('v_xor_b32 v%d, 64, v%d' % (T + 1, T))
        a('v_add_u32 v%d, 1024, v%d' % (T + 1, T + 1))
        a('v_and_b32 v14, 31, v0')
        a('v_lshrrev_b32 v15, 5, v0')
        a('v_bfe_u32 v2, v0, 1, 3')
        a('v_xor_b32 v15, v15, v2')
        a('s_and_b32 s11, %s, 1' % sW)
        a('s_lshl_b32 s11, s11, 12')
        a('s_add_u32 s11, s11, %d' % self.P1_X)
        a('v_lshlrev_b32 v14, 7, v14')
        a('v_add_u32 v14, s11, v14')
        for u in range(4):
            a('v_xor_b32 v2, %d, v15' % (2 * u))
            a('v_lshl_add_u32 v%d, v2, 4, v14' % (T + 2 + u))
        self.tr_lane_addr('v14', 128, 32, 'v2', 'v3')
        a('v_bfe_u32 v2, v0, 3, 1')
        a('s_lshr_b32 s11, %s, 1' % sW)
        a('v_xor_b32 v2, s11, v2')
        a('v_lshl_add_u32 v%d, v2, 6, v14' % (T + 6))
        a('v_lshrrev_b32 v2, 5, v0')
        a('v_mul_u32_u24 v2, %d, v2' % (7168 - 1024))
        a('v_add_u32 v%d, v2, v%d' % (T + 6, T + 6))
        a('v_add_u32 v%d, %d, v%d' % (T + 7, 2 * SLOT, T + 6))
        ONE, SU, SQ, RS, NB, TMP = T + 9, ACC, ACC + 4, T + 10, T + 14, T + 18
        a('v_mov_b32 v%d, 0x3f803f80' % ONE)
        a('v_mov_b32 v%d, 0xffff0000' % TMP)
        st = []
        for s in range(7):
            for q in range(2):
                for d in range(4):
                    x = XR + (s * 2 + q) * 4 + d
                    k = q * 2 + (d & 1)
                    first = s == 0 and d < 2
                    st.append('v_dot2_f32_bf16 v%d, v%d, v%d, %s' % (SU + k, x, ONE, '0' if first else 'v%d' % (SU + k)))
                    st.append('v_dot2_f32_bf16 v%d, v%d, v%d, %s' % (SQ + k, x, x, '0' if first else 'v%d' % (SQ + k)))
        red = []
        for q in range(2):
            st.append('v_add_f32 v%d, v%d, v%d' % (SU + 2 * q, SU + 2 * q, SU + 2 * q + 1))
            st.append('v_add_f32 v%d, v%d, v%d' % (SQ + 2 * q, SQ + 2 * q, SQ + 2 * q + 1))
            red += [SU + 2 * q, SQ + 2 * q]
        for dpp in ('quad_perm:[1,0,3,2]', 'quad_perm:[2,3,0,1]', 'row_half_mirror'):
            for r in red:
                st.append('v_add_f32_dpp v%d, v%d, v%d %s row_mask:0xf bank_mask:0xf' % (r, r, r, dpp))
        for q in range(2):
            su, sq = SU + 2 * q, SQ + 2 * q
            st += ['v_mul_f32 v%d, %s, v%d' % (su, f32(1.0 / 448), su),
                   'v_mul_f32 v%d, %s, v%d' % (sq, f32(1.0 / 448), sq),
                   'v_fma_f32 v%d, -v%d, v%d, v%d' % (sq, su, su, sq),
                   'v_max_f32 v%d, 0, v%d' % (sq, sq),
                   'v_add_f32 v%d, %s, v%d' % (sq, f32(1e-5), sq),
                   'v_rsq_f32 v%d, v%d' % (RS + 2 * q, sq),
                   'v_mul_f32_e64 v%d, -v%d, v%d' % (NB + 2 * q, su, RS + 2 * q)]

        def norm(s, pk):
            o = []
            for q in range(2):
                b = XR + (s * 2 + q) * 4
                tb_ = PKR + q * 8
                for d in range(4):
                    o.append('v_lshlrev_b32 v%d, 16, v%d' % (tb_ + 2 * d, b + d))
                    o.append('v_and_b32 v%d, v%d, v%d' % (tb_ + 2 * d + 1, TMP, b + d))
                for d in range(4):
                    t0 = tb_ + 2 * d
                    if pk:
                        o.append('v_pk_fma_f32 %s, %s, %s, %s op_sel_hi:[1,0,0]' % (
                            vr(t0, 2), vr(t0, 2), vr(RS + 2 * q, 2), vr(NB + 2 * q, 2)))
                    else:
                        o.append('v_fma_f32 v%d, v%d, v%d, v%d' % (t0, t0, RS + 2 * q, NB + 2 * q))
                        o.append('v_fma_f32 v%d, v%d, v%d, v%d' % (t0 + 1, t0 + 1, RS + 2 * q, NB + 2 * q))
                for d in range(4):
                    o.append('v_cvt_pk_bf16_f32 v%d, v%d, v%d' % (b + d, tb_ + 2 * d, tb_ + 2 * d + 1))
                if s == 6 and q == 0:
                    o.append('s_barrier')
                o.append('ds_write_b128 v%d, %s offset:%d' % (T + q, vr(b), (s % 6) * 8192))
            return o

        def xread(ks):
            return 'ds_read_b128 %s, v%d offset:%d' % (ar(4 * ks), T + 2 + ks % 4, ((ks // 4) % 6) * 8192)

        cnt = [0]

        def wread(ss, k):
            b = WF + (cnt[0] % 8) * 4
            cnt[0] += 1
            sl = self.P1_SL[ss]
            return b, ['ds_read_b64_tr_b16 %s, v%d offset:%d' % (vr(b + 2 * z, 2), T + 6 + (sl >> 1), (sl & 1) * SLOT + (k & 1) * 14336 + (k >> 1) * 1024 + z * 512)
                       for z in range(2)]

        D = 6

        def store(g):
            so = ['s82', 'vcc_lo', 'vcc_hi'][g]
            o = []
            for h in range(2):
                pk = PKR + (g % 2) * 8 + 4 * h
                for d in range(4):
                    r = ACC + 16 * (g % 2) + 8 * h + 2 * d
                    o.append('v_cvt_pk_bf16_f32 v%d, v%d, v%d' % (pk + d, r, r + 1))
                o.append(('buffer_store_dwordx4 %s, %s, %s, %s offen offset:%d sc1' % (vr(pk), vL16, SRD_WS, so, h * 1024), 'q%d' % g))
            return o

        def sync(ss):
            return [Pseudo('wait_tok', 'w%d' % ss), 's_waitcnt lgkmcnt(0)', 's_barrier']
        a('s_lshl_b32 s13, %s, 1' % sM)
        a('s_and_b32 s12, %s, 1' % sW)
        a('s_add_u32 s13, s13, s12')
        a('s_lshr_b32 s12, %s, 1' % sW)
        a('s_lshl_b32 s11, %s, 1' % sN)
        a('s_add_u32 s12, s12, s11')
        a('s_mul_i32 vcc_lo, s13, %d' % (84 * 1024))
        a('s_lshl_b32 s11, s12, 11')
        a('s_add_u32 vcc_lo, vcc_lo, s11')
        a('s_add_u32 s82, vcc_lo, %d' % (28 * 1024))
        a('s_add_u32 vcc_hi, vcc_lo, %d' % (56 * 1024))
        a('s_lshl_b32 s16, s13, 4')
        a('s_add_u32 s16, s16, s12')
        a('s_lshl_b32 s16, s16, %d' % (FSH + 2))
        a('s_add_u32 s16, s16, %d' % (WS_FL + FL_F1 * FS))
        a('s_mov_b32 %s, s16' % sBK2)
        self.stamp(1)
        for s_ in range(NX0, 7):
            self.emit(xload(s_))
        if self.opt.get('pw', 2) == 2:
            self.emit(self.prewrite(True, 184))
        k = NWF
        for s in range(7):
            blk = st[16 * s:16 * s + 16]
            self.emit(blk[:9])
            if s in (0, 3, 6):
                self.stamp(42 + s // 3)
            if k + 2 <= self.opt.get('n0', 14):
                self.emit(wg[k] + blk[9:] + wg[k + 1])
                k += 2
            else:
                self.emit(blk[9:])
        n1 = self.opt.get('n1', 20)
        self.emit(sprinkle(st[112:] + norm(0, True) + norm(1, True) + ['s_load_dword %s, %s, 0x0' % (sEP, DBGP)] + norm(2, True) + norm(3, True), wg[k:n1], 0.3, 1.0))
        self.stamp(2)
        self.emit(sync(0))
        self.get_epoch(issued=True)
        self.stamp(3)
        seq = [(ss, kk) for ss in range(6) for kk in range(14)]

        def rds(i):
            ss, kk = seq[i]
            b, r = wread(ss, kk)
            o = sync(ss) if (kk == 0 and ss) else []
            if ss < 2:
                o.append(xread(14 * ss + kk))
            return b, o + r
        rd = [rds(i) for i in range(len(seq))]
        for i in range(D):
            self.emit(rd[i][1])
        self.stamp(57)
        p2s = self.p2_setup_s()
        p2v = self.capture(self.p2_setup_v)
        for ss in range(6):
            g, h = ss // 2, ss % 2
            acc = vr(ACC + 16 * (g % 2), 16)
            A, B = [], []
            for kk in range(14):
                i = 14 * ss + kk
                m_ = '%s %s, %s, %s, %s' % (MFMA, acc, vr(rd[i][0]), ar(4 * (14 * h + kk)), acc if (kk or h) else '0')
                (A if kk <= 14 - D else B).append(m_)
                if i + D < len(seq):
                    (A if kk < 14 - D else B).extend(rd[i + D][1])
            sa, sb = [], []
            if ss == 0:
                sa = sprinkle([x for s in range(4, 7) for x in norm(s, self.opt.get('pk0', 0))], wg[n1:], 0.0, 0.9)
            if ss in (2, 4):
                sa = ['s_nop 0'] * 0 + store(ss // 2 - 1)
            fl = lambda gs: [x for g_ in gs for x in g_]
            if ss == 0:
                sb = fl(self.p1_wdma(4)[:4])
            if ss == 1:
                sa = fl(self.p1_wdma(4)[4:])
                sb = fl(self.p1_wdma(5)[:4])
            if ss == 2:
                sa = fl(self.p1_wdma(5)[4:]) + sa
            if ss == 2 and self.opt.get('rpl', 3) == 0:
                sb = self.rp_load()[0]
            if ss == 1 and self.opt.get('pw', 2) == 1:
                sa = sa + self.prewrite(True, 184)
            if ss == 3:
                sa = p2s[:26]
                sb = p2s[26:40] + [[Pseudo('wait_tok', 'q0')] + self.f1_set(0)]
            if ss == 4:
                sb = p2s[40:]
            if ss == 5:
                sa = p2v[:40]
            A, r1 = weave(A, sa, start=1 if ss in (2, 4) else 0)
            if ss == 5:
                B = B[:2] + ['s_waitcnt lgkmcnt(0)'] + self.poll_loads(self.kflags(0)) + B[2:] + [Pseudo('wait_tok', 'q1')] + self.f1_set(1)
                r2 = []
            else:
                B, r2 = weave(B, sb)
            self.emit(A + r1 + B + r2)
            self.stamp(27 + ss)
        self.emit(store(2))
        self.p2v_rest = p2v[40:]

    def kflags(self, part):
        return [('s%d' % (20 + g), k * 64 + part) for g in range(2) for k in range(3)]

    def qflags(self):
        return [('s22', 1), ('s23', 1)]

    def fo_items(self):
        return [('s18', k) for k in range(2)]

    def rp_load(self):
        o = ['v_lshrrev_b32 v220, 3, v0', 'v_and_b32 v221, 7, v0', 'v_mul_u32_u24 v220, 3584, v220',
             'v_lshl_add_u32 v220, v221, 4, v220', 'v_add_u32 v221, %d, v220' % (8 * 3584 - 1024),
             's_lshl_b32 s25, %s, 6' % sN, 's_lshl_b32 s28, %s, 4' % sW, 's_add_u32 s25, s25, s28', 's_mul_i32 s25, s25, 3584',
             's_lshl_b32 s28, %s, 7' % sM, 's_add_u32 s25, s25, s28',
             ['s_cmp_lt_u32 %s, 28' % sM, 's_cselect_b32 s25, s25, %d' % OOB], 's_lshl_b32 s28, %s, 11' % sW]
        d = []
        for img, srd in enumerate((SRD_G, SRD_U)):
            d.append('s_add_u32 m0, s28, %d' % (self.RP_LDS + img * 8192))
            for z in range(2):
                d.append(('buffer_load_dwordx4 v%d, %s, s25 offen offset:%d lds' % (220 + z, srd, z * 1024), 'rp'))
        return o, d

    def rp_prep(self):
        a = self.a
        self.tr_lane_addr('v15', 128, 8192, 'v2', 'v3')
        a('s_lshl_b32 s11, %s, 5' % sW)
        a('s_add_u32 s11, s11, %d' % self.RP_LDS)
        a('v_add_u32 v15, s11, v15')
        a('s_lshl_b32 s13, %s, 2' % sM)
        a('s_add_u32 s13, s13, %s' % sW)
        a('s_mul_i32 s0, s13, 28672')
        a('s_lshl_b32 s12, %s, 12' % sN)
        a('s_add_u32 s0, s0, s12')
        a('s_add_u32 s0, s0, %d' % WS_WGU)
        a('s_mul_i32 s1, s13, 896')
        a('s_lshl_b32 s12, %s, 7' % sN)
        a('s_add_u32 s1, s1, s12')
        a('s_add_u32 s1, s1, %d' % WS_CS)
        a('s_lshl_b32 s12, %s, 2' % sN)
        a('s_max_u32 s12, s12, %s' % sM)
        a('s_cmp_lt_u32 s12, 28')
        a('s_cselect_b32 s0, s0, %d' % OOB)
        a('s_cselect_b32 s1, s1, %d' % OOB)

    def rp_frag(self):
        a = self.a
        for u in range(4):
            for z in range(2):
                a('ds_read_b64_tr_b16 %s, v15 offset:%d' % (ar(168 + u * 4 + z * 2, 2), (16 * u + 4 * z) * 128))
        for d in range(4):
            a('v_mov_b32 v%d, 0x3f803f80' % (160 + d))
        a('v_lshlrev_b32 v164, 2, v0')

    def rp_mm(self):
        for u in range(4):
            self.a('%s v[16:31], v[160:163], %s, %s' % (MFMA, ar(168 + u * 4), 'v[16:31]' if u else '0'))

    def rp_store(self):
        a = self.a
        for u in range(4):
            a('buffer_store_dwordx4 %s, %s, %s, s0 offen offset:%d sc1' % (ar(168 + u * 4), vL16, SRD_WS, u * 1024), tok='rs')
        a('s_mov_b32 exec_hi, 0')
        a('buffer_store_dword v16, v164, %s, s1 offen sc1' % SRD_WS, tok='rs')
        a('s_mov_b32 exec_hi, -1')

    def fg_set(self):
        a = self.a
        a('s_mul_i32 s11, %s, 7' % sM)
        a('s_add_u32 s11, s11, %s' % sN)
        a('s_cmp_ge_u32 %s, 7' % sN)
        a('s_cselect_b32 s11, 223, s11')
        self.flag_set_wg('s11', FL_FG)

    def prewrite(self, active, z):
        assert FS == 256
        st = lambda: 'buffer_store_dwordx4 %s, %s, %s, s0 offen sc1' % (vr(z), vL16, SRD_WS)
        o = ['v_mov_b32 v%d, 0' % (z + k) for k in range(4)]
        o += ['s_lshl_b32 s0, %s, 2' % sR4, 's_add_u32 s0, s0, %s' % sW, 's_lshl_b32 s0, s0, 4', 's_add_u32 s0, s0, %s' % sJ,
              's_lshl_b32 s0, s0, 10', 's_add_u32 s0, s0, %d' % (WS_FL + FL_F4 * FS), st()]
        o += ['s_lshl_b32 s0, %s, 2' % sR, 's_add_u32 s0, s0, %s' % sW, 's_lshl_b32 s0, s0, 4', 's_add_u32 s0, s0, %s' % sHD,
              's_lshl_b32 s0, s0, 8', 's_add_u32 s0, s0, %d' % (WS_FL + FL_F2 * FS),
              ['s_mov_b64 exec, 0xffff', st(), 's_mov_b64 exec, -1']]
        if active:
            o += ['s_mov_b32 s0, %s' % sBK2, st()]
        return o

    def prewrite_data(self, z):
        st = lambda s_, off: 'buffer_store_dwordx4 %s, %s, %s, %s offen offset:%d sc1' % (vr(z), vL16, SRD_WS, s_, off)
        o = ['s_lshl_b32 s11, s24, 4', 's_add_u32 s11, s11, %s' % sHD, 's_lshl_b32 s11, s11, 11', 's_add_u32 s11, s11, %d' % WS_O,
             st('s11', 0), st('s11', 1024),
             's_lshl_b32 s13, %s, 1' % sM, 's_and_b32 s12, %s, 1' % sW, 's_add_u32 s13, s13, s12', 's_mul_i32 s13, s13, 14',
             's_lshr_b32 s12, %s, 1' % sW, 's_add_u32 s13, s13, s12', 's_lshl_b32 s12, %s, 1' % sN, 's_add_u32 s13, s13, s12',
             's_lshl_b32 s13, s13, 11', 's_add_u32 s13, s13, %d' % WS_HB,
             's_cmp_ge_u32 %s, 7' % sN, 's_cselect_b32 s13, %d, s13' % OOB, st('s13', 0), st('s13', 1024)]
        return o

    def touch(self, v):
        sh = self.opt.get('tsh', 19)
        return ['v_lshlrev_b32 v%d, %d, v0' % (v, sh),
                'buffer_load_dword v%d, v%d, %s, 0 offen offset:2048' % (v + 1, v, SRD_WS),
                'buffer_load_dword v%d, v%d, %s, 0 offen offset:2048' % (v + 1, v, SRD_OUT)]

    def idle1(self):
        a = self.a
        self.srd(36, 16, 2048 * 896)
        self.srd(40, 34, WS_END)
        noep = self.label('noep')
        a('s_lshl_b32 s13, s2, 2')
        a('s_add_u32 s13, s13, %s' % sW)
        a('s_cmp_lg_u32 s13, 1020')
        a('s_cbranch_scc1 %s' % noep)
        a.begin_cond(noep)
        a('s_mov_b32 s13, %d' % WS_EP)
        a('s_load_dword s12, %s, s13' % WSP)
        a('s_add_u32 s12, s12, 1')
        a('s_max_u32 s12, s12, 1')
        a('v_mov_b32 v8, s12')
        a('v_mov_b32 v9, 0')
        a('s_mov_b64 exec, 1')
        a('buffer_store_dword v8, off, %s, s13 sc1' % SRD_WS)
        a('global_store_dword v9, v8, %s sc1' % DBGP)
        a('s_mov_b64 exec, -1')
        a.end_cond()
        a(noep + ':')
        if self.opt.get('j0', 0):
            self.srd(52, 18, 448 * 2688)
            a('s_lshl_b32 s11, %s, 2' % sM)
            a('s_add_u32 s11, s11, %s' % sW)
            a('s_mul_i32 s11, s11, 9408')
            for k in range(10):
                if k and k % 4 == 0:
                    a('s_add_u32 s11, s11, 4096')
                a('buffer_load_dwordx4 v[40:43], %s, %s, s11 offen offset:%d' % (vL16, SRD_WQKV, (k % 4) * 1024))
        a('v_lshrrev_b32 v2, 3, v0')
        a('v_and_b32 v3, 7, v0')
        a('s_mul_i32 s17, %s, 40960' % sW)
        self.srd(60, 24, 448 * 3584)
        self.srd(64, 26, 448 * 3584)
        self.srd(52, 28, 1792 * 896)
        self.srd(56, 20, 448 * 896)
        self.roles()
        if self.opt.get('pw', 2):
            self.emit(self.prewrite(False, 44))
        a('v_mul_u32_u24 v4, 896, v2')
        a('v_lshl_add_u32 v4, v3, 4, v4')
        a('s_and_b32 s12, %s, 3' % sM)
        a('s_mul_i32 s19, s12, 112')
        a('s_lshl_b32 s11, %s, 4' % sW)
        a('s_add_u32 s19, s19, s11')
        a('s_lshr_b32 s11, %s, 1' % sW)
        a('s_lshl_b32 s11, s11, 3')
        a('s_sub_u32 s19, s19, s11')
        a('s_mul_i32 s19, s19, 896')
        a('s_lshr_b32 s13, %s, 2' % sM)
        a('s_lshl_b32 s11, s13, 7')
        a('s_add_u32 s19, s19, s11')
        a('s_lshl_b32 s18, s13, 5')
        a('s_lshl_b32 s11, s12, 3')
        a('s_add_u32 s18, s18, s11')
        a('s_add_u32 s18, s18, %s' % sW)
        a('s_lshl_b32 s18, s18, 11')
        a('s_add_u32 s18, s18, %d' % WS_WO)
        a('s_lshl_b32 s20, %s, 2' % sM)
        a('s_add_u32 s20, s20, %s' % sW)
        a('s_lshl_b32 s21, s20, 11')
        a('s_add_u32 s21, s21, %d' % WS_WD)
        a('s_cmp_lt_u32 %s, 28' % sM)
        a('s_cselect_b32 s19, s19, %d' % OOB)
        a('s_cselect_b32 s18, s18, %d' % OOB)
        a('s_cselect_b32 s21, s21, %d' % OOB)
        for k in range(4):
            a('s_add_u32 m0, s17, %d' % (14336 + k * 1024))
            a('s_add_u32 s11, s19, %d' % (((k >> 1) * 56 + (k & 1) * 8) * 896))
            a('buffer_load_dwordx4 v4, %s, s11 offen lds' % SRD_D, tok='j2')
        self.tr_lane_addr('v6', 128, 32, 'v2', 'v3')
        a('v_add_u32 v6, s17, v6')
        self.tr_lane_addr('v7', 896, 32, 'v2', 'v3')
        a('v_add_u32 v7, s17, v7')

        def j3():
            a('s_mul_i32 s11, s20, 12544')
            for k in range(13):
                if k and k % 4 == 0:
                    a('s_add_u32 s11, s11, 4096')
                for srd in (SRD_G, SRD_U):
                    a('buffer_load_dwordx4 v[40:43], %s, %s, s11 offen offset:%d' % (vL16, srd, (k % 4) * 1024))

        def j4():
            a('s_mul_i32 s22, s20, %d' % (16 * 896))
            for k in range(14):
                if k % 4 == 0:
                    a('s_add_u32 m0, s17, %d' % (18432 + k * 1024))
                    if k:
                        a('s_add_u32 s22, s22, 4096')
                a('buffer_load_dwordx4 %s, %s, s22 offen offset:%d lds' % (vL16, SRD_WQKV, (k % 4) * 1024), tok='j4')

        def j2p():
            a.wait_tok('j2')
            for k in range(4):
                for z in range(2):
                    a('ds_read_b64_tr_b16 %s, v6 offset:%d' % (vr(24 + k * 4 + z * 2, 2), 14336 + (k >> 1) * 2048 + (k & 1) * 64 + z * 512))
            a('s_add_u32 s19, s18, 8192')
            for k in range(4):
                a('buffer_store_dwordx4 %s, %s, %s, s%d offen offset:%d sc1' % (vr(24 + k * 4), vL16, SRD_WS, 18 + (k >> 1), (k & 1) * 1024), tok='c2')

        def j4p():
            a.wait_tok('j4')
            for ct in range(14):
                for z in range(2):
                    a('ds_read_b64_tr_b16 %s, v110 offset:%d' % (vr(48 + ct * 4 + z * 2, 2), 18432 + ct * 64 + z * 4 * 896))
            for ct in range(14):
                if ct and ct % 2 == 0:
                    a('s_add_u32 s0, s0, %d' % (112 * 2048))
                a('buffer_store_dwordx4 %s, %s, %s, s0 offen offset:%d sc1' % (vr(48 + ct * 4), vL16, SRD_WS, (ct % 2) * 1024), tok='c4')

        def flag(tok, base):
            a.wait_tok(tok)
            a('s_barrier')
            a('s_mov_b32 s11, %s' % sM)
            self.flag_set_wg('s11', base)
        if self.opt.get('j4e', 0):
            j4()
            j2p()
        else:
            j2p()
            j4()
        a('v_mov_b32 v110, v7')
        a('s_mov_b32 s0, s21')
        self.p2_setup_v()
        self.emit(self.p2_setup_s())
        self.res_voffset('v15', 's1')
        self.emit(self.rp_load()[0])
        self.get_epoch()
        flag('c2', FL_FO)
        self.stamp(1)
        j4p()
        self.stamp(2)
        a('s_lshl_b32 s0, %s, %d' % (sM, FSH + 7))
        a('s_add_u32 s0, s0, %d' % (WS_FL + (FL_F1 + 6 * 4 + self.opt.get('px', 1)) * FS))
        a('s_load_dword s12, %s, s0 offset:128' % WSP)
        flag('c4', FL_FD)
        self.stamp(3)
        a('s_cmp_eq_u32 s12, %s' % sEP)
        a('s_cbranch_scc1 L_nopw')
        a('s_cmp_lg_u32 %s, 0' % sW)
        a('s_cbranch_scc1 L_nopw')
        self.prewait('s0')
        a('L_nopw:')
        a('s_barrier')
        self.poll(self.kflags(0) + self.qflags())
        self.k_issue()
        a('s_mov_b32 s11, s1')

    KV_LDS = 4 * SLOT

    def p2_setup_s(self):
        o = []
        a = o.append
        a('s_mul_i32 s28, %s, 7' % sHD)
        a('s_lshr_b32 s28, s28, 1')
        a('s_lshl_b32 s11, %s, 2' % sR)
        a('s_add_u32 s12, s11, %s' % sW)
        a('s_mul_i32 s13, %s, 3' % sW)
        a('s_add_u32 s11, s11, s13')
        a('s_sub_i32 s18, s11, 8')
        a('s_max_i32 s13, s18, 0')
        a('s_lshl_b32 s13, s13, %d' % (FSH + 6))
        a('s_add_u32 s13, s13, %d' % (WS_FL + FL_F1 * FS))
        a('s_lshl_b32 s14, s12, %d' % (FSH + 6))
        a('s_add_u32 s14, s14, %d' % (WS_FL + FL_F1 * FS))
        for k, add in enumerate((0, 3)):
            a('s_add_u32 s15, s28, %d' % add)
            a('s_lshr_b32 s15, s15, 2')
            a('s_lshl_b32 s15, s15, %d' % (FSH + 2))
            a('s_add_u32 s%d, s15, s13' % (20 + k))
            a('s_add_u32 s%d, s15, s14' % (22 + k))
        a('s_mov_b32 s24, s12')
        a('s_lshl_b32 s28, s28, 9')
        a('s_mul_i32 s19, s12, %d' % (84 * 1024))
        a('s_add_u32 s19, s19, s28')
        for k in range(3):
            a('s_add_i32 s13, s18, %d' % k)
            a('s_mul_i32 s14, s13, %d' % (84 * 1024))
            a('s_add_u32 s14, s14, s28')
            a('s_add_u32 s14, s14, %d' % (56 * 512))
            a('s_cmp_lt_i32 s13, 0')
            a('s_cselect_b32 s%d, %d, s14' % (29 + k, OOB))
        a('s_mul_i32 s17, %s, %d' % (sW, 3 * 4096))
        a('v_lshrrev_b32 v5, 5, v0')
        a('v_lshlrev_b32 v5, 6, v5')
        a('v_xor_b32 v4, %s, v5' % vL16)
        a('v_xor_b32 v5, 128, v4')
        a('s_bitcmp1_b32 %s, 0' % sHD)
        a('s_cselect_b64 s[26:27], -1, 0')
        a('s_min_u32 s18, %s, 6' % sN)
        a('s_lshl_b32 s18, s18, 2')
        a('s_and_b32 s11, %s, 2' % sW)
        a('s_add_u32 s18, s18, s11')
        a('s_lshl_b32 s18, s18, %d' % FSH)
        a('s_add_u32 s18, s18, %d' % (WS_FL + FL_FO * FS))
        return o

    def p2_setup_v(self):
        a = self.a
        M = 224
        a('v_and_b32 v2, 31, v0')
        a('v_lshrrev_b32 v3, 5, v0')
        a('v_lshlrev_b32 v3, 2, v3')
        a('v_sub_u32 v2, v2, v3')
        for r in range(16):
            a('v_cmp_le_i32 s[%d:%d], %d, v2' % (MASK0 + 2 * r, MASK0 + 2 * r + 1, (r & 3) + 8 * (r >> 2)))
        a('v_mov_b32 v2, 0xffff')
        a('v_mov_b32 v3, 0xffff0000')
        for p in range(8):
            a('v_cndmask_b32 v%d, 0, v2, s[%d:%d]' % (M + p, MASK0 + 4 * p, MASK0 + 4 * p + 1))
            a('v_cndmask_b32 v8, 0, v3, s[%d:%d]' % (MASK0 + 4 * p + 2, MASK0 + 4 * p + 3))
            a('v_or_b32 v%d, v%d, v8' % (M + p, M + p))
        a('s_bitcmp1_b32 %s, 0' % sHD)
        a('s_cselect_b32 s12, -1, 0')
        a('s_mov_b32 s13, 0')
        a('v_cndmask_b32 v6, -1, 0, s[12:13]')
        a('s_cselect_b32 s13, 0, -1')
        a('s_mov_b32 s12, 0')
        a('v_cndmask_b32 v7, -1, 0, s[12:13]')
        a('s_cselect_b32 s11, 0, %d' % (3 * 512 + 8))
        a('s_mul_i32 s12, %s, %d' % (sW, 3 * 4096))
        a('s_add_u32 s11, s11, s12')
        a('s_add_u32 s11, s11, %d' % (self.KV_LDS + 2048))
        a('v_and_b32 v8, 31, v0')
        a('v_lshlrev_b32 v8, 4, v8')
        a('v_add_u32 v8, s11, v8')
        a('v_lshrrev_b32 v9, 5, v0')
        a('v_lshl_add_u32 v9, v9, 12, v8')
        a('v_mov_b32 v10, 0x3f80')
        a('v_mov_b32 v11, 0')
        a('s_lshl_b32 s11, %s, 12' % sW)
        a('s_add_u32 s11, s11, %d' % self.KV_LDS)
        a('v_add_u32 v12, s11, %s' % vL16)
        a('v_and_b32 v2, 1, v0')
        a('v_bfe_u32 v3, v0, 4, 1')
        a('v_lshrrev_b32 v13, 5, v0')
        a('v_xor_b32 v13, v13, v2')
        a('v_lshlrev_b32 v13, 6, v13')
        a('v_lshl_add_u32 v13, v3, 7, v13')
        a('v_lshl_add_u32 v13, v2, 9, v13')
        a('v_lshl_add_u32 v13, v3, 10, v13')
        a('v_bfe_u32 v2, v0, 2, 2')
        a('v_lshl_add_u32 v13, v2, 4, v13')
        a('v_bfe_u32 v2, v0, 1, 1')
        a('v_lshl_add_u32 v13, v2, 3, v13')
        a('v_xor_b32 v14, 128, v13')
        a('s_add_u32 s11, s11, 2048')
        a('v_add_u32 v13, s11, v13')
        a('v_add_u32 v14, s11, v14')

    def k_issue(self):
        a = self.a
        for k in range(3):
            a('s_add_u32 m0, s17, %d' % (self.KV_LDS + k * 4096))
            for t in range(2):
                a('buffer_load_dwordx4 %s, %s, s%d offen offset:%d sc1 lds' % (vL16, SRD_WS, 29 + k, t * 1024), tok='k')

    def q_issue(self):
        for t in range(2):
            self.a('buffer_load_dwordx4 %s, %s, %s, s19 offen offset:%d sc1' % (vr(232 + 4 * t), vL16, SRD_WS, t * 1024))

    def v_issue(self):
        a = self.a
        for k in range(3):
            a('s_add_u32 m0, s17, %d' % (self.KV_LDS + k * 4096 + 2048))
            a('s_add_u32 s13, s%d, %d' % (29 + k, 56 * 512))
            for t in range(2):
                a('buffer_load_dwordx4 v%d, %s, s13 offen offset:%d sc1 lds' % (4 + t, SRD_WS, t * 1024), tok='v')

    def p2(self):
        a = self.a
        S, KF, Q, VF, P, O, M = 16, 160, 232, 176, 192, 208, 224
        rpl = self.opt.get('rpl', 3)
        a('v_and_b32 v%d, v%d, v6' % (Q, Q))
        a('v_and_b32 v%d, v%d, v6' % (Q + 1, Q + 1))
        a('v_and_b32 v%d, v%d, v7' % (Q + 6, Q + 6))
        a('v_and_b32 v%d, v%d, v7' % (Q + 7, Q + 7))
        a.wait_tok('k')
        a('s_barrier')
        self.stamp(8)
        order = [0, 8, 1, 2, 3, 4, 5, 6, 7]
        KB = [KF, KF + 8, VF, VF + 8]
        MX = 216

        def kread(i):
            return ['ds_read_b128 %s, v12 offset:%d' % (vr(KB[i % 4] + h * 4), order[i] * 4096 + h * 1024) for h in range(2)]

        def smm(i):
            t = order[i]
            return ['%s %s, %s, %s, %s' % (MFMA, vr(S + 16 * t, 16), vr(KB[i % 4] + h * 4), vr(Q + 4 * h),
                                           vr(S + 16 * t, 16) if h else '0') for h in range(2)]

        def fill(t):
            lab = self.label('fill')
            self.cold += [lab + ':', 's_nop 15'] + ['v_mov_b32 v%d, 0xff800000' % (S + 16 * t + r) for r in range(16)] + ['s_branch %s_r' % lab]
            return ['s_cmp_lt_u32 s24, %d' % (8 - t), 's_cbranch_scc1 %s' % lab, lab + '_r:']

        def mx(t):
            m3 = ['v_max3_f32 v%d, v%d, v%d, v%d' % (MX + k % 4, MX + k % 4, S + 2 * k, S + 2 * k + 1) for k in range(8 * t, 8 * t + 8)]
            if t == 0:
                o = fill(0)
                o += ['v_cndmask_b32 v%d, v%d, v%d, s[%d:%d]' % (S + r, S + r, S + 128 + r, MASK0 + 2 * r, MASK0 + 2 * r + 1) for r in range(16)]
                o += ['v_max_f32 v%d, v%d, v%d' % (MX + k, S + 2 * k, S + 2 * k + 1) for k in range(4)] + m3[4:]
                return o[:15], o[15:]
            la, lb = self.label('mxa'), self.label('mxb')
            c = 's_cmp_lt_u32 s24, %d' % (8 - t)
            return ([c, 's_cbranch_scc1 %s' % la, Pseudo('begin', la)] + m3[:4] + [Pseudo('end'), la + ':'],
                    ['s_cbranch_scc1 %s' % lb, Pseudo('begin', lb)] + m3[4:] + [Pseudo('end'), lb + ':'])

        def fill_rest():
            lab = self.label('fillr')
            o = [lab + ':', 's_nop 15']
            for t in range(1, 8):
                if t > 1:
                    o += ['s_cmp_lt_u32 s24, %d' % (8 - t), 's_cbranch_scc0 %s_r' % lab]
                o += ['v_mov_b32 v%d, 0xff800000' % (S + 16 * t + r) for r in range(16)]
            self.cold += o + ['s_branch %s_r' % lab]
            return ['s_cmp_lt_u32 s24, 7', 's_cbranch_scc1 %s' % lab, lab + '_r:']
        wo = self.wo_rest
        self.emit(kread(0) + kread(1) + kread(2))
        for i in range(9):
            m0_, m1_ = smm(i)
            va, vb = mx(i - 4) if i >= 4 else ([], [])
            sl_ = [wo.pop(0)] if (wo and i < self.opt.get('sw', 0)) else []
            self.emit([m0_] + (kread(i + 3) if i + 3 < 9 else []) + sl_ + va + [m1_] + vb)
        self.emit(self.poll_loads(self.kflags(2)))
        for t in range(5, 8):
            self.emit(list(mx(t)))
        self.emit(fill_rest())
        CC = S + 128
        a('v_max3_f32 v%d, v%d, v%d, v%d' % (MX, MX, MX + 1, MX + 2))
        a('v_max_f32 v%d, v%d, v%d' % (MX, MX, MX + 3))
        a('v_mov_b32 v%d, v%d' % (MX + 1, MX))
        c = 28 ** -0.5 * 1.4426950408889634
        a('v_mov_b32 v%d, %s' % (CC + 2, f32(c)))
        a('v_permlane32_swap_b32 v%d, v%d' % (MX, MX + 1))
        a('v_max_f32 v%d, v%d, v%d' % (MX, MX, MX + 1))
        a('v_mul_f32 v%d, %s, v%d' % (CC + 4, f32(-c), MX))
        self.stamp(9)
        VA = 184

        def vread(t):
            return ['ds_read_b64_tr_b16 %s, v%d offset:%d' % (ar(VA + t * 8 + k * 4 + z * 2, 2), 13 + z, t * 4096 + k * 256)
                    for k in range(2) for z in range(2)]

        def pkf(t):
            b = S + 16 * t
            return ['v_pk_fma_f32 %s, %s, %s, %s op_sel_hi:[1,0,0]' % (vr(b + 2 * p, 2), vr(b + 2 * p, 2), vr(CC + 2, 2), vr(CC + 4, 2))
                    for p in range(8)]

        def exps(t):
            return ['v_exp_f32 v%d, v%d' % (S + 16 * t + r, S + 16 * t + r) for r in range(16)]

        def cvt(t, pb):
            b = S + 16 * t
            return ['v_cvt_pk_bf16_f32 v%d, v%d, v%d' % (pb + p, b + 2 * p, b + 2 * p + 1) for p in range(8)]
        first = [True]

        def pv(t, pb):
            o = []
            for k in range(2):
                o.append('%s %s, %s, %s, %s' % (MFMA, vr(O, 16), ar(VA + t * 8 + k * 4), vr(pb + 4 * k), '0' if first[0] else vr(O, 16)))
                first[0] = False
            return o
        PB = lambda t: P if t == 0 else S + 16 * t
        vr_all = [x for t in order for x in vread(t)]
        vc, vb = self.opt.get('vc', 0), self.opt.get('vb', 3)
        nb = self.opt.get('nb', 3)
        pvq = [(0, P), (8, P + 8)] + [(t, PB(t)) for t in range(1, 8)]
        self.emit(pkf(0))
        for t in range(8):
            if t == vc:
                self.poll_check(self.kflags(2))
                self.v_issue()
                self.p4_wsetup()
                fg, fd = self.fg_items()
                self.emit(self.poll_loads(fd))
                if self.opt.get('pd', 0):
                    self.emit(self.prewrite_data(M))
                self.stamp(41)
            if t == vc + 2:
                self.poll_check(fd)
            side = []
            if t >= 1:
                side += cvt(t - 1, PB(t - 1))
                if t == 1:
                    for p in range(8):
                        side.append('v_and_b32 v%d, v%d, v%d' % (P + 8 + p, P + p, M + p))
                        side.append('v_bfi_b32 v%d, v%d, 0, v%d' % (P + p, M + p, P + p))
            if t == vb:
                a.wait_tok('v')
                a('ds_write_b64 v9, v[10:11]')
                a('ds_write_b64 v8, v[10:11] offset:8192')
                a('s_waitcnt lgkmcnt(0)')
                a('s_barrier')
                self.stamp(45)
            if vb <= t < vb + 3:
                side = vr_all[12 * (t - vb):12 * (t - vb) + 12] + side
            pk_ = pkf(t + 1) if t < 7 else []
            mm = []
            if t > vb:
                for _ in range(self.opt.get('npv', 2)):
                    if pvq and pvq[0][0] % 8 < t:
                        mm += pv(*pvq.pop(0))
            ex = exps(t)
            blk = []
            pre = pk_ + side
            n1_ = 16 - 3 * len(mm) if mm else 16
            for r in range(n1_):
                blk.append(ex[r])
                blk += pre[len(pre) * r // n1_:len(pre) * (r + 1) // n1_]
            for k, m_ in enumerate(mm):
                blk += [m_] + ex[n1_ + 3 * k:n1_ + 3 * k + 3]
            if t == vb:
                blk = [x for x in self.capture(self.rp_frag)] + blk
                st_ = self.capture(self.rp_store)
                mm_ = self.capture(self.rp_mm)
                blk = sprinkle(blk, [[mm_[u], st_[u]] for u in range(4)], 0.7, 1.0)
            if t == vb + 1:
                blk = blk[:12] + [st_[4:]] + blk[12:]
            src = wo if wo else (self.wd if t >= vc + 2 else [])
            take_ = src[:nb] if vc <= t < self.opt.get('tb', 7) else []
            del src[:len(take_)]
            self.emit(sprinkle(blk, take_, 0.1, 0.95))
            if self.opt.get('bs'):
                self.stamp(50 + t)
        self.fg = fg
        assert not wo
        last = cvt(7, PB(7))
        rest = [m_ for x in pvq for m_ in pv(*x)]
        self.emit(sprinkle(last, [[m_] for m_ in rest[:-2]], 0.0, 1.0) + rest[-2:])
        a.wait_tok('wo')
        a('s_barrier')
        self.stamp(10)
        a('v_cndmask_b32 v2, v%d, v%d, s[26:27]' % (O + 12, O))
        a('v_mov_b32 v3, v2')
        a('v_permlane32_swap_b32 v2, v3')
        a('v_cndmask_b32 v2, v3, v2, s[26:27]')
        a('v_rcp_f32 v2, v2')
        a('s_lshl_b32 s16, %s, 2' % sR)
        a('s_add_u32 s16, s16, %s' % sW)
        a('s_lshl_b32 s16, s16, 4')
        a('s_add_u32 s16, s16, %s' % sHD)
        a('s_lshl_b32 s11, s16, 11')
        a('s_add_u32 s11, s11, %d' % WS_O)
        for p in range(8):
            a('v_pk_mul_f32 %s, %s, v[2:3] op_sel_hi:[1,0]' % (vr(O + 2 * p, 2), vr(O + 2 * p, 2)))
        for p in range(8):
            a('v_cvt_pk_bf16_f32 v%d, v%d, v%d' % (P + p, O + 2 * p, O + 2 * p + 1))
        a('v_and_b32 v%d, v%d, v6' % (P, P))
        a('v_and_b32 v%d, v%d, v6' % (P + 1, P + 1))
        a('v_and_b32 v%d, v%d, v7' % (P + 6, P + 6))
        a('v_and_b32 v%d, v%d, v7' % (P + 7, P + 7))
        for t in range(2):
            a('buffer_store_dwordx4 %s, %s, %s, s11 offen offset:%d sc1' % (vr(P + 4 * t), vL16, SRD_WS, t * 1024), tok='o')

    WO_A = 112
    HRES = 240

    WO_LDS = 0

    def wo_bulk(self):
        g0 = ['s_lshl_b32 %s, %s, 14' % (sBK2, sW), 's_lshl_b32 %s, %s, 16' % (sBK, sN), 's_add_u32 %s, %s, %s' % (sBK, sBK, sBK2),
              's_add_u32 %s, %s, %d' % (sBK, sBK, WS_WO), 's_cmp_ge_u32 %s, 7' % sN, 's_cselect_b32 %s, %d, %s' % (sBK, OOB, sBK)]
        out = []
        for i in range(16):
            g = list(g0) if i == 0 else (['s_add_u32 %s, %s, 4096' % (sBK, sBK)] if i % 4 == 0 else [])
            if i % 4 == 0:
                g.append('s_add_u32 m0, %s, %d' % (sBK2, self.WO_LDS + i * 1024))
            out.append(g + [('buffer_load_dwordx4 %s, %s, %s offen offset:%d sc1 lds' % (vL16, SRD_WS, sBK, (i % 4) * 1024), 'wo')])
        return out

    def wo_read(self):
        a = self.a
        a('s_lshr_b32 s11, %s, 1' % sW)
        a('s_lshl_b32 s11, s11, 15')
        a('s_add_u32 s11, s11, %d' % self.WO_LDS)
        a('v_add_u32 v2, s11, %s' % vXA)
        a('v_add_u32 v3, s11, %s' % vXB)
        for f in range(16):
            for rel in range(2):
                a('ds_read_b128 %s, v%d offset:%d' % (vr(self.WO_A + (f * 2 + rel) * 4), 2 + rel, f * 2048))

    def wd_bulk(self):
        g0 = ['s_mul_i32 %s, %s, %d' % (sBK, sN, 112 * 2048), 's_mul_i32 %s, %s, %d' % (sBK2, sW, 28 * 2048),
              's_add_u32 %s, %s, %s' % (sBK, sBK, sBK2), 's_add_u32 %s, %s, %d' % (sBK, sBK, WS_WD),
              's_cmp_ge_u32 %s, 7' % sN, 's_cselect_b32 %s, %d, %s' % (sBK, OOB, sBK)]
        out = []
        cur = 0
        for slot in range(28):
            f = (slot % 4) * 7 + slot // 4
            for rel in range(2):
                g = list(g0) if (slot == 0 and rel == 0) else []
                if rel == 0 and f != cur:
                    d = (f - cur) * 2048
                    g.append('s_add_u32 %s, %s, %d' % (sBK, sBK, d) if d > 0 else 's_sub_u32 %s, %s, %d' % (sBK, sBK, -d))
                    cur = f
                out.append(g + ['buffer_load_dwordx4 %s, %s, %s, %s offen sc1' % (
                    ar((slot * 2 + rel) * 4), (vXA, vXB)[rel], SRD_WS, sBK)])
        return out

    def gu_bulk(self, tile):
        o = []
        for i in range(7):
            g = []
            if i % 4 == 0:
                g = ['s_add_u32 m0, s31, %d' % ((tile % 5) * SLOT + i * 1024),
                     's_add_u32 %s, s30, %d' % (sBK2, tile * 28672 + i * 1024)]
            o.append(g + [('buffer_load_dwordx4 %s, %s, %s offen offset:%d sc1 lds' % (vL16, SRD_WS, sBK2, (i % 4) * 1024), 'g%d' % tile)])
        return o

    def warm(self):
        return ['s_lshr_b32 s11, s2, 3', 's_and_b32 s11, s11, 3', 's_lshl_b32 s11, s11, 7',
                'v_lshlrev_b32 v15, 9, v0',
                's_mul_i32 s12, %s, %d' % (sJ, 7 * 28672), 's_lshl_b32 s13, %s, 15' % sW, 's_add_u32 s12, s12, s13',
                's_add_u32 s12, s12, s11', 's_add_u32 s12, s12, %d' % WS_WGU,
                'buffer_load_dword v2, v15, %s, s12 offen' % SRD_WS]

    def p4_wsetup(self):
        a = self.a
        a('s_mul_i32 s31, %s, 7168' % sW)
        a('s_mul_i32 s30, %s, %d' % (sJ, 7 * 28672))
        a('s_add_u32 s30, s30, s31')
        a('s_add_u32 s30, s30, %d' % WS_WGU)

    def seq_loads(self, dst, n, sreg):
        o = []
        for i in range(n):
            if i and i % 4 == 0:
                o.append('s_add_u32 %s, %s, 4096' % (sreg, sreg))
            o.append('buffer_load_dwordx4 %s, %s, %s, %s offen offset:%d sc1' % (
                vr(dst + 4 * i), vL16, SRD_WS, sreg, (i % 4) * 1024))
        return o

    def res_voffset(self, dst, sreg):
        a = self.a
        a('v_and_b32 %s, 31, v0' % dst)
        a('v_mul_u32_u24 %s, 896, %s' % (dst, dst))
        a('v_lshrrev_b32 v2, 5, v0')
        a('v_lshl_add_u32 %s, v2, 4, %s' % (dst, dst))
        a('s_lshl_b32 %s, %s, 1' % (sreg, sM))
        a('s_and_b32 s12, %s, 1' % sW)
        a('s_add_u32 %s, %s, s12' % (sreg, sreg))
        a('s_mul_i32 %s, %s, %d' % (sreg, sreg, 32 * 896))
        a('s_lshl_b32 s12, %s, 7' % sN)
        a('s_add_u32 %s, %s, s12' % (sreg, sreg))
        a('s_lshr_b32 s12, %s, 1' % sW)
        a('s_lshl_b32 s12, s12, 6')
        a('s_add_u32 %s, %s, s12' % (sreg, sreg))

    def unpack8(self, dst, src):
        for p in range(8):
            self.a('v_lshlrev_b32 v%d, 16, v%d' % (dst + 2 * p, src + p))
            self.a('v_and_b32 v%d, 0xffff0000, v%d' % (dst + 2 * p + 1, src + p))

    P3_ACC, P3_OF = 16, 48

    def p3_setup(self):
        a = self.a
        EX = XTRA + 1024
        self.unpack8(self.P3_ACC, self.HRES)
        a('s_lshl_b32 s13, %s, 1' % sM)
        a('s_and_b32 s12, %s, 1' % sW)
        a('s_add_u32 s13, s13, s12')
        a('s_lshr_b32 s12, %s, 1' % sW)
        a('s_lshl_b32 s18, s13, 1')
        a('s_add_u32 s18, s18, s12')
        a('s_lshl_b32 s20, s18, %d' % (FSH + 3))
        a('s_add_u32 s20, s20, %d' % (WS_FL + FL_F2 * FS))
        a('s_lshl_b32 s18, s18, 14')
        a('s_add_u32 s18, s18, %d' % WS_O)
        a('s_xor_b32 s11, %s, 2' % sW)
        a('s_lshl_b32 s11, s11, 12')
        a('s_add_u32 s11, s11, %d' % EX)
        a('v_add_u32 v4, s11, %s' % vL16)
        a('s_lshl_b32 s11, %s, 12' % sW)
        a('s_add_u32 s11, s11, %d' % EX)
        a('v_add_u32 v5, s11, %s' % vL16)
        a('s_lshl_b32 s14, %s, 1' % sN)
        a('s_add_u32 s14, s14, s12')
        a('s_mul_i32 s19, s13, 28672')
        a('s_lshl_b32 s12, s14, 11')
        a('s_add_u32 s19, s19, s12')
        a('s_add_u32 s19, s19, %d' % WS_HB)
        a('s_lshl_b32 s17, s13, 4')
        a('s_add_u32 s17, s17, s14')
        a('s_lshl_b32 s29, s17, 8')
        a('s_add_u32 s29, s29, %d' % WS_ST)
        a('v_mov_b32 v6, 0x3f803f80')
        a('v_lshlrev_b32 v7, 3, v0')

    def p3(self):
        a = self.a
        ACC, OF = self.P3_ACC, self.P3_OF
        self.poll([('s20', k) for k in range(8)])
        self.stamp(12)
        self.emit(self.seq_loads(OF, 16, 's18'))
        for f in range(16):
            for rel in (1, 0):
                a('%s %s, %s, %s, %s' % (MFMA, vr(ACC + 16 * rel, 16), vr(self.WO_A + (f * 2 + rel) * 4), vr(OF + 4 * f),
                                         '0' if (rel == 1 and f == 0) else vr(ACC + 16 * rel, 16)))
        self.stamp(13)
        for k in range(4):
            a('ds_write_b128 v4, %s offset:%d' % (vr(ACC + 16 + 4 * k), k * 1024))
        a('s_waitcnt lgkmcnt(0)')
        a('s_barrier')
        for k in range(4):
            a('ds_read_b128 %s, v5 offset:%d' % (vr(OF + 4 * k), k * 1024))
        H = self.HRES
        for p in range(8):
            a('v_pk_add_f32 %s, %s, %s' % (vr(ACC + 2 * p, 2), vr(ACC + 2 * p, 2), vr(OF + 2 * p, 2)))
            a('v_cvt_pk_bf16_f32 v%d, v%d, v%d' % (H + p, ACC + 2 * p, ACC + 2 * p + 1))
            if p % 4 == 3:
                a('buffer_store_dwordx4 %s, %s, %s, s19 offen offset:%d sc1' % (vr(H + p - 3), vL16, SRD_WS, (p // 4) * 1024), tok='h')
        for p in range(8):
            a('v_dot2_f32_bf16 v8, v%d, v6, %s' % (H + p, 'v8' if p else '0'))
            a('v_dot2_f32_bf16 v9, v%d, v%d, %s' % (H + p, H + p, 'v9' if p else '0'))
        a('v_mov_b32 v10, v8')
        a('v_mov_b32 v11, v9')
        a('v_permlane32_swap_b32 v8, v10')
        a('v_permlane32_swap_b32 v9, v11')
        a('v_add_f32 v8, v8, v10')
        a('v_add_f32 v9, v9, v11')
        a('s_mov_b32 exec_hi, 0')
        a('buffer_store_dwordx2 v[8:9], v7, %s, s29 offen sc1' % SRD_WS, tok='h')
        a('s_mov_b64 exec, -1')

    def p4_cs_issue(self):
        a = self.a
        a('s_lshl_b32 s11, %s, 1' % sW)
        a('v_lshrrev_b32 v112, 5, v0')
        a('v_add_u32 v112, s11, v112')
        a('v_min_u32 v113, 6, v112')
        a('v_mul_u32_u24 v113, 896, v113')
        a('v_and_b32 v114, 31, v0')
        a('v_lshl_add_u32 v113, v114, 2, v113')
        a('s_mul_i32 s11, %s, %d' % (sJ, 7 * 896))
        a('s_add_u32 s11, s11, %d' % WS_CS)
        for k in range(7):
            a('buffer_load_dword v%d, v113, %s, s11 offen offset:%d sc1' % (116 + k, SRD_WS, 128 * k))
        a('v_lshlrev_b32 v112, 7, v112')
        a('v_lshl_add_u32 v112, v114, 2, v112')
        a('v_add_u32 v112, %d, v112' % XTRA)

    def p4_cs_finish(self):
        a = self.a
        for k in range(1, 7):
            a('v_add_f32 v116, v116, v%d' % (116 + k))
        a('ds_write_b32 v112, v116')

    def fg_items(self):
        a = self.a
        a('s_mul_i32 s23, %s, 7' % sJ)
        a('s_lshr_b32 s23, s23, 2')
        a('s_min_u32 s23, s23, 25')
        a('s_mul_i32 s23, s23, 7')
        a('s_mul_i32 s11, %s, 7' % sW)
        a('s_lshr_b32 s11, s11, 2')
        a('s_min_u32 s11, s11, 4')
        a('s_add_u32 s23, s23, s11')
        a('s_lshl_b32 s23, s23, %d' % FSH)
        a('s_add_u32 s23, s23, %d' % (WS_FL + FL_FG * FS))
        a('s_mul_i32 s22, %s, %d' % (sW, 7 * FS))
        a('s_add_u32 s22, s22, %d' % (WS_FL + FL_FD * FS))
        return [('s23', 7 * g + k) for g in range(3) for k in range(3)], [('s22', k) for k in range(7)]

    def p4_setup(self):
        a = self.a
        a('s_lshl_b32 s13, %s, 2' % sR4)
        a('s_add_u32 s13, s13, %s' % sW)
        a('s_mul_i32 s18, s13, 28672')
        a('s_add_u32 s18, s18, %d' % WS_HB)
        a('s_lshl_b32 s20, s13, %d' % (FSH + 6))
        a('s_add_u32 s20, s20, %d' % (WS_FL + FL_F3 * FS))
        a('v_and_b32 v2, 31, v0')
        a('v_lshlrev_b32 v2, 3, v2')
        a('v_lshrrev_b32 v3, 5, v0')
        a('v_mul_u32_u24 v4, %d, v3' % (7 * 256))
        a('v_add_u32 v14, v2, v4')
        a('s_lshl_b32 s19, s13, 12')
        a('s_add_u32 s19, s19, %d' % WS_ST)
        a('v_add_u32 v5, %d, %s' % (2 * SLOT, vL16))
        a('v_add_u32 v6, %d, %s' % (4 * SLOT, vL16))
        a('v_lshlrev_b32 v7, 4, v3')
        a('v_add_u32 v7, %d, v7' % XTRA)
        a('s_mul_i32 s29, s13, %d' % (112 * 1024))
        a('s_mul_i32 s12, %s, %d' % (sJ, 7 * 1024))
        a('s_add_u32 s29, s29, s12')
        a('s_add_u32 s29, s29, %d' % WS_HH)
        a('s_add_u32 s28, s29, 4096')
        a('s_lshl_b32 s27, s13, 4')
        a('s_add_u32 s27, s27, %s' % sJ)

    def f1_set(self, part):
        return ['s_mov_b64 exec, 0xffff',
                'buffer_store_dwordx4 %s, %s, %s, s16 offen offset:%d sc1' % (vr(vFL), vL16, SRD_WS, part * FS),
                's_mov_b64 exec, -1']

    def f4_set(self, stage):
        return ['s_mov_b32 s11, s27'] + self.flag_set('s11', FL_F4 + stage, 2)

    def p4(self, wd_rest):
        a = self.a
        T0 = self.opt['T0']
        HF, ACC, WF, CSR, TM, PK = 16, 128, 192, 208, 224, 232
        NACC = 4
        self.poll([('s20', 4 * k) for k in range(14)])
        self.stamp(16)
        hl = self.seq_loads(HF, 28, 's18')
        for k in range(7):
            hl.append('buffer_load_dwordx2 %s, v14, %s, s19 offen offset:%d sc1' % (vr(CSR + 2 * k, 2), SRD_WS, 256 * k))
        base = [vL16, 'v5', 'v6']
        cnt = [0]

        def wread(tile, k):
            s = tile % 5
            b = 224 + (cnt[0] % 8) * 4
            cnt[0] += 1
            return b, ('ds_read_b128 %s, %s offset:%d' % (ar(b), base[s >> 1], (s & 1) * SLOT + k * 1024), 'wr%d' % cnt[0])

        C1 = -2.0 * 1.4426950408889634 * 0.7978845608028654
        st = []
        for k in range(1, 7):
            st.append('v_add_f32 v%d, v%d, v%d' % (CSR, CSR, CSR + 2 * k))
            st.append('v_add_f32 v%d, v%d, v%d' % (CSR + 1, CSR + 1, CSR + 2 * k + 1))
        st += ['v_mov_b32 v12, v%d' % CSR, 'v_mov_b32 v13, v%d' % (CSR + 1),
               'v_permlane32_swap_b32 v%d, v12' % CSR, 'v_permlane32_swap_b32 v%d, v13' % (CSR + 1),
               'v_add_f32 v12, v12, v%d' % CSR, 'v_add_f32 v13, v13, v%d' % (CSR + 1),
               'v_mul_f32 v8, %s, v12' % f32(-1.0 / 448), 'v_mul_f32 v13, %s, v13' % f32(1.0 / 448),
               'v_fma_f32 v13, -v8, v8, v13', 'v_max_f32 v13, 0, v13', 'v_add_f32 v11, %s, v13' % f32(1e-5),
               'v_rsq_f32 v12, v11', 'v_mul_f32 v9, %s, v12' % f32(C1), 'v_mul_f32 v13, v12, v12',
               'v_mul_f32 v10, v9, v13', 'v_mul_f32 v10, %s, v10' % f32(0.044715)]

        def gelu(tile):
            b = ACC + 16 * (tile % NACC)
            pk = PK + (tile % 2) * 4
            o = ['ds_read_b128 %s, v7 offset:%d' % (vr(CSR + 4 * k), tile * 128 + 32 * k) for k in range(4)]
            for h in range(2):
                E = range(4 * h, 4 * h + 4)
                for e in E:
                    o.append('v_fmac_f32 v%d, v%d, v8' % (b + e, CSR + e))
                for e in E:
                    o.append('v_mul_f32 v%d, v%d, v%d' % (TM + e % 4, b + e, b + e))
                for e in E:
                    o.append('v_fma_f32 v%d, v%d, v10, v9' % (TM + e % 4, TM + e % 4))
                for e in E:
                    o.append('v_mul_f32 v%d, v%d, v%d' % (TM + e % 4, TM + e % 4, b + e))
                for e in E:
                    o.append('v_exp_f32 v%d, v%d' % (TM + e % 4, TM + e % 4))
                    o.append('v_fmac_f32 v%d, v%d, v8' % (b + 8 + e, CSR + 8 + e))
                for e in E:
                    o.append('v_fma_f32 v%d, v%d, v11, v11' % (TM + e % 4, TM + e % 4))
                for e in E:
                    o.append('v_rcp_f32 v%d, v%d' % (TM + e % 4, TM + e % 4))
                    o.append('v_mul_f32 v%d, v%d, v%d' % (b + e, b + e, b + 8 + e))
                for e in E:
                    o.append('v_mul_f32 v%d, v%d, v%d' % (b + e, b + e, TM + e % 4))
                for p in range(2):
                    o.append('v_cvt_pk_bf16_f32 v%d, v%d, v%d' % (pk + 2 * h + p, b + 4 * h + 2 * p, b + 4 * h + 2 * p + 1))
            o.append(('buffer_store_dwordx4 %s, %s, %s, s%d offen offset:%d sc1' % (
                vr(pk), vL16, SRD_WS, 29 if tile < 4 else 28, (tile % 4) * 1024), 'hh%d' % tile))
            return o

        def gelu_pk(tile, csr):
            b = ACC + 16 * (tile % NACC)
            pk = PK + (tile % 2) * 4
            P2 = lambda r: vr(r, 2)
            o = []
            E = (0, 2, 4, 6)
            o += ['v_pk_fma_f32 %s, %s, v[8:9], %s op_sel_hi:[1,0,1]' % (P2(b + e), P2(csr + e), P2(b + e)) for e in E]
            o += ['v_pk_mul_f32 %s, %s, %s' % (P2(csr + e), P2(b + e), P2(b + e)) for e in E]
            o += ['v_pk_fma_f32 %s, %s, v[10:11], v[8:9] op_sel:[0,0,1] op_sel_hi:[1,0,1]' % (P2(csr + e), P2(csr + e)) for e in E]
            o += ['v_pk_mul_f32 %s, %s, %s' % (P2(csr + e), P2(csr + e), P2(b + e)) for e in E]
            for e in E:
                o += ['v_exp_f32 v%d, v%d' % (csr + e, csr + e),
                      'v_pk_fma_f32 %s, %s, v[8:9], %s op_sel_hi:[1,0,1]' % (P2(b + 8 + e), P2(csr + 8 + e), P2(b + 8 + e)),
                      'v_exp_f32 v%d, v%d' % (csr + e + 1, csr + e + 1)]
            o += ['v_pk_fma_f32 %s, %s, v[10:11], v[10:11] op_sel:[0,1,1] op_sel_hi:[1,1,1]' % (P2(csr + e), P2(csr + e)) for e in E]
            for e in E:
                o += ['v_rcp_f32 v%d, v%d' % (csr + e, csr + e),
                      'v_pk_mul_f32 %s, %s, %s' % (P2(b + e), P2(b + e), P2(b + 8 + e)),
                      'v_rcp_f32 v%d, v%d' % (csr + e + 1, csr + e + 1)]
            o += ['v_pk_mul_f32 %s, %s, %s' % (P2(b + e), P2(b + e), P2(csr + e)) for e in E]
            o += ['v_cvt_pk_bf16_f32 v%d, v%d, v%d' % (pk + e // 2, b + e, b + e + 1) for e in E]
            o.append(('buffer_store_dwordx4 %s, %s, %s, s%d offen offset:%d sc1' % (
                vr(pk), vL16, SRD_WS, 29 if tile < 4 else 28, (tile % 4) * 1024), 'hh%d' % tile))
            return o
        nup = 15
        self.emit(hl[:nup])
        for t in range(T0):
            a.wait_tok('g%d' % t)
        a('s_waitcnt lgkmcnt(0)')
        a('s_barrier')
        self.stamp(40)
        seq = [(t, k) for k in range(28) for t in range(T0)] + [(t, k) for t in range(T0, 7) for k in range(28)]
        rd = [wread(t, k) for t, k in seq]
        D, WE = 7, self.opt.get('we', 2)
        if self.opt.get('g4l', 0):
            presync = {(3, 0): [Pseudo('wait_tok', 'g3'), 's_waitcnt lgkmcnt(0)', 's_barrier'],
                       (4, 0): [Pseudo('wait_tok', 'g4'), 's_barrier'],
                       (5, 0): [Pseudo('wait_tok', 'g5'), 's_barrier'],
                       (6, 0): [Pseudo('wait_tok', 'g6'), 's_barrier']}
        else:
            presync = {(T0, 0): [Pseudo('wait_tok', 'g%d' % t) for t in range(T0, 5)] + ['s_waitcnt lgkmcnt(0)', 's_barrier'],
                       (5, 0): [Pseudo('wait_tok', 'g5'), Pseudo('wait_tok', 'g6'), 's_barrier']}
        self.emit([rd[i][1] for i in range(D)])
        gaps = []
        for i, (t, k) in enumerate(seq):
            acc = vr(ACC + 16 * (t % NACC), 16)
            g = ['%s %s, %s, %s, %s' % (MFMA, acc, ar(rd[i][0]), vr(HF + 4 * k), acc if k else '0')]
            if i + D < len(seq):
                g.append([presync.get(seq[i + D], []), rd[i + D][1]])
            else:
                g.append([])
            if (i + 1) % WE == 0 and i + WE < len(seq):
                g.append(Pseudo('wait_tok', rd[i + WE][1][1]))
            gaps.append(g)
        n1 = 28 * T0
        nw1 = self.opt.get('nw1', 18)
        w1 = gaps[:n1]
        side = [[x] for x in hl[nup:]]
        for i, x in enumerate(side):
            w1[i] = w1[i][:2] + [x] + w1[i][2:]
        m_ = len(side) + 4
        self.emit(w1[:m_])
        self.emit(cweave(w1[m_:n1 - D - 1], wd_rest[:nw1] + st) + w1[n1 - D - 1:])
        self.stamp(17)
        bulk = self.gu_bulk(5) + self.gu_bulk(6) + wd_rest[nw1:]
        nwin = 7 - T0
        l6 = self.opt.get('l6', 0)
        share = [14] + [(len(bulk) - 14 - l6 + 1) // 2] * 2 + [l6]
        if self.opt.get('g4l', 0):
            share = [(len(bulk) - l6 + 2) // 3] * 3 + [l6]
            assert share[0] >= 8
        for t in range(T0, 7):
            n = share[t - T0]
            side = sprinkle(gelu(t - T0), bulk[:n], 0.0, 0.9)
            bulk = bulk[n:]
            if t == 6:
                side = [[Pseudo('wait_tok', 'hh1')] + self.f4_set(0)] + side + self.p5_setup()
            self.emit(cweave(gaps[28 * t:28 * t + 28], side))
            self.stamp(18 + t - T0)
        assert not bulk and T0 == 3
        CX = [CSR, 192, 112]
        for n_, t in enumerate((4, 5, 6)):
            for k in range(4):
                a('ds_read_b128 %s, v7 offset:%d' % (vr(CX[n_] + 4 * k), t * 128 + 32 * k))
        a('s_waitcnt lgkmcnt(0)')
        self.tail = [gelu_pk(t, CX[n_]) for n_, t in enumerate((4, 5, 6))]

    def p5_setup(self):
        o = []
        a = o.append
        a('s_and_b32 s13, %s, 1' % sW)
        a('s_lshl_b32 s14, %s, 1' % sM)
        a('s_lshl_b32 s20, s14, %d' % (FSH + 6))
        a('s_lshl_b32 s15, %s, %d' % (sW, FSH + 4))
        a('s_add_u32 s20, s20, s15')
        a('s_add_u32 s20, s20, %d' % (WS_FL + FL_F4 * FS))
        a('s_add_u32 s13, s14, s13')
        a('s_xor_b32 s12, s13, 1')
        a('s_mul_i32 s14, %s, %d' % (sW, 28 * 1024))
        a('s_add_u32 s14, s14, %d' % WS_HH)
        for ra, r in enumerate(('s13', 's12')):
            a('s_mul_i32 %s, %s, %d' % (r, r, 112 * 1024))
            a('s_add_u32 s%d, %s, s14' % (68 + 8 * ra, r))
            for q in range(1, 7):
                a('s_add_u32 s%d, s%d, %d' % (68 + 8 * ra + q, 68 + 8 * ra, q * 4096))
        return o

    def p5(self):
        a = self.a
        ACC, HHF, NBUF = 128, 16, 24
        fl = lambda st: [('s20', (r * 16 + jj) * 4 + st) for r in range(2) for jj in range(4)]
        seq = [(jj * 7 + tau, ra) for tau in range(7) for jj in range(4) for ra in range(2)]

        def load(i):
            f, ra = seq[i]
            return 'buffer_load_dwordx4 %s, %s, %s, s%d offen offset:%d sc1' % (
                vr(HHF + (i % NBUF) * 4), vL16, SRD_WS, 68 + 8 * ra + f // 4, (f % 4) * 1024)
        t4, t5, t6 = self.tail
        n6 = self.opt.get('n6', 12)
        if self.opt.get('fp', 1):
            self.emit(self.poll_loads(fl(0)))
            self.emit(t4)
            a('s_waitcnt lgkmcnt(0)')
            for k in range(4):
                p = 's[%d:%d]' % (PT + 2 * k, PT + 2 * k + 1)
                a('s_xor_b64 %s, %s, %s' % (p, p, sEP2))
                if k:
                    a('s_or_b64 s[%d:%d], s[%d:%d], %s' % (PT, PT + 1, PT, PT + 1, p))
            a('s_cbranch_scc1 L_p5slow')
            n5 = self.opt.get('n5', 5)
            self.emit(sprinkle(t5, [[load(i)] for i in range(n5)], 0.0, 0.9))
            a.wait_tok('hh3')
            self.emit(self.f4_set(1))
            self.emit(sprinkle(t6, [[load(i)] for i in range(n5, n6)], 0.0, 0.9))
            self.stamp(22)
            a('L_p5join:')
            keep = self.a
            self.a = self.side

            a2 = self.a
            a2('L_p5slow:')
            a2.fresh()
            self.emit(t5)
            a2('s_waitcnt vmcnt(2)')
            self.emit(self.f4_set(1))
            self.emit(t6)
            a2('s_waitcnt vmcnt(0)')
            self.emit(self.f4_set(2))
            a2('s_add_u32 s20, s20, 128')
            self.emit(self.poll_loads(fl(0)))
            self.poll_check(fl(0), tries=1)
            a2('s_sub_u32 s20, s20, 128')
            self.emit([load(i) for i in range(n6)])
            a2('s_waitcnt vmcnt(0)')
            a2('s_branch L_p5join')
            self.a = keep
        else:
            self.emit(t4 + t5)
            self.emit(self.poll_loads(fl(0)))
            a.wait_tok('hh3')
            self.emit(self.f4_set(1))
            self.emit(t6)
            self.stamp(22)
            self.poll_check(fl(0), onfail=self.f4_set(2))
            self.emit([load(i) for i in range(n6)])
        self.stamp(23)
        self.wd_late = [[load(i)] for i in range(n6, 16)] + self.wd_late
        self.unpack8(ACC, self.HRES)
        self.res_voffset('v4', 's18')
        for rel in range(4):
            a('s_xor_b32 s11, %s, %d' % (sW, rel))
            a('s_mul_i32 s11, s11, 12288')
            a('s_add_u32 s11, s11, %d' % (2 * SLOT))
            a('v_add_u32 v%d, s11, %s' % (12 + rel, vL16))
        a.wait_tok('hh6')
        self.emit(self.f4_set(2))
        AHEAD = self.opt.get('ahead', 14)
        nxt = [16]
        pB, pC = self.opt.get('pB', 0), self.opt.get('pC', 12)
        wl = self.wd_late

        def issue_upto(n):
            while nxt[0] < min(n, len(seq)):
                i = nxt[0]
                if i == 16:
                    self.poll_check(fl(1))
                    self.stamp(47)
                if i == 32:
                    self.poll_check(fl(2))
                    self.stamp(48)
                a(load(i))
                nxt[0] += 1
        seen = set([(0, 0)])
        for i, (f, ra) in enumerate(seq):
            assert nxt[0] > i
            if i == pB:
                self.emit(self.poll_loads(fl(1)))
            if i == pC:
                self.emit(self.poll_loads(fl(2)))
            for rb in range(2):
                acc = vr(ACC + 16 * (ra + 2 * rb), 16)
                a('%s %s, %s, %s, %s' % (MFMA, acc, ar(((i // 2) * 2 + rb) * 4), vr(HHF + (i % NBUF) * 4),
                                         acc if (ra, rb) in seen else '0'))
                seen.add((ra, rb))
            if wl and i < 16:
                self.emit(wl.pop(0))
                if len(wl) > 15 - i:
                    self.emit(wl.pop(0))
            if i >= pB + self.opt.get('dB', 5):
                lim = 32 if i < pC + self.opt.get('dC', 7) else len(seq)
                issue_upto(min(i + 1 + AHEAD, lim))
        assert not wl
        self.stamp(24)
        for rel in (2, 1, 3):
            for k in range(4):
                a('ds_write_b128 v%d, %s offset:%d' % (12 + rel, vr(ACC + 16 * rel + 4 * k), (rel - 1) * 4096 + k * 1024))
        a('s_waitcnt lgkmcnt(0)')
        a('s_barrier')
        for k in range(12):
            a('ds_read_b128 %s, v12 offset:%d' % (vr(HHF + 4 * k), k * 1024))
        for rel in range(3):
            for p in range(8):
                a('v_pk_add_f32 %s, %s, %s' % (vr(ACC + 2 * p, 2), vr(ACC + 2 * p, 2), vr(HHF + 16 * rel + 2 * p, 2)))
        for p in range(8):
            a('v_cvt_pk_bf16_f32 v%d, v%d, v%d' % (112 + p, ACC + 2 * p, ACC + 2 * p + 1))
            if p % 4 == 3:
                a('buffer_store_dwordx4 %s, v4, %s, s18 offen offset:%d' % (vr(112 + p - 3), SRD_OUT, (p // 4) * 32) + ['', ' sc1', ' nt', ' sc0 sc1'][self.opt.get('ost', 0)])
        self.stamp(25)

    def build(self):
        a = self.a
        nm = NAME + '_kernel'
        a('.globl %s\n.p2align 8\n.type %s,@function\n%s:' % (nm, nm, nm))
        self.prologue()
        a('s_cmp_ge_u32 %s, 7' % sN)
        a('s_cbranch_scc1 L_idle1')
        self.p1()
        self.stamp(5)
        self.poll_check(self.kflags(0), onfail=self.f1_set(2))
        self.k_issue()
        self.stamp(7)
        self.emit(self.p2v_rest)
        self.emit(self.poll_loads(self.qflags() + self.fo_items()))
        a.wait_tok('q2')
        self.emit(self.f1_set(2))
        self.stamp(36)
        self.wd = self.wd_bulk()
        nl = self.opt.get('nl', 0)
        self.wd_late = self.wd[56 - nl:]
        del self.wd[56 - nl:]
        wo = self.wo_bulk()
        w2 = self.opt.get('w2', 4)
        assert w2 % 4 == 0 and w2 >= 4
        self.res_voffset('v15', 's11')
        self.emit(self.rp_load()[0])
        self.poll_check(self.qflags() + self.fo_items())
        a('L_join1:')
        self.q_issue()
        for t in range(2):
            a('buffer_load_dwordx4 %s, v15, %s, s11 offen offset:%d' % (vr(self.HRES + 4 * t), SRD_X, 32 * t))
        a('s_barrier')
        self.emit(self.rp_load()[1])
        self.emit(wo[:w2])
        self.wo_rest = wo[w2:]
        self.rp_prep()
        self.stamp(6)
        self.p2()
        self.wo_read()
        self.p3_setup()
        a.wait_tok('o')
        self.emit(self.flag_set('s16', FL_F2))
        self.stamp(11)
        rpl = self.opt.get('rpl', 3)
        if rpl:
            a('s_waitcnt lgkmcnt(0)')
            a('s_barrier')
            self.fg_set()
        else:
            self.poll(self.fg)
            a('s_barrier')
        self.stamp(37)
        b = [self.opt.get('b%d' % k, d) for k, d in ((2, 10), (4, 6 if rpl else 8), (5, 15 if rpl else 10))]
        if rpl or self.opt.get('h1wd'):
            self.emit(self.wd[:b[0]])
            del self.wd[:b[0]]
            b[0] = 0
        Q = [g for t in range(5) for g in self.gu_bulk(t)] + self.wd

        def take(n):
            self.emit(Q[:n])
            del Q[:n]
        take(b[0])
        self.stamp(38)
        a('s_cmp_ge_u32 %s, 7' % sN)
        a('s_cbranch_scc1 L_idle3')
        a.begin_cond('p3')
        self.p3()
        a.end_cond()
        a('L_skip3:')
        self.stamp(14)
        if rpl:
            self.poll(self.fg)
        take(b[1])
        if not rpl:
            self.p4_cs_issue()
        a('s_cmp_ge_u32 %s, 7' % sN)
        a('s_cbranch_scc1 L_skip3b')
        a.begin_cond('p3')
        a.wait_tok('h')
        self.emit(self.flag_set('s17', FL_F3, 2))
        a.end_cond()
        a('L_skip3b:')
        self.stamp(15)
        if rpl:
            a('s_barrier')
            self.p4_cs_issue()
        take(b[2])
        assert sum(b) >= 21
        self.p4_cs_finish()
        self.p4_setup()
        self.stamp(39)
        a('s_cmp_ge_u32 %s, 7' % sN)
        a('s_cbranch_scc1 L_idle3b')
        a('L_go4:')
        self.p4(Q)
        a('s_cmp_ge_u32 %s, 7' % sN)
        a('s_cbranch_scc1 L_idle5')
        self.p5()
        self.stamp_out()
        a('L_exit:')
        a('s_endpgm')
        a('L_idle5:')
        a.fresh()
        a('s_nop 15')
        self.emit(self.tail[0] + self.tail[1])
        a('s_waitcnt vmcnt(2)')
        self.emit(self.f4_set(1))
        self.emit(self.tail[2])
        a('s_waitcnt vmcnt(0)')
        self.emit(self.f4_set(2))
        self.stamp_out()
        a('s_endpgm')
        a('L_idle3:')
        a.fresh()
        self.prewait('s20')
        a('s_branch L_skip3')
        a('L_idle3b:')
        a.fresh()
        self.prewait('s20')
        a('s_branch L_go4')
        a('L_idle1:')
        a.fresh()
        a('s_waitcnt lgkmcnt(0)')
        self.idle1()
        a('s_branch L_join1')
        a.items += self.side.items
        for x in self.cold:
            a.raw(x)
        a('L_code_end:')
        a.raw('s_endpgm')
        hdr = open('cdna_kernels/%s.s.ref' % NAME).read().split('; Override launch')[0]
        hdr += '; @launch grid=(256,1,1) block=(256,1,1) lds=%d\n' % LDS_BYTES
        hdr += '.amdgcn_target "amdgcn-amd-amdhsa--gfx950"\n.text\n'
        body = a.finalize()
        tail = ('.section .rodata,"a"\n.p2align 6\n.amdhsa_kernel %s\n  .amdhsa_next_free_vgpr 512\n  .amdhsa_next_free_sgpr 102\n'
                '  .amdhsa_accum_offset 256\n  .amdhsa_group_segment_fixed_size 0\n  .amdhsa_kernarg_size 80\n'
                '  .amdhsa_user_sgpr_count 2\n  .amdhsa_user_sgpr_kernarg_segment_ptr 1\n'
                '  .amdhsa_system_sgpr_workgroup_id_x 1\n.end_amdhsa_kernel\n' % nm)
        return hdr + body + tail


if __name__ == '__main__':
    out = sys.argv[1]
    opt = {}
    for x in sys.argv[2:]:
        if '=' in x:
            k, v = x.split('=')
            opt[k] = int(v) if v.lstrip('-').isdigit() else v
    txt = Gen(stamps='--ts' in sys.argv, **opt).build()
    open(out, 'w').write(txt)
    print('wrote', out, len(txt), 'bytes')
```

```python
import sys, struct
from asmlib import Asm, weave, Pseudo

NAME = 'sequential_preLN__sliding_block__glu_gated_geglu__prompt'

WS_QKV = 0
WS_O = WS_QKV + 64 * 84 * 1024
WS_HB = WS_O + 64 * 32768
WS_ST = WS_HB + 64 * 28672
WS_HH = WS_ST + 64 * 4096
WS_WGU = WS_HH + 64 * 112 * 1024
WS_CS = WS_WGU + 112 * 28672
WS_WD = WS_CS + 112 * 896
WS_WO = WS_WD + 7 * 112 * 2048
WS_CQ = WS_WO + 7 * 32 * 2048
WS_FL = WS_CQ + 8192
FS, FSH = (512, 9) if 'fs=512' in sys.argv else (256, 8)
FL_F1 = 0
FL_F3 = 3
FL_F4 = 4096
FL_F2 = FL_F4 + 4096
FL_FG = FL_F2 + 1024
FL_FO = FL_FG + 224
FL_FD = FL_FO + 32
FL_END = FL_FD + 32
WS_EP = WS_FL + FL_END * FS
WS_TS = 28 << 20
WS_END = WS_TS + 256 * 4 * 256
OOB = 0x7ff00000

LDS_BYTES = 163840
SLOT = 28672
XTRA = 5 * SLOT

sW, sXCD, sI, sM, sN, sR, sHD, sCT = 's3', 's4', 's5', 's6', 's7', 's8', 's9', 's10'
SRD_X, SRD_WS, SRD_OUT = 's[36:39]', 's[40:43]', 's[44:47]'
SRD_WQKV, SRD_D, SRD_G, SRD_U = 's[52:55]', 's[56:59]', 's[60:63]', 's[64:67]'
PT = 52
sBK, sBK2, sR4, sJ = 's48', 's49', 's4', 's5'
sEP, sEP2 = 's50', 's[50:51]'
DBGP, WSP = 's[32:33]', 's[34:35]'
MASK0 = 68
vL16 = 'v1'
vXA, vXB, vFL = 'v248', 'v249', 250


def f32(x):
    return '0x%08x' % struct.unpack('<I', struct.pack('<f', x))[0]


def vr(b, n=4, t='v'):
    return '%s[%d:%d]' % (t, b, b + n - 1)


def ar(b, n=4):
    return vr(b, n, 'a')


MFMA = 'v_mfma_f32_32x32x16_bf16'


def sprinkle(main, groups, lo=0.0, hi=1.0):
    n = len(main)
    a, b = int(n * lo), int(n * hi)
    out, k = [], 0
    for i, x in enumerate(main):
        while k < len(groups) and i >= a + (b - a) * k // max(len(groups), 1):
            out.extend(groups[k]); k += 1
        out.append(x)
    for g in groups[k:]:
        out.extend(g)
    return out


def cost(x):
    if isinstance(x, list):
        return sum(cost(y) for y in x)
    if isinstance(x, tuple):
        x = x[0]
    if not isinstance(x, str):
        return 4.2 if getattr(x, 'what', '') == 'wait_tok' else 0
    m = x.split()[0]
    if m.endswith(':'):
        return 0
    if m.startswith('v_mfma'):
        return 8
    if m in ('v_exp_f32', 'v_rcp_f32', 'v_rsq_f32'):
        return 8.4
    if m.startswith('buffer_'):
        return 10
    if m.startswith('v_pk_') or m.startswith('v_cvt_pk') or m.startswith('v_max3'):
        return 5.2
    if m.startswith('v_fma') and not m.startswith('v_fmac'):
        return 4.6
    return 4.2


def cweave(gaps, side, skip=0):
    n = len(gaps) - skip
    base = [cost(g) for g in gaps]
    tot = sum(base[skip:]) + cost(list(side))
    out, k, acc = [], 0, 0.0
    for i, g in enumerate(gaps):
        if i < skip:
            out += g
            continue
        acc += base[i]
        tgt = tot * (i - skip + 1) / n
        ins = []
        while k < len(side) and (acc + cost(side[k]) / 2 <= tgt or i == len(gaps) - 1):
            acc += cost(side[k]); ins.append(side[k]); k += 1
        out += g[:2] + ins + g[2:]
    return out


class Gen:
    def __init__(self, stamps=False, **opt):
        self.a = Asm()
        self.stamps = stamps
        self.nl = 0
        self.cold = []
        self.side = Asm()
        self.PT = PT
        self.opt = dict(p2map='C', p4map='B', rot=3, T0=3, nA=24, codepf=1, nt=0)
        self.opt.update(opt)

    def label(self, s):
        self.nl += 1
        return 'L_%s_%d' % (s, self.nl)

    def emit(self, lst):
        for x in lst:
            if isinstance(x, tuple):
                self.a(x[0], tok=x[1])
            elif isinstance(x, str):
                self.a(x)
            elif isinstance(x, list):
                self.emit(x)
            else:
                self.a.items.append(x)

    def capture(self, fn, *args):
        keep = self.a
        self.a = Asm()
        fn(*args)
        items = self.a.items
        self.a = keep
        return items

    def stamp(self, k):
        rt = {3: 50, 32: 51, 9: 52, 10: 53, 40: 54, 17: 55, 21: 56, 23: 57, 24: 58}
        if self.stamps and self.opt.get('lite') == 2 and k in rt:
            self.a('s_memtime s[100:101]\ns_waitcnt lgkmcnt(0)\nv_writelane_b32 v254, s100, %d' % k)
            self.a('s_memrealtime s[100:101]\ns_waitcnt lgkmcnt(0)\nv_writelane_b32 v254, s100, %d' % rt[k])
        if self.stamps and (k == 0 or not self.opt.get('lite')):
            self.a('s_memtime s[100:101]\ns_waitcnt lgkmcnt(0)\nv_writelane_b32 v254, s100, %d' % k)

    def stamp_out(self):
        if self.stamps:
            a = self.a
            a('s_waitcnt vmcnt(0)')
            a('s_memrealtime s[100:101]\ns_waitcnt lgkmcnt(0)\nv_writelane_b32 v254, s100, 62')
            a('s_memtime s[100:101]\ns_waitcnt lgkmcnt(0)\nv_writelane_b32 v254, s100, 61')
            a('s_lshl_b32 s11, s2, 2')
            a('s_add_u32 s11, s11, %s' % sW)
            a('s_lshl_b32 s11, s11, 8')
            a('s_add_u32 s11, s11, %d' % WS_TS)
            a('v_lshlrev_b32 v2, 2, v0')
            a('buffer_store_dword v254, v2, %s, s11 offen' % SRD_WS)
            if self.opt.get('dbg'):
                skip = self.label('dbg')
                a('s_memrealtime s[100:101]')
                a('s_lshl_b32 s11, s2, 2')
                a('s_add_u32 s11, s11, %s' % sW)
                a('s_cmp_lg_u32 s11, %d' % (self.opt['dbg'] * 4))
                a('s_cbranch_scc1 %s' % skip)
                a('v_readlane_b32 s12, v254, 0')
                a('v_readlane_b32 s14, v254, 63')
                for k, st in enumerate([1, 2, 4, 6, 7, 8, 9, 11, 12, 15, 16, 17, 22, 25]):
                    a('v_readlane_b32 s13, v254, %d' % st)
                    a('s_nop 3')
                    a('s_sub_u32 s13, s13, s12')
                    a('v_writelane_b32 v3, s13, %d' % (k + 1))
                a('s_waitcnt lgkmcnt(0)')
                a('s_sub_u32 s13, s100, s14')
                a('v_writelane_b32 v3, s13, 15')
                a('s_mov_b64 exec, 0xfffe')
                a('global_store_dword v2, v3, %s' % DBGP)
                a('s_mov_b64 exec, -1')
                a(skip + ':')

    def srd(self, d, p, size):
        a = self.a
        a('s_mov_b32 s%d, s%d' % (d, p))
        a('s_and_b32 s%d, s%d, 0xffff' % (d + 1, p + 1))
        a('s_mov_b32 s%d, %d' % (d + 2, size))
        a('s_mov_b32 s%d, 0x20000' % (d + 3))

    def flag_set(self, sidx, base, sh=0):
        return ['s_lshl_b32 %s, %s, %d' % (sidx, sidx, FSH + sh),
                's_add_u32 %s, %s, %d' % (sidx, sidx, WS_FL + base * FS),
                's_mov_b64 exec, 0xffff' if FS == 256 else 's_mov_b32 exec_hi, 0',
                'buffer_store_dwordx4 %s, %s, %s, %s offen sc1' % (vr(vFL), vL16, SRD_WS, sidx),
                's_mov_b64 exec, -1']

    def poll_loads(self, items, first=True):
        items = list(items)
        if len(items) % 2:
            items.append(items[-1])
        assert len(items) <= 16
        base = WSP if first else 's[14:15]'
        return ['s_load_dword s%d, %s, %s offset:%d' % (self.PT + k, base, so, imm * FS) for k, (so, imm) in enumerate(items)]

    def poll_check(self, items, onfail=None, tries=None):
        a = self.a
        n = (len(items) + 1) // 2
        top, done, slow = self.label('poll'), self.label('pdone'), self.label('pslow')
        a('s_mov_b64 s[14:15], %s' % WSP)
        a('s_mov_b32 s13, %d' % (tries if tries is not None else FS // 64 - 1))
        a(top + ':')
        a('s_waitcnt lgkmcnt(0)')
        for k in range(n):
            p = 's[%d:%d]' % (self.PT + 2 * k, self.PT + 2 * k + 1)
            a('s_xor_b64 %s, %s, %s' % (p, p, sEP2))
            if k:
                a('s_or_b64 s[%d:%d], s[%d:%d], %s' % (self.PT, self.PT + 1, self.PT, self.PT + 1, p))
        a('s_cbranch_scc0 %s' % done)
        if onfail:
            a.raw('s_cmp_lg_u32 s13, %d' % (FS // 64 - 1))
            a.raw('s_cbranch_scc1 %s_nf' % top)
            for x in ['s_waitcnt vmcnt(0)'] + onfail:
                a.raw(x)
            a.raw('%s_nf:' % top)
        a.raw('s_sub_u32 s13, s13, 1')
        a.raw('s_cbranch_scc1 %s' % slow)
        a.raw('s_sleep %d' % self.opt.get('sl1', 4))
        a.raw('s_add_u32 s14, s14, 64')
        a.raw('s_addc_u32 s15, s15, 0')
        for x in self.poll_loads(items, first=False):
            a.raw(x)
        a.raw('s_branch %s' % top)
        a(done + ':')
        o = [slow + ':', 'v_mov_b32 v255, 0']
        for k, (so, imm) in enumerate(items):
            o += ['s_add_u32 s13, %s, %d' % (so, imm * FS), 'v_writelane_b32 v255, s13, %d' % k]
        o += ['s_mov_b64 exec, 0x%x' % ((1 << len(items)) - 1), slow + '_l:',
              'buffer_load_dword v253, v255, %s, 0 offen sc1' % SRD_WS, 's_waitcnt vmcnt(0)',
              'v_cmp_ne_u32 vcc, %s, v253' % sEP, 's_nop 4', 's_cbranch_vccz %s_d' % slow,
              's_sub_u32 %s, %s, 1' % (sCT, sCT), 's_cbranch_scc1 L_exit', 's_sleep %d' % self.opt.get('sl2', 6), 's_branch %s_l' % slow,
              slow + '_d:', 'v_mov_b32 v253, %s' % sEP, 's_mov_b64 exec, -1', 's_nop 4', 's_branch %s' % done]
        self.cold += o

    def poll(self, items):
        self.emit(self.poll_loads(items))
        self.poll_check(items)

    def prewait(self, soff):
        a = self.a
        top, done = self.label('pw'), self.label('pwd')
        a('s_waitcnt vmcnt(0)')
        a(top + ':')
        a.raw('buffer_load_dword v255, off, %s, %s offset:%d sc1' % (SRD_WS, soff, FS - 64))
        a.raw('s_waitcnt vmcnt(0)')
        a.raw('v_cmp_ne_u32 vcc, %s, v255' % sEP)
        a.raw('s_nop 4')
        a.raw('s_cbranch_vccz %s' % done)
        a.raw('s_sub_u32 %s, %s, 1' % (sCT, sCT))
        a.raw('s_cbranch_scc1 L_exit')
        a.raw('s_sleep %d' % self.opt.get('sl3', 8))
        a.raw('s_branch %s' % top)
        a(done + ':')

    def epoch_issue(self):
        self.a('s_load_dword %s, %s, 0x0' % (sEP, DBGP))

    def flag_set_wg(self, sidx, base):
        o = self.flag_set(sidx, base)
        self.emit(o[:2] + ['s_cmp_eq_u32 %s, 0' % sW, 's_cselect_b32 %s, %s, %d' % (sidx, sidx, OOB)] + o[2:])

    def get_epoch(self, issued=False):
        a = self.a
        top, done = self.label('ep'), self.label('epd')
        if not issued:
            self.epoch_issue()
        a('s_waitcnt lgkmcnt(0)')
        a('s_cmp_lg_u32 %s, 0' % sEP)
        a('s_cbranch_scc0 %s' % top)
        a(done + ':')
        self.cold += [top + ':', 'v_mov_b32 v255, 0', top + '_l:', 'global_load_dword v253, v255, %s sc1' % DBGP,
                      's_waitcnt vmcnt(0)', 'v_readfirstlane_b32 %s, v253' % sEP, 's_nop 4', 's_cmp_lg_u32 %s, 0' % sEP,
                      's_cbranch_scc1 %s' % done, 's_sub_u32 %s, %s, 1' % (sCT, sCT), 's_cbranch_scc1 L_exit',
                      's_sleep 4', 's_branch %s_l' % top]
        a('s_mov_b32 s51, s50')
        for k in range(4):
            a('v_mov_b32 v%d, %s' % (vFL + k, sEP))

    def tr_lane_addr(self, dst, pitch, h16, t0, t1):
        a = self.a
        a('v_lshrrev_b32 %s, 5, v0' % t0)
        a('v_lshlrev_b32 %s, 3, %s' % (t0, t0))
        a('v_bfe_u32 %s, v0, 2, 2' % t1)
        a('v_add_u32 %s, %s, %s' % (t0, t0, t1))
        a('v_mul_u32_u24 %s, %d, %s' % (dst, pitch, t0))
        a('v_bfe_u32 %s, v0, 4, 1' % t0)
        a('v_mul_u32_u24 %s, %d, %s' % (t0, h16, t0))
        a('v_add_u32 %s, %s, %s' % (dst, dst, t0))
        a('v_and_b32 %s, 1, v0' % t0)
        a('v_lshl_add_u32 %s, %s, 4, %s' % (dst, t0, dst))
        a('v_bfe_u32 %s, v0, 1, 1' % t0)
        a('v_lshl_add_u32 %s, %s, 3, %s' % (dst, t0, dst))

    def prologue(self):
        a = self.a
        a.fresh()
        a('s_cmp_ge_u32 s2, 256')
        a('s_cbranch_scc1 L_exit')
        if self.stamps:
            a('v_mov_b32 v254, 0')
            a('s_memrealtime s[100:101]\ns_waitcnt lgkmcnt(0)\nv_writelane_b32 v254, s100, 63')
            self.stamp(0)
        a('s_load_dwordx16 s[16:31], s[0:1], 0')
        a('s_load_dwordx4 s[32:35], s[0:1], 64')
        self.code_prefetch(232)
        a('v_lshrrev_b32 v2, 6, v0')
        a('v_and_b32 v0, 63, v0')
        a('v_readfirstlane_b32 %s, v2' % sW)
        a('v_lshlrev_b32 %s, 4, v0' % vL16)
        a('s_and_b32 %s, s2, 7' % sXCD)
        a('s_lshr_b32 %s, s2, 3' % sI)
        a('s_and_b32 s11, %s, 3' % sI)
        a('s_lshl_b32 %s, %s, 2' % (sM, sXCD))
        a('s_add_u32 %s, %s, s11' % (sM, sM))
        a('s_lshr_b32 %s, %s, 2' % (sN, sI))
        a('s_mov_b32 %s, 0x40000' % sCT)

    def roles(self):
        a = self.a
        self.srd(40, 34, WS_END)
        self.srd(44, 30, 2048 * 896)
        a('s_and_b32 s11, %s, 1' % sI)
        a('s_lshl_b32 s12, %s, 1' % sN)
        a('s_add_u32 s12, s12, s11')
        a('s_lshr_b32 s13, %s, 1' % sM)
        if self.opt['p2map'] == 'A':
            a('s_mov_b32 %s, s13' % sR)
            a('s_mov_b32 %s, s12' % sHD)
        else:
            a('s_lshr_b32 %s, %s, 1' % (sR, sI))
            a('s_lshl_b32 %s, %s, 1' % (sHD, sXCD))
            a('s_add_u32 %s, %s, s11' % (sHD, sHD))
        if self.opt['p4map'] == 'A':
            a('s_mov_b32 %s, s13' % sR4)
            a('s_mov_b32 %s, s12' % sJ)
        else:
            a('s_and_b32 s11, %s, 1' % sXCD)
            a('s_lshl_b32 s11, s11, 3')
            a('s_add_u32 s11, s11, %s' % sN)
            a('s_lshr_b32 s12, %s, 1' % sXCD)
            a('s_lshl_b32 s12, s12, 2')
            a('s_and_b32 s13, %s, 3' % sI)
            a('s_add_u32 %s, s12, s13' % sR4)
            a('s_mov_b32 %s, s11' % sJ)
        a('s_lshr_b32 s11, %s, 1' % sW)
        a('s_lshl_b32 s11, s11, 10')
        a('v_xor_b32 %s, s11, %s' % (vXA, vL16))
        a('v_xor_b32 %s, 1024, %s' % (vXB, vXA))

    def code_prefetch(self, dst):
        if not self.opt['codepf']:
            return
        a = self.a
        a('s_getpc_b64 s[12:13]')
        a('L_code_pc:')
        a('s_lshr_b32 s11, s2, 3')
        a('s_lshl_b32 s11, s11, 12')
        a('v_lshl_add_u32 v%d, v0, 4, s11' % dst)
        a('v_min_u32 v%d, L_code_end-L_code_pc-16, v%d' % (dst, dst))
        a('v_mov_b32 v%d, s13' % (dst + 1))
        a('v_add_co_u32 v%d, vcc, s12, v%d' % (dst, dst))
        a('v_addc_co_u32 v%d, vcc, 0, v%d, vcc' % (dst + 1, dst + 1))
        a('global_load_dwordx4 %s, %s, off' % (vr(dst + 2), vr(dst, 2)))

    P1_X = 4 * SLOT
    P1_SL = [0, 1, 2, 3, 0, 1]
    RP_LDS = 3 * SLOT

    def p1_wdma(self, ss):
        g, h = ss // 2, ss % 2
        o = []
        for i in range(7):
            pre = ['s_add_u32 m0, s83, %d' % (self.P1_SL[ss] * SLOT + i * 1024)] if i % 4 == 0 else []
            o.append(pre + [('buffer_load_dwordx4 v%d, %s, s%d offen offset:%d lds' % (180 + g, SRD_WQKV, 68 + 7 * h + i, (i % 4) * 1024), 'w%d' % ss)])
        return o

    def p1(self):
        a = self.a
        XR, ACC, WF, PKR, T = 16, 72, 104, 136, 152
        VX, VX2 = 178, 179
        a('v_lshrrev_b32 v2, 3, v0')
        a('v_and_b32 v3, 7, v0')
        a('v_mul_u32_u24 v%d, 896, v2' % VX)
        a('v_lshl_add_u32 v%d, v3, 4, v%d' % (VX, VX))
        a('v_add_u32 v%d, %d, v%d' % (VX2, 8 * 896, VX))
        a('s_lshl_b32 s11, %s, 6' % sM)
        a('s_lshl_b32 s12, %s, 4' % sW)
        a('s_add_u32 s11, s11, s12')
        a('s_mul_i32 s14, s11, 896')
        a('s_add_u32 s15, %s, %s' % (sXCD if self.opt['rot'] == 3 else '0', sN))
        a('s_sub_u32 s13, s15, 7')
        a('s_cselect_b32 s15, s15, s13')
        a('s_lshl_b32 s15, s15, 7')
        for s in range(7):
            a('s_add_u32 s%d, s14, s15' % (92 + s))
            a('s_mul_i32 s%d, s15, 1344' % (84 + s))
            if s < 6:
                a('s_add_u32 s15, s15, 128')
                a('s_cmp_eq_u32 s15, 896')
                a('s_cselect_b32 s15, 0, s15')

        def wtab(h):
            for i in range(7):
                B = 28 * h + 4 * i
                a('s_add_u32 s%d, s%d, %d' % (68 + 7 * h + i, 84 + (B >> 3), (B & 7) * 8 * 2688 + 4096 - (i % 4) * 1024))
        wtab(0)
        a('s_mul_i32 s83, %s, 7168' % sW)
        a('s_mul_i32 s11, %s, %d' % (sW, 8 * 2688))
        a('s_lshl_b32 s12, %s, 7' % sN)
        a('s_add_u32 s11, s11, s12')
        a('v_bfe_u32 v176, v0, 4, 1')
        a('v_lshlrev_b32 v176, 2, v176')
        a('v_xor_b32 v176, v176, v3')
        a('v_mul_u32_u24 v177, 2688, v2')
        a('v_lshl_add_u32 v176, v176, 4, v177')
        a('v_add_u32 v181, s11, v176')
        a('v_add_u32 v180, 896, v181')
        self.srd(36, 16, 2048 * 896)
        self.stamp(34)
        NX0, NWF = self.opt.get('nx0', 5), self.opt.get('nwf', 0)

        def xload(s):
            return ['buffer_load_dwordx4 %s, v%d, %s, s%d offen' % (vr(XR + (s * 2 + q) * 4), VX2 if q else VX, SRD_X, 92 + s) for q in range(2)]
        for s in range(NX0):
            self.emit(xload(s))
        a('s_sub_u32 s18, s18, 4096')
        a('s_subb_u32 s19, s19, 0')
        self.srd(52, 18, 448 * 2688 + 4096)
        if self.opt.get('aw', 1):
            a('s_lshl_b32 s11, s2, 2')
            a('s_add_u32 s11, s11, %s' % sW)
            a('s_mul_i32 s11, s11, 1344')
            a('s_add_u32 s11, s11, 4096')
            a('v_lshlrev_b32 v190, 7, v0')
            a('s_mov_b64 exec, 0x7ff')
            a('buffer_load_dword v191, v190, %s, s11 offen' % SRD_WQKV)
            a('s_mov_b64 exec, -1')
        wg = self.p1_wdma(0) + self.p1_wdma(1) + self.p1_wdma(2) + self.p1_wdma(3)
        self.emit(wg[:min(NWF, 7)])
        wtab(1)
        self.emit(wg[7:NWF])
        self.stamp(26)
        self.srd(60, 24, 448 * 3584)
        self.srd(64, 26, 448 * 3584)
        self.roles()
        a('v_add_u32 v182, 1792, v181')
        a('v_lshrrev_b32 v10, 4, v0')
        a('v_xor_b32 v10, v3, v10')
        a('v_lshlrev_b32 v11, 7, v2')
        a('s_lshl_b32 s11, %s, 11' % sW)
        a('s_add_u32 s11, s11, %d' % self.P1_X)
        a('v_add_u32 v11, s11, v11')
        a('v_lshl_add_u32 v%d, v10, 4, v11' % T)
        a('v_xor_b32 v%d, 64, v%d' % (T + 1, T))
        a('v_add_u32 v%d, 1024, v%d' % (T + 1, T + 1))
        a('v_and_b32 v14, 31, v0')
        a('v_lshrrev_b32 v15, 5, v0')
        a('v_bfe_u32 v2, v0, 1, 3')
        a('v_xor_b32 v15, v15, v2')
        a('s_and_b32 s11, %s, 1' % sW)
        a('s_lshl_b32 s11, s11, 12')
        a('s_add_u32 s11, s11, %d' % self.P1_X)
        a('v_lshlrev_b32 v14, 7, v14')
        a('v_add_u32 v14, s11, v14')
        for u in range(4):
            a('v_xor_b32 v2, %d, v15' % (2 * u))
            a('v_lshl_add_u32 v%d, v2, 4, v14' % (T + 2 + u))
        self.tr_lane_addr('v14', 128, 32, 'v2', 'v3')
        a('v_bfe_u32 v2, v0, 3, 1')
        a('s_lshr_b32 s11, %s, 1' % sW)
        a('v_xor_b32 v2, s11, v2')
        a('v_lshl_add_u32 v%d, v2, 6, v14' % (T + 6))
        a('v_lshrrev_b32 v2, 5, v0')
        a('v_mul_u32_u24 v2, %d, v2' % (7168 - 1024))
        a('v_add_u32 v%d, v2, v%d' % (T + 6, T + 6))
        a('v_add_u32 v%d, %d, v%d' % (T + 7, 2 * SLOT, T + 6))
        ONE, SU, SQ, RS, NB, TMP = T + 9, ACC, ACC + 4, T + 10, T + 14, T + 18
        a('v_mov_b32 v%d, 0x3f803f80' % ONE)
        a('v_mov_b32 v%d, 0xffff0000' % TMP)
        st = []
        for s in range(7):
            for q in range(2):
                for d in range(4):
                    x = XR + (s * 2 + q) * 4 + d
                    k = q * 2 + (d & 1)
                    first = s == 0 and d < 2
                    st.append('v_dot2_f32_bf16 v%d, v%d, v%d, %s' % (SU + k, x, ONE, '0' if first else 'v%d' % (SU + k)))
                    st.append('v_dot2_f32_bf16 v%d, v%d, v%d, %s' % (SQ + k, x, x, '0' if first else 'v%d' % (SQ + k)))
        red = []
        for q in range(2):
            st.append('v_add_f32 v%d, v%d, v%d' % (SU + 2 * q, SU + 2 * q, SU + 2 * q + 1))
            st.append('v_add_f32 v%d, v%d, v%d' % (SQ + 2 * q, SQ + 2 * q, SQ + 2 * q + 1))
            red += [SU + 2 * q, SQ + 2 * q]
        for dpp in ('quad_perm:[1,0,3,2]', 'quad_perm:[2,3,0,1]', 'row_half_mirror'):
            for r in red:
                st.append('v_add_f32_dpp v%d, v%d, v%d %s row_mask:0xf bank_mask:0xf' % (r, r, r, dpp))
        for q in range(2):
            su, sq = SU + 2 * q, SQ + 2 * q
            st += ['v_mul_f32 v%d, %s, v%d' % (su, f32(1.0 / 448), su),
                   'v_mul_f32 v%d, %s, v%d' % (sq, f32(1.0 / 448), sq),
                   'v_fma_f32 v%d, -v%d, v%d, v%d' % (sq, su, su, sq),
                   'v_max_f32 v%d, 0, v%d' % (sq, sq),
                   'v_add_f32 v%d, %s, v%d' % (sq, f32(1e-5), sq),
                   'v_rsq_f32 v%d, v%d' % (RS + 2 * q, sq),
                   'v_mul_f32_e64 v%d, -v%d, v%d' % (NB + 2 * q, su, RS + 2 * q)]

        def norm(s, pk):
            o = []
            for q in range(2):
                b = XR + (s * 2 + q) * 4
                tb_ = PKR + q * 8
                for d in range(4):
                    o.append('v_lshlrev_b32 v%d, 16, v%d' % (tb_ + 2 * d, b + d))
                    o.append('v_and_b32 v%d, v%d, v%d' % (tb_ + 2 * d + 1, TMP, b + d))
                for d in range(4):
                    t0 = tb_ + 2 * d
                    if pk:
                        o.append('v_pk_fma_f32 %s, %s, %s, %s op_sel_hi:[1,0,0]' % (
                            vr(t0, 2), vr(t0, 2), vr(RS + 2 * q, 2), vr(NB + 2 * q, 2)))
                    else:
                        o.append('v_fma_f32 v%d, v%d, v%d, v%d' % (t0, t0, RS + 2 * q, NB + 2 * q))
                        o.append('v_fma_f32 v%d, v%d, v%d, v%d' % (t0 + 1, t0 + 1, RS + 2 * q, NB + 2 * q))
                for d in range(4):
                    o.append('v_cvt_pk_bf16_f32 v%d, v%d, v%d' % (b + d, tb_ + 2 * d, tb_ + 2 * d + 1))
                if s == 6 and q == 0:
                    o.append('s_barrier')
                o.append('ds_write_b128 v%d, %s offset:%d' % (T + q, vr(b), (s % 6) * 8192))
            return o

        def xread(ks):
            return 'ds_read_b128 %s, v%d offset:%d' % (ar(4 * ks), T + 2 + ks % 4, ((ks // 4) % 6) * 8192)

        cnt = [0]

        def wread(ss, k):
            b = WF + (cnt[0] % 8) * 4
            cnt[0] += 1
            sl = self.P1_SL[ss]
            return b, ['ds_read_b64_tr_b16 %s, v%d offset:%d' % (vr(b + 2 * z, 2), T + 6 + (sl >> 1), (sl & 1) * SLOT + (k & 1) * 14336 + (k >> 1) * 1024 + z * 512)
                       for z in range(2)]

        D = 6

        def store(g):
            so = ['s82', 'vcc_lo', 'vcc_hi'][g]
            o = []
            for h in range(2):
                pk = PKR + (g % 2) * 8 + 4 * h
                for d in range(4):
                    r = ACC + 16 * (g % 2) + 8 * h + 2 * d
                    o.append('v_cvt_pk_bf16_f32 v%d, v%d, v%d' % (pk + d, r, r + 1))
                o.append(('buffer_store_dwordx4 %s, %s, %s, %s offen offset:%d sc1' % (vr(pk), vL16, SRD_WS, so, h * 1024), 'q%d' % g))
            return o

        def sync(ss):
            return [Pseudo('wait_tok', 'w%d' % ss), 's_waitcnt lgkmcnt(0)', 's_barrier']
        a('s_lshl_b32 s13, %s, 1' % sM)
        a('s_and_b32 s12, %s, 1' % sW)
        a('s_add_u32 s13, s13, s12')
        a('s_lshr_b32 s12, %s, 1' % sW)
        a('s_lshl_b32 s11, %s, 1' % sN)
        a('s_add_u32 s12, s12, s11')
        a('s_mul_i32 vcc_lo, s13, %d' % (84 * 1024))
        a('s_lshl_b32 s11, s12, 11')
        a('s_add_u32 vcc_lo, vcc_lo, s11')
        a('s_add_u32 s82, vcc_lo, %d' % (28 * 1024))
        a('s_add_u32 vcc_hi, vcc_lo, %d' % (56 * 1024))
        a('s_lshl_b32 s16, s13, 4')
        a('s_add_u32 s16, s16, s12')
        a('s_lshl_b32 s16, s16, %d' % (FSH + 2))
        a('s_add_u32 s16, s16, %d' % (WS_FL + FL_F1 * FS))
        a('s_mov_b32 %s, s16' % sBK2)
        self.stamp(1)
        for s_ in range(NX0, 7):
            self.emit(xload(s_))
        if self.opt.get('pw', 2) == 2:
            self.emit(self.prewrite(True, 184))
        k = NWF
        for s in range(7):
            blk = st[16 * s:16 * s + 16]
            self.emit(blk[:9])
            if s in (0, 3, 6):
                self.stamp(42 + s // 3)
            if k + 2 <= self.opt.get('n0', 14):
                self.emit(wg[k] + blk[9:] + wg[k + 1])
                k += 2
            else:
                self.emit(blk[9:])
        n1 = self.opt.get('n1', 20)
        self.emit(sprinkle(st[112:] + norm(0, True) + norm(1, True) + ['s_load_dword %s, %s, 0x0' % (sEP, DBGP)] + [x for c_ in range(2, self.opt.get('nf', 4)) for x in norm(c_, True)], wg[k:n1], 0.3, 1.0))
        self.stamp(2)
        self.emit(sync(0))
        self.get_epoch(issued=True)
        self.stamp(3)
        seq = [(ss, kk) for ss in range(6) for kk in range(14)]

        def rds(i):
            ss, kk = seq[i]
            b, r = wread(ss, kk)
            o = sync(ss) if (kk == 0 and ss) else []
            if ss < 2:
                o.append(xread(14 * ss + kk))
            return b, o + r
        rd = [rds(i) for i in range(len(seq))]
        for i in range(D):
            self.emit(rd[i][1])
        self.stamp(57)
        p2s = self.p2_setup_s()
        p2v = self.capture(self.p2_setup_v)
        for ss in range(6):
            g, h = ss // 2, ss % 2
            acc = vr(ACC + 16 * (g % 2), 16)
            A, B = [], []
            for kk in range(14):
                i = 14 * ss + kk
                m_ = '%s %s, %s, %s, %s' % (MFMA, acc, vr(rd[i][0]), ar(4 * (14 * h + kk)), acc if (kk or h) else '0')
                (A if kk <= 14 - D else B).append(m_)
                if i + D < len(seq):
                    (A if kk < 14 - D else B).extend(rd[i + D][1])
            sa, sb = [], []
            if ss == 0:
                sa = sprinkle([x for s in range(self.opt.get('nf', 4), 7) for x in norm(s, self.opt.get('pk0', 0))], wg[n1:], 0.0, 0.9)
            if ss in (2, 4):
                sa = ['s_nop 0'] * 0 + store(ss // 2 - 1)
            fl = lambda gs: [x for g_ in gs for x in g_]
            if ss == 0:
                sb = fl(self.p1_wdma(4)[:4])
            if ss == 1:
                sa = fl(self.p1_wdma(4)[4:])
                sb = fl(self.p1_wdma(5)[:4])
            if ss == 2:
                sa = fl(self.p1_wdma(5)[4:]) + sa
            if ss == 2 and self.opt.get('rpl', 3) == 0:
                sb = self.rp_load()[0]
            if ss == 1 and self.opt.get('pw', 2) == 1:
                sa = sa + self.prewrite(True, 184)
            if ss == 3:
                sa = p2s[:26]
                sb = p2s[26:40] + [[Pseudo('wait_tok', 'q0')] + self.f1_set(0)]
            if ss == 4:
                sb = p2s[40:]
            if ss == 5:
                sa = p2v[:40]
            A, r1 = weave(A, sa, start=1 if ss in (2, 4) else (2 if (ss == 0 and self.opt.get('nf', 4) == 6) else 0))
            if ss == 5:
                B = B[:2] + ['s_waitcnt lgkmcnt(0)'] + self.poll_loads(self.kflags(0)) + B[2:] + [Pseudo('wait_tok', 'q1')] + self.f1_set(1)
                r2 = []
            else:
                B, r2 = weave(B, sb)
            self.emit(A + r1 + B + r2)
            self.stamp(27 + ss)
        self.emit(store(2))
        self.p2v_rest = p2v[40:]

    def kflags(self, part):
        return [('s%d' % (20 + g), k * 64 + part) for g in range(2) for k in range(3)]

    def qflags(self):
        return [('s22', 1), ('s23', 1)]

    def fo_items(self):
        return [('s18', k) for k in range(2)]

    def rp_load(self):
        o = ['v_lshrrev_b32 v220, 3, v0', 'v_and_b32 v221, 7, v0', 'v_mul_u32_u24 v220, 3584, v220',
             'v_lshl_add_u32 v220, v221, 4, v220', 'v_add_u32 v221, %d, v220' % (8 * 3584 - 1024),
             's_lshl_b32 s25, %s, 6' % sN, 's_lshl_b32 s28, %s, 4' % sW, 's_add_u32 s25, s25, s28', 's_mul_i32 s25, s25, 3584',
             's_lshl_b32 s28, %s, 7' % sM, 's_add_u32 s25, s25, s28',
             ['s_cmp_lt_u32 %s, 28' % sM, 's_cselect_b32 s25, s25, %d' % OOB], 's_lshl_b32 s28, %s, 11' % sW]
        d = []
        for img, srd in enumerate((SRD_G, SRD_U)):
            d.append('s_add_u32 m0, s28, %d' % (self.RP_LDS + img * 8192))
            for z in range(2):
                d.append(('buffer_load_dwordx4 v%d, %s, s25 offen offset:%d lds' % (220 + z, srd, z * 1024), 'rp'))
        return o, d

    def rp_prep(self):
        a = self.a
        self.tr_lane_addr('v15', 128, 8192, 'v2', 'v3')
        a('s_lshl_b32 s11, %s, 5' % sW)
        a('s_add_u32 s11, s11, %d' % self.RP_LDS)
        a('v_add_u32 v15, s11, v15')
        a('s_lshl_b32 s13, %s, 2' % sM)
        a('s_add_u32 s13, s13, %s' % sW)
        a('s_mul_i32 s0, s13, 28672')
        a('s_lshl_b32 s12, %s, 12' % sN)
        a('s_add_u32 s0, s0, s12')
        a('s_add_u32 s0, s0, %d' % WS_WGU)
        a('s_mul_i32 s1, s13, 896')
        a('s_lshl_b32 s12, %s, 7' % sN)
        a('s_add_u32 s1, s1, s12')
        a('s_add_u32 s1, s1, %d' % WS_CS)
        a('s_lshl_b32 s12, %s, 2' % sN)
        a('s_max_u32 s12, s12, %s' % sM)
        a('s_cmp_lt_u32 s12, 28')
        a('s_cselect_b32 s0, s0, %d' % OOB)
        a('s_cselect_b32 s1, s1, %d' % OOB)

    def rp_frag(self):
        a = self.a
        for u in range(4):
            for z in range(2):
                a('ds_read_b64_tr_b16 %s, v15 offset:%d' % (ar(168 + u * 4 + z * 2, 2), (16 * u + 4 * z) * 128))
        for d in range(4):
            a('v_mov_b32 v%d, 0x3f803f80' % (160 + d))
        a('v_lshlrev_b32 v164, 2, v0')

    def rp_mm(self):
        for u in range(4):
            self.a('%s v[16:31], v[160:163], %s, %s' % (MFMA, ar(168 + u * 4), 'v[16:31]' if u else '0'))

    def rp_store(self):
        a = self.a
        for u in range(4):
            a('buffer_store_dwordx4 %s, %s, %s, s0 offen offset:%d sc1' % (ar(168 + u * 4), vL16, SRD_WS, u * 1024), tok='rs')
        a('s_mov_b32 exec_hi, 0')
        a('buffer_store_dword v16, v164, %s, s1 offen sc1' % SRD_WS, tok='rs')
        a('s_mov_b32 exec_hi, -1')

    def fg_set(self):
        a = self.a
        a('s_mul_i32 s11, %s, 7' % sM)
        a('s_add_u32 s11, s11, %s' % sN)
        a('s_cmp_ge_u32 %s, 7' % sN)
        a('s_cselect_b32 s11, 223, s11')
        self.flag_set_wg('s11', FL_FG)

    def prewrite(self, active, z):
        assert FS == 256
        st = lambda: 'buffer_store_dwordx4 %s, %s, %s, s0 offen sc1' % (vr(z), vL16, SRD_WS)
        o = ['v_mov_b32 v%d, 0' % (z + k) for k in range(4)]
        o += ['s_lshl_b32 s0, %s, 2' % sR4, 's_add_u32 s0, s0, %s' % sW, 's_lshl_b32 s0, s0, 4', 's_add_u32 s0, s0, %s' % sJ,
              's_lshl_b32 s0, s0, 10', 's_add_u32 s0, s0, %d' % (WS_FL + FL_F4 * FS), st()]
        o += ['s_lshl_b32 s0, %s, 2' % sR, 's_add_u32 s0, s0, %s' % sW, 's_lshl_b32 s0, s0, 4', 's_add_u32 s0, s0, %s' % sHD,
              's_lshl_b32 s0, s0, 8', 's_add_u32 s0, s0, %d' % (WS_FL + FL_F2 * FS),
              ['s_mov_b64 exec, 0xffff', st(), 's_mov_b64 exec, -1']]
        if active:
            o += ['s_mov_b32 s0, %s' % sBK2, st()]
        return o

    def prewrite_data(self, z):
        st = lambda s_, off: 'buffer_store_dwordx4 %s, %s, %s, %s offen offset:%d sc1' % (vr(z), vL16, SRD_WS, s_, off)
        o = ['s_lshl_b32 s11, s24, 4', 's_add_u32 s11, s11, %s' % sHD, 's_lshl_b32 s11, s11, 11', 's_add_u32 s11, s11, %d' % WS_O,
             st('s11', 0), st('s11', 1024),
             's_lshl_b32 s13, %s, 1' % sM, 's_and_b32 s12, %s, 1' % sW, 's_add_u32 s13, s13, s12', 's_mul_i32 s13, s13, 14',
             's_lshr_b32 s12, %s, 1' % sW, 's_add_u32 s13, s13, s12', 's_lshl_b32 s12, %s, 1' % sN, 's_add_u32 s13, s13, s12',
             's_lshl_b32 s13, s13, 11', 's_add_u32 s13, s13, %d' % WS_HB,
             's_cmp_ge_u32 %s, 7' % sN, 's_cselect_b32 s13, %d, s13' % OOB, st('s13', 0), st('s13', 1024)]
        return o

    def touch(self, v):
        sh = self.opt.get('tsh', 19)
        return ['v_lshlrev_b32 v%d, %d, v0' % (v, sh),
                'buffer_load_dword v%d, v%d, %s, 0 offen offset:2048' % (v + 1, v, SRD_WS),
                'buffer_load_dword v%d, v%d, %s, 0 offen offset:2048' % (v + 1, v, SRD_OUT)]

    def idle1(self):
        a = self.a
        self.srd(36, 16, 2048 * 896)
        self.srd(40, 34, WS_END)
        noep = self.label('noep')
        a('s_lshl_b32 s13, s2, 2')
        a('s_add_u32 s13, s13, %s' % sW)
        a('s_cmp_lg_u32 s13, 1020')
        a('s_cbranch_scc1 %s' % noep)
        a.begin_cond(noep)
        a('s_mov_b32 s13, %d' % WS_EP)
        a('s_load_dword s12, %s, s13 glc' % WSP)
        a('s_add_u32 s12, s12, 1')
        a('s_max_u32 s12, s12, 1')
        a('v_mov_b32 v8, s12')
        a('v_mov_b32 v9, 0')
        a('s_mov_b64 exec, 1')
        a('buffer_store_dword v8, off, %s, s13 sc1' % SRD_WS)
        a('global_store_dword v9, v8, %s sc1' % DBGP)
        a('s_mov_b64 exec, -1')
        a.end_cond()
        a(noep + ':')
        if self.opt.get('j0', 0):
            self.srd(52, 18, 448 * 2688)
            a('s_lshl_b32 s11, %s, 2' % sM)
            a('s_add_u32 s11, s11, %s' % sW)
            a('s_mul_i32 s11, s11, 9408')
            for k in range(10):
                if k and k % 4 == 0:
                    a('s_add_u32 s11, s11, 4096')
                a('buffer_load_dwordx4 v[40:43], %s, %s, s11 offen offset:%d' % (vL16, SRD_WQKV, (k % 4) * 1024))
        a('v_lshrrev_b32 v2, 3, v0')
        a('v_and_b32 v3, 7, v0')
        a('s_mul_i32 s17, %s, 40960' % sW)
        self.srd(60, 24, 448 * 3584)
        self.srd(64, 26, 448 * 3584)
        self.srd(52, 28, 1792 * 896)
        self.srd(56, 20, 448 * 896)
        self.roles()
        if self.opt.get('ti', 0):
            self.emit(self.touch(38))
            a('buffer_load_dword v39, v38, %s, 0 offen' % SRD_G)
            a('buffer_load_dword v39, v38, %s, 0 offen' % SRD_U)
        if self.opt.get('pw', 2):
            self.emit(self.prewrite(False, 44))
        a('v_mul_u32_u24 v4, 896, v2')
        a('v_lshl_add_u32 v4, v3, 4, v4')
        a('s_and_b32 s12, %s, 3' % sM)
        a('s_mul_i32 s19, s12, 112')
        a('s_lshl_b32 s11, %s, 4' % sW)
        a('s_add_u32 s19, s19, s11')
        a('s_lshr_b32 s11, %s, 1' % sW)
        a('s_lshl_b32 s11, s11, 3')
        a('s_sub_u32 s19, s19, s11')
        a('s_mul_i32 s19, s19, 896')
        a('s_lshr_b32 s13, %s, 2' % sM)
        a('s_lshl_b32 s11, s13, 7')
        a('s_add_u32 s19, s19, s11')
        a('s_lshl_b32 s18, s13, 5')
        a('s_lshl_b32 s11, s12, 3')
        a('s_add_u32 s18, s18, s11')
        a('s_add_u32 s18, s18, %s' % sW)
        a('s_lshl_b32 s18, s18, 11')
        a('s_add_u32 s18, s18, %d' % WS_WO)
        a('s_lshl_b32 s20, %s, 2' % sM)
        a('s_add_u32 s20, s20, %s' % sW)
        a('s_lshl_b32 s21, s20, 11')
        a('s_add_u32 s21, s21, %d' % WS_WD)
        a('s_cmp_lt_u32 %s, 28' % sM)
        a('s_cselect_b32 s19, s19, %d' % OOB)
        a('s_cselect_b32 s18, s18, %d' % OOB)
        a('s_cselect_b32 s21, s21, %d' % OOB)
        for k in range(4):
            a('s_add_u32 m0, s17, %d' % (14336 + k * 1024))
            a('s_add_u32 s11, s19, %d' % (((k >> 1) * 56 + (k & 1) * 8) * 896))
            a('buffer_load_dwordx4 v4, %s, s11 offen lds' % SRD_D, tok='j2')
        self.tr_lane_addr('v6', 128, 32, 'v2', 'v3')
        a('v_add_u32 v6, s17, v6')
        self.tr_lane_addr('v7', 896, 32, 'v2', 'v3')
        a('v_add_u32 v7, s17, v7')

        def j3():
            a('s_lshl_b32 s11, %s, 2' % sM)
            a('s_add_u32 s11, s11, %s' % sW)
            a('s_mul_i32 s11, s11, 12544')
            for k in range(13):
                if k and k % 4 == 0:
                    a('s_add_u32 s11, s11, 4096')
                for srd in (SRD_G, SRD_U):
                    a('buffer_load_dwordx4 v[40:43], %s, %s, s11 offen offset:%d' % (vL16, srd, (k % 4) * 1024))

        def j4():
            a('s_mul_i32 s22, s20, %d' % (16 * 896))
            for k in range(14):
                if k % 4 == 0:
                    a('s_add_u32 m0, s17, %d' % (18432 + k * 1024))
                    if k:
                        a('s_add_u32 s22, s22, 4096')
                a('buffer_load_dwordx4 %s, %s, s22 offen offset:%d lds' % (vL16, SRD_WQKV, (k % 4) * 1024), tok='j4')

        def j2p():
            a.wait_tok('j2')
            for k in range(4):
                for z in range(2):
                    a('ds_read_b64_tr_b16 %s, v6 offset:%d' % (vr(24 + k * 4 + z * 2, 2), 14336 + (k >> 1) * 2048 + (k & 1) * 64 + z * 512))
            a('s_add_u32 s19, s18, 8192')
            for k in range(4):
                a('buffer_store_dwordx4 %s, %s, %s, s%d offen offset:%d sc1' % (vr(24 + k * 4), vL16, SRD_WS, 18 + (k >> 1), (k & 1) * 1024), tok='c2')

        def j4p():
            a.wait_tok('j4')
            for ct in range(14):
                for z in range(2):
                    a('ds_read_b64_tr_b16 %s, v110 offset:%d' % (vr(48 + ct * 4 + z * 2, 2), 18432 + ct * 64 + z * 4 * 896))
            for ct in range(14):
                if ct and ct % 2 == 0:
                    a('s_add_u32 s0, s0, %d' % (112 * 2048))
                a('buffer_store_dwordx4 %s, %s, %s, s0 offen offset:%d sc1' % (vr(48 + ct * 4), vL16, SRD_WS, (ct % 2) * 1024), tok='c4')

        def flag(tok, base):
            a.wait_tok(tok)
            a('s_barrier')
            a('s_mov_b32 s11, %s' % sM)
            self.flag_set_wg('s11', base)
        if self.opt.get('j4e', 0):
            j4()
            j2p()
        else:
            j2p()
            j4()
        a('v_mov_b32 v110, v7')
        a('s_mov_b32 s0, s21')
        self.p2_setup_v()
        self.emit(self.p2_setup_s())
        self.res_voffset('v15', 's1')
        self.emit(self.rp_load()[0])
        self.get_epoch()
        flag('c2', FL_FO)
        self.stamp(1)
        j4p()
        self.stamp(2)
        a('s_lshl_b32 s0, %s, %d' % (sM, FSH + 7))
        a('s_add_u32 s0, s0, %d' % (WS_FL + (FL_F1 + 6 * 4 + self.opt.get('px', 1)) * FS))
        a('s_load_dword s12, %s, s0 offset:128' % WSP)
        flag('c4', FL_FD)
        if self.opt.get('j3', 0):
            j3()
        self.stamp(3)
        a('s_cmp_eq_u32 s12, %s' % sEP)
        a('s_cbranch_scc1 L_nopw')
        a('s_cmp_lg_u32 %s, 0' % sW)
        a('s_cbranch_scc1 L_nopw')
        self.prewait('s0')
        a('L_nopw:')
        a('s_barrier')
        self.poll(self.kflags(0) + self.qflags())
        self.k_issue()
        a('s_mov_b32 s11, s1')

    KV_LDS = 4 * SLOT

    def p2_setup_s(self):
        o = []
        a = o.append
        a('s_mul_i32 s28, %s, 7' % sHD)
        a('s_lshr_b32 s28, s28, 1')
        a('s_lshl_b32 s11, %s, 2' % sR)
        a('s_add_u32 s12, s11, %s' % sW)
        a('s_mul_i32 s13, %s, 3' % sW)
        a('s_add_u32 s11, s11, s13')
        a('s_sub_i32 s18, s11, 8')
        a('s_max_i32 s13, s18, 0')
        a('s_lshl_b32 s13, s13, %d' % (FSH + 6))
        a('s_add_u32 s13, s13, %d' % (WS_FL + FL_F1 * FS))
        a('s_lshl_b32 s14, s12, %d' % (FSH + 6))
        a('s_add_u32 s14, s14, %d' % (WS_FL + FL_F1 * FS))
        for k, add in enumerate((0, 3)):
            a('s_add_u32 s15, s28, %d' % add)
            a('s_lshr_b32 s15, s15, 2')
            a('s_lshl_b32 s15, s15, %d' % (FSH + 2))
            a('s_add_u32 s%d, s15, s13' % (20 + k))
            a('s_add_u32 s%d, s15, s14' % (22 + k))
        a('s_mov_b32 s24, s12')
        a('s_lshl_b32 s28, s28, 9')
        a('s_mul_i32 s19, s12, %d' % (84 * 1024))
        a('s_add_u32 s19, s19, s28')
        for k in range(3):
            a('s_add_i32 s13, s18, %d' % k)
            a('s_mul_i32 s14, s13, %d' % (84 * 1024))
            a('s_add_u32 s14, s14, s28')
            a('s_add_u32 s14, s14, %d' % (56 * 512))
            a('s_cmp_lt_i32 s13, 0')
            a('s_cselect_b32 s%d, %d, s14' % (29 + k, OOB))
        a('s_mul_i32 s17, %s, %d' % (sW, 3 * 4096))
        a('v_lshrrev_b32 v5, 5, v0')
        a('v_lshlrev_b32 v5, 6, v5')
        a('v_xor_b32 v4, %s, v5' % vL16)
        a('v_xor_b32 v5, 128, v4')
        a('s_bitcmp1_b32 %s, 0' % sHD)
        a('s_cselect_b64 s[26:27], -1, 0')
        a('s_min_u32 s18, %s, 6' % sN)
        a('s_lshl_b32 s18, s18, 2')
        a('s_and_b32 s11, %s, 2' % sW)
        a('s_add_u32 s18, s18, s11')
        a('s_lshl_b32 s18, s18, %d' % FSH)
        a('s_add_u32 s18, s18, %d' % (WS_FL + FL_FO * FS))
        return o

    def p2_setup_v(self):
        a = self.a
        M = 224
        a('v_and_b32 v2, 31, v0')
        a('v_lshrrev_b32 v3, 5, v0')
        a('v_lshlrev_b32 v3, 2, v3')
        a('v_sub_u32 v2, v2, v3')
        for r in range(16):
            a('v_cmp_le_i32 s[%d:%d], %d, v2' % (MASK0 + 2 * r, MASK0 + 2 * r + 1, (r & 3) + 8 * (r >> 2)))
        a('v_mov_b32 v2, 0xffff')
        a('v_mov_b32 v3, 0xffff0000')
        for p in range(8):
            a('v_cndmask_b32 v%d, 0, v2, s[%d:%d]' % (M + p, MASK0 + 4 * p, MASK0 + 4 * p + 1))
            a('v_cndmask_b32 v8, 0, v3, s[%d:%d]' % (MASK0 + 4 * p + 2, MASK0 + 4 * p + 3))
            a('v_or_b32 v%d, v%d, v8' % (M + p, M + p))
        a('s_bitcmp1_b32 %s, 0' % sHD)
        a('s_cselect_b32 s12, -1, 0')
        a('s_mov_b32 s13, 0')
        a('v_cndmask_b32 v6, -1, 0, s[12:13]')
        a('s_cselect_b32 s13, 0, -1')
        a('s_mov_b32 s12, 0')
        a('v_cndmask_b32 v7, -1, 0, s[12:13]')
        a('s_cselect_b32 s11, 0, %d' % (3 * 512 + 8))
        a('s_mul_i32 s12, %s, %d' % (sW, 3 * 4096))
        a('s_add_u32 s11, s11, s12')
        a('s_add_u32 s11, s11, %d' % (self.KV_LDS + 2048))
        a('v_and_b32 v8, 31, v0')
        a('v_lshlrev_b32 v8, 4, v8')
        a('v_add_u32 v8, s11, v8')
        a('v_lshrrev_b32 v9, 5, v0')
        a('v_lshl_add_u32 v9, v9, 12, v8')
        a('v_mov_b32 v10, 0x3f80')
        a('v_mov_b32 v11, 0')
        a('s_lshl_b32 s11, %s, 12' % sW)
        a('s_add_u32 s11, s11, %d' % self.KV_LDS)
        a('v_add_u32 v12, s11, %s' % vL16)
        a('v_and_b32 v2, 1, v0')
        a('v_bfe_u32 v3, v0, 4, 1')
        a('v_lshrrev_b32 v13, 5, v0')
        a('v_xor_b32 v13, v13, v2')
        a('v_lshlrev_b32 v13, 6, v13')
        a('v_lshl_add_u32 v13, v3, 7, v13')
        a('v_lshl_add_u32 v13, v2, 9, v13')
        a('v_lshl_add_u32 v13, v3, 10, v13')
        a('v_bfe_u32 v2, v0, 2, 2')
        a('v_lshl_add_u32 v13, v2, 4, v13')
        a('v_bfe_u32 v2, v0, 1, 1')
        a('v_lshl_add_u32 v13, v2, 3, v13')
        a('v_xor_b32 v14, 128, v13')
        a('s_add_u32 s11, s11, 2048')
        a('v_add_u32 v13, s11, v13')
        a('v_add_u32 v14, s11, v14')

    def k_issue(self):
        a = self.a
        for k in range(3):
            a('s_add_u32 m0, s17, %d' % (self.KV_LDS + k * 4096))
            for t in range(2):
                a('buffer_load_dwordx4 %s, %s, s%d offen offset:%d sc1 lds' % (vL16, SRD_WS, 29 + k, t * 1024), tok='k')

    def q_issue(self):
        for t in range(2):
            self.a('buffer_load_dwordx4 %s, %s, %s, s19 offen offset:%d sc1' % (vr(232 + 4 * t), vL16, SRD_WS, t * 1024))

    def v_issue(self):
        a = self.a
        for k in range(3):
            a('s_add_u32 m0, s17, %d' % (self.KV_LDS + k * 4096 + 2048))
            a('s_add_u32 s13, s%d, %d' % (29 + k, 56 * 512))
            for t in range(2):
                a('buffer_load_dwordx4 v%d, %s, s13 offen offset:%d sc1 lds' % (4 + t, SRD_WS, t * 1024), tok='v')

    def p2(self):
        a = self.a
        S, KF, Q, VF, P, O, M = 16, 160, 232, 176, 192, 208, 224
        rpl = self.opt.get('rpl', 3)
        a('v_and_b32 v%d, v%d, v6' % (Q, Q))
        a('v_and_b32 v%d, v%d, v6' % (Q + 1, Q + 1))
        a('v_and_b32 v%d, v%d, v7' % (Q + 6, Q + 6))
        a('v_and_b32 v%d, v%d, v7' % (Q + 7, Q + 7))
        a.wait_tok('k')
        a('s_barrier')
        self.stamp(8)
        order = [0, 8, 1, 2, 3, 4, 5, 6, 7]
        KB = [KF, KF + 8, VF, VF + 8]
        MX = 216

        def kread(i):
            return ['ds_read_b128 %s, v12 offset:%d' % (vr(KB[i % 4] + h * 4), order[i] * 4096 + h * 1024) for h in range(2)]

        def smm(i):
            t = order[i]
            return ['%s %s, %s, %s, %s' % (MFMA, vr(S + 16 * t, 16), vr(KB[i % 4] + h * 4), vr(Q + 4 * h),
                                           vr(S + 16 * t, 16) if h else '0') for h in range(2)]

        def fill(t):
            lab = self.label('fill')
            self.cold += [lab + ':', 's_nop 15'] + ['v_mov_b32 v%d, 0xff800000' % (S + 16 * t + r) for r in range(16)] + ['s_branch %s_r' % lab]
            return ['s_cmp_lt_u32 s24, %d' % (8 - t), 's_cbranch_scc1 %s' % lab, lab + '_r:']

        def mx(t):
            m3 = ['v_max3_f32 v%d, v%d, v%d, v%d' % (MX + k % 4, MX + k % 4, S + 2 * k, S + 2 * k + 1) for k in range(8 * t, 8 * t + 8)]
            if t == 0:
                o = fill(0)
                o += ['v_cndmask_b32 v%d, v%d, v%d, s[%d:%d]' % (S + r, S + r, S + 128 + r, MASK0 + 2 * r, MASK0 + 2 * r + 1) for r in range(16)]
                o += ['v_max_f32 v%d, v%d, v%d' % (MX + k, S + 2 * k, S + 2 * k + 1) for k in range(4)] + m3[4:]
                return o[:15], o[15:]
            la, lb = self.label('mxa'), self.label('mxb')
            c = 's_cmp_lt_u32 s24, %d' % (8 - t)
            return ([c, 's_cbranch_scc1 %s' % la, Pseudo('begin', la)] + m3[:4] + [Pseudo('end'), la + ':'],
                    ['s_cbranch_scc1 %s' % lb, Pseudo('begin', lb)] + m3[4:] + [Pseudo('end'), lb + ':'])

        def fill_rest():
            lab = self.label('fillr')
            o = [lab + ':', 's_nop 15']
            for t in range(1, 8):
                if t > 1:
                    o += ['s_cmp_lt_u32 s24, %d' % (8 - t), 's_cbranch_scc0 %s_r' % lab]
                o += ['v_mov_b32 v%d, 0xff800000' % (S + 16 * t + r) for r in range(16)]
            self.cold += o + ['s_branch %s_r' % lab]
            return ['s_cmp_lt_u32 s24, 7', 's_cbranch_scc1 %s' % lab, lab + '_r:']
        wo = self.wo_rest
        self.emit(kread(0) + kread(1) + kread(2))
        for i in range(9):
            m0_, m1_ = smm(i)
            va, vb = mx(i - 4) if i >= 4 else ([], [])
            sl_ = [wo.pop(0)] if (wo and i < self.opt.get('sw', 0)) else []
            self.emit([m0_] + (kread(i + 3) if i + 3 < 9 else []) + sl_ + va + [m1_] + vb)
        if self.opt.get('ro', 1) == 2:
            self.emit(self.rp_load()[1])
        self.emit(self.poll_loads(self.kflags(2)))
        for t in range(5, 8):
            self.emit(list(mx(t)))
        self.emit(fill_rest())
        CC = S + 128
        a('v_max3_f32 v%d, v%d, v%d, v%d' % (MX, MX, MX + 1, MX + 2))
        a('v_max_f32 v%d, v%d, v%d' % (MX, MX, MX + 3))
        a('v_mov_b32 v%d, v%d' % (MX + 1, MX))
        c = 28 ** -0.5 * 1.4426950408889634
        a('v_mov_b32 v%d, %s' % (CC + 2, f32(c)))
        a('v_permlane32_swap_b32 v%d, v%d' % (MX, MX + 1))
        a('v_max_f32 v%d, v%d, v%d' % (MX, MX, MX + 1))
        a('v_mul_f32 v%d, %s, v%d' % (CC + 4, f32(-c), MX))
        self.stamp(9)
        VA = 184

        def vread(t):
            return ['ds_read_b64_tr_b16 %s, v%d offset:%d' % (ar(VA + t * 8 + k * 4 + z * 2, 2), 13 + z, t * 4096 + k * 256)
                    for k in range(2) for z in range(2)]

        def pkf(t):
            b = S + 16 * t
            return ['v_pk_fma_f32 %s, %s, %s, %s op_sel_hi:[1,0,0]' % (vr(b + 2 * p, 2), vr(b + 2 * p, 2), vr(CC + 2, 2), vr(CC + 4, 2))
                    for p in range(8)]

        def exps(t):
            return ['v_exp_f32 v%d, v%d' % (S + 16 * t + r, S + 16 * t + r) for r in range(16)]

        def cvt(t, pb):
            b = S + 16 * t
            return ['v_cvt_pk_bf16_f32 v%d, v%d, v%d' % (pb + p, b + 2 * p, b + 2 * p + 1) for p in range(8)]
        first = [True]

        def pv(t, pb):
            o = []
            for k in range(2):
                o.append('%s %s, %s, %s, %s' % (MFMA, vr(O, 16), ar(VA + t * 8 + k * 4), vr(pb + 4 * k), '0' if first[0] else vr(O, 16)))
                first[0] = False
            return o
        PB = lambda t: P if t == 0 else S + 16 * t
        vr_all = [x for t in order for x in vread(t)]
        vc, vb = self.opt.get('vc', 0), self.opt.get('vb', 3)
        nb = self.opt.get('nb', 4)
        pvq = [(0, P), (8, P + 8)] + [(t, PB(t)) for t in range(1, 8)]
        self.emit(pkf(0))
        for t in range(8):
            if t == vc:
                self.poll_check(self.kflags(2))
                self.v_issue()
                self.p4_wsetup()
                fg, fd = self.fg_items()
                self.emit(self.poll_loads(fd))
                if self.opt.get('pd', 0):
                    self.emit(self.prewrite_data(M))
                self.stamp(41)
            if t == vc + 2:
                self.poll_check(fd)
            side = []
            if t >= 1:
                side += cvt(t - 1, PB(t - 1))
                if t == 1:
                    for p in range(8):
                        side.append('v_and_b32 v%d, v%d, v%d' % (P + 8 + p, P + p, M + p))
                        side.append('v_bfi_b32 v%d, v%d, 0, v%d' % (P + p, M + p, P + p))
            if t == vb:
                a.wait_tok('v')
                a('ds_write_b64 v9, v[10:11]')
                a('ds_write_b64 v8, v[10:11] offset:8192')
                a('s_waitcnt lgkmcnt(0)')
                a('s_barrier')
                self.stamp(45)
            if vb <= t < vb + 3:
                side = vr_all[12 * (t - vb):12 * (t - vb) + 12] + side
            pk_ = pkf(t + 1) if t < 7 else []
            mm = []
            if t > vb:
                for _ in range(self.opt.get('npv', 2)):
                    if pvq and pvq[0][0] % 8 < t:
                        mm += pv(*pvq.pop(0))
            ex = exps(t)
            blk = []
            pre = pk_ + side
            n1_ = 16 - 3 * len(mm) if mm else 16
            for r in range(n1_):
                blk.append(ex[r])
                blk += pre[len(pre) * r // n1_:len(pre) * (r + 1) // n1_]
            for k, m_ in enumerate(mm):
                blk += [m_] + ex[n1_ + 3 * k:n1_ + 3 * k + 3]
            if t == vb:
                blk = [x for x in self.capture(self.rp_frag)] + blk
                st_ = self.capture(self.rp_store)
                mm_ = self.capture(self.rp_mm)
                blk = sprinkle(blk, [[mm_[u], st_[u]] for u in range(4)], 0.7, 1.0)
            if t == vb + 1:
                blk = blk[:12] + [st_[4:]] + blk[12:]
            src = wo if wo else (self.wd if t >= vc + 2 else [])
            take_ = src[:nb] if vc <= t < self.opt.get('tb', 7) else []
            del src[:len(take_)]
            self.emit(sprinkle(blk, take_, 0.1, 0.95))
            if self.opt.get('bs'):
                self.stamp(50 + t)
        self.fg = fg
        assert not wo
        last = cvt(7, PB(7))
        rest = [m_ for x in pvq for m_ in pv(*x)]
        self.emit(sprinkle(last, [[m_] for m_ in rest[:-2]], 0.0, 1.0) + rest[-2:])
        a.wait_tok('wo')
        a('s_barrier')
        self.stamp(10)
        a('v_cndmask_b32 v2, v%d, v%d, s[26:27]' % (O + 12, O))
        a('v_mov_b32 v3, v2')
        a('v_permlane32_swap_b32 v2, v3')
        a('v_cndmask_b32 v2, v3, v2, s[26:27]')
        a('v_rcp_f32 v2, v2')
        a('s_lshl_b32 s16, %s, 2' % sR)
        a('s_add_u32 s16, s16, %s' % sW)
        a('s_lshl_b32 s16, s16, 4')
        a('s_add_u32 s16, s16, %s' % sHD)
        a('s_lshl_b32 s11, s16, 11')
        a('s_add_u32 s11, s11, %d' % WS_O)
        for p in range(8):
            a('v_pk_mul_f32 %s, %s, v[2:3] op_sel_hi:[1,0]' % (vr(O + 2 * p, 2), vr(O + 2 * p, 2)))
        for p in range(8):
            a('v_cvt_pk_bf16_f32 v%d, v%d, v%d' % (P + p, O + 2 * p, O + 2 * p + 1))
        a('v_and_b32 v%d, v%d, v6' % (P, P))
        a('v_and_b32 v%d, v%d, v6' % (P + 1, P + 1))
        a('v_and_b32 v%d, v%d, v7' % (P + 6, P + 6))
        a('v_and_b32 v%d, v%d, v7' % (P + 7, P + 7))
        for t in range(2):
            a('buffer_store_dwordx4 %s, %s, %s, s11 offen offset:%d sc1' % (vr(P + 4 * t), vL16, SRD_WS, t * 1024), tok='o')

    WO_A = 112
    HRES = 240

    WO_LDS = 0

    def wo_bulk(self):
        g0 = ['s_lshl_b32 %s, %s, 14' % (sBK2, sW), 's_lshl_b32 %s, %s, 16' % (sBK, sN), 's_add_u32 %s, %s, %s' % (sBK, sBK, sBK2),
              's_add_u32 %s, %s, %d' % (sBK, sBK, WS_WO), 's_cmp_ge_u32 %s, 7' % sN, 's_cselect_b32 %s, %d, %s' % (sBK, OOB, sBK)]
        out = []
        for i in range(16):
            g = list(g0) if i == 0 else (['s_add_u32 %s, %s, 4096' % (sBK, sBK)] if i % 4 == 0 else [])
            if i % 4 == 0:
                g.append('s_add_u32 m0, %s, %d' % (sBK2, self.WO_LDS + i * 1024))
            out.append(g + [('buffer_load_dwordx4 %s, %s, %s offen offset:%d sc1 lds' % (vL16, SRD_WS, sBK, (i % 4) * 1024), 'wo')])
        return out

    def wo_read(self):
        a = self.a
        a('s_lshr_b32 s11, %s, 1' % sW)
        a('s_lshl_b32 s11, s11, 15')
        a('s_add_u32 s11, s11, %d' % self.WO_LDS)
        a('v_add_u32 v2, s11, %s' % vXA)
        a('v_add_u32 v3, s11, %s' % vXB)
        for f in range(16):
            for rel in range(2):
                a('ds_read_b128 %s, v%d offset:%d' % (vr(self.WO_A + (f * 2 + rel) * 4), 2 + rel, f * 2048))

    def wd_bulk(self):
        g0 = ['s_mul_i32 %s, %s, %d' % (sBK, sN, 112 * 2048), 's_mul_i32 %s, %s, %d' % (sBK2, sW, 28 * 2048),
              's_add_u32 %s, %s, %s' % (sBK, sBK, sBK2), 's_add_u32 %s, %s, %d' % (sBK, sBK, WS_WD),
              's_cmp_ge_u32 %s, 7' % sN, 's_cselect_b32 %s, %d, %s' % (sBK, OOB, sBK)]
        out = []
        cur = 0
        for slot in range(28):
            f = (slot % 4) * 7 + slot // 4
            for rel in range(2):
                g = list(g0) if (slot == 0 and rel == 0) else []
                if rel == 0 and f != cur:
                    d = (f - cur) * 2048
                    g.append('s_add_u32 %s, %s, %d' % (sBK, sBK, d) if d > 0 else 's_sub_u32 %s, %s, %d' % (sBK, sBK, -d))
                    cur = f
                out.append(g + ['buffer_load_dwordx4 %s, %s, %s, %s offen sc1' % (
                    ar((slot * 2 + rel) * 4), (vXA, vXB)[rel], SRD_WS, sBK)])
        return out

    def gu_bulk(self, tile):
        o = []
        for i in range(7):
            g = []
            if i % 4 == 0:
                g = ['s_add_u32 m0, s31, %d' % ((tile % 5) * SLOT + i * 1024),
                     's_add_u32 %s, s30, %d' % (sBK2, tile * 28672 + i * 1024)]
            o.append(g + [('buffer_load_dwordx4 %s, %s, %s offen offset:%d sc1 lds' % (vL16, SRD_WS, sBK2, (i % 4) * 1024), 'g%d' % tile)])
        return o

    def warm(self):
        return ['s_lshr_b32 s11, s2, 3', 's_and_b32 s11, s11, 3', 's_lshl_b32 s11, s11, 7',
                'v_lshlrev_b32 v15, 9, v0',
                's_mul_i32 s12, %s, %d' % (sJ, 7 * 28672), 's_lshl_b32 s13, %s, 15' % sW, 's_add_u32 s12, s12, s13',
                's_add_u32 s12, s12, s11', 's_add_u32 s12, s12, %d' % WS_WGU,
                'buffer_load_dword v2, v15, %s, s12 offen' % SRD_WS]

    def p4_wsetup(self):
        a = self.a
        a('s_mul_i32 s31, %s, 7168' % sW)
        a('s_mul_i32 s30, %s, %d' % (sJ, 7 * 28672))
        a('s_add_u32 s30, s30, s31')
        a('s_add_u32 s30, s30, %d' % WS_WGU)

    def seq_loads(self, dst, n, sreg):
        o = []
        for i in range(n):
            if i and i % 4 == 0:
                o.append('s_add_u32 %s, %s, 4096' % (sreg, sreg))
            o.append('buffer_load_dwordx4 %s, %s, %s, %s offen offset:%d sc1' % (
                vr(dst + 4 * i), vL16, SRD_WS, sreg, (i % 4) * 1024))
        return o

    def res_voffset(self, dst, sreg):
        a = self.a
        a('v_and_b32 %s, 31, v0' % dst)
        a('v_mul_u32_u24 %s, 896, %s' % (dst, dst))
        a('v_lshrrev_b32 v2, 5, v0')
        a('v_lshl_add_u32 %s, v2, 4, %s' % (dst, dst))
        a('s_lshl_b32 %s, %s, 1' % (sreg, sM))
        a('s_and_b32 s12, %s, 1' % sW)
        a('s_add_u32 %s, %s, s12' % (sreg, sreg))
        a('s_mul_i32 %s, %s, %d' % (sreg, sreg, 32 * 896))
        a('s_lshl_b32 s12, %s, 7' % sN)
        a('s_add_u32 %s, %s, s12' % (sreg, sreg))
        a('s_lshr_b32 s12, %s, 1' % sW)
        a('s_lshl_b32 s12, s12, 6')
        a('s_add_u32 %s, %s, s12' % (sreg, sreg))

    def unpack8(self, dst, src):
        for p in range(8):
            self.a('v_lshlrev_b32 v%d, 16, v%d' % (dst + 2 * p, src + p))
            self.a('v_and_b32 v%d, 0xffff0000, v%d' % (dst + 2 * p + 1, src + p))

    P3_ACC, P3_OF = 16, 48

    def p3_setup(self):
        a = self.a
        EX = XTRA + 1024
        self.unpack8(self.P3_ACC, self.HRES)
        a('s_lshl_b32 s13, %s, 1' % sM)
        a('s_and_b32 s12, %s, 1' % sW)
        a('s_add_u32 s13, s13, s12')
        a('s_lshr_b32 s12, %s, 1' % sW)
        a('s_lshl_b32 s18, s13, 1')
        a('s_add_u32 s18, s18, s12')
        a('s_lshl_b32 s20, s18, %d' % (FSH + 3))
        a('s_add_u32 s20, s20, %d' % (WS_FL + FL_F2 * FS))
        a('s_lshl_b32 s18, s18, 14')
        a('s_add_u32 s18, s18, %d' % WS_O)
        a('s_xor_b32 s11, %s, 2' % sW)
        a('s_lshl_b32 s11, s11, 12')
        a('s_add_u32 s11, s11, %d' % EX)
        a('v_add_u32 v4, s11, %s' % vL16)
        a('s_lshl_b32 s11, %s, 12' % sW)
        a('s_add_u32 s11, s11, %d' % EX)
        a('v_add_u32 v5, s11, %s' % vL16)
        a('s_lshl_b32 s14, %s, 1' % sN)
        a('s_add_u32 s14, s14, s12')
        a('s_mul_i32 s19, s13, 28672')
        a('s_lshl_b32 s12, s14, 11')
        a('s_add_u32 s19, s19, s12')
        a('s_add_u32 s19, s19, %d' % WS_HB)
        a('s_lshl_b32 s17, s13, 4')
        a('s_add_u32 s17, s17, s14')
        a('s_lshl_b32 s29, s17, 8')
        a('s_add_u32 s29, s29, %d' % WS_ST)
        a('v_mov_b32 v6, 0x3f803f80')
        a('v_lshlrev_b32 v7, 3, v0')

    def p3(self):
        a = self.a
        ACC, OF = self.P3_ACC, self.P3_OF
        self.poll([('s20', k) for k in range(8)])
        self.stamp(12)
        self.emit(self.seq_loads(OF, 16, 's18'))
        for f in range(16):
            for rel in (1, 0):
                a('%s %s, %s, %s, %s' % (MFMA, vr(ACC + 16 * rel, 16), vr(self.WO_A + (f * 2 + rel) * 4), vr(OF + 4 * f),
                                         '0' if (rel == 1 and f == 0) else vr(ACC + 16 * rel, 16)))
        self.stamp(13)
        for k in range(4):
            a('ds_write_b128 v4, %s offset:%d' % (vr(ACC + 16 + 4 * k), k * 1024))
        a('s_waitcnt lgkmcnt(0)')
        a('s_barrier')
        for k in range(4):
            a('ds_read_b128 %s, v5 offset:%d' % (vr(OF + 4 * k), k * 1024))
        H = self.HRES
        for p in range(8):
            a('v_pk_add_f32 %s, %s, %s' % (vr(ACC + 2 * p, 2), vr(ACC + 2 * p, 2), vr(OF + 2 * p, 2)))
            a('v_cvt_pk_bf16_f32 v%d, v%d, v%d' % (H + p, ACC + 2 * p, ACC + 2 * p + 1))
            if p % 4 == 3:
                a('buffer_store_dwordx4 %s, %s, %s, s19 offen offset:%d sc1' % (vr(H + p - 3), vL16, SRD_WS, (p // 4) * 1024), tok='h')
        for p in range(8):
            a('v_dot2_f32_bf16 v8, v%d, v6, %s' % (H + p, 'v8' if p else '0'))
            a('v_dot2_f32_bf16 v9, v%d, v%d, %s' % (H + p, H + p, 'v9' if p else '0'))
        a('v_mov_b32 v10, v8')
        a('v_mov_b32 v11, v9')
        a('v_permlane32_swap_b32 v8, v10')
        a('v_permlane32_swap_b32 v9, v11')
        a('v_add_f32 v8, v8, v10')
        a('v_add_f32 v9, v9, v11')
        a('s_mov_b32 exec_hi, 0')
        a('buffer_store_dwordx2 v[8:9], v7, %s, s29 offen sc1' % SRD_WS, tok='h')
        a('s_mov_b64 exec, -1')

    def p4_cs_issue(self):
        a = self.a
        a('s_lshl_b32 s11, %s, 1' % sW)
        a('v_lshrrev_b32 v112, 5, v0')
        a('v_add_u32 v112, s11, v112')
        a('v_min_u32 v113, 6, v112')
        a('v_mul_u32_u24 v113, 896, v113')
        a('v_and_b32 v114, 31, v0')
        a('v_lshl_add_u32 v113, v114, 2, v113')
        a('s_mul_i32 s11, %s, %d' % (sJ, 7 * 896))
        a('s_add_u32 s11, s11, %d' % WS_CS)
        for k in range(7):
            a('buffer_load_dword v%d, v113, %s, s11 offen offset:%d sc1' % (116 + k, SRD_WS, 128 * k))
        a('v_lshlrev_b32 v112, 9, v112')
        a('v_lshl_add_u32 v112, v114, 4, v112')
        a('v_add_u32 v112, %d, v112' % self.CF_LDS)

    CF_LDS = XTRA

    def split_bf16(self, x, hi, lo):
        raise NotImplementedError

    def p4_cs_finish(self):
        a = self.a
        for k in range(1, 7):
            a('v_add_f32 v116, v116, v%d' % (116 + k))
        a('v_mov_b32 v122, 0')
        a('v_mov_b32 v123, 0')
        a('v_cvt_pk_bf16_f32 v121, v116, 0')
        a('v_lshlrev_b32 v117, 16, v121')
        a('v_sub_f32 v117, v116, v117')
        a('v_cvt_pk_bf16_f32 v120, v116, v117')
        a('ds_write_b128 v112, v[120:123]')

    def fg_items(self):
        a = self.a
        a('s_mul_i32 s23, %s, 7' % sJ)
        a('s_lshr_b32 s23, s23, 2')
        a('s_min_u32 s23, s23, 25')
        a('s_mul_i32 s23, s23, 7')
        a('s_mul_i32 s11, %s, 7' % sW)
        a('s_lshr_b32 s11, s11, 2')
        a('s_min_u32 s11, s11, 4')
        a('s_add_u32 s23, s23, s11')
        a('s_lshl_b32 s23, s23, %d' % FSH)
        a('s_add_u32 s23, s23, %d' % (WS_FL + FL_FG * FS))
        a('s_mul_i32 s22, %s, %d' % (sW, 7 * FS))
        a('s_add_u32 s22, s22, %d' % (WS_FL + FL_FD * FS))
        return [('s23', 7 * g + k) for g in range(3) for k in range(3)], [('s22', k) for k in range(7)]

    def p4_setup(self):
        a = self.a
        a('s_lshl_b32 s13, %s, 2' % sR4)
        a('s_add_u32 s13, s13, %s' % sW)
        a('s_mul_i32 s18, s13, 28672')
        a('s_add_u32 s18, s18, %d' % WS_HB)
        a('s_lshl_b32 s20, s13, %d' % (FSH + 6))
        a('s_add_u32 s20, s20, %d' % (WS_FL + FL_F3 * FS))
        a('v_and_b32 v2, 31, v0')
        a('v_lshlrev_b32 v2, 3, v2')
        a('v_lshrrev_b32 v3, 5, v0')
        a('v_mul_u32_u24 v4, %d, v3' % (7 * 256))
        a('v_add_u32 v14, v2, v4')
        a('s_lshl_b32 s19, s13, 12')
        a('s_add_u32 s19, s19, %d' % WS_ST)
        a('v_add_u32 v5, %d, %s' % (2 * SLOT, vL16))
        a('v_add_u32 v6, %d, %s' % (4 * SLOT, vL16))
        a('v_and_b32 v7, 0x1f0, %s' % vL16)
        a('v_add_u32 v7, %d, v7' % self.CF_LDS)
        a('s_mul_i32 s29, s13, %d' % (112 * 1024))
        a('s_mul_i32 s12, %s, %d' % (sJ, 7 * 1024))
        a('s_add_u32 s29, s29, s12')
        a('s_add_u32 s29, s29, %d' % WS_HH)
        a('s_add_u32 s28, s29, 4096')
        a('s_lshl_b32 s27, s13, 4')
        a('s_add_u32 s27, s27, %s' % sJ)

    def f1_set(self, part):
        return ['s_mov_b64 exec, 0xffff',
                'buffer_store_dwordx4 %s, %s, %s, s16 offen offset:%d sc1' % (vr(vFL), vL16, SRD_WS, part * FS),
                's_mov_b64 exec, -1']

    def f4_set(self, stage):
        return ['s_mov_b32 s11, s27'] + self.flag_set('s11', FL_F4 + stage, 2)

    def p4(self, wd_rest):
        a = self.a
        T0 = self.opt['T0']
        HF, ACC, WF, CSR, TM, PK = 16, 128, 192, 208, 224, 232
        NACC = 5
        MB = CSR
        self.poll([('s20', 4 * k) for k in range(14)])
        self.stamp(16)
        hl = self.seq_loads(HF, 28, 's18')
        for k in range(7):
            hl.append('buffer_load_dwordx2 %s, v14, %s, s19 offen offset:%d sc1' % (vr(CSR + 2 * k, 2), SRD_WS, 256 * k))
        base = [vL16, 'v5', 'v6']
        cnt = [0]

        def wread(tile, k):
            s = tile % 5
            b = 224 + (cnt[0] % 8) * 4
            cnt[0] += 1
            if k == 28:
                return b, ('ds_read_b128 %s, v7 offset:%d' % (ar(b), tile * 512), 'wr%d' % cnt[0])
            return b, ('ds_read_b128 %s, %s offset:%d' % (ar(b), base[s >> 1], (s & 1) * SLOT + k * 1024), 'wr%d' % cnt[0])

        C1 = -2.0 * 1.4426950408889634 * 0.7978845608028654
        st = []
        for k in range(1, 7):
            st.append('v_add_f32 v%d, v%d, v%d' % (CSR, CSR, CSR + 2 * k))
            st.append('v_add_f32 v%d, v%d, v%d' % (CSR + 1, CSR + 1, CSR + 2 * k + 1))
        st += ['v_mov_b32 v12, v%d' % CSR, 'v_mov_b32 v13, v%d' % (CSR + 1),
               'v_permlane32_swap_b32 v%d, v12' % CSR, 'v_permlane32_swap_b32 v%d, v13' % (CSR + 1),
               'v_add_f32 v12, v12, v%d' % CSR, 'v_add_f32 v13, v13, v%d' % (CSR + 1),
               'v_mul_f32 v8, %s, v12' % f32(-1.0 / 448), 'v_mul_f32 v13, %s, v13' % f32(1.0 / 448),
               'v_fma_f32 v13, -v8, v8, v13', 'v_max_f32 v13, 0, v13', 'v_add_f32 v11, %s, v13' % f32(1e-5),
               'v_rsq_f32 v12, v11', 'v_mul_f32 v9, %s, v12' % f32(C1), 'v_mul_f32 v13, v12, v12',
               'v_mul_f32 v10, v9, v13', 'v_mul_f32 v10, %s, v10' % f32(0.044715),
               's_mov_b32 s12, -1', 's_mov_b32 s13, 0', 'v_cndmask_b32 v8, 0, v8, s[12:13]',
               'v_mov_b32 v%d, 0' % (MB + 2), 'v_mov_b32 v%d, 0' % (MB + 3),
               'v_cvt_pk_bf16_f32 v%d, v8, v8' % MB, 'v_lshlrev_b32 v12, 16, v%d' % MB,
               'v_sub_f32 v12, v8, v12', 'v_cvt_pk_bf16_f32 v%d, v12, 0' % (MB + 1)]

        def csread(tile):
            return ['ds_read_b128 %s, v7 offset:%d' % (vr(CSR + 4 * k), tile * 128 + 32 * k) for k in range(4)]

        def gelu(tile):
            b = ACC + 16 * (tile % NACC)
            pk = PK + (tile % 2) * 4
            o = []
            E = range(8)
            o += ['v_mul_f32 v%d, v%d, v%d' % (TM + e, b + e, b + e) for e in E]
            o += ['v_fma_f32 v%d, v%d, v10, v9' % (TM + e, TM + e) for e in E]
            o += ['v_mul_f32 v%d, v%d, v%d' % (TM + e, TM + e, b + e) for e in E]
            for e in E:
                o.append('v_exp_f32 v%d, v%d' % (TM + e, TM + e))
                o.append('v_mul_f32 v%d, v%d, v%d' % (b + e, b + e, b + 8 + e))
            for e in range(11):
                if e < 8:
                    o.append('v_fma_f32 v%d, v%d, v11, v11' % (TM + e, TM + e))
                if e >= 3:
                    o.append('v_rcp_f32 v%d, v%d' % (TM + e - 3, TM + e - 3))
            o += ['v_mul_f32 v%d, v%d, v%d' % (b + e, b + e, TM + e) for e in E]
            o += ['v_cvt_pk_bf16_f32 v%d, v%d, v%d' % (pk + p, b + 2 * p, b + 2 * p + 1) for p in range(4)]
            o.append(('buffer_store_dwordx4 %s, %s, %s, s%d offen offset:%d sc1' % (
                vr(pk), vL16, SRD_WS, 29 if tile < 4 else 28, (tile % 4) * 1024), 'hh%d' % tile))
            return o

        def gelu_pk(tile, csr):
            b = ACC + 16 * (tile % NACC)
            pk = PK + (tile % 2) * 4
            P2 = lambda r: vr(r, 2)
            o = []
            E = (0, 2, 4, 6)
            o += ['v_pk_mul_f32 %s, %s, %s' % (P2(csr + e), P2(b + e), P2(b + e)) for e in E]
            o += ['v_pk_fma_f32 %s, %s, v[10:11], v[8:9] op_sel:[0,0,1] op_sel_hi:[1,0,1]' % (P2(csr + e), P2(csr + e)) for e in E]
            o += ['v_pk_mul_f32 %s, %s, %s' % (P2(csr + e), P2(csr + e), P2(b + e)) for e in E]
            for e in E:
                o += ['v_exp_f32 v%d, v%d' % (csr + e, csr + e), 'v_exp_f32 v%d, v%d' % (csr + e + 1, csr + e + 1)]
            o += ['v_pk_fma_f32 %s, %s, v[10:11], v[10:11] op_sel:[0,1,1] op_sel_hi:[1,1,1]' % (P2(csr + e), P2(csr + e)) for e in E]
            for e in E:
                o += ['v_rcp_f32 v%d, v%d' % (csr + e, csr + e),
                      'v_pk_mul_f32 %s, %s, %s' % (P2(b + e), P2(b + e), P2(b + 8 + e)),
                      'v_rcp_f32 v%d, v%d' % (csr + e + 1, csr + e + 1)]
            o += ['v_pk_mul_f32 %s, %s, %s' % (P2(b + e), P2(b + e), P2(csr + e)) for e in E]
            o += ['v_cvt_pk_bf16_f32 v%d, v%d, v%d' % (pk + e // 2, b + e, b + e + 1) for e in E]
            o.append(('buffer_store_dwordx4 %s, %s, %s, s%d offen offset:%d sc1' % (
                vr(pk), vL16, SRD_WS, 29 if tile < 4 else 28, (tile % 4) * 1024), 'hh%d' % tile))
            return o
        nup = 15
        self.emit(hl[:nup])
        for t in range(3):
            a.wait_tok('g%d' % t)
        a('s_waitcnt lgkmcnt(0)')
        a('s_barrier')
        self.stamp(40)
        k3 = self.opt.get('k3', 10)
        seq = []
        done3 = 0
        for k in range(28):
            seq += [(t, k) for t in range(3)]
            if k >= k3:
                tgt = 28 * (k - k3 + 1) // (28 - k3)
                seq += [(3, kk) for kk in range(done3, tgt)]
                assert tgt <= k + 1
                done3 = tgt
        seq += [(t, 28) for t in range(4)]
        seq += [(t, k) for t in range(4, 7) for k in range(29)]
        rd = [wread(t, k) for t, k in seq]
        D, WE = 7, self.opt.get('we', 2)
        presync = {(t, 0): [Pseudo('wait_tok', 'g%d' % t)] + (['s_waitcnt lgkmcnt(0)'] if t == 4 else []) + ['s_barrier'] for t in range(3, 7)}
        self.emit([rd[i][1] for i in range(D)])
        gaps = []
        for i, (t, k) in enumerate(seq):
            acc = vr(ACC + 16 * (t % NACC), 16)
            g = ['%s %s, %s, %s, %s' % (MFMA, acc, ar(rd[i][0]), vr(HF + 4 * k if k < 28 else MB), acc if k else '0')]
            if i + D < len(seq):
                g.append([presync.get(seq[i + D], []), rd[i + D][1]])
            else:
                g.append([])
            if (i + 1) % WE == 0 and i + WE < len(seq):
                g.append(Pseudo('wait_tok', rd[i + WE][1][1]))
            gaps.append(g)
        n1 = 116
        isg = lambda g, t: isinstance(g[-1], tuple) and g[-1][1] == 'g%d' % t
        g3 = [g for g in wd_rest if isg(g, 3)]
        g4 = [g for g in wd_rest if isg(g, 4)]
        wdr = wd_rest[len(g3) + len(g4):]
        nw1 = self.opt.get('nw1', 2)
        hg = []
        for x in hl[nup:]:
            if hg and isinstance(hg[-1][-1], str) and hg[-1][-1].startswith('s_add'):
                hg[-1].append(x)
            else:
                hg.append([x])
        side = g3 + hg + g4 + wdr[:nw1]
        w1 = gaps[:n1]
        sp = self.opt.get('sp', 2)
        for i, x in enumerate(side):
            p_ = i * sp if i >= len(g3) else i
            p_ -= len(g3) * (sp - 1) if i >= len(g3) else 0
            w1[p_] = w1[p_][:2] + [x] + w1[p_][2:]
        assert p_ < n1 - D - 8
        m_ = n1 - 44
        self.emit(w1[:m_])
        self.emit(cweave(w1[m_:n1 - 6], st) + w1[n1 - 6:])
        self.stamp(17)
        bulk = self.gu_bulk(5) + self.gu_bulk(6) + wdr[nw1:]
        l6 = self.opt.get('l6', 6)
        share = [(len(bulk) - l6 + 1) // 2] * 2 + [l6]
        assert share[0] >= 12
        gw = [int(c) for c in str(self.opt.get('gw', 222))]
        self.stg = stg = [int(c) for c in str(self.opt.get('stg', 247))]
        nx, pub = 0, 0
        for t in range(4, 7):
            n = share[t - 4]
            assert nx >= t - 4 and nx + gw[t - 4] <= t
            gl = [x for q in range(nx, nx + gw[t - 4]) for x in gelu(q)]
            if pub < len(stg) and stg[pub] <= nx:
                c_ = len(gl) * self.opt.get('fpos', 80) // 100
                gl = gl[:c_] + [[Pseudo('wait_tok', 'hh%d' % (stg[pub] - 1))] + self.f4_set(pub)] + gl[c_:]
                pub += 1
            nx += gw[t - 4]
            side = sprinkle(gl, bulk[:n], 0.0, 0.9 if t < 6 else 0.5)
            bulk = bulk[n:]
            if t == 6:
                side = side[:20] + self.p5_setup() + side[20:]
            self.emit(cweave(gaps[29 * t:29 * t + 29], side, skip=1))
            self.stamp(15 + t)
        assert not bulk
        a('s_waitcnt lgkmcnt(0)')
        self.tail = [(q, gelu_pk(q, TM)) for q in range(nx, 7)]
        self.pub = pub

    def p5_setup(self):
        o = []
        a = o.append
        a('s_and_b32 s13, %s, 1' % sW)
        a('s_lshl_b32 s14, %s, 1' % sM)
        a('s_lshl_b32 s20, s14, %d' % (FSH + 6))
        a('s_lshl_b32 s15, %s, %d' % (sW, FSH + 4))
        a('s_add_u32 s20, s20, s15')
        a('s_add_u32 s20, s20, %d' % (WS_FL + FL_F4 * FS))
        a('s_add_u32 s13, s14, s13')
        a('s_xor_b32 s12, s13, 1')
        a('s_mul_i32 s14, %s, %d' % (sW, 28 * 1024))
        a('s_add_u32 s14, s14, %d' % WS_HH)
        for ra, r in enumerate(('s13', 's12')):
            a('s_mul_i32 %s, %s, %d' % (r, r, 112 * 1024))
            a('s_add_u32 s%d, %s, s14' % (68 + 8 * ra, r))
            for q in range(1, 7):
                a('s_add_u32 s%d, s%d, %d' % (68 + 8 * ra + q, 68 + 8 * ra, q * 4096))
        return o

    def p5(self):
        a = self.a
        ACC, HHF, NBUF = 128, 16, 24
        fl = lambda st: [('s20', (r * 16 + jj) * 4 + st) for r in range(2) for jj in range(4)]
        seq = [(jj * 7 + tau, ra) for tau in range(7) for jj in range(4) for ra in range(2)]

        def load(i):
            f, ra = seq[i]
            return 'buffer_load_dwordx4 %s, %s, %s, s%d offen offset:%d sc1' % (
                vr(HHF + (i % NBUF) * 4), vL16, SRD_WS, 68 + 8 * ra + f // 4, (f % 4) * 1024)
        stg, pub = self.stg, self.pub
        rest_flags = lambda p: [x for q in range(p, len(stg)) for x in self.f4_set(q)]
        n6 = min(self.opt.get('n6', 12), 8 * stg[0])
        tail = [x for q, g in self.tail for x in g]
        if pub >= 1 and len(self.tail) >= 2:
            self.emit(self.poll_loads(fl(0)))
            self.emit(self.tail[0][1])
            tail = [x for q, g in self.tail[1:] for x in g]
            a('s_waitcnt lgkmcnt(0)')
            for k in range(4):
                p = 's[%d:%d]' % (PT + 2 * k, PT + 2 * k + 1)
                a('s_xor_b64 %s, %s, %s' % (p, p, sEP2))
                if k:
                    a('s_or_b64 s[%d:%d], s[%d:%d], %s' % (PT, PT + 1, PT, PT + 1, p))
            a('s_cbranch_scc1 L_p5slow')
            self.emit(sprinkle(tail, [[load(i)] for i in range(n6)], 0.0, 0.9))
            a('L_p5join:')
            keep = self.a
            self.a = a2 = self.side
            a2('L_p5slow:')
            a2.fresh()
            self.emit(tail)
            a2('s_waitcnt vmcnt(0)')
            self.emit(rest_flags(pub))
            a2('s_add_u32 s20, s20, 128')
            self.emit(self.poll_loads(fl(0)))
            self.poll_check(fl(0), tries=1)
            a2('s_sub_u32 s20, s20, 128')
            self.emit([load(i) for i in range(n6)])
            a2('s_waitcnt vmcnt(0)')
            a2('s_branch L_p5join')
            self.a = keep
        else:
            self.emit(self.poll_loads(fl(0)))
            self.emit(tail)
            self.poll_check(fl(0), onfail=rest_flags(pub))
            self.emit([load(i) for i in range(n6)])
        self.stamp(22)
        while pub < len(stg) - 1:
            a.wait_tok('hh%d' % (stg[pub] - 1))
            self.emit(self.f4_set(pub))
            pub += 1
        self.stamp(23)
        self.unpack8(ACC, self.HRES)
        self.res_voffset('v4', 's18')
        for rel in range(4):
            a('s_xor_b32 s11, %s, %d' % (sW, rel))
            a('s_mul_i32 s11, s11, 12288')
            a('s_add_u32 s11, s11, %d' % (2 * SLOT))
            a('v_add_u32 v%d, s11, %s' % (12 + rel, vL16))
        AHEAD = self.opt.get('ahead', 14)
        cur = min(AHEAD, 8 * stg[0])
        self.emit([load(i) for i in range(n6, cur)])
        a.wait_tok('hh6')
        self.emit(self.f4_set(pub))
        nxt = [max(cur, n6)]
        lead, dly = self.opt.get('lead', 16), self.opt.get('dly', 5)
        bnd = [8 * x for x in stg[:-1]]
        pi, ok = [], []
        for q, b_ in enumerate(bnd):
            p_ = max(b_ - lead, ok[-1] + 1 if ok else 0)
            pi.append(p_)
            ok.append(min(p_ + dly, b_ - 1))

        def issue_upto(n):
            while nxt[0] < min(n, len(seq)):
                i = nxt[0]
                if i in bnd:
                    self.poll_check(fl(bnd.index(i) + 1))
                    self.stamp(47 + bnd.index(i))
                a(load(i))
                nxt[0] += 1
        seen = set([(0, 0)])
        for i, (f, ra) in enumerate(seq):
            assert nxt[0] > i
            if i in pi:
                q = pi.index(i)
                assert q == 0 or nxt[0] > bnd[q - 1], (i, q, nxt[0])
                self.emit(self.poll_loads(fl(q + 1)))
            for rb in range(2):
                acc = vr(ACC + 16 * (ra + 2 * rb), 16)
                a('%s %s, %s, %s, %s' % (MFMA, acc, ar(((i // 2) * 2 + rb) * 4), vr(HHF + (i % NBUF) * 4),
                                         acc if (ra, rb) in seen else '0'))
                seen.add((ra, rb))
            lim = min([b_ for b_, o_ in zip(bnd, ok) if i < o_] + [len(seq)])
            issue_upto(min(i + 1 + AHEAD, lim))
        self.stamp(24)
        for rel in (2, 1, 3):
            for k in range(4):
                a('ds_write_b128 v%d, %s offset:%d' % (12 + rel, vr(ACC + 16 * rel + 4 * k), (rel - 1) * 4096 + k * 1024))
        a('s_waitcnt lgkmcnt(0)')
        a('s_barrier')
        for k in range(12):
            a('ds_read_b128 %s, v12 offset:%d' % (vr(HHF + 4 * k), k * 1024))
        for rel in range(3):
            for p in range(8):
                a('v_pk_add_f32 %s, %s, %s' % (vr(ACC + 2 * p, 2), vr(ACC + 2 * p, 2), vr(HHF + 16 * rel + 2 * p, 2)))
        for p in range(8):
            a('v_cvt_pk_bf16_f32 v%d, v%d, v%d' % (112 + p, ACC + 2 * p, ACC + 2 * p + 1))
            if p % 4 == 3:
                a('buffer_store_dwordx4 %s, v4, %s, s18 offen offset:%d' % (vr(112 + p - 3), SRD_OUT, (p // 4) * 32) + ['', ' sc1', ' nt', ' sc0 sc1'][self.opt.get('ost', 0)])
        self.stamp(25)

    def build(self):
        a = self.a
        nm = NAME + '_kernel'
        a('.globl %s\n.p2align 8\n.type %s,@function\n%s:' % (nm, nm, nm))
        self.prologue()
        a('s_cmp_ge_u32 %s, 7' % sN)
        a('s_cbranch_scc1 L_idle1')
        self.p1()
        self.stamp(5)
        self.poll_check(self.kflags(0), onfail=self.f1_set(2))
        self.k_issue()
        self.stamp(7)
        self.emit(self.p2v_rest)
        self.emit(self.poll_loads(self.qflags() + self.fo_items()))
        a.wait_tok('q2')
        self.emit(self.f1_set(2))
        self.stamp(36)
        self.wd = self.wd_bulk()
        nl = self.opt.get('nl', 0)
        self.wd_late = self.wd[56 - nl:]
        del self.wd[56 - nl:]
        wo = self.wo_bulk()
        w2 = self.opt.get('w2', 8)
        assert w2 % 4 == 0 and w2 >= 4
        self.res_voffset('v15', 's11')
        self.emit(self.rp_load()[0])
        self.poll_check(self.qflags() + self.fo_items())
        a('L_join1:')
        self.q_issue()
        for t in range(2):
            a('buffer_load_dwordx4 %s, v15, %s, s11 offen offset:%d' % (vr(self.HRES + 4 * t), SRD_X, 32 * t))
        a('s_barrier')
        if self.opt.get('ro', 1) == 0:
            self.emit(self.rp_load()[1])
        self.emit(wo[:w2])
        if self.opt.get('ro', 1) == 1:
            self.emit(self.rp_load()[1])
        self.wo_rest = wo[w2:]
        self.rp_prep()
        self.stamp(6)
        self.p2()
        self.wo_read()
        self.p3_setup()
        a.wait_tok('o')
        self.emit(self.flag_set('s16', FL_F2))
        self.stamp(11)
        rpl = self.opt.get('rpl', 3)
        if rpl:
            a('s_waitcnt lgkmcnt(0)')
            a('s_barrier')
            self.fg_set()
        else:
            self.poll(self.fg)
            a('s_barrier')
        self.stamp(37)
        b = [self.opt.get('b%d' % k, d) for k, d in ((2, 12), (4, 6), (5, 15))]
        if rpl or self.opt.get('h1wd'):
            self.emit(self.wd[:b[0]])
            del self.wd[:b[0]]
            b[0] = 0
        Q = [g for t in range(5) for g in self.gu_bulk(t)] + self.wd

        def take(n):
            self.emit(Q[:n])
            del Q[:n]
        take(b[0])
        self.stamp(38)
        a('s_cmp_ge_u32 %s, 7' % sN)
        a('s_cbranch_scc1 L_idle3')
        a.begin_cond('p3')
        self.p3()
        a.end_cond()
        a('L_skip3:')
        self.stamp(14)
        if rpl:
            self.poll(self.fg)
        take(b[1])
        if not rpl:
            self.p4_cs_issue()
        a('s_cmp_ge_u32 %s, 7' % sN)
        a('s_cbranch_scc1 L_skip3b')
        a.begin_cond('p3')
        a.wait_tok('h')
        self.emit(self.flag_set('s17', FL_F3, 2))
        a.end_cond()
        a('L_skip3b:')
        self.stamp(15)
        if rpl:
            a('s_barrier')
            self.p4_cs_issue()
        take(b[2])
        assert 21 <= sum(b) <= 35
        self.p4_cs_finish()
        self.p4_setup()
        self.stamp(39)
        a('s_cmp_ge_u32 %s, 7' % sN)
        a('s_cbranch_scc1 L_idle3b')
        a('L_go4:')
        self.p4(Q)
        a('s_cmp_ge_u32 %s, 7' % sN)
        a('s_cbranch_scc1 L_idle5')
        self.p5()
        self.stamp_out()
        a('L_exit:')
        a('s_endpgm')
        a('L_idle5:')
        a.fresh()
        a('s_nop 15')
        self.emit([x for q, g in self.tail for x in g])
        for q in range(self.pub, len(self.stg)):
            a('s_waitcnt vmcnt(%d)' % (7 - self.stg[q] + q - self.pub if self.stg[q] > self.tail[0][0] else len(self.tail) + q - self.pub))
            self.emit(self.f4_set(q))
        a('s_lshl_b32 s11, s2, 2')
        a('s_add_u32 s11, s11, %s' % sW)
        a('s_cmp_lg_u32 s11, 1020')
        a('s_cbranch_scc1 L_noclr')
        a('v_mov_b32 v2, 0')
        a('s_mov_b64 exec, 1')
        a('global_store_dword v2, v2, %s sc1' % DBGP)
        a('s_mov_b64 exec, -1')
        a('L_noclr:')
        self.stamp_out()
        a('s_endpgm')
        a('L_idle3:')
        a.fresh()
        self.prewait('s20')
        a('s_branch L_skip3')
        a('L_idle3b:')
        a.fresh()
        self.prewait('s20')
        a('s_branch L_go4')
        a('L_idle1:')
        a.fresh()
        a('s_waitcnt lgkmcnt(0)')
        self.idle1()
        a('s_branch L_join1')
        a.items += self.side.items
        for x in self.cold:
            a.raw(x)
        a('L_code_end:')
        a.raw('s_endpgm')
        hdr = open('cdna_kernels/%s.s.ref' % NAME).read().split('; Override launch')[0]
        hdr += '; @launch grid=(256,1,1) block=(256,1,1) lds=%d\n' % LDS_BYTES
        hdr += '.amdgcn_target "amdgcn-amd-amdhsa--gfx950"\n.text\n'
        body = a.finalize()
        tail = ('.section .rodata,"a"\n.p2align 6\n.amdhsa_kernel %s\n  .amdhsa_next_free_vgpr 512\n  .amdhsa_next_free_sgpr 102\n'
                '  .amdhsa_accum_offset 256\n  .amdhsa_group_segment_fixed_size 0\n  .amdhsa_kernarg_size 80\n'
                '  .amdhsa_user_sgpr_count 2\n  .amdhsa_user_sgpr_kernarg_segment_ptr 1\n'
                '  .amdhsa_system_sgpr_workgroup_id_x 1\n.end_amdhsa_kernel\n' % nm)
        return hdr + body + tail


if __name__ == '__main__':
    out = sys.argv[1]
    opt = {}
    for x in sys.argv[2:]:
        if '=' in x:
            k, v = x.split('=')
            opt[k] = int(v) if v.lstrip('-').isdigit() else v
    txt = Gen(stamps='--ts' in sys.argv, **opt).build()
    open(out, 'w').write(txt)
    print('wrote', out, len(txt), 'bytes')
```

```python
import sys, struct
from asmlib import Asm, weave, Pseudo

NAME = 'sequential_preLN__sliding_block__glu_gated_geglu__prompt'

WS_QKV = 0
WS_O = WS_QKV + 64 * 84 * 1024
WS_HB = WS_O + 64 * 32768
WS_ST = WS_HB + 64 * 28672
WS_HH = WS_ST + 64 * 4096
WS_WGU = WS_HH + 64 * 112 * 1024
WS_CS = WS_WGU + 112 * 28672
WS_WD = WS_CS + 112 * 896
WS_WO = WS_WD + 7 * 112 * 2048
WS_CQ = WS_WO + 7 * 32 * 2048
WS_FL = WS_CQ + 8192
FS, FSH = (512, 9) if 'fs=512' in sys.argv else (256, 8)
FL_F1 = 0
FL_F3 = 3
FL_F4 = 4096
FL_F2 = FL_F4 + 4096
FL_FG = FL_F2 + 1024
FL_FO = FL_FG + 224
FL_FD = FL_FO + 32
FL_END = FL_FD + 32
WS_EP = WS_FL + FL_END * FS
WS_TS = 28 << 20
WS_END = WS_TS + 256 * 4 * 256
OOB = 0x7ff00000

LDS_BYTES = 163840
SLOT = 28672
XTRA = 5 * SLOT

sW, sXCD, sI, sM, sN, sR, sHD, sCT = 's3', 's4', 's5', 's6', 's7', 's8', 's9', 's10'
SRD_X, SRD_WS, SRD_OUT = 's[36:39]', 's[40:43]', 's[44:47]'
SRD_WQKV, SRD_D, SRD_G, SRD_U = 's[52:55]', 's[56:59]', 's[60:63]', 's[64:67]'
PT = 52
sBK, sBK2, sR4, sJ = 's48', 's49', 's4', 's5'
sEP, sEP2 = 's50', 's[50:51]'
DBGP, WSP = 's[32:33]', 's[34:35]'
MASK0 = 68
vL16 = 'v1'
vXA, vXB, vFL = 'v248', 'v249', 250


def f32(x):
    return '0x%08x' % struct.unpack('<I', struct.pack('<f', x))[0]


def vr(b, n=4, t='v'):
    return '%s[%d:%d]' % (t, b, b + n - 1)


def ar(b, n=4):
    return vr(b, n, 'a')


MFMA = 'v_mfma_f32_32x32x16_bf16'


def sprinkle(main, groups, lo=0.0, hi=1.0):
    n = len(main)
    a, b = int(n * lo), int(n * hi)
    out, k = [], 0
    for i, x in enumerate(main):
        while k < len(groups) and i >= a + (b - a) * k // max(len(groups), 1):
            out.extend(groups[k]); k += 1
        out.append(x)
    for g in groups[k:]:
        out.extend(g)
    return out


def cost(x):
    if isinstance(x, list):
        return sum(cost(y) for y in x)
    if isinstance(x, tuple):
        x = x[0]
    if not isinstance(x, str):
        return 4.2 if getattr(x, 'what', '') == 'wait_tok' else 0
    m = x.split()[0]
    if m.endswith(':'):
        return 0
    if m.startswith('v_mfma'):
        return 8
    if m in ('v_exp_f32', 'v_rcp_f32', 'v_rsq_f32'):
        return 8.4
    if m.startswith('buffer_'):
        return 10
    if m.startswith('v_pk_') or m.startswith('v_cvt_pk') or m.startswith('v_max3'):
        return 5.2
    if m.startswith('v_fma') and not m.startswith('v_fmac'):
        return 4.6
    return 4.2


def cweave(gaps, side, skip=0):
    n = len(gaps) - skip
    base = [cost(g) for g in gaps]
    tot = sum(base[skip:]) + cost(list(side))
    out, k, acc = [], 0, 0.0
    for i, g in enumerate(gaps):
        if i < skip:
            out += g
            continue
        acc += base[i]
        tgt = tot * (i - skip + 1) / n
        ins = []
        while k < len(side) and (acc + cost(side[k]) / 2 <= tgt or i == len(gaps) - 1):
            acc += cost(side[k]); ins.append(side[k]); k += 1
        out += g[:2] + ins + g[2:]
    return out


class Gen:
    def __init__(self, stamps=False, **opt):
        self.a = Asm()
        self.stamps = stamps
        self.nl = 0
        self.cold = []
        self.side = Asm()
        self.PT = PT
        self.opt = dict(p2map='C', p4map='B', rot=3, T0=3, nA=24, codepf=1, nt=7)
        self.opt.update(opt)

    def label(self, s):
        self.nl += 1
        return 'L_%s_%d' % (s, self.nl)

    def emit(self, lst):
        for x in lst:
            if isinstance(x, tuple):
                self.a(x[0], tok=x[1])
            elif isinstance(x, str):
                self.a(x)
            elif isinstance(x, list):
                self.emit(x)
            else:
                self.a.items.append(x)

    def capture(self, fn, *args):
        keep = self.a
        self.a = Asm()
        fn(*args)
        items = self.a.items
        self.a = keep
        return items

    def stamp(self, k):
        rt = {3: 50, 32: 51, 9: 52, 10: 53, 40: 54, 17: 55, 21: 56, 23: 57, 24: 58}
        if self.stamps and self.opt.get('lite') == 2 and k in rt:
            self.a('s_memtime s[100:101]\ns_waitcnt lgkmcnt(0)\nv_writelane_b32 v254, s100, %d' % k)
            self.a('s_memrealtime s[100:101]\ns_waitcnt lgkmcnt(0)\nv_writelane_b32 v254, s100, %d' % rt[k])
        if self.stamps and (k == 0 or not self.opt.get('lite')):
            self.a('s_memtime s[100:101]\ns_waitcnt lgkmcnt(0)\nv_writelane_b32 v254, s100, %d' % k)

    def stamp_out(self):
        if self.stamps:
            a = self.a
            a('s_waitcnt vmcnt(0)')
            a('s_memrealtime s[100:101]\ns_waitcnt lgkmcnt(0)\nv_writelane_b32 v254, s100, 62')
            a('s_memtime s[100:101]\ns_waitcnt lgkmcnt(0)\nv_writelane_b32 v254, s100, 61')
            a('s_lshl_b32 s11, s2, 2')
            a('s_add_u32 s11, s11, %s' % sW)
            a('s_lshl_b32 s11, s11, 8')
            a('s_add_u32 s11, s11, %d' % WS_TS)
            a('v_lshlrev_b32 v2, 2, v0')
            a('buffer_store_dword v254, v2, %s, s11 offen' % SRD_WS)
            if self.opt.get('dbg'):
                skip = self.label('dbg')
                a('s_memrealtime s[100:101]')
                a('s_lshl_b32 s11, s2, 2')
                a('s_add_u32 s11, s11, %s' % sW)
                a('s_cmp_lg_u32 s11, %d' % (self.opt['dbg'] * 4))
                a('s_cbranch_scc1 %s' % skip)
                a('v_readlane_b32 s12, v254, 0')
                a('v_readlane_b32 s14, v254, 63')
                for k, st in enumerate([1, 2, 4, 6, 7, 8, 9, 11, 12, 15, 16, 17, 22, 25]):
                    a('v_readlane_b32 s13, v254, %d' % st)
                    a('s_nop 3')
                    a('s_sub_u32 s13, s13, s12')
                    a('v_writelane_b32 v3, s13, %d' % (k + 1))
                a('s_waitcnt lgkmcnt(0)')
                a('s_sub_u32 s13, s100, s14')
                a('v_writelane_b32 v3, s13, 15')
                a('s_mov_b64 exec, 0xfffe')
                a('global_store_dword v2, v3, %s' % DBGP)
                a('s_mov_b64 exec, -1')
                a(skip + ':')

    def srd(self, d, p, size):
        a = self.a
        a('s_mov_b32 s%d, s%d' % (d, p))
        a('s_and_b32 s%d, s%d, 0xffff' % (d + 1, p + 1))
        a('s_mov_b32 s%d, %d' % (d + 2, size))
        a('s_mov_b32 s%d, 0x20000' % (d + 3))

    def flag_set(self, sidx, base, sh=0):
        return ['s_lshl_b32 %s, %s, %d' % (sidx, sidx, FSH + sh),
                's_add_u32 %s, %s, %d' % (sidx, sidx, WS_FL + base * FS),
                's_mov_b64 exec, 0xffff' if FS == 256 else 's_mov_b32 exec_hi, 0',
                'buffer_store_dwordx4 %s, %s, %s, %s offen sc1' % (vr(vFL), vL16, SRD_WS, sidx),
                's_mov_b64 exec, -1']

    def poll_loads(self, items, first=True):
        items = list(items)
        if len(items) % 2:
            items.append(items[-1])
        assert len(items) <= 16
        base = WSP if first else 's[14:15]'
        return ['s_load_dword s%d, %s, %s offset:%d' % (self.PT + k, base, so, imm * FS) for k, (so, imm) in enumerate(items)]

    def poll_check(self, items, onfail=None, tries=None):
        a = self.a
        n = (len(items) + 1) // 2
        top, done, slow = self.label('poll'), self.label('pdone'), self.label('pslow')
        a('s_mov_b64 s[14:15], %s' % WSP)
        a('s_mov_b32 s13, %d' % (tries if tries is not None else FS // 64 - 1))
        a(top + ':')
        a('s_waitcnt lgkmcnt(0)')
        for k in range(n):
            p = 's[%d:%d]' % (self.PT + 2 * k, self.PT + 2 * k + 1)
            a('s_xor_b64 %s, %s, %s' % (p, p, sEP2))
            if k:
                a('s_or_b64 s[%d:%d], s[%d:%d], %s' % (self.PT, self.PT + 1, self.PT, self.PT + 1, p))
        a('s_cbranch_scc0 %s' % done)
        if onfail:
            a.raw('s_cmp_lg_u32 s13, %d' % (FS // 64 - 1))
            a.raw('s_cbranch_scc1 %s_nf' % top)
            for x in ['s_waitcnt vmcnt(0)'] + onfail:
                a.raw(x)
            a.raw('%s_nf:' % top)
        a.raw('s_sub_u32 s13, s13, 1')
        a.raw('s_cbranch_scc1 %s' % slow)
        a.raw('s_sleep %d' % self.opt.get('sl1', 4))
        a.raw('s_add_u32 s14, s14, 64')
        a.raw('s_addc_u32 s15, s15, 0')
        for x in self.poll_loads(items, first=False):
            a.raw(x)
        a.raw('s_branch %s' % top)
        a(done + ':')
        o = [slow + ':', 'v_mov_b32 v255, 0']
        for k, (so, imm) in enumerate(items):
            o += ['s_add_u32 s13, %s, %d' % (so, imm * FS), 'v_writelane_b32 v255, s13, %d' % k]
        o += ['s_mov_b64 exec, 0x%x' % ((1 << len(items)) - 1), slow + '_l:',
              'buffer_load_dword v253, v255, %s, 0 offen sc1' % SRD_WS, 's_waitcnt vmcnt(0)',
              'v_cmp_ne_u32 vcc, %s, v253' % sEP, 's_nop 4', 's_cbranch_vccz %s_d' % slow,
              's_sub_u32 %s, %s, 1' % (sCT, sCT), 's_cbranch_scc1 L_exit', 's_sleep %d' % self.opt.get('sl2', 6), 's_branch %s_l' % slow,
              slow + '_d:', 'v_mov_b32 v253, %s' % sEP, 's_mov_b64 exec, -1', 's_nop 4', 's_branch %s' % done]
        self.cold += o

    def poll(self, items):
        self.emit(self.poll_loads(items))
        self.poll_check(items)

    def prewait(self, soff):
        a = self.a
        top, done = self.label('pw'), self.label('pwd')
        a('s_waitcnt vmcnt(0)')
        a(top + ':')
        a.raw('buffer_load_dword v255, off, %s, %s offset:%d sc1' % (SRD_WS, soff, FS - 64))
        a.raw('s_waitcnt vmcnt(0)')
        a.raw('v_cmp_ne_u32 vcc, %s, v255' % sEP)
        a.raw('s_nop 4')
        a.raw('s_cbranch_vccz %s' % done)
        a.raw('s_sub_u32 %s, %s, 1' % (sCT, sCT))
        a.raw('s_cbranch_scc1 L_exit')
        a.raw('s_sleep %d' % self.opt.get('sl3', 8))
        a.raw('s_branch %s' % top)
        a(done + ':')

    def epoch_issue(self):
        self.a('s_load_dword %s, %s, 0x0' % (sEP, DBGP))

    def flag_set_wg(self, sidx, base):
        o = self.flag_set(sidx, base)
        self.emit(o[:2] + ['s_cmp_eq_u32 %s, 0' % sW, 's_cselect_b32 %s, %s, %d' % (sidx, sidx, OOB)] + o[2:])

    def get_epoch(self, issued=False):
        a = self.a
        top, done = self.label('ep'), self.label('epd')
        if not issued:
            self.epoch_issue()
        a('s_waitcnt lgkmcnt(0)')
        a('s_cmp_lg_u32 %s, 0' % sEP)
        a('s_cbranch_scc0 %s' % top)
        a(done + ':')
        self.cold += [top + ':', 'v_mov_b32 v255, 0', top + '_l:', 'global_load_dword v253, v255, %s sc1' % DBGP,
                      's_waitcnt vmcnt(0)', 'v_readfirstlane_b32 %s, v253' % sEP, 's_nop 4', 's_cmp_lg_u32 %s, 0' % sEP,
                      's_cbranch_scc1 %s' % done, 's_sub_u32 %s, %s, 1' % (sCT, sCT), 's_cbranch_scc1 L_exit',
                      's_sleep 4', 's_branch %s_l' % top]
        a('s_mov_b32 s51, s50')
        for k in range(4):
            a('v_mov_b32 v%d, %s' % (vFL + k, sEP))

    def tr_lane_addr(self, dst, pitch, h16, t0, t1):
        a = self.a
        a('v_lshrrev_b32 %s, 5, v0' % t0)
        a('v_lshlrev_b32 %s, 3, %s' % (t0, t0))
        a('v_bfe_u32 %s, v0, 2, 2' % t1)
        a('v_add_u32 %s, %s, %s' % (t0, t0, t1))
        a('v_mul_u32_u24 %s, %d, %s' % (dst, pitch, t0))
        a('v_bfe_u32 %s, v0, 4, 1' % t0)
        a('v_mul_u32_u24 %s, %d, %s' % (t0, h16, t0))
        a('v_add_u32 %s, %s, %s' % (dst, dst, t0))
        a('v_and_b32 %s, 1, v0' % t0)
        a('v_lshl_add_u32 %s, %s, 4, %s' % (dst, t0, dst))
        a('v_bfe_u32 %s, v0, 1, 1' % t0)
        a('v_lshl_add_u32 %s, %s, 3, %s' % (dst, t0, dst))

    def prologue(self):
        a = self.a
        a.fresh()
        a('s_cmp_ge_u32 s2, 256')
        a('s_cbranch_scc1 L_exit')
        if self.stamps:
            a('v_mov_b32 v254, 0')
            a('s_memrealtime s[100:101]\ns_waitcnt lgkmcnt(0)\nv_writelane_b32 v254, s100, 63')
            self.stamp(0)
        a('s_load_dwordx16 s[16:31], s[0:1], 0')
        a('s_load_dwordx4 s[32:35], s[0:1], 64')
        self.code_prefetch(232)
        a('v_lshrrev_b32 v2, 6, v0')
        a('v_and_b32 v0, 63, v0')
        a('v_readfirstlane_b32 %s, v2' % sW)
        a('v_lshlrev_b32 %s, 4, v0' % vL16)
        a('s_and_b32 %s, s2, 7' % sXCD)
        a('s_lshr_b32 %s, s2, 3' % sI)
        a('s_and_b32 s11, %s, 3' % sI)
        a('s_lshl_b32 %s, %s, 2' % (sM, sXCD))
        a('s_add_u32 %s, %s, s11' % (sM, sM))
        a('s_lshr_b32 %s, %s, 2' % (sN, sI))
        a('s_mov_b32 %s, 0x40000' % sCT)

    def roles(self):
        a = self.a
        self.srd(40, 34, WS_END)
        self.srd(44, 30, 2048 * 896)
        a('s_and_b32 s11, %s, 1' % sI)
        a('s_lshl_b32 s12, %s, 1' % sN)
        a('s_add_u32 s12, s12, s11')
        a('s_lshr_b32 s13, %s, 1' % sM)
        if self.opt['p2map'] == 'A':
            a('s_mov_b32 %s, s13' % sR)
            a('s_mov_b32 %s, s12' % sHD)
        else:
            a('s_lshr_b32 %s, %s, 1' % (sR, sI))
            a('s_lshl_b32 %s, %s, 1' % (sHD, sXCD))
            a('s_add_u32 %s, %s, s11' % (sHD, sHD))
        if self.opt['p4map'] == 'A':
            a('s_mov_b32 %s, s13' % sR4)
            a('s_mov_b32 %s, s12' % sJ)
        else:
            a('s_and_b32 s11, %s, 1' % sXCD)
            a('s_lshl_b32 s11, s11, 3')
            a('s_add_u32 s11, s11, %s' % sN)
            a('s_lshr_b32 s12, %s, 1' % sXCD)
            a('s_lshl_b32 s12, s12, 2')
            a('s_and_b32 s13, %s, 3' % sI)
            a('s_add_u32 %s, s12, s13' % sR4)
            a('s_mov_b32 %s, s11' % sJ)
        a('s_lshr_b32 s11, %s, 1' % sW)
        a('s_lshl_b32 s11, s11, 10')
        a('v_xor_b32 %s, s11, %s' % (vXA, vL16))
        a('v_xor_b32 %s, 1024, %s' % (vXB, vXA))

    def code_prefetch(self, dst):
        if not self.opt['codepf']:
            return
        a = self.a
        a('s_getpc_b64 s[12:13]')
        a('L_code_pc:')
        a('s_lshr_b32 s11, s2, 3')
        a('s_lshl_b32 s11, s11, 12')
        a('v_lshl_add_u32 v%d, v0, 4, s11' % dst)
        a('v_min_u32 v%d, L_code_end-L_code_pc-16, v%d' % (dst, dst))
        a('v_mov_b32 v%d, s13' % (dst + 1))
        a('v_add_co_u32 v%d, vcc, s12, v%d' % (dst, dst))
        a('v_addc_co_u32 v%d, vcc, 0, v%d, vcc' % (dst + 1, dst + 1))
        a('global_load_dwordx4 %s, %s, off' % (vr(dst + 2), vr(dst, 2)))

    P1_X = 4 * SLOT
    P1_SL = [0, 1, 2, 3, 0, 1]
    RP_LDS = 3 * SLOT

    def p1_wdma(self, ss):
        g, h = ss // 2, ss % 2
        o = []
        for i in range(7):
            pre = ['s_add_u32 m0, s83, %d' % (self.P1_SL[ss] * SLOT + i * 1024)] if i % 4 == 0 else []
            o.append(pre + [('buffer_load_dwordx4 v%d, %s, s%d offen offset:%d lds' % (180 + g, SRD_WQKV, 68 + 7 * h + i, (i % 4) * 1024), 'w%d' % ss)])
        return o

    def p1(self):
        a = self.a
        XR, ACC, WF, PKR, T = 16, 72, 104, 136, 152
        VX, VX2 = 178, 179
        a('v_lshrrev_b32 v2, 3, v0')
        a('v_and_b32 v3, 7, v0')
        a('v_mul_u32_u24 v%d, 896, v2' % VX)
        a('v_lshl_add_u32 v%d, v3, 4, v%d' % (VX, VX))
        a('v_add_u32 v%d, %d, v%d' % (VX2, 8 * 896, VX))
        a('s_lshl_b32 s11, %s, 6' % sM)
        a('s_lshl_b32 s12, %s, 4' % sW)
        a('s_add_u32 s11, s11, s12')
        a('s_mul_i32 s14, s11, 896')
        a('s_add_u32 s15, %s, %s' % (sXCD if self.opt['rot'] == 3 else '0', sN))
        a('s_sub_u32 s13, s15, 7')
        a('s_cselect_b32 s15, s15, s13')
        a('s_lshl_b32 s15, s15, 7')
        for s in range(7):
            a('s_add_u32 s%d, s14, s15' % (92 + s))
            a('s_mul_i32 s%d, s15, 1344' % (84 + s))
            if s < 6:
                a('s_add_u32 s15, s15, 128')
                a('s_cmp_eq_u32 s15, 896')
                a('s_cselect_b32 s15, 0, s15')

        def wtab(h):
            for i in range(7):
                B = 28 * h + 4 * i
                a('s_add_u32 s%d, s%d, %d' % (68 + 7 * h + i, 84 + (B >> 3), (B & 7) * 8 * 2688 + 4096 - (i % 4) * 1024))
        wtab(0)
        a('s_mul_i32 s83, %s, 7168' % sW)
        a('s_mul_i32 s11, %s, %d' % (sW, 8 * 2688))
        a('s_lshl_b32 s12, %s, 7' % sN)
        a('s_add_u32 s11, s11, s12')
        a('v_bfe_u32 v176, v0, 4, 1')
        a('v_lshlrev_b32 v176, 2, v176')
        a('v_xor_b32 v176, v176, v3')
        a('v_mul_u32_u24 v177, 2688, v2')
        a('v_lshl_add_u32 v176, v176, 4, v177')
        a('v_add_u32 v181, s11, v176')
        a('v_add_u32 v180, 896, v181')
        self.srd(36, 16, 2048 * 896)
        self.stamp(34)
        NX0, NWF = self.opt.get('nx0', 5), self.opt.get('nwf', 0)

        def xload(s):
            return ['buffer_load_dwordx4 %s, v%d, %s, s%d offen%s' % (vr(XR + (s * 2 + q) * 4), VX2 if q else VX, SRD_X, 92 + s, ' nt' if self.opt['nt'] & 4 else '') for q in range(2)]
        for s in range(NX0):
            self.emit(xload(s))
        a('s_sub_u32 s18, s18, 4096')
        a('s_subb_u32 s19, s19, 0')
        self.srd(52, 18, 448 * 2688 + 4096)
        if self.opt.get('aw', 1):
            a('s_lshl_b32 s11, s2, 2')
            a('s_add_u32 s11, s11, %s' % sW)
            a('s_mul_i32 s11, s11, 1344')
            a('s_add_u32 s11, s11, 4096')
            a('v_lshlrev_b32 v190, 7, v0')
            a('s_mov_b64 exec, 0x7ff')
            a('buffer_load_dword v191, v190, %s, s11 offen' % SRD_WQKV)
            a('s_mov_b64 exec, -1')
        wg = self.p1_wdma(0) + self.p1_wdma(1) + self.p1_wdma(2) + self.p1_wdma(3)
        self.emit(wg[:min(NWF, 7)])
        wtab(1)
        self.emit(wg[7:NWF])
        self.stamp(26)
        self.srd(60, 24, 448 * 3584)
        self.srd(64, 26, 448 * 3584)
        self.roles()
        a('v_add_u32 v182, 1792, v181')
        a('v_lshrrev_b32 v10, 4, v0')
        a('v_xor_b32 v10, v3, v10')
        a('v_lshlrev_b32 v11, 7, v2')
        a('s_lshl_b32 s11, %s, 11' % sW)
        a('s_add_u32 s11, s11, %d' % self.P1_X)
        a('v_add_u32 v11, s11, v11')
        a('v_lshl_add_u32 v%d, v10, 4, v11' % T)
        a('v_xor_b32 v%d, 64, v%d' % (T + 1, T))
        a('v_add_u32 v%d, 1024, v%d' % (T + 1, T + 1))
        a('v_and_b32 v14, 31, v0')
        a('v_lshrrev_b32 v15, 5, v0')
        a('v_bfe_u32 v2, v0, 1, 3')
        a('v_xor_b32 v15, v15, v2')
        a('s_and_b32 s11, %s, 1' % sW)
        a('s_lshl_b32 s11, s11, 12')
        a('s_add_u32 s11, s11, %d' % self.P1_X)
        a('v_lshlrev_b32 v14, 7, v14')
        a('v_add_u32 v14, s11, v14')
        for u in range(4):
            a('v_xor_b32 v2, %d, v15' % (2 * u))
            a('v_lshl_add_u32 v%d, v2, 4, v14' % (T + 2 + u))
        self.tr_lane_addr('v14', 128, 32, 'v2', 'v3')
        a('v_bfe_u32 v2, v0, 3, 1')
        a('s_lshr_b32 s11, %s, 1' % sW)
        a('v_xor_b32 v2, s11, v2')
        a('v_lshl_add_u32 v%d, v2, 6, v14' % (T + 6))
        a('v_lshrrev_b32 v2, 5, v0')
        a('v_mul_u32_u24 v2, %d, v2' % (7168 - 1024))
        a('v_add_u32 v%d, v2, v%d' % (T + 6, T + 6))
        a('v_add_u32 v%d, %d, v%d' % (T + 7, 2 * SLOT, T + 6))
        ONE, SU, SQ, RS, NB, TMP = T + 9, ACC, ACC + 4, T + 10, T + 14, T + 18
        a('v_mov_b32 v%d, 0x3f803f80' % ONE)
        a('v_mov_b32 v%d, 0xffff0000' % TMP)
        st = []
        for s in range(7):
            for q in range(2):
                for d in range(4):
                    x = XR + (s * 2 + q) * 4 + d
                    k = q * 2 + (d & 1)
                    first = s == 0 and d < 2
                    st.append('v_dot2_f32_bf16 v%d, v%d, v%d, %s' % (SU + k, x, ONE, '0' if first else 'v%d' % (SU + k)))
                    st.append('v_dot2_f32_bf16 v%d, v%d, v%d, %s' % (SQ + k, x, x, '0' if first else 'v%d' % (SQ + k)))
        red = []
        for q in range(2):
            st.append('v_add_f32 v%d, v%d, v%d' % (SU + 2 * q, SU + 2 * q, SU + 2 * q + 1))
            st.append('v_add_f32 v%d, v%d, v%d' % (SQ + 2 * q, SQ + 2 * q, SQ + 2 * q + 1))
            red += [SU + 2 * q, SQ + 2 * q]
        for dpp in ('quad_perm:[1,0,3,2]', 'quad_perm:[2,3,0,1]', 'row_half_mirror'):
            for r in red:
                st.append('v_add_f32_dpp v%d, v%d, v%d %s row_mask:0xf bank_mask:0xf' % (r, r, r, dpp))
        for q in range(2):
            su, sq = SU + 2 * q, SQ + 2 * q
            st += ['v_mul_f32 v%d, %s, v%d' % (su, f32(1.0 / 448), su),
                   'v_mul_f32 v%d, %s, v%d' % (sq, f32(1.0 / 448), sq),
                   'v_fma_f32 v%d, -v%d, v%d, v%d' % (sq, su, su, sq),
                   'v_max_f32 v%d, 0, v%d' % (sq, sq),
                   'v_add_f32 v%d, %s, v%d' % (sq, f32(1e-5), sq),
                   'v_rsq_f32 v%d, v%d' % (RS + 2 * q, sq),
                   'v_mul_f32_e64 v%d, -v%d, v%d' % (NB + 2 * q, su, RS + 2 * q)]

        def norm(s, pk):
            o = []
            for q in range(2):
                b = XR + (s * 2 + q) * 4
                tb_ = PKR + q * 8
                for d in range(4):
                    o.append('v_lshlrev_b32 v%d, 16, v%d' % (tb_ + 2 * d, b + d))
                    o.append('v_and_b32 v%d, v%d, v%d' % (tb_ + 2 * d + 1, TMP, b + d))
                for d in range(4):
                    t0 = tb_ + 2 * d
                    if pk:
                        o.append('v_pk_fma_f32 %s, %s, %s, %s op_sel_hi:[1,0,0]' % (
                            vr(t0, 2), vr(t0, 2), vr(RS + 2 * q, 2), vr(NB + 2 * q, 2)))
                    else:
                        o.append('v_fma_f32 v%d, v%d, v%d, v%d' % (t0, t0, RS + 2 * q, NB + 2 * q))
                        o.append('v_fma_f32 v%d, v%d, v%d, v%d' % (t0 + 1, t0 + 1, RS + 2 * q, NB + 2 * q))
                for d in range(4):
                    o.append('v_cvt_pk_bf16_f32 v%d, v%d, v%d' % (b + d, tb_ + 2 * d, tb_ + 2 * d + 1))
                if s == 6 and q == 0:
                    o.append('s_barrier')
                o.append('ds_write_b128 v%d, %s offset:%d' % (T + q, vr(b), (s % 6) * 8192))
            return o

        def xread(ks):
            return 'ds_read_b128 %s, v%d offset:%d' % (ar(4 * ks), T + 2 + ks % 4, ((ks // 4) % 6) * 8192)

        cnt = [0]

        def wread(ss, k):
            b = WF + (cnt[0] % 8) * 4
            cnt[0] += 1
            sl = self.P1_SL[ss]
            return b, ['ds_read_b64_tr_b16 %s, v%d offset:%d' % (vr(b + 2 * z, 2), T + 6 + (sl >> 1), (sl & 1) * SLOT + (k & 1) * 14336 + (k >> 1) * 1024 + z * 512)
                       for z in range(2)]

        D = 6

        def store(g):
            so = ['s82', 'vcc_lo', 'vcc_hi'][g]
            o = []
            for h in range(2):
                pk = PKR + (g % 2) * 8 + 4 * h
                for d in range(4):
                    r = ACC + 16 * (g % 2) + 8 * h + 2 * d
                    o.append('v_cvt_pk_bf16_f32 v%d, v%d, v%d' % (pk + d, r, r + 1))
                o.append(('buffer_store_dwordx4 %s, %s, %s, %s offen offset:%d sc1' % (vr(pk), vL16, SRD_WS, so, h * 1024), 'q%d' % g))
            return o

        def sync(ss):
            return [Pseudo('wait_tok', 'w%d' % ss), 's_waitcnt lgkmcnt(0)', 's_barrier']
        a('s_lshl_b32 s13, %s, 1' % sM)
        a('s_and_b32 s12, %s, 1' % sW)
        a('s_add_u32 s13, s13, s12')
        a('s_lshr_b32 s12, %s, 1' % sW)
        a('s_lshl_b32 s11, %s, 1' % sN)
        a('s_add_u32 s12, s12, s11')
        a('s_mul_i32 vcc_lo, s13, %d' % (84 * 1024))
        a('s_lshl_b32 s11, s12, 11')
        a('s_add_u32 vcc_lo, vcc_lo, s11')
        a('s_add_u32 s82, vcc_lo, %d' % (28 * 1024))
        a('s_add_u32 vcc_hi, vcc_lo, %d' % (56 * 1024))
        a('s_lshl_b32 s16, s13, 4')
        a('s_add_u32 s16, s16, s12')
        a('s_lshl_b32 s16, s16, %d' % (FSH + 2))
        a('s_add_u32 s16, s16, %d' % (WS_FL + FL_F1 * FS))
        a('s_mov_b32 %s, s16' % sBK2)
        self.stamp(1)
        for s_ in range(NX0, 7):
            self.emit(xload(s_))
        self.emit(self.p2_setup_s())
        self.p2_setup_v()
        self.emit(self.rp_load()[0])
        if self.opt.get('pw', 3) == 2:
            self.emit(self.prewrite('A', 184))
        k = NWF
        for s in range(7):
            blk = st[16 * s:16 * s + 16]
            self.emit(blk[:9])
            if s in (0, 3, 6):
                self.stamp(42 + s // 3)
            if k + 2 <= self.opt.get('n0', 14):
                self.emit(wg[k] + blk[9:] + wg[k + 1])
                k += 2
            else:
                self.emit(blk[9:])
        n1 = self.opt.get('n1', 20)
        if self.opt.get('pw', 3) == 3:
            self.emit(self.prewrite('A', 184))
        self.emit(sprinkle(st[112:] + norm(0, True) + norm(1, True) + ['s_load_dword %s, %s, 0x0' % (sEP, DBGP)] + [x for c_ in range(2, self.opt.get('nf', 4)) for x in norm(c_, True)], wg[k:n1], 0.3, 1.0))
        self.stamp(2)
        self.emit(sync(0))
        self.get_epoch(issued=True)
        self.stamp(3)
        seq = [(ss, kk) for ss in range(6) for kk in range(14)]

        def rds(i):
            ss, kk = seq[i]
            b, r = wread(ss, kk)
            o = sync(ss) if (kk == 0 and ss) else []
            if ss < 2:
                o.append(xread(14 * ss + kk))
            return b, o + r
        rd = [rds(i) for i in range(len(seq))]
        for i in range(D):
            self.emit(rd[i][1])
        self.stamp(57)
        for ss in range(6):
            g, h = ss // 2, ss % 2
            acc = vr(ACC + 16 * (g % 2), 16)
            A, B = [], []
            for kk in range(14):
                i = 14 * ss + kk
                m_ = '%s %s, %s, %s, %s' % (MFMA, acc, vr(rd[i][0]), ar(4 * (14 * h + kk)), acc if (kk or h) else '0')
                (A if kk <= 14 - D else B).append(m_)
                if i + D < len(seq):
                    (A if kk < 14 - D else B).extend(rd[i + D][1])
            sa, sb = [], []
            if ss == 0:
                sa = sprinkle([x for s in range(self.opt.get('nf', 4), 7) for x in norm(s, self.opt.get('pk0', 0))], wg[n1:], 0.0, 0.9)
            if ss in (2, 4):
                sa = ['s_nop 0'] * 0 + store(ss // 2 - 1)
            fl = lambda gs: [x for g_ in gs for x in g_]
            if ss == 0:
                sb = fl(self.p1_wdma(4)[:4])
            if ss == 1:
                sa = fl(self.p1_wdma(4)[4:])
                sb = fl(self.p1_wdma(5)[:4])
            if ss == 2:
                sa = fl(self.p1_wdma(5)[4:]) + sa
            if ss == 2 and self.opt.get('rpl', 3) == 0:
                sb = self.rp_load()[0]
            if ss == 1 and self.opt.get('pw', 3) == 1:
                sa = sa + self.prewrite('A', 184)
            if ss == 3:
                sa = self.p2_masks()
            if ss == self.opt.get('kf', 3):
                sb = [[], [], [], [[Pseudo('wait_tok', 'q0')] + self.f1_set(0)]]
            A, r1 = weave(A, sa, start=1 if ss in (2, 4) else (2 if (ss == 0 and self.opt.get('nf', 4) == 6) else 0))
            if ss == 5:
                B = B[:2] + ['s_waitcnt lgkmcnt(0)'] + self.poll_loads(self.kflags(0)) + B[2:] + [Pseudo('wait_tok', 'q1')] + self.f1_set(1)
                r2 = []
            else:
                B, r2 = weave(B, sb)
            self.emit(A + r1 + B + r2)
            self.stamp(27 + ss)
        self.emit(store(2))

    def kflags(self, part):
        return [('s%d' % (20 + g), k * 64 + part) for g in range(2) for k in range(3)]

    def qflags(self):
        return [('s22', 1), ('s23', 1)]

    def fo_items(self):
        return [('s18', k) for k in range(2)]

    def rp_load(self):
        o = ['v_lshrrev_b32 v220, 3, v0', 'v_and_b32 v221, 7, v0', 'v_mul_u32_u24 v220, 3584, v220',
             'v_lshl_add_u32 v220, v221, 4, v220', 'v_add_u32 v221, %d, v220' % (8 * 3584 - 1024),
             's_lshl_b32 s25, %s, 6' % sN, 's_lshl_b32 s28, %s, 4' % sW, 's_add_u32 s25, s25, s28', 's_mul_i32 s25, s25, 3584',
             's_lshl_b32 s28, %s, 7' % sM, 's_add_u32 s25, s25, s28',
             ['s_cmp_lt_u32 %s, 28' % sM, 's_cselect_b32 s25, s25, %d' % OOB], 's_lshl_b32 s28, %s, 11' % sW]
        d = []
        for img, srd in enumerate((SRD_G, SRD_U)):
            d.append('s_add_u32 m0, s28, %d' % (self.RP_LDS + img * 8192))
            for z in range(2):
                d.append(('buffer_load_dwordx4 v%d, %s, s25 offen offset:%d%s lds' % (220 + z, srd, z * 1024, ' nt' if self.opt['nt'] & 1 else ''), 'rp'))
        return o, d

    def rp_prep(self):
        a = self.a
        self.tr_lane_addr('v15', 128, 8192, 'v2', 'v3')
        a('s_lshl_b32 s11, %s, 5' % sW)
        a('s_add_u32 s11, s11, %d' % self.RP_LDS)
        a('v_add_u32 v15, s11, v15')
        a('s_lshl_b32 s13, %s, 2' % sM)
        a('s_add_u32 s13, s13, %s' % sW)
        a('s_mul_i32 s0, s13, 28672')
        a('s_lshl_b32 s12, %s, 12' % sN)
        a('s_add_u32 s0, s0, s12')
        a('s_add_u32 s0, s0, %d' % WS_WGU)
        a('s_mul_i32 s1, s13, 896')
        a('s_lshl_b32 s12, %s, 7' % sN)
        a('s_add_u32 s1, s1, s12')
        a('s_add_u32 s1, s1, %d' % WS_CS)
        a('s_lshl_b32 s12, %s, 2' % sN)
        a('s_max_u32 s12, s12, %s' % sM)
        a('s_cmp_lt_u32 s12, 28')
        a('s_cselect_b32 s0, s0, %d' % OOB)
        a('s_cselect_b32 s1, s1, %d' % OOB)

    def rp_frag(self):
        a = self.a
        for u in range(4):
            for z in range(2):
                a('ds_read_b64_tr_b16 %s, v15 offset:%d' % (ar(168 + u * 4 + z * 2, 2), (16 * u + 4 * z) * 128))
        for d in range(4):
            a('v_mov_b32 v%d, 0x3f803f80' % (160 + d))
        a('v_lshlrev_b32 v164, 2, v0')

    def rp_mm(self):
        for u in range(4):
            self.a('%s v[16:31], v[160:163], %s, %s' % (MFMA, ar(168 + u * 4), 'v[16:31]' if u else '0'))

    def rp_store(self):
        a = self.a
        for u in range(4):
            a('buffer_store_dwordx4 %s, %s, %s, s0 offen offset:%d sc1' % (ar(168 + u * 4), vL16, SRD_WS, u * 1024), tok='rs')
        a('s_mov_b32 exec_hi, 0')
        a('buffer_store_dword v16, v164, %s, s1 offen sc1' % SRD_WS, tok='rs')
        a('s_mov_b32 exec_hi, -1')

    def fg_set(self):
        a = self.a
        a('s_mul_i32 s11, %s, 7' % sM)
        a('s_add_u32 s11, s11, %s' % sN)
        a('s_cmp_ge_u32 %s, 7' % sN)
        a('s_cselect_b32 s11, 223, s11')
        self.flag_set_wg('s11', FL_FG)

    def prewrite(self, part, z):
        assert FS == 256
        st = lambda s_: 'buffer_store_dwordx4 %s, %s, %s, %s offen sc1' % (vr(z), vL16, SRD_WS, s_)
        o = ['v_mov_b32 v%d, 0' % (z + k) for k in range(4)]
        if part == 'A':
            return o + [st('s16')]
        o += ['s_lshl_b32 s12, %s, 2' % sR4, 's_add_u32 s12, s12, %s' % sW, 's_lshl_b32 s12, s12, 4', 's_add_u32 s12, s12, %s' % sJ,
              's_lshl_b32 s12, s12, 10', 's_add_u32 s12, s12, %d' % (WS_FL + FL_F4 * FS),
              ['s_mov_b32 exec_hi, 0xffff', st('s12'), 's_mov_b32 exec_hi, -1']]
        o += ['s_lshl_b32 s12, s24, 4', 's_add_u32 s12, s12, %s' % sHD,
              's_lshl_b32 s12, s12, 8', 's_add_u32 s12, s12, %d' % (WS_FL + FL_F2 * FS),
              ['s_mov_b64 exec, 0xffff', st('s12'), 's_mov_b64 exec, -1']]
        return o

    def prewrite_data(self, z):
        st = lambda s_, off: 'buffer_store_dwordx4 %s, %s, %s, %s offen offset:%d sc1' % (vr(z), vL16, SRD_WS, s_, off)
        o = ['s_lshl_b32 s11, s24, 4', 's_add_u32 s11, s11, %s' % sHD, 's_lshl_b32 s11, s11, 11', 's_add_u32 s11, s11, %d' % WS_O,
             st('s11', 0), st('s11', 1024),
             's_lshl_b32 s13, %s, 1' % sM, 's_and_b32 s12, %s, 1' % sW, 's_add_u32 s13, s13, s12', 's_mul_i32 s13, s13, 14',
             's_lshr_b32 s12, %s, 1' % sW, 's_add_u32 s13, s13, s12', 's_lshl_b32 s12, %s, 1' % sN, 's_add_u32 s13, s13, s12',
             's_lshl_b32 s13, s13, 11', 's_add_u32 s13, s13, %d' % WS_HB,
             's_cmp_ge_u32 %s, 7' % sN, 's_cselect_b32 s13, %d, s13' % OOB, st('s13', 0), st('s13', 1024)]
        return o

    def touch(self, v):
        sh = self.opt.get('tsh', 19)
        return ['v_lshlrev_b32 v%d, %d, v0' % (v, sh),
                'buffer_load_dword v%d, v%d, %s, 0 offen offset:2048' % (v + 1, v, SRD_WS),
                'buffer_load_dword v%d, v%d, %s, 0 offen offset:2048' % (v + 1, v, SRD_OUT)]

    def idle1(self):
        a = self.a
        self.srd(36, 16, 2048 * 896)
        self.srd(40, 34, WS_END)
        noep = self.label('noep')
        a('s_lshl_b32 s13, s2, 2')
        a('s_add_u32 s13, s13, %s' % sW)
        a('s_cmp_lg_u32 s13, 1020')
        a('s_cbranch_scc1 %s' % noep)
        a.begin_cond(noep)
        a('s_mov_b32 s13, %d' % WS_EP)
        a('s_load_dword s12, %s, s13 glc' % WSP)
        a('s_add_u32 s12, s12, 1')
        a('s_max_u32 s12, s12, 1')
        a('v_mov_b32 v8, s12')
        a('v_mov_b32 v9, 0')
        a('s_mov_b64 exec, 1')
        a('buffer_store_dword v8, off, %s, s13 sc1' % SRD_WS)
        a('global_store_dword v9, v8, %s sc1' % DBGP)
        a('s_mov_b64 exec, -1')
        a.end_cond()
        a(noep + ':')
        if self.opt.get('j0', 0):
            self.srd(52, 18, 448 * 2688)
            a('s_lshl_b32 s11, %s, 2' % sM)
            a('s_add_u32 s11, s11, %s' % sW)
            a('s_mul_i32 s11, s11, 9408')
            for k in range(10):
                if k and k % 4 == 0:
                    a('s_add_u32 s11, s11, 4096')
                a('buffer_load_dwordx4 v[40:43], %s, %s, s11 offen offset:%d' % (vL16, SRD_WQKV, (k % 4) * 1024))
        a('v_lshrrev_b32 v2, 3, v0')
        a('v_and_b32 v3, 7, v0')
        a('s_mul_i32 s17, %s, 40960' % sW)
        self.srd(60, 24, 448 * 3584)
        self.srd(64, 26, 448 * 3584)
        self.srd(52, 28, 1792 * 896)
        self.srd(56, 20, 448 * 896)
        self.roles()
        if self.opt.get('ti', 0):
            self.emit(self.touch(38))
            a('buffer_load_dword v39, v38, %s, 0 offen' % SRD_G)
            a('buffer_load_dword v39, v38, %s, 0 offen' % SRD_U)
        a('v_mul_u32_u24 v4, 896, v2')
        a('v_lshl_add_u32 v4, v3, 4, v4')
        a('s_and_b32 s12, %s, 3' % sM)
        a('s_mul_i32 s19, s12, 112')
        a('s_lshl_b32 s11, %s, 4' % sW)
        a('s_add_u32 s19, s19, s11')
        a('s_lshr_b32 s11, %s, 1' % sW)
        a('s_lshl_b32 s11, s11, 3')
        a('s_sub_u32 s19, s19, s11')
        a('s_mul_i32 s19, s19, 896')
        a('s_lshr_b32 s13, %s, 2' % sM)
        a('s_lshl_b32 s11, s13, 7')
        a('s_add_u32 s19, s19, s11')
        a('s_lshl_b32 s18, s13, 5')
        a('s_lshl_b32 s11, s12, 3')
        a('s_add_u32 s18, s18, s11')
        a('s_add_u32 s18, s18, %s' % sW)
        a('s_lshl_b32 s18, s18, 11')
        a('s_add_u32 s18, s18, %d' % WS_WO)
        a('s_lshl_b32 s20, %s, 2' % sM)
        a('s_add_u32 s20, s20, %s' % sW)
        a('s_lshl_b32 s21, s20, 11')
        a('s_add_u32 s21, s21, %d' % WS_WD)
        a('s_cmp_lt_u32 %s, 28' % sM)
        a('s_cselect_b32 s19, s19, %d' % OOB)
        a('s_cselect_b32 s18, s18, %d' % OOB)
        a('s_cselect_b32 s21, s21, %d' % OOB)
        for k in range(4):
            a('s_add_u32 m0, s17, %d' % (14336 + k * 1024))
            a('s_add_u32 s11, s19, %d' % (((k >> 1) * 56 + (k & 1) * 8) * 896))
            a('buffer_load_dwordx4 v4, %s, s11 offen%s lds' % (SRD_D, ' nt' if self.opt['nt'] & 2 else ''), tok='j2')
        self.tr_lane_addr('v6', 128, 32, 'v2', 'v3')
        a('v_add_u32 v6, s17, v6')
        self.tr_lane_addr('v7', 896, 32, 'v2', 'v3')
        a('v_add_u32 v7, s17, v7')

        def j3():
            a('s_lshl_b32 s11, %s, 2' % sM)
            a('s_add_u32 s11, s11, %s' % sW)
            a('s_mul_i32 s11, s11, 12544')
            for k in range(13):
                if k and k % 4 == 0:
                    a('s_add_u32 s11, s11, 4096')
                for srd in ((SRD_G, SRD_U) if self.opt.get('j3') in (1, 3) else (SRD_G,)):
                    a('buffer_load_dwordx4 v[40:43], %s, %s, s11 offen offset:%d' % (vL16, srd, (k % 4) * 1024))

        def j4():
            a('s_mul_i32 s22, s20, %d' % (16 * 896))
            for k in range(14):
                if k % 4 == 0:
                    a('s_add_u32 m0, s17, %d' % (18432 + k * 1024))
                    if k:
                        a('s_add_u32 s22, s22, 4096')
                a('buffer_load_dwordx4 %s, %s, s22 offen offset:%d%s lds' % (vL16, SRD_WQKV, (k % 4) * 1024, ' nt' if self.opt['nt'] & 2 else ''), tok='j4')

        def j2p():
            a.wait_tok('j2')
            for k in range(4):
                for z in range(2):
                    a('ds_read_b64_tr_b16 %s, v6 offset:%d' % (vr(24 + k * 4 + z * 2, 2), 14336 + (k >> 1) * 2048 + (k & 1) * 64 + z * 512))
            a('s_add_u32 s19, s18, 8192')
            for k in range(4):
                a('buffer_store_dwordx4 %s, %s, %s, s%d offen offset:%d sc1' % (vr(24 + k * 4), vL16, SRD_WS, 18 + (k >> 1), (k & 1) * 1024), tok='c2')

        def j4p():
            a.wait_tok('j4')
            for ct in range(14):
                for z in range(2):
                    a('ds_read_b64_tr_b16 %s, v110 offset:%d' % (vr(48 + ct * 4 + z * 2, 2), 18432 + ct * 64 + z * 4 * 896))
            for ct in range(14):
                if ct and ct % 2 == 0:
                    a('s_add_u32 s0, s0, %d' % (112 * 2048))
                a('buffer_store_dwordx4 %s, %s, %s, s0 offen offset:%d sc1' % (vr(48 + ct * 4), vL16, SRD_WS, (ct % 2) * 1024), tok='c4')

        def flag(tok, base):
            a.wait_tok(tok)
            a('s_barrier')
            a('s_mov_b32 s11, %s' % sM)
            self.flag_set_wg('s11', base)
        if self.opt.get('j4e', 0):
            j4()
            j2p()
        else:
            j2p()
            j4()
        a('v_mov_b32 v110, v7')
        a('s_mov_b32 s0, s21')
        self.p2_setup_v()
        self.emit(self.p2_masks())
        self.emit(self.p2_setup_s())
        self.res_voffset('v15', 's1')
        self.emit(self.rp_load()[0])
        self.get_epoch()
        flag('c2', FL_FO)
        self.stamp(1)
        if self.opt.get('j3', 0) in (3, 4):
            j3()
        j4p()
        self.stamp(2)
        a('s_lshl_b32 s0, %s, %d' % (sM, FSH + 7))
        a('s_add_u32 s0, s0, %d' % (WS_FL + (FL_F1 + 6 * 4 + self.opt.get('px', 1)) * FS))
        a('s_load_dword s12, %s, s0 offset:128' % WSP)
        flag('c4', FL_FD)
        if self.opt.get('j3', 0) in (1, 2):
            j3()
        self.stamp(3)
        a('s_cmp_eq_u32 s12, %s' % sEP)
        a('s_cbranch_scc1 L_nopw')
        a('s_cmp_lg_u32 %s, 0' % sW)
        a('s_cbranch_scc1 L_nopw')
        self.prewait('s0')
        a('L_nopw:')
        a('s_barrier')
        self.poll(self.kflags(0) + self.qflags())
        self.k_issue()
        a('s_mov_b32 s11, s1')

    KV_LDS = 4 * SLOT

    def p2_setup_s(self):
        o = []
        a = o.append
        a('s_mul_i32 s28, %s, 7' % sHD)
        a('s_lshr_b32 s28, s28, 1')
        a('s_lshl_b32 s11, %s, 2' % sR)
        a('s_add_u32 s12, s11, %s' % sW)
        a('s_mul_i32 s13, %s, 3' % sW)
        a('s_add_u32 s11, s11, s13')
        a('s_sub_i32 s18, s11, 8')
        a('s_max_i32 s13, s18, 0')
        a('s_lshl_b32 s13, s13, %d' % (FSH + 6))
        a('s_add_u32 s13, s13, %d' % (WS_FL + FL_F1 * FS))
        a('s_lshl_b32 s14, s12, %d' % (FSH + 6))
        a('s_add_u32 s14, s14, %d' % (WS_FL + FL_F1 * FS))
        for k, add in enumerate((0, 3)):
            a('s_add_u32 s15, s28, %d' % add)
            a('s_lshr_b32 s15, s15, 2')
            a('s_lshl_b32 s15, s15, %d' % (FSH + 2))
            a('s_add_u32 s%d, s15, s13' % (20 + k))
            a('s_add_u32 s%d, s15, s14' % (22 + k))
        a('s_mov_b32 s24, s12')
        a('s_lshl_b32 s28, s28, 9')
        a('s_mul_i32 s19, s12, %d' % (84 * 1024))
        a('s_add_u32 s19, s19, s28')
        for k in range(3):
            a('s_add_i32 s13, s18, %d' % k)
            a('s_mul_i32 s14, s13, %d' % (84 * 1024))
            a('s_add_u32 s14, s14, s28')
            a('s_add_u32 s14, s14, %d' % (56 * 512))
            a('s_cmp_lt_i32 s13, 0')
            a('s_cselect_b32 s%d, %d, s14' % (29 + k, OOB))
        a('s_mul_i32 s17, %s, %d' % (sW, 3 * 4096))
        a('v_lshrrev_b32 v5, 5, v0')
        a('v_lshlrev_b32 v5, 6, v5')
        a('v_xor_b32 v4, %s, v5' % vL16)
        a('v_xor_b32 v5, 128, v4')
        a('s_bitcmp1_b32 %s, 0' % sHD)
        a('s_cselect_b64 s[26:27], -1, 0')
        a('s_min_u32 s18, %s, 6' % sN)
        a('s_lshl_b32 s18, s18, 2')
        a('s_and_b32 s11, %s, 2' % sW)
        a('s_add_u32 s18, s18, s11')
        a('s_lshl_b32 s18, s18, %d' % FSH)
        a('s_add_u32 s18, s18, %d' % (WS_FL + FL_FO * FS))
        return o

    def p2_masks(self):
        o = ['v_and_b32 v2, 31, v0', 'v_lshrrev_b32 v3, 5, v0', 'v_lshlrev_b32 v3, 2, v3', 'v_sub_u32 v2, v2, v3']
        return o + ['v_cmp_le_i32 s[%d:%d], %d, v2' % (MASK0 + 2 * r, MASK0 + 2 * r + 1, (r & 3) + 8 * (r >> 2)) for r in range(16)]

    def p2_setup_v(self):
        a = self.a
        M = 224
        a('v_and_b32 v2, 31, v0')
        a('v_lshrrev_b32 v3, 5, v0')
        a('v_lshlrev_b32 v3, 2, v3')
        a('v_sub_u32 v2, v3, v2')
        a('s_mov_b32 s11, 0x03020706')
        for p in range(8):
            k0 = ((2 * p) & 3) + 8 * ((2 * p) >> 2)
            a('v_add_u32 v3, %d, v2' % (k0 - 1))
            a('v_add_u32 v8, %d, v2' % k0)
            a('v_perm_b32 v%d, v3, v8, s11' % (M + p))
        a('s_bitcmp1_b32 %s, 0' % sHD)
        a('s_cselect_b32 s12, -1, 0')
        a('s_mov_b32 s13, 0')
        a('v_cndmask_b32 v6, -1, 0, s[12:13]')
        a('s_cselect_b32 s13, 0, -1')
        a('s_mov_b32 s12, 0')
        a('v_cndmask_b32 v7, -1, 0, s[12:13]')
        a('s_cselect_b32 s11, 0, %d' % (3 * 512 + 8))
        a('s_mul_i32 s12, %s, %d' % (sW, 3 * 4096))
        a('s_add_u32 s11, s11, s12')
        a('s_add_u32 s11, s11, %d' % (self.KV_LDS + 2048))
        a('v_and_b32 v8, 31, v0')
        a('v_lshlrev_b32 v8, 4, v8')
        a('v_add_u32 v8, s11, v8')
        a('v_lshrrev_b32 v9, 5, v0')
        a('v_lshl_add_u32 v9, v9, 12, v8')
        a('v_mov_b32 v10, 0x3f80')
        a('v_mov_b32 v11, 0')
        a('s_lshl_b32 s11, %s, 12' % sW)
        a('s_add_u32 s11, s11, %d' % self.KV_LDS)
        a('v_add_u32 v12, s11, %s' % vL16)
        a('v_and_b32 v2, 1, v0')
        a('v_bfe_u32 v3, v0, 4, 1')
        a('v_lshrrev_b32 v13, 5, v0')
        a('v_xor_b32 v13, v13, v2')
        a('v_lshlrev_b32 v13, 6, v13')
        a('v_lshl_add_u32 v13, v3, 7, v13')
        a('v_lshl_add_u32 v13, v2, 9, v13')
        a('v_lshl_add_u32 v13, v3, 10, v13')
        a('v_bfe_u32 v2, v0, 2, 2')
        a('v_lshl_add_u32 v13, v2, 4, v13')
        a('v_bfe_u32 v2, v0, 1, 1')
        a('v_lshl_add_u32 v13, v2, 3, v13')
        a('v_xor_b32 v14, 128, v13')
        a('s_add_u32 s11, s11, 2048')
        a('v_add_u32 v13, s11, v13')
        a('v_add_u32 v14, s11, v14')

    def k_issue(self):
        a = self.a
        for k in range(3):
            a('s_add_u32 m0, s17, %d' % (self.KV_LDS + k * 4096))
            for t in range(2):
                a('buffer_load_dwordx4 %s, %s, s%d offen offset:%d sc1 lds' % (vL16, SRD_WS, 29 + k, t * 1024), tok='k')

    def q_issue(self):
        for t in range(2):
            self.a('buffer_load_dwordx4 %s, %s, %s, s19 offen offset:%d sc1' % (vr(232 + 4 * t), vL16, SRD_WS, t * 1024))

    def v_issue(self):
        a = self.a
        for k in range(3):
            a('s_add_u32 m0, s17, %d' % (self.KV_LDS + k * 4096 + 2048))
            a('s_add_u32 s13, s%d, %d' % (29 + k, 56 * 512))
            for t in range(2):
                a('buffer_load_dwordx4 v%d, %s, s13 offen offset:%d sc1 lds' % (4 + t, SRD_WS, t * 1024), tok='v')

    def p2(self):
        a = self.a
        S, KF, Q, VF, P, O, M = 16, 160, 232, 176, 192, 208, 224
        rpl = self.opt.get('rpl', 3)
        a('v_and_b32 v%d, v%d, v6' % (Q, Q))
        a('v_and_b32 v%d, v%d, v6' % (Q + 1, Q + 1))
        a('v_and_b32 v%d, v%d, v7' % (Q + 6, Q + 6))
        a('v_and_b32 v%d, v%d, v7' % (Q + 7, Q + 7))
        a.wait_tok('k')
        a('s_barrier')
        self.stamp(8)
        order = [0, 8, 1, 2, 3, 4, 5, 6, 7]
        KB = [KF, KF + 8, VF, VF + 8]
        MX = 216

        def kread(i):
            return ['ds_read_b128 %s, v12 offset:%d' % (vr(KB[i % 4] + h * 4), order[i] * 4096 + h * 1024) for h in range(2)]

        def smm(i):
            t = order[i]
            return ['%s %s, %s, %s, %s' % (MFMA, vr(S + 16 * t, 16), vr(KB[i % 4] + h * 4), vr(Q + 4 * h),
                                           vr(S + 16 * t, 16) if h else '0') for h in range(2)]

        def fill(t):
            lab = self.label('fill')
            self.cold += [lab + ':', 's_nop 15'] + ['v_mov_b32 v%d, 0xff800000' % (S + 16 * t + r) for r in range(16)] + ['s_branch %s_r' % lab]
            return ['s_cmp_lt_u32 s24, %d' % (8 - t), 's_cbranch_scc1 %s' % lab, lab + '_r:']

        def mx(t):
            m3 = ['v_max3_f32 v%d, v%d, v%d, v%d' % (MX + k % 4, MX + k % 4, S + 2 * k, S + 2 * k + 1) for k in range(8 * t, 8 * t + 8)]
            if t == 0:
                o = fill(0)
                o += ['v_cndmask_b32 v%d, v%d, v%d, s[%d:%d]' % (S + r, S + r, S + 128 + r, MASK0 + 2 * r, MASK0 + 2 * r + 1) for r in range(16)]
                o += ['v_max_f32 v%d, v%d, v%d' % (MX + k, S + 2 * k, S + 2 * k + 1) for k in range(4)] + m3[4:]
                return o[:15], o[15:]
            la, lb = self.label('mxa'), self.label('mxb')
            c = 's_cmp_lt_u32 s24, %d' % (8 - t)
            return ([c, 's_cbranch_scc1 %s' % la, Pseudo('begin', la)] + m3[:4] + [Pseudo('end'), la + ':'],
                    ['s_cbranch_scc1 %s' % lb, Pseudo('begin', lb)] + m3[4:] + [Pseudo('end'), lb + ':'])

        def fill_rest():
            lab = self.label('fillr')
            o = [lab + ':', 's_nop 15']
            for t in range(1, 8):
                if t > 1:
                    o += ['s_cmp_lt_u32 s24, %d' % (8 - t), 's_cbranch_scc0 %s_r' % lab]
                o += ['v_mov_b32 v%d, 0xff800000' % (S + 16 * t + r) for r in range(16)]
            self.cold += o + ['s_branch %s_r' % lab]
            return ['s_cmp_lt_u32 s24, 7', 's_cbranch_scc1 %s' % lab, lab + '_r:']
        wo = self.wo_rest
        self.emit(kread(0) + kread(1) + kread(2))
        for i in range(9):
            m0_, m1_ = smm(i)
            va, vb = mx(i - 4) if i >= 4 else ([], [])
            sl_ = [wo.pop(0)] if (wo and i < self.opt.get('sw', 0)) else []
            self.emit([m0_] + (kread(i + 3) if i + 3 < 9 else []) + sl_ + va + [m1_] + vb)
        if self.opt.get('ro', 1) == 2:
            self.emit(self.rp_load()[1])
        self.emit(self.poll_loads(self.kflags(2)))
        for t in range(5, 8):
            self.emit(list(mx(t)))
        self.emit(fill_rest())
        CC = S + 128
        a('v_max3_f32 v%d, v%d, v%d, v%d' % (MX, MX, MX + 1, MX + 2))
        a('v_max_f32 v%d, v%d, v%d' % (MX, MX, MX + 3))
        a('v_mov_b32 v%d, v%d' % (MX + 1, MX))
        c = 28 ** -0.5 * 1.4426950408889634
        a('v_mov_b32 v%d, %s' % (CC + 2, f32(c)))
        a('v_permlane32_swap_b32 v%d, v%d' % (MX, MX + 1))
        a('v_max_f32 v%d, v%d, v%d' % (MX, MX, MX + 1))
        a('v_mul_f32 v%d, %s, v%d' % (CC + 4, f32(-c), MX))
        self.stamp(9)
        VA = 184

        def vread(t):
            return ['ds_read_b64_tr_b16 %s, v%d offset:%d' % (ar(VA + t * 8 + k * 4 + z * 2, 2), 13 + z, t * 4096 + k * 256)
                    for k in range(2) for z in range(2)]

        def pkf(t):
            b = S + 16 * t
            return ['v_pk_fma_f32 %s, %s, %s, %s op_sel_hi:[1,0,0]' % (vr(b + 2 * p, 2), vr(b + 2 * p, 2), vr(CC + 2, 2), vr(CC + 4, 2))
                    for p in range(8)]

        def exps(t):
            return ['v_exp_f32 v%d, v%d' % (S + 16 * t + r, S + 16 * t + r) for r in range(16)]

        def cvt(t, pb):
            b = S + 16 * t
            return ['v_cvt_pk_bf16_f32 v%d, v%d, v%d' % (pb + p, b + 2 * p, b + 2 * p + 1) for p in range(8)]
        first = [True]

        def pv(t, pb):
            o = []
            for k in range(2):
                o.append('%s %s, %s, %s, %s' % (MFMA, vr(O, 16), ar(VA + t * 8 + k * 4), vr(pb + 4 * k), '0' if first[0] else vr(O, 16)))
                first[0] = False
            return o
        PB = lambda t: P if t == 0 else S + 16 * t
        vr_all = [x for t in order for x in vread(t)]
        vc, vb = self.opt.get('vc', 0), self.opt.get('vb', 3)
        nb = self.opt.get('nb', 4)
        pvq = [(0, P), (8, P + 8)] + [(t, PB(t)) for t in range(1, 8)]
        self.emit(pkf(0))
        for t in range(8):
            if t == vc:
                self.poll_check(self.kflags(2))
                self.v_issue()
                if self.opt.get('ro', 1) == 3:
                    self.emit(self.rp_load()[1])
                self.p4_wsetup()
                fg, fd = self.fg_items()
                self.emit(self.poll_loads(fd))
                if self.opt.get('pb', 0) == 1:
                    self.emit(self.prewrite('B', 208))
                if self.opt.get('pd', 0):
                    self.emit(self.prewrite_data(M))
                self.stamp(41)
            if t == vc + 2:
                self.poll_check(fd)
            side = []
            if t >= 1:
                side += cvt(t - 1, PB(t - 1))
                if t == 1:
                    for p in range(8):
                        side.append('v_and_b32 v%d, v%d, v%d' % (P + 8 + p, P + p, M + p))
                        side.append('v_bfi_b32 v%d, v%d, 0, v%d' % (P + p, M + p, P + p))
            if t == vb:
                a.wait_tok('v')
                a('ds_write_b64 v9, v[10:11]')
                a('ds_write_b64 v8, v[10:11] offset:8192')
                a('s_waitcnt lgkmcnt(0)')
                a('s_barrier')
                self.stamp(45)
            if vb <= t < vb + 3:
                side = vr_all[12 * (t - vb):12 * (t - vb) + 12] + side
            pk_ = pkf(t + 1) if t < 7 else []
            mm = []
            if t > vb:
                for _ in range(self.opt.get('npv', 2)):
                    if pvq and pvq[0][0] % 8 < t:
                        mm += pv(*pvq.pop(0))
            ex = exps(t)
            blk = []
            pre = pk_ + side
            n1_ = 16 - 3 * len(mm) if mm else 16
            for r in range(n1_):
                blk.append(ex[r])
                blk += pre[len(pre) * r // n1_:len(pre) * (r + 1) // n1_]
            for k, m_ in enumerate(mm):
                blk += [m_] + ex[n1_ + 3 * k:n1_ + 3 * k + 3]
            if t == vb and self.opt.get('ro', 1) < 3:
                blk = [x for x in self.capture(self.rp_frag)] + blk
                st_ = self.capture(self.rp_store)
                mm_ = self.capture(self.rp_mm)
                blk = sprinkle(blk, [[mm_[u], st_[u]] for u in range(4)], 0.7, 1.0)
            if t == vb + 1 and self.opt.get('ro', 1) < 3:
                blk = blk[:12] + [st_[4:]] + blk[12:]
            src = wo if wo else (self.wd if t >= vc + 2 else [])
            take_ = src[:nb] if vc <= t < self.opt.get('tb', 7) else []
            del src[:len(take_)]
            self.emit(sprinkle(blk, take_, 0.1, 0.95))
            if self.opt.get('bs'):
                self.stamp(50 + t)
        self.fg = fg
        assert not wo
        last = cvt(7, PB(7))
        rest = [m_ for x in pvq for m_ in pv(*x)]
        self.emit(sprinkle(last, [[m_] for m_ in rest[:-2]], 0.0, 1.0) + rest[-2:])
        a.wait_tok('wo')
        a.wait_tok('rp')
        a('s_barrier')
        if self.opt.get('ro', 1) == 3:
            self.rp_frag()
        self.stamp(10)
        a('v_cndmask_b32 v2, v%d, v%d, s[26:27]' % (O + 12, O))
        a('v_mov_b32 v3, v2')
        a('v_permlane32_swap_b32 v2, v3')
        a('v_cndmask_b32 v2, v3, v2, s[26:27]')
        a('v_rcp_f32 v2, v2')
        a('s_lshl_b32 s16, %s, 2' % sR)
        a('s_add_u32 s16, s16, %s' % sW)
        a('s_lshl_b32 s16, s16, 4')
        a('s_add_u32 s16, s16, %s' % sHD)
        a('s_lshl_b32 s11, s16, 11')
        a('s_add_u32 s11, s11, %d' % WS_O)
        for p in range(8):
            a('v_pk_mul_f32 %s, %s, v[2:3] op_sel_hi:[1,0]' % (vr(O + 2 * p, 2), vr(O + 2 * p, 2)))
        for p in range(8):
            a('v_cvt_pk_bf16_f32 v%d, v%d, v%d' % (P + p, O + 2 * p, O + 2 * p + 1))
        a('v_and_b32 v%d, v%d, v6' % (P, P))
        a('v_and_b32 v%d, v%d, v6' % (P + 1, P + 1))
        a('v_and_b32 v%d, v%d, v7' % (P + 6, P + 6))
        a('v_and_b32 v%d, v%d, v7' % (P + 7, P + 7))
        for t in range(2):
            a('buffer_store_dwordx4 %s, %s, %s, s11 offen offset:%d sc1' % (vr(P + 4 * t), vL16, SRD_WS, t * 1024), tok='o')

    WO_A = 112
    HRES = 240

    WO_LDS = 0

    def wo_bulk(self):
        g0 = ['s_lshl_b32 %s, %s, 14' % (sBK2, sW), 's_lshl_b32 %s, %s, 16' % (sBK, sN), 's_add_u32 %s, %s, %s' % (sBK, sBK, sBK2),
              's_add_u32 %s, %s, %d' % (sBK, sBK, WS_WO), 's_cmp_ge_u32 %s, 7' % sN, 's_cselect_b32 %s, %d, %s' % (sBK, OOB, sBK)]
        out = []
        for i in range(16):
            g = list(g0) if i == 0 else (['s_add_u32 %s, %s, 4096' % (sBK, sBK)] if i % 4 == 0 else [])
            if i % 4 == 0:
                g.append('s_add_u32 m0, %s, %d' % (sBK2, self.WO_LDS + i * 1024))
            out.append(g + [('buffer_load_dwordx4 %s, %s, %s offen offset:%d sc1 lds' % (vL16, SRD_WS, sBK, (i % 4) * 1024), 'wo')])
        return out

    def wo_read(self):
        a = self.a
        a('s_lshr_b32 s11, %s, 1' % sW)
        a('s_lshl_b32 s11, s11, 15')
        a('s_add_u32 s11, s11, %d' % self.WO_LDS)
        a('v_add_u32 v2, s11, %s' % vXA)
        a('v_add_u32 v3, s11, %s' % vXB)
        for f in range(16):
            for rel in range(2):
                a('ds_read_b128 %s, v%d offset:%d' % (vr(self.WO_A + (f * 2 + rel) * 4), 2 + rel, f * 2048))

    def wd_bulk(self):
        g0 = ['s_mul_i32 %s, %s, %d' % (sBK, sN, 112 * 2048), 's_mul_i32 %s, %s, %d' % (sBK2, sW, 28 * 2048),
              's_add_u32 %s, %s, %s' % (sBK, sBK, sBK2), 's_add_u32 %s, %s, %d' % (sBK, sBK, WS_WD),
              's_cmp_ge_u32 %s, 7' % sN, 's_cselect_b32 %s, %d, %s' % (sBK, OOB, sBK)]
        out = []
        cur = 0
        for slot in range(28):
            f = (slot % 4) * 7 + slot // 4
            for rel in range(2):
                g = list(g0) if (slot == 0 and rel == 0) else []
                if rel == 0 and f != cur:
                    d = (f - cur) * 2048
                    g.append('s_add_u32 %s, %s, %d' % (sBK, sBK, d) if d > 0 else 's_sub_u32 %s, %s, %d' % (sBK, sBK, -d))
                    cur = f
                out.append(g + ['buffer_load_dwordx4 %s, %s, %s, %s offen sc1' % (
                    ar((slot * 2 + rel) * 4), (vXA, vXB)[rel], SRD_WS, sBK)])
        return out

    def gu_bulk(self, tile):
        o = []
        for i in range(7):
            g = []
            if i % 4 == 0:
                g = ['s_add_u32 m0, s31, %d' % ((tile % 5) * SLOT + i * 1024),
                     's_add_u32 %s, s30, %d' % (sBK2, tile * 28672 + i * 1024)]
            o.append(g + [('buffer_load_dwordx4 %s, %s, %s offen offset:%d sc1 lds' % (vL16, SRD_WS, sBK2, (i % 4) * 1024), 'g%d' % tile)])
        return o

    def warm(self):
        return ['s_lshr_b32 s11, s2, 3', 's_and_b32 s11, s11, 3', 's_lshl_b32 s11, s11, 7',
                'v_lshlrev_b32 v15, 9, v0',
                's_mul_i32 s12, %s, %d' % (sJ, 7 * 28672), 's_lshl_b32 s13, %s, 15' % sW, 's_add_u32 s12, s12, s13',
                's_add_u32 s12, s12, s11', 's_add_u32 s12, s12, %d' % WS_WGU,
                'buffer_load_dword v2, v15, %s, s12 offen' % SRD_WS]

    def p4_wsetup(self):
        a = self.a
        a('s_mul_i32 s31, %s, 7168' % sW)
        a('s_mul_i32 s30, %s, %d' % (sJ, 7 * 28672))
        a('s_add_u32 s30, s30, s31')
        a('s_add_u32 s30, s30, %d' % WS_WGU)

    def seq_loads(self, dst, n, sreg):
        o = []
        for i in range(n):
            if i and i % 4 == 0:
                o.append('s_add_u32 %s, %s, 4096' % (sreg, sreg))
            o.append('buffer_load_dwordx4 %s, %s, %s, %s offen offset:%d sc1' % (
                vr(dst + 4 * i), vL16, SRD_WS, sreg, (i % 4) * 1024))
        return o

    def res_voffset(self, dst, sreg):
        a = self.a
        a('v_and_b32 %s, 31, v0' % dst)
        a('v_mul_u32_u24 %s, 896, %s' % (dst, dst))
        a('v_lshrrev_b32 v2, 5, v0')
        a('v_lshl_add_u32 %s, v2, 4, %s' % (dst, dst))
        a('s_lshl_b32 %s, %s, 1' % (sreg, sM))
        a('s_and_b32 s12, %s, 1' % sW)
        a('s_add_u32 %s, %s, s12' % (sreg, sreg))
        a('s_mul_i32 %s, %s, %d' % (sreg, sreg, 32 * 896))
        a('s_lshl_b32 s12, %s, 7' % sN)
        a('s_add_u32 %s, %s, s12' % (sreg, sreg))
        a('s_lshr_b32 s12, %s, 1' % sW)
        a('s_lshl_b32 s12, s12, 6')
        a('s_add_u32 %s, %s, s12' % (sreg, sreg))

    def unpack8(self, dst, src):
        for p in range(8):
            self.a('v_lshlrev_b32 v%d, 16, v%d' % (dst + 2 * p, src + p))
            self.a('v_and_b32 v%d, 0xffff0000, v%d' % (dst + 2 * p + 1, src + p))

    P3_ACC, P3_OF = 16, 48

    def p3_setup(self):
        a = self.a
        EX = XTRA + 1024
        self.unpack8(self.P3_ACC, self.HRES)
        a('s_lshl_b32 s13, %s, 1' % sM)
        a('s_and_b32 s12, %s, 1' % sW)
        a('s_add_u32 s13, s13, s12')
        a('s_lshr_b32 s12, %s, 1' % sW)
        a('s_lshl_b32 s18, s13, 1')
        a('s_add_u32 s18, s18, s12')
        a('s_lshl_b32 s20, s18, %d' % (FSH + 3))
        a('s_add_u32 s20, s20, %d' % (WS_FL + FL_F2 * FS))
        a('s_lshl_b32 s18, s18, 14')
        a('s_add_u32 s18, s18, %d' % WS_O)
        a('s_xor_b32 s11, %s, 2' % sW)
        a('s_lshl_b32 s11, s11, 12')
        a('s_add_u32 s11, s11, %d' % EX)
        a('v_add_u32 v4, s11, %s' % vL16)
        a('s_lshl_b32 s11, %s, 12' % sW)
        a('s_add_u32 s11, s11, %d' % EX)
        a('v_add_u32 v5, s11, %s' % vL16)
        a('s_lshl_b32 s14, %s, 1' % sN)
        a('s_add_u32 s14, s14, s12')
        a('s_mul_i32 s19, s13, 28672')
        a('s_lshl_b32 s12, s14, 11')
        a('s_add_u32 s19, s19, s12')
        a('s_add_u32 s19, s19, %d' % WS_HB)
        a('s_lshl_b32 s17, s13, 4')
        a('s_add_u32 s17, s17, s14')
        a('s_lshl_b32 s29, s17, 8')
        a('s_add_u32 s29, s29, %d' % WS_ST)
        a('v_mov_b32 v6, 0x3f803f80')
        a('v_lshlrev_b32 v7, 3, v0')

    def p3(self):
        a = self.a
        ACC, OF = self.P3_ACC, self.P3_OF
        self.poll([('s20', k) for k in range(8)])
        self.stamp(12)
        self.emit(self.seq_loads(OF, 16, 's18'))
        for f in range(16):
            for rel in (1, 0):
                a('%s %s, %s, %s, %s' % (MFMA, vr(ACC + 16 * rel, 16), vr(self.WO_A + (f * 2 + rel) * 4), vr(OF + 4 * f),
                                         '0' if (rel == 1 and f == 0) else vr(ACC + 16 * rel, 16)))
        self.stamp(13)
        for k in range(4):
            a('ds_write_b128 v4, %s offset:%d' % (vr(ACC + 16 + 4 * k), k * 1024))
        a('s_waitcnt lgkmcnt(0)')
        a('s_barrier')
        for k in range(4):
            a('ds_read_b128 %s, v5 offset:%d' % (vr(OF + 4 * k), k * 1024))
        H = self.HRES
        for p in range(8):
            a('v_pk_add_f32 %s, %s, %s' % (vr(ACC + 2 * p, 2), vr(ACC + 2 * p, 2), vr(OF + 2 * p, 2)))
            a('v_cvt_pk_bf16_f32 v%d, v%d, v%d' % (H + p, ACC + 2 * p, ACC + 2 * p + 1))
            if p % 4 == 3:
                a('buffer_store_dwordx4 %s, %s, %s, s19 offen offset:%d sc1' % (vr(H + p - 3), vL16, SRD_WS, (p // 4) * 1024), tok='h')
        for p in range(8):
            a('v_dot2_f32_bf16 v8, v%d, v6, %s' % (H + p, 'v8' if p else '0'))
            a('v_dot2_f32_bf16 v9, v%d, v%d, %s' % (H + p, H + p, 'v9' if p else '0'))
        a('v_mov_b32 v10, v8')
        a('v_mov_b32 v11, v9')
        a('v_permlane32_swap_b32 v8, v10')
        a('v_permlane32_swap_b32 v9, v11')
        a('v_add_f32 v8, v8, v10')
        a('v_add_f32 v9, v9, v11')
        a('s_mov_b32 exec_hi, 0')
        a('buffer_store_dwordx2 v[8:9], v7, %s, s29 offen sc1' % SRD_WS, tok='h')
        a('s_mov_b64 exec, -1')

    def p4_cs_issue(self):
        a = self.a
        a('s_lshl_b32 s11, %s, 1' % sW)
        a('v_lshrrev_b32 v112, 5, v0')
        a('v_add_u32 v112, s11, v112')
        a('v_min_u32 v113, 6, v112')
        a('v_mul_u32_u24 v113, 896, v113')
        a('v_and_b32 v114, 31, v0')
        a('v_lshl_add_u32 v113, v114, 2, v113')
        a('s_mul_i32 s11, %s, %d' % (sJ, 7 * 896))
        a('s_add_u32 s11, s11, %d' % WS_CS)
        for k in range(7):
            a('buffer_load_dword v%d, v113, %s, s11 offen offset:%d sc1' % (116 + k, SRD_WS, 128 * k))
        a('v_lshlrev_b32 v112, 9, v112')
        a('v_lshl_add_u32 v112, v114, 4, v112')
        a('v_add_u32 v112, %d, v112' % self.CF_LDS)

    CF_LDS = XTRA

    def split_bf16(self, x, hi, lo):
        raise NotImplementedError

    def p4_cs_finish(self):
        a = self.a
        for k in range(1, 7):
            a('v_add_f32 v116, v116, v%d' % (116 + k))
        a('v_mov_b32 v122, 0')
        a('v_mov_b32 v123, 0')
        a('v_cvt_pk_bf16_f32 v121, v116, 0')
        a('v_lshlrev_b32 v117, 16, v121')
        a('v_sub_f32 v117, v116, v117')
        a('v_cvt_pk_bf16_f32 v120, v116, v117')
        a('ds_write_b128 v112, v[120:123]')

    def fg_items(self):
        a = self.a
        a('s_mul_i32 s23, %s, 7' % sJ)
        a('s_lshr_b32 s23, s23, 2')
        a('s_min_u32 s23, s23, 25')
        a('s_mul_i32 s23, s23, 7')
        a('s_mul_i32 s11, %s, 7' % sW)
        a('s_lshr_b32 s11, s11, 2')
        a('s_min_u32 s11, s11, 4')
        a('s_add_u32 s23, s23, s11')
        a('s_lshl_b32 s23, s23, %d' % FSH)
        a('s_add_u32 s23, s23, %d' % (WS_FL + FL_FG * FS))
        a('s_mul_i32 s22, %s, %d' % (sW, 7 * FS))
        a('s_add_u32 s22, s22, %d' % (WS_FL + FL_FD * FS))
        return [('s23', 7 * g + k) for g in range(3) for k in range(3)], [('s22', k) for k in range(7)]

    def p4_setup(self):
        a = self.a
        a('s_lshl_b32 s13, %s, 2' % sR4)
        a('s_add_u32 s13, s13, %s' % sW)
        a('s_mul_i32 s18, s13, 28672')
        a('s_add_u32 s18, s18, %d' % WS_HB)
        a('s_lshl_b32 s20, s13, %d' % (FSH + 6))
        a('s_add_u32 s20, s20, %d' % (WS_FL + FL_F3 * FS))
        a('v_and_b32 v2, 31, v0')
        a('v_lshlrev_b32 v2, 3, v2')
        a('v_lshrrev_b32 v3, 5, v0')
        a('v_mul_u32_u24 v4, %d, v3' % (7 * 256))
        a('v_add_u32 v14, v2, v4')
        a('s_lshl_b32 s19, s13, 12')
        a('s_add_u32 s19, s19, %d' % WS_ST)
        a('v_add_u32 v5, %d, %s' % (2 * SLOT, vL16))
        a('v_add_u32 v6, %d, %s' % (4 * SLOT, vL16))
        a('v_and_b32 v7, 0x1f0, %s' % vL16)
        a('v_add_u32 v7, %d, v7' % self.CF_LDS)
        a('s_mul_i32 s29, s13, %d' % (112 * 1024))
        a('s_mul_i32 s12, %s, %d' % (sJ, 7 * 1024))
        a('s_add_u32 s29, s29, s12')
        a('s_add_u32 s29, s29, %d' % WS_HH)
        a('s_add_u32 s28, s29, 4096')
        a('s_lshl_b32 s27, s13, 4')
        a('s_add_u32 s27, s27, %s' % sJ)

    def f1_set(self, part):
        return ['s_mov_b64 exec, 0xffff',
                'buffer_store_dwordx4 %s, %s, %s, s16 offen offset:%d sc1' % (vr(vFL), vL16, SRD_WS, part * FS),
                's_mov_b64 exec, -1']

    def f4_set(self, stage):
        return ['s_mov_b32 s11, s27'] + self.flag_set('s11', FL_F4 + stage, 2)

    def p4(self, wd_rest):
        a = self.a
        T0 = self.opt['T0']
        HF, ACC, WF, CSR, TM, PK = 16, 128, 192, 208, 224, 232
        NACC = 5
        MB = CSR
        self.poll([('s20', 4 * k) for k in range(14)])
        self.stamp(16)
        hl = self.seq_loads(HF, 28, 's18')
        for k in range(7):
            hl.append('buffer_load_dwordx2 %s, v14, %s, s19 offen offset:%d sc1' % (vr(CSR + 2 * k, 2), SRD_WS, 256 * k))
        base = [vL16, 'v5', 'v6']
        cnt = [0]

        def wread(tile, k):
            s = tile % 5
            b = 224 + (cnt[0] % 8) * 4
            cnt[0] += 1
            if k == 28:
                return b, ('ds_read_b128 %s, v7 offset:%d' % (ar(b), tile * 512), 'wr%d' % cnt[0])
            return b, ('ds_read_b128 %s, %s offset:%d' % (ar(b), base[s >> 1], (s & 1) * SLOT + k * 1024), 'wr%d' % cnt[0])

        C1 = -2.0 * 1.4426950408889634 * 0.7978845608028654
        st = []
        for k in range(1, 7):
            st.append('v_add_f32 v%d, v%d, v%d' % (CSR, CSR, CSR + 2 * k))
            st.append('v_add_f32 v%d, v%d, v%d' % (CSR + 1, CSR + 1, CSR + 2 * k + 1))
        st += ['v_mov_b32 v12, v%d' % CSR, 'v_mov_b32 v13, v%d' % (CSR + 1),
               'v_permlane32_swap_b32 v%d, v12' % CSR, 'v_permlane32_swap_b32 v%d, v13' % (CSR + 1),
               'v_add_f32 v12, v12, v%d' % CSR, 'v_add_f32 v13, v13, v%d' % (CSR + 1),
               'v_mul_f32 v8, %s, v12' % f32(-1.0 / 448), 'v_mul_f32 v13, %s, v13' % f32(1.0 / 448),
               'v_fma_f32 v13, -v8, v8, v13', 'v_max_f32 v13, 0, v13', 'v_add_f32 v11, %s, v13' % f32(1e-5),
               'v_rsq_f32 v12, v11', 'v_mul_f32 v9, %s, v12' % f32(C1), 'v_mul_f32 v13, v12, v12',
               'v_mul_f32 v10, v9, v13', 'v_mul_f32 v10, %s, v10' % f32(0.044715),
               's_mov_b32 s12, -1', 's_mov_b32 s13, 0', 'v_cndmask_b32 v8, 0, v8, s[12:13]',
               'v_mov_b32 v%d, 0' % (MB + 2), 'v_mov_b32 v%d, 0' % (MB + 3),
               'v_cvt_pk_bf16_f32 v%d, v8, v8' % MB, 'v_lshlrev_b32 v12, 16, v%d' % MB,
               'v_sub_f32 v12, v8, v12', 'v_cvt_pk_bf16_f32 v%d, v12, 0' % (MB + 1)]

        def csread(tile):
            return ['ds_read_b128 %s, v7 offset:%d' % (vr(CSR + 4 * k), tile * 128 + 32 * k) for k in range(4)]

        def gelu(tile):
            b = ACC + 16 * (tile % NACC)
            pk = PK + (tile % 2) * 4
            o = []
            E = range(8)
            o += ['v_mul_f32 v%d, v%d, v%d' % (TM + e, b + e, b + e) for e in E]
            o += ['v_fma_f32 v%d, v%d, v10, v9' % (TM + e, TM + e) for e in E]
            o += ['v_mul_f32 v%d, v%d, v%d' % (TM + e, TM + e, b + e) for e in E]
            for e in E:
                o.append('v_exp_f32 v%d, v%d' % (TM + e, TM + e))
                o.append('v_mul_f32 v%d, v%d, v%d' % (b + e, b + e, b + 8 + e))
            for e in range(11):
                if e < 8:
                    o.append('v_fma_f32 v%d, v%d, v11, v11' % (TM + e, TM + e))
                if e >= 3:
                    o.append('v_rcp_f32 v%d, v%d' % (TM + e - 3, TM + e - 3))
            o += ['v_mul_f32 v%d, v%d, v%d' % (b + e, b + e, TM + e) for e in E]
            o += ['v_cvt_pk_bf16_f32 v%d, v%d, v%d' % (pk + p, b + 2 * p, b + 2 * p + 1) for p in range(4)]
            o.append(('buffer_store_dwordx4 %s, %s, %s, s%d offen offset:%d sc1' % (
                vr(pk), vL16, SRD_WS, 29 if tile < 4 else 28, (tile % 4) * 1024), 'hh%d' % tile))
            return o

        def gelu_pk(tile, csr):
            b = ACC + 16 * (tile % NACC)
            pk = PK + (tile % 2) * 4
            P2 = lambda r: vr(r, 2)
            o = []
            E = (0, 2, 4, 6)
            o += ['v_pk_mul_f32 %s, %s, %s' % (P2(csr + e), P2(b + e), P2(b + e)) for e in E]
            o += ['v_pk_fma_f32 %s, %s, v[10:11], v[8:9] op_sel:[0,0,1] op_sel_hi:[1,0,1]' % (P2(csr + e), P2(csr + e)) for e in E]
            o += ['v_pk_mul_f32 %s, %s, %s' % (P2(csr + e), P2(csr + e), P2(b + e)) for e in E]
            for e in E:
                o += ['v_exp_f32 v%d, v%d' % (csr + e, csr + e), 'v_exp_f32 v%d, v%d' % (csr + e + 1, csr + e + 1)]
            o += ['v_pk_fma_f32 %s, %s, v[10:11], v[10:11] op_sel:[0,1,1] op_sel_hi:[1,1,1]' % (P2(csr + e), P2(csr + e)) for e in E]
            for e in E:
                o += ['v_rcp_f32 v%d, v%d' % (csr + e, csr + e),
                      'v_pk_mul_f32 %s, %s, %s' % (P2(b + e), P2(b + e), P2(b + 8 + e)),
                      'v_rcp_f32 v%d, v%d' % (csr + e + 1, csr + e + 1)]
            o += ['v_pk_mul_f32 %s, %s, %s' % (P2(b + e), P2(b + e), P2(csr + e)) for e in E]
            o += ['v_cvt_pk_bf16_f32 v%d, v%d, v%d' % (pk + e // 2, b + e, b + e + 1) for e in E]
            o.append(('buffer_store_dwordx4 %s, %s, %s, s%d offen offset:%d sc1' % (
                vr(pk), vL16, SRD_WS, 29 if tile < 4 else 28, (tile % 4) * 1024), 'hh%d' % tile))
            return o
        nup = 15
        self.emit(hl[:nup])
        for t in range(3):
            a.wait_tok('g%d' % t)
        a('s_waitcnt lgkmcnt(0)')
        a('s_barrier')
        self.stamp(40)
        k3 = self.opt.get('k3', 10)
        seq = []
        done3 = 0
        for k in range(28):
            seq += [(t, k) for t in range(3)]
            if k >= k3:
                tgt = 28 * (k - k3 + 1) // (28 - k3)
                seq += [(3, kk) for kk in range(done3, tgt)]
                assert tgt <= k + 1
                done3 = tgt
        seq += [(t, 28) for t in range(4)]
        seq += [(t, k) for t in range(4, 7) for k in range(29)]
        rd = [wread(t, k) for t, k in seq]
        D, WE = 7, self.opt.get('we', 2)
        presync = {(t, 0): [Pseudo('wait_tok', 'g%d' % t)] + (['s_waitcnt lgkmcnt(0)'] if t == 4 else []) + ['s_barrier'] for t in range(3, 7)}
        self.emit([rd[i][1] for i in range(D)])
        gaps = []
        for i, (t, k) in enumerate(seq):
            acc = vr(ACC + 16 * (t % NACC), 16)
            g = ['%s %s, %s, %s, %s' % (MFMA, acc, ar(rd[i][0]), vr(HF + 4 * k if k < 28 else MB), acc if k else '0')]
            if i + D < len(seq):
                g.append([presync.get(seq[i + D], []), rd[i + D][1]])
            else:
                g.append([])
            if (i + 1) % WE == 0 and i + WE < len(seq):
                g.append(Pseudo('wait_tok', rd[i + WE][1][1]))
            gaps.append(g)
        n1 = 116
        isg = lambda g, t: isinstance(g[-1], tuple) and g[-1][1] == 'g%d' % t
        g3 = [g for g in wd_rest if isg(g, 3)]
        g4 = [g for g in wd_rest if isg(g, 4)]
        wdr = wd_rest[len(g3) + len(g4):]
        nw1 = self.opt.get('nw1', 2)
        hg = []
        for x in hl[nup:]:
            if hg and isinstance(hg[-1][-1], str) and hg[-1][-1].startswith('s_add'):
                hg[-1].append(x)
            else:
                hg.append([x])
        side = g3 + hg + g4 + wdr[:nw1]
        w1 = gaps[:n1]
        sp = self.opt.get('sp', 2)
        for i, x in enumerate(side):
            p_ = i * sp if i >= len(g3) else i
            p_ -= len(g3) * (sp - 1) if i >= len(g3) else 0
            w1[p_] = w1[p_][:2] + [x] + w1[p_][2:]
        assert p_ < n1 - D - 8
        m_ = n1 - 44
        self.emit(w1[:m_])
        self.emit(cweave(w1[m_:n1 - 6], st) + w1[n1 - 6:])
        self.stamp(17)
        bulk = self.gu_bulk(5) + self.gu_bulk(6) + wdr[nw1:]
        l6 = self.opt.get('l6', 6)
        share = [(len(bulk) - l6 + 1) // 2] * 2 + [l6]
        assert share[0] >= 12
        gw = [int(c) for c in str(self.opt.get('gw', 222))]
        self.stg = stg = [int(c) for c in str(self.opt.get('stg', 247))]
        nx, pub = 0, 0
        for t in range(4, 7):
            n = share[t - 4]
            assert nx >= t - 4 and nx + gw[t - 4] <= t
            gl = [x for q in range(nx, nx + gw[t - 4]) for x in gelu(q)]
            if pub < len(stg) and stg[pub] <= nx:
                c_ = len(gl) * self.opt.get('fpos', 80) // 100
                gl = gl[:c_] + [[Pseudo('wait_tok', 'hh%d' % (stg[pub] - 1))] + self.f4_set(pub)] + gl[c_:]
                pub += 1
            nx += gw[t - 4]
            side = sprinkle(gl, bulk[:n], 0.0, 0.9 if t < 6 else 0.5)
            bulk = bulk[n:]
            if t == 6:
                side = side[:20] + self.p5_setup() + side[20:]
            self.emit(cweave(gaps[29 * t:29 * t + 29], side, skip=1))
            self.stamp(15 + t)
        assert not bulk
        a('s_waitcnt lgkmcnt(0)')
        self.tail = [(q, gelu_pk(q, TM)) for q in range(nx, 7)]
        self.pub = pub

    def p5_setup(self):
        o = []
        a = o.append
        a('s_and_b32 s13, %s, 1' % sW)
        a('s_lshl_b32 s14, %s, 1' % sM)
        a('s_lshl_b32 s20, s14, %d' % (FSH + 6))
        a('s_lshl_b32 s15, %s, %d' % (sW, FSH + 4))
        a('s_add_u32 s20, s20, s15')
        a('s_add_u32 s20, s20, %d' % (WS_FL + FL_F4 * FS))
        a('s_add_u32 s13, s14, s13')
        a('s_xor_b32 s12, s13, 1')
        a('s_mul_i32 s14, %s, %d' % (sW, 28 * 1024))
        a('s_add_u32 s14, s14, %d' % WS_HH)
        for ra, r in enumerate(('s13', 's12')):
            a('s_mul_i32 %s, %s, %d' % (r, r, 112 * 1024))
            a('s_add_u32 s%d, %s, s14' % (68 + 8 * ra, r))
            for q in range(1, 7):
                a('s_add_u32 s%d, s%d, %d' % (68 + 8 * ra + q, 68 + 8 * ra, q * 4096))
        return o

    def p5(self):
        a = self.a
        ACC, HHF, NBUF = 128, 16, 24
        fl = lambda st: [('s20', (r * 16 + jj) * 4 + st) for r in range(2) for jj in range(4)]
        seq = [(jj * 7 + tau, ra) for tau in range(7) for jj in range(4) for ra in range(2)]
        ne = self.opt.get('ne', 16)
        seq = seq[:56 - ne] + [x for x in seq[56 - ne:] if x[1] == 1] + [x for x in seq[56 - ne:] if x[1] == 0]
        send = lambda rel: ['ds_write_b128 v%d, %s offset:%d' % (12 + rel, vr(ACC + 16 * rel + 4 * k), (rel - 1) * 4096 + k * 1024) for k in range(4)]
        early = send(1) + send(3) if ne >= 16 else []

        def load(i):
            f, ra = seq[i]
            return 'buffer_load_dwordx4 %s, %s, %s, s%d offen offset:%d sc1' % (
                vr(HHF + (i % NBUF) * 4), vL16, SRD_WS, 68 + 8 * ra + f // 4, (f % 4) * 1024)
        stg, pub = self.stg, self.pub
        rest_flags = lambda p: [x for q in range(p, len(stg)) for x in self.f4_set(q)]
        n6 = min(self.opt.get('n6', 12), 8 * stg[0])
        tail = [x for q, g in self.tail for x in g]
        if pub >= 1 and len(self.tail) >= 2:
            self.emit(self.poll_loads(fl(0)))
            self.emit(self.tail[0][1])
            tail = [x for q, g in self.tail[1:] for x in g]
            a('s_waitcnt lgkmcnt(0)')
            for k in range(4):
                p = 's[%d:%d]' % (PT + 2 * k, PT + 2 * k + 1)
                a('s_xor_b64 %s, %s, %s' % (p, p, sEP2))
                if k:
                    a('s_or_b64 s[%d:%d], s[%d:%d], %s' % (PT, PT + 1, PT, PT + 1, p))
            a('s_cbranch_scc1 L_p5slow')
            self.emit(sprinkle(tail, [[load(i)] for i in range(n6)], 0.0, 0.9))
            a('L_p5join:')
            keep = self.a
            self.a = a2 = self.side
            a2('L_p5slow:')
            a2.fresh()
            self.emit(tail)
            a2('s_waitcnt vmcnt(0)')
            self.emit(rest_flags(pub))
            a2('s_add_u32 s20, s20, 128')
            self.emit(self.poll_loads(fl(0)))
            self.poll_check(fl(0), tries=1)
            a2('s_sub_u32 s20, s20, 128')
            self.emit([load(i) for i in range(n6)])
            a2('s_waitcnt vmcnt(0)')
            a2('s_branch L_p5join')
            self.a = keep
        else:
            self.emit(self.poll_loads(fl(0)))
            self.emit(tail)
            self.poll_check(fl(0), onfail=rest_flags(pub))
            self.emit([load(i) for i in range(n6)])
        self.stamp(22)
        while pub < len(stg) - 1:
            a.wait_tok('hh%d' % (stg[pub] - 1))
            self.emit(self.f4_set(pub))
            pub += 1
        self.stamp(23)
        self.unpack8(ACC, self.HRES)
        self.res_voffset('v4', 's18')
        for rel in range(4):
            a('s_xor_b32 s11, %s, %d' % (sW, rel))
            a('s_mul_i32 s11, s11, 12288')
            a('s_add_u32 s11, s11, %d' % (2 * SLOT))
            a('v_add_u32 v%d, s11, %s' % (12 + rel, vL16))
        AHEAD = self.opt.get('ahead', 14)
        cur = min(AHEAD, 8 * stg[0])
        self.emit([load(i) for i in range(n6, cur)])
        a.wait_tok('hh6')
        self.emit(self.f4_set(pub))
        nxt = [max(cur, n6)]
        lead, dly = self.opt.get('lead', 16), self.opt.get('dly', 5)
        bnd = [8 * x for x in stg[:-1]]
        pi, ok = [], []
        for q, b_ in enumerate(bnd):
            p_ = max(b_ - lead, ok[-1] + 1 if ok else 0)
            pi.append(p_)
            ok.append(min(p_ + dly, b_ - 1))

        def issue_upto(n):
            while nxt[0] < min(n, len(seq)):
                i = nxt[0]
                if i in bnd:
                    self.poll_check(fl(bnd.index(i) + 1))
                    self.stamp(47 + bnd.index(i))
                a(load(i))
                nxt[0] += 1
        seen = set([(0, 0)])
        for i, (f, ra) in enumerate(seq):
            assert nxt[0] > i
            if i in pi:
                q = pi.index(i)
                assert q == 0 or nxt[0] > bnd[q - 1], (i, q, nxt[0])
                self.emit(self.poll_loads(fl(q + 1)))
            for rb in ((1, 0) if i == 55 else (0, 1)):
                if early and i > 56 - ne // 2 + 1:
                    a(early.pop(0))
                acc = vr(ACC + 16 * (ra + 2 * rb), 16)
                a('%s %s, %s, %s, %s' % (MFMA, acc, ar((((f % 7) * 4 + f // 7) * 2 + rb) * 4), vr(HHF + (i % NBUF) * 4),
                                         acc if (ra, rb) in seen else '0'))
                seen.add((ra, rb))
            lim = min([b_ for b_, o_ in zip(bnd, ok) if i < o_] + [len(seq)])
            issue_upto(min(i + 1 + AHEAD, lim))
        self.stamp(24)
        assert not early
        self.emit(send(2) if ne >= 16 else send(2) + send(1) + send(3))
        a('s_waitcnt lgkmcnt(0)')
        a('s_barrier')
        for k in range(12):
            a('ds_read_b128 %s, v12 offset:%d' % (vr(HHF + 4 * k), k * 1024))
        for rel in range(3):
            for p in range(8):
                a('v_pk_add_f32 %s, %s, %s' % (vr(ACC + 2 * p, 2), vr(ACC + 2 * p, 2), vr(HHF + 16 * rel + 2 * p, 2)))
        for p in range(8):
            a('v_cvt_pk_bf16_f32 v%d, v%d, v%d' % (112 + p, ACC + 2 * p, ACC + 2 * p + 1))
            if p % 4 == 3:
                a('buffer_store_dwordx4 %s, v4, %s, s18 offen offset:%d' % (vr(112 + p - 3), SRD_OUT, (p // 4) * 32) + ['', ' sc1', ' nt', ' sc0 sc1'][self.opt.get('ost', 0)])
        self.stamp(25)

    def build(self):
        a = self.a
        nm = NAME + '_kernel'
        a('.globl %s\n.p2align 8\n.type %s,@function\n%s:' % (nm, nm, nm))
        self.prologue()
        a('s_cmp_ge_u32 %s, 7' % sN)
        a('s_cbranch_scc1 L_idle1')
        self.p1()
        self.stamp(5)
        self.poll_check(self.kflags(0), onfail=self.f1_set(2))
        self.k_issue()
        self.stamp(7)
        if not self.opt.get('ql', 0):
            self.emit(self.poll_loads(self.qflags() + self.fo_items()))
        a.wait_tok('q2')
        if self.opt.get('ql', 0):
            self.emit(self.poll_loads(self.qflags() + self.fo_items()))
        self.emit(self.f1_set(2))
        self.stamp(36)
        self.wd = self.wd_bulk()
        nl = self.opt.get('nl', 0)
        self.wd_late = self.wd[56 - nl:]
        del self.wd[56 - nl:]
        wo = self.wo_bulk()
        w2 = self.opt.get('w2', 8)
        assert w2 % 4 == 0
        self.res_voffset('v15', 's11')
        self.poll_check(self.qflags() + self.fo_items())
        a('L_join1:')
        self.q_issue()
        for t in range(2):
            a('buffer_load_dwordx4 %s, v15, %s, s11 offen offset:%d' % (vr(self.HRES + 4 * t), SRD_X, 32 * t))
        self.stamp(46)
        if w2 or self.opt.get('ro', 1) < 2:
            a('s_barrier')
        if self.opt.get('ro', 1) == 0:
            self.emit(self.rp_load()[1])
        self.emit(wo[:w2])
        if self.opt.get('ro', 1) == 1:
            self.emit(self.rp_load()[1])
        self.wo_rest = wo[w2:]
        self.rp_prep()
        if self.opt.get('pb', 0) == 0:
            self.emit(self.prewrite('B', 208))
        self.stamp(6)
        self.p2()
        if self.opt.get('ro', 1) == 3:
            self.rp_mm()
            self.rp_store()
        self.wo_read()
        self.p3_setup()
        a.wait_tok('o')
        self.emit(self.flag_set('s16', FL_F2))
        self.stamp(11)
        rpl = self.opt.get('rpl', 3)
        if rpl:
            a.wait_tok('rs')
            a('s_waitcnt lgkmcnt(0)')
            a('s_barrier')
            self.fg_set()
        else:
            self.poll(self.fg)
            a('s_barrier')
        self.stamp(37)
        b = [self.opt.get('b%d' % k, d) for k, d in ((2, 12), (4, 6), (5, 15))]
        if rpl or self.opt.get('h1wd'):
            self.emit(self.wd[:b[0]])
            del self.wd[:b[0]]
            b[0] = 0
        Q = [g for t in range(5) for g in self.gu_bulk(t)] + self.wd

        def take(n):
            self.emit(Q[:n])
            del Q[:n]
        take(b[0])
        self.stamp(38)
        a('s_cmp_ge_u32 %s, 7' % sN)
        a('s_cbranch_scc1 L_idle3')
        a.begin_cond('p3')
        self.p3()
        a.end_cond()
        a('L_skip3:')
        self.stamp(14)
        if rpl:
            self.poll(self.fg)
        take(b[1])
        if not rpl:
            self.p4_cs_issue()
        a('s_cmp_ge_u32 %s, 7' % sN)
        a('s_cbranch_scc1 L_skip3b')
        a.begin_cond('p3')
        a.wait_tok('h')
        self.emit(self.flag_set('s17', FL_F3, 2))
        a.end_cond()
        a('L_skip3b:')
        self.stamp(15)
        if rpl:
            a('s_barrier')
            self.p4_cs_issue()
        take(b[2])
        assert 21 <= sum(b) <= 35
        self.p4_cs_finish()
        self.p4_setup()
        self.stamp(39)
        a('s_cmp_ge_u32 %s, 7' % sN)
        a('s_cbranch_scc1 L_idle3b')
        a('L_go4:')
        self.p4(Q)
        a('s_cmp_ge_u32 %s, 7' % sN)
        a('s_cbranch_scc1 L_idle5')
        self.p5()
        self.stamp_out()
        a('L_exit:')
        a('s_endpgm')
        a('L_idle5:')
        a.fresh()
        a('s_nop 15')
        self.emit([x for q, g in self.tail for x in g])
        for q in range(self.pub, len(self.stg)):
            a('s_waitcnt vmcnt(%d)' % (7 - self.stg[q] + q - self.pub if self.stg[q] > self.tail[0][0] else len(self.tail) + q - self.pub))
            self.emit(self.f4_set(q))
        a('s_lshl_b32 s11, s2, 2')
        a('s_add_u32 s11, s11, %s' % sW)
        a('s_cmp_lg_u32 s11, 1020')
        a('s_cbranch_scc1 L_noclr')
        a('v_mov_b32 v2, 0')
        a('s_mov_b64 exec, 1')
        a('global_store_dword v2, v2, %s sc1' % DBGP)
        a('s_mov_b64 exec, -1')
        a('L_noclr:')
        self.stamp_out()
        a('s_endpgm')
        a('L_idle3:')
        a.fresh()
        self.prewait('s20')
        a('s_branch L_skip3')
        a('L_idle3b:')
        a.fresh()
        self.prewait('s20')
        a('s_branch L_go4')
        a('L_idle1:')
        a.fresh()
        a('s_waitcnt lgkmcnt(0)')
        self.idle1()
        a('s_branch L_join1')
        a.items += self.side.items
        for x in self.cold:
            a.raw(x)
        a('L_code_end:')
        a.raw('s_endpgm')
        hdr = open('cdna_kernels/%s.s.ref' % NAME).read().split('; Override launch')[0]
        hdr += '; @launch grid=(256,1,1) block=(256,1,1) lds=%d\n' % LDS_BYTES
        hdr += '.amdgcn_target "amdgcn-amd-amdhsa--gfx950"\n.text\n'
        body = a.finalize()
        tail = ('.section .rodata,"a"\n.p2align 6\n.amdhsa_kernel %s\n  .amdhsa_next_free_vgpr 512\n  .amdhsa_next_free_sgpr 102\n'
                '  .amdhsa_accum_offset 256\n  .amdhsa_group_segment_fixed_size 0\n  .amdhsa_kernarg_size 80\n'
                '  .amdhsa_user_sgpr_count 2\n  .amdhsa_user_sgpr_kernarg_segment_ptr 1\n'
                '  .amdhsa_system_sgpr_workgroup_id_x 1\n.end_amdhsa_kernel\n' % nm)
        return hdr + body + tail


if __name__ == '__main__':
    out = sys.argv[1]
    opt = {}
    for x in sys.argv[2:]:
        if '=' in x:
            k, v = x.split('=')
            opt[k] = int(v) if v.lstrip('-').isdigit() else v
    txt = Gen(stamps='--ts' in sys.argv, **opt).build()
    open(out, 'w').write(txt)
    print('wrote', out, len(txt), 'bytes')
```

```python
import sys, struct
from asmlib import Asm, weave, Pseudo

NAME = 'sequential_preLN__sliding_block__glu_gated_geglu__prompt'

WS_QKV = 0
WS_O = WS_QKV + 64 * 84 * 1024
WS_HB = WS_O + 64 * 32768
WS_ST = WS_HB + 64 * 28672
WS_HH = WS_ST + 64 * 4096
WS_WGU = WS_HH + 64 * 112 * 1024
WS_CS = WS_WGU + 112 * 28672
WS_WD = WS_CS + 112 * 896
WS_WO = WS_WD + 7 * 112 * 2048
WS_CQ = WS_WO + 7 * 32 * 2048
WS_FL = WS_CQ + 8192
FS, FSH = (512, 9) if 'fs=512' in sys.argv else (256, 8)
FL_F1 = 0
FL_F3 = 3
FL_F4 = 4096
FL_F2 = FL_F4 + 4096
FL_FG = FL_F2 + 1024
FL_FO = FL_FG + 224
FL_FD = FL_FO + 32
FL_END = FL_FD + 32
WS_EP = WS_FL + FL_END * FS
WS_TS = 28 << 20
WS_END = WS_TS + 256 * 4 * 256
OOB = 0x7ff00000

LDS_BYTES = 163840
SLOT = 28672
XTRA = 5 * SLOT

sW, sXCD, sI, sM, sN, sR, sHD, sCT = 's3', 's4', 's5', 's6', 's7', 's8', 's9', 's10'
SRD_X, SRD_WS, SRD_OUT = 's[36:39]', 's[40:43]', 's[44:47]'
SRD_WQKV, SRD_D, SRD_G, SRD_U = 's[52:55]', 's[56:59]', 's[60:63]', 's[64:67]'
PT = 52
sBK, sBK2, sR4, sJ = 's48', 's49', 's4', 's5'
sEP, sEP2 = 's50', 's[50:51]'
DBGP, WSP = 's[32:33]', 's[34:35]'
MASK0 = 68
vL16 = 'v1'
vXA, vXB, vFL = 'v248', 'v249', 250


def f32(x):
    return '0x%08x' % struct.unpack('<I', struct.pack('<f', x))[0]


def vr(b, n=4, t='v'):
    return '%s[%d:%d]' % (t, b, b + n - 1)


def ar(b, n=4):
    return vr(b, n, 'a')


MFMA = 'v_mfma_f32_32x32x16_bf16'


def sprinkle(main, groups, lo=0.0, hi=1.0):
    n = len(main)
    a, b = int(n * lo), int(n * hi)
    out, k = [], 0
    for i, x in enumerate(main):
        while k < len(groups) and i >= a + (b - a) * k // max(len(groups), 1):
            out.extend(groups[k]); k += 1
        out.append(x)
    for g in groups[k:]:
        out.extend(g)
    return out


def cost(x):
    if isinstance(x, list):
        return sum(cost(y) for y in x)
    if isinstance(x, tuple):
        x = x[0]
    if not isinstance(x, str):
        return 4.2 if getattr(x, 'what', '') == 'wait_tok' else 0
    m = x.split()[0]
    if m.endswith(':'):
        return 0
    if m.startswith('v_mfma'):
        return 8
    if m in ('v_exp_f32', 'v_rcp_f32', 'v_rsq_f32'):
        return 8.4
    if m.startswith('buffer_'):
        return 10
    if m.startswith('v_pk_') or m.startswith('v_cvt_pk') or m.startswith('v_max3'):
        return 5.2
    if m.startswith('v_fma') and not m.startswith('v_fmac'):
        return 4.6
    return 4.2


def cweave(gaps, side, skip=0):
    n = len(gaps) - skip
    base = [cost(g) for g in gaps]
    tot = sum(base[skip:]) + cost(list(side))
    out, k, acc = [], 0, 0.0
    for i, g in enumerate(gaps):
        if i < skip:
            out += g
            continue
        acc += base[i]
        tgt = tot * (i - skip + 1) / n
        ins = []
        while k < len(side) and (acc + cost(side[k]) / 2 <= tgt or i == len(gaps) - 1):
            acc += cost(side[k]); ins.append(side[k]); k += 1
        out += g[:2] + ins + g[2:]
    return out


class Gen:
    def __init__(self, stamps=False, **opt):
        self.a = Asm()
        self.stamps = stamps
        self.nl = 0
        self.cold = []
        self.side = Asm()
        self.PT = PT
        self.opt = dict(p2map='C', p4map='B', rot=3, T0=3, nA=24, codepf=1, nt=3)
        self.opt.update(opt)

    def label(self, s):
        self.nl += 1
        return 'L_%s_%d' % (s, self.nl)

    def emit(self, lst):
        for x in lst:
            if isinstance(x, tuple):
                self.a(x[0], tok=x[1])
            elif isinstance(x, str):
                self.a(x)
            elif isinstance(x, list):
                self.emit(x)
            else:
                self.a.items.append(x)

    def capture(self, fn, *args):
        keep = self.a
        self.a = Asm()
        fn(*args)
        items = self.a.items
        self.a = keep
        return items

    def stamp(self, k):
        if self.opt.get('jit') and k in (1, 3, 29, 31, 5, 36, 8, 45, 10, 37, 13, 15, 40, 17, 20, 21, 23, 24):
            lab = self.label('jit')
            self.a('s_memtime s[100:101]\ns_waitcnt lgkmcnt(0)')
            self.a.raw('s_cselect_b32 s101, 1, 0')
            self.a.raw('s_lshr_b32 s100, s100, 2')
            self.a.raw('s_and_b32 s100, s100, %d' % self.opt['jit'])
            self.a.raw('s_cbranch_scc1 %s' % lab)
            self.a.raw('s_sleep 100')
            self.a.raw(lab + ':')
            self.a.raw('s_cmp_eq_u32 s101, 1')
            return
        rt = {3: 50, 32: 51, 9: 52, 10: 53, 40: 54, 17: 55, 21: 56, 23: 57, 24: 58}
        if self.stamps and self.opt.get('lite') == 2 and k in rt:
            self.a('s_memtime s[100:101]\ns_waitcnt lgkmcnt(0)\nv_writelane_b32 v254, s100, %d' % k)
            self.a('s_memrealtime s[100:101]\ns_waitcnt lgkmcnt(0)\nv_writelane_b32 v254, s100, %d' % rt[k])
        if self.stamps and (k == 0 or not self.opt.get('lite')):
            self.a('s_memtime s[100:101]\ns_waitcnt lgkmcnt(0)\nv_writelane_b32 v254, s100, %d' % k)

    def stamp_out(self):
        if self.stamps:
            a = self.a
            a('s_waitcnt vmcnt(0)')
            a('s_memrealtime s[100:101]\ns_waitcnt lgkmcnt(0)\nv_writelane_b32 v254, s100, 62')
            a('s_memtime s[100:101]\ns_waitcnt lgkmcnt(0)\nv_writelane_b32 v254, s100, 61')
            a('s_lshl_b32 s11, s2, 2')
            a('s_add_u32 s11, s11, %s' % sW)
            a('s_lshl_b32 s11, s11, 8')
            a('s_add_u32 s11, s11, %d' % WS_TS)
            a('v_lshlrev_b32 v2, 2, v0')
            a('buffer_store_dword v254, v2, %s, s11 offen' % SRD_WS)
            if self.opt.get('dbg'):
                skip = self.label('dbg')
                a('s_memrealtime s[100:101]')
                a('s_lshl_b32 s11, s2, 2')
                a('s_add_u32 s11, s11, %s' % sW)
                a('s_cmp_lg_u32 s11, %d' % (self.opt['dbg'] * 4))
                a('s_cbranch_scc1 %s' % skip)
                a('v_readlane_b32 s12, v254, 0')
                a('v_readlane_b32 s14, v254, 63')
                for k, st in enumerate([1, 2, 4, 6, 7, 8, 9, 11, 12, 15, 16, 17, 22, 25]):
                    a('v_readlane_b32 s13, v254, %d' % st)
                    a('s_nop 3')
                    a('s_sub_u32 s13, s13, s12')
                    a('v_writelane_b32 v3, s13, %d' % (k + 1))
                a('s_waitcnt lgkmcnt(0)')
                a('s_sub_u32 s13, s100, s14')
                a('v_writelane_b32 v3, s13, 15')
                a('s_mov_b64 exec, 0xfffe')
                a('global_store_dword v2, v3, %s' % DBGP)
                a('s_mov_b64 exec, -1')
                a(skip + ':')

    def srd(self, d, p, size):
        a = self.a
        a('s_mov_b32 s%d, s%d' % (d, p))
        a('s_and_b32 s%d, s%d, 0xffff' % (d + 1, p + 1))
        a('s_mov_b32 s%d, %d' % (d + 2, size))
        a('s_mov_b32 s%d, 0x20000' % (d + 3))

    def flag_set(self, sidx, base, sh=0):
        return ['s_lshl_b32 %s, %s, %d' % (sidx, sidx, FSH + sh),
                's_add_u32 %s, %s, %d' % (sidx, sidx, WS_FL + base * FS),
                's_mov_b64 exec, 0xffff' if FS == 256 else 's_mov_b32 exec_hi, 0',
                'buffer_store_dwordx4 %s, %s, %s, %s offen sc1' % (vr(vFL), vL16, SRD_WS, sidx),
                's_mov_b64 exec, -1']

    def poll_loads(self, items, first=True):
        items = list(items)
        if len(items) % 2:
            items.append(items[-1])
        assert len(items) <= 16
        base = WSP if first else 's[14:15]'
        return ['s_load_dword s%d, %s, %s offset:%d' % (self.PT + k, base, so, imm * FS) for k, (so, imm) in enumerate(items)]

    def poll_check(self, items, onfail=None, tries=None):
        a = self.a
        n = (len(items) + 1) // 2
        top, done, slow = self.label('poll'), self.label('pdone'), self.label('pslow')
        a('s_mov_b64 s[14:15], %s' % WSP)
        a('s_mov_b32 s13, %d' % (tries if tries is not None else FS // 64 - 1))
        a(top + ':')
        a('s_waitcnt lgkmcnt(0)')
        for k in range(n):
            p = 's[%d:%d]' % (self.PT + 2 * k, self.PT + 2 * k + 1)
            a('s_xor_b64 %s, %s, %s' % (p, p, sEP2))
            if k:
                a('s_or_b64 s[%d:%d], s[%d:%d], %s' % (self.PT, self.PT + 1, self.PT, self.PT + 1, p))
        a('s_cbranch_scc0 %s' % done)
        if onfail:
            a.raw('s_cmp_lg_u32 s13, %d' % (FS // 64 - 1))
            a.raw('s_cbranch_scc1 %s_nf' % top)
            for x in ['s_waitcnt vmcnt(0)'] + onfail:
                a.raw(x)
            a.raw('%s_nf:' % top)
        a.raw('s_sub_u32 s13, s13, 1')
        a.raw('s_cbranch_scc1 %s' % slow)
        a.raw('s_sleep %d' % self.opt.get('sl1', 4))
        a.raw('s_add_u32 s14, s14, 64')
        a.raw('s_addc_u32 s15, s15, 0')
        for x in self.poll_loads(items, first=False):
            a.raw(x)
        a.raw('s_branch %s' % top)
        a(done + ':')
        o = [slow + ':', 'v_mov_b32 v255, 0']
        for k, (so, imm) in enumerate(items):
            o += ['s_add_u32 s13, %s, %d' % (so, imm * FS), 'v_writelane_b32 v255, s13, %d' % k]
        o += ['s_mov_b64 exec, 0x%x' % ((1 << len(items)) - 1), slow + '_l:',
              'buffer_load_dword v253, v255, %s, 0 offen sc1' % SRD_WS, 's_waitcnt vmcnt(0)',
              'v_cmp_ne_u32 vcc, %s, v253' % sEP, 's_nop 4', 's_cbranch_vccz %s_d' % slow,
              's_sub_u32 %s, %s, 1' % (sCT, sCT), 's_cbranch_scc1 L_exit', 's_sleep %d' % self.opt.get('sl2', 6), 's_branch %s_l' % slow,
              slow + '_d:', 'v_mov_b32 v253, %s' % sEP, 's_mov_b64 exec, -1', 's_nop 4', 's_branch %s' % done]
        self.cold += o

    def poll(self, items):
        self.emit(self.poll_loads(items))
        self.poll_check(items)

    def prewait(self, soff):
        a = self.a
        top, done = self.label('pw'), self.label('pwd')
        a('s_waitcnt vmcnt(0)')
        a(top + ':')
        a.raw('buffer_load_dword v255, off, %s, %s offset:%d sc1' % (SRD_WS, soff, FS - 64))
        a.raw('s_waitcnt vmcnt(0)')
        a.raw('v_cmp_ne_u32 vcc, %s, v255' % sEP)
        a.raw('s_nop 4')
        a.raw('s_cbranch_vccz %s' % done)
        a.raw('s_sub_u32 %s, %s, 1' % (sCT, sCT))
        a.raw('s_cbranch_scc1 L_exit')
        a.raw('s_sleep %d' % self.opt.get('sl3', 8))
        a.raw('s_branch %s' % top)
        a(done + ':')

    def epoch_issue(self):
        self.a('s_load_dword %s, %s, 0x0' % (sEP, DBGP))

    def flag_set_wg(self, sidx, base):
        o = self.flag_set(sidx, base)
        self.emit(o[:2] + ['s_cmp_eq_u32 %s, 0' % sW, 's_cselect_b32 %s, %s, %d' % (sidx, sidx, OOB)] + o[2:])

    def get_epoch(self, issued=False):
        a = self.a
        top, done = self.label('ep'), self.label('epd')
        if not issued:
            self.epoch_issue()
        a('s_waitcnt lgkmcnt(0)')
        a('s_cmp_lg_u32 %s, 0' % sEP)
        a('s_cbranch_scc0 %s' % top)
        a(done + ':')
        self.cold += [top + ':', 'v_mov_b32 v255, 0', top + '_l:', 'global_load_dword v253, v255, %s sc1' % DBGP,
                      's_waitcnt vmcnt(0)', 'v_readfirstlane_b32 %s, v253' % sEP, 's_nop 4', 's_cmp_lg_u32 %s, 0' % sEP,
                      's_cbranch_scc1 %s' % done, 's_sub_u32 %s, %s, 1' % (sCT, sCT), 's_cbranch_scc1 L_exit',
                      's_sleep 4', 's_branch %s_l' % top]
        a('s_mov_b32 s51, s50')
        for k in range(4):
            a('v_mov_b32 v%d, %s' % (vFL + k, sEP))

    def tr_lane_addr(self, dst, pitch, h16, t0, t1):
        a = self.a
        a('v_lshrrev_b32 %s, 5, v0' % t0)
        a('v_lshlrev_b32 %s, 3, %s' % (t0, t0))
        a('v_bfe_u32 %s, v0, 2, 2' % t1)
        a('v_add_u32 %s, %s, %s' % (t0, t0, t1))
        a('v_mul_u32_u24 %s, %d, %s' % (dst, pitch, t0))
        a('v_bfe_u32 %s, v0, 4, 1' % t0)
        a('v_mul_u32_u24 %s, %d, %s' % (t0, h16, t0))
        a('v_add_u32 %s, %s, %s' % (dst, dst, t0))
        a('v_and_b32 %s, 1, v0' % t0)
        a('v_lshl_add_u32 %s, %s, 4, %s' % (dst, t0, dst))
        a('v_bfe_u32 %s, v0, 1, 1' % t0)
        a('v_lshl_add_u32 %s, %s, 3, %s' % (dst, t0, dst))

    def prologue(self):
        a = self.a
        a.fresh()
        a('s_cmp_ge_u32 s2, 256')
        a('s_cbranch_scc1 L_exit')
        if self.stamps:
            a('v_mov_b32 v254, 0')
            a('s_memrealtime s[100:101]\ns_waitcnt lgkmcnt(0)\nv_writelane_b32 v254, s100, 63')
            self.stamp(0)
        a('s_load_dwordx16 s[16:31], s[0:1], 0')
        a('s_load_dwordx4 s[32:35], s[0:1], 64')
        self.code_prefetch(232)
        a('v_lshrrev_b32 v2, 6, v0')
        a('v_and_b32 v0, 63, v0')
        a('v_readfirstlane_b32 %s, v2' % sW)
        a('v_lshlrev_b32 %s, 4, v0' % vL16)
        a('s_and_b32 %s, s2, 7' % sXCD)
        a('s_lshr_b32 %s, s2, 3' % sI)
        a('s_and_b32 s11, %s, 3' % sI)
        a('s_lshl_b32 %s, %s, 2' % (sM, sXCD))
        a('s_add_u32 %s, %s, s11' % (sM, sM))
        a('s_lshr_b32 %s, %s, 2' % (sN, sI))
        a('s_mov_b32 %s, 0x40000' % sCT)

    def roles(self):
        a = self.a
        self.srd(40, 34, WS_END)
        self.srd(44, 30, 2048 * 896)
        a('s_and_b32 s11, %s, 1' % sI)
        a('s_lshl_b32 s12, %s, 1' % sN)
        a('s_add_u32 s12, s12, s11')
        a('s_lshr_b32 s13, %s, 1' % sM)
        if self.opt['p2map'] == 'A':
            a('s_mov_b32 %s, s13' % sR)
            a('s_mov_b32 %s, s12' % sHD)
        else:
            a('s_lshr_b32 %s, %s, 1' % (sR, sI))
            a('s_lshl_b32 %s, %s, 1' % (sHD, sXCD))
            a('s_add_u32 %s, %s, s11' % (sHD, sHD))
        if self.opt['p4map'] == 'A':
            a('s_mov_b32 %s, s13' % sR4)
            a('s_mov_b32 %s, s12' % sJ)
        else:
            a('s_and_b32 s11, %s, 1' % sXCD)
            a('s_lshl_b32 s11, s11, 3')
            a('s_add_u32 s11, s11, %s' % sN)
            a('s_lshr_b32 s12, %s, 1' % sXCD)
            a('s_lshl_b32 s12, s12, 2')
            a('s_and_b32 s13, %s, 3' % sI)
            a('s_add_u32 %s, s12, s13' % sR4)
            a('s_mov_b32 %s, s11' % sJ)
        a('s_lshr_b32 s11, %s, 1' % sW)
        a('s_lshl_b32 s11, s11, 10')
        a('v_xor_b32 %s, s11, %s' % (vXA, vL16))
        a('v_xor_b32 %s, 1024, %s' % (vXB, vXA))

    def code_prefetch(self, dst):
        if not self.opt['codepf']:
            return
        a = self.a
        a('s_getpc_b64 s[12:13]')
        a('L_code_pc:')
        a('s_lshr_b32 s11, s2, 3')
        a('s_lshl_b32 s11, s11, 12')
        a('v_lshl_add_u32 v%d, v0, 4, s11' % dst)
        a('v_min_u32 v%d, L_code_end-L_code_pc-16, v%d' % (dst, dst))
        a('v_mov_b32 v%d, s13' % (dst + 1))
        a('v_add_co_u32 v%d, vcc, s12, v%d' % (dst, dst))
        a('v_addc_co_u32 v%d, vcc, 0, v%d, vcc' % (dst + 1, dst + 1))
        a('global_load_dwordx4 %s, %s, off' % (vr(dst + 2), vr(dst, 2)))

    P1_X = 4 * SLOT
    P1_SL = [0, 1, 2, 3, 0, 1]
    RP_LDS = 3 * SLOT

    def p1_wdma(self, ss):
        g, h = ss // 2, ss % 2
        o = []
        for i in range(7):
            pre = ['s_add_u32 m0, s83, %d' % (self.P1_SL[ss] * SLOT + i * 1024)] if i % 4 == 0 else []
            o.append(pre + [('buffer_load_dwordx4 v%d, %s, s%d offen offset:%d lds' % (180 + g, SRD_WQKV, 68 + 7 * h + i, (i % 4) * 1024), 'w%d' % ss)])
        return o

    def p1(self):
        a = self.a
        XR, ACC, WF, PKR, T = 16, 72, 104, 136, 152
        VX, VX2 = 178, 179
        a('v_lshrrev_b32 v2, 3, v0')
        a('v_and_b32 v3, 7, v0')
        a('v_mul_u32_u24 v%d, 896, v2' % VX)
        a('v_lshl_add_u32 v%d, v3, 4, v%d' % (VX, VX))
        a('v_add_u32 v%d, %d, v%d' % (VX2, 8 * 896, VX))
        a('s_lshl_b32 s11, %s, 6' % sM)
        a('s_lshl_b32 s12, %s, 4' % sW)
        a('s_add_u32 s11, s11, s12')
        a('s_mul_i32 s14, s11, 896')
        a('s_add_u32 s15, %s, %s' % (sXCD if self.opt['rot'] == 3 else '0', sN))
        a('s_sub_u32 s13, s15, 7')
        a('s_cselect_b32 s15, s15, s13')
        a('s_lshl_b32 s15, s15, 7')
        for s in range(7):
            a('s_add_u32 s%d, s14, s15' % (92 + s))
            a('s_mul_i32 s%d, s15, 1344' % (84 + s))
            if s < 6:
                a('s_add_u32 s15, s15, 128')
                a('s_cmp_eq_u32 s15, 896')
                a('s_cselect_b32 s15, 0, s15')

        def wtab(h):
            for i in range(7):
                B = 28 * h + 4 * i
                a('s_add_u32 s%d, s%d, %d' % (68 + 7 * h + i, 84 + (B >> 3), (B & 7) * 8 * 2688 + 4096 - (i % 4) * 1024))
        wtab(0)
        a('s_mul_i32 s83, %s, 7168' % sW)
        a('s_mul_i32 s11, %s, %d' % (sW, 8 * 2688))
        a('s_lshl_b32 s12, %s, 7' % sN)
        a('s_add_u32 s11, s11, s12')
        a('v_bfe_u32 v176, v0, 4, 1')
        a('v_lshlrev_b32 v176, 2, v176')
        a('v_xor_b32 v176, v176, v3')
        a('v_mul_u32_u24 v177, 2688, v2')
        a('v_lshl_add_u32 v176, v176, 4, v177')
        a('v_add_u32 v181, s11, v176')
        a('v_add_u32 v180, 896, v181')
        self.srd(36, 16, 2048 * 896)
        self.stamp(34)
        NX0, NWF = self.opt.get('nx0', 5), self.opt.get('nwf', 0)

        def xload(s):
            return ['buffer_load_dwordx4 %s, v%d, %s, s%d offen%s' % (vr(XR + (s * 2 + q) * 4), VX2 if q else VX, SRD_X, 92 + s, ' nt' if self.opt['nt'] & 4 else '') for q in range(2)]
        for s in range(NX0):
            self.emit(xload(s))
        a('s_sub_u32 s18, s18, 4096')
        a('s_subb_u32 s19, s19, 0')
        self.srd(52, 18, 448 * 2688 + 4096)
        if self.opt.get('aw', 1):
            a('s_lshl_b32 s11, s2, 2')
            a('s_add_u32 s11, s11, %s' % sW)
            a('s_mul_i32 s11, s11, 1344')
            a('s_add_u32 s11, s11, 4096')
            a('v_lshlrev_b32 v190, 7, v0')
            a('s_mov_b64 exec, 0x7ff')
            a('buffer_load_dword v191, v190, %s, s11 offen' % SRD_WQKV)
            a('s_mov_b64 exec, -1')
        wg = self.p1_wdma(0) + self.p1_wdma(1) + self.p1_wdma(2) + self.p1_wdma(3)
        self.emit(wg[:min(NWF, 7)])
        wtab(1)
        self.emit(wg[7:NWF])
        self.stamp(26)
        self.srd(60, 24, 448 * 3584)
        self.srd(64, 26, 448 * 3584)
        self.roles()
        a('v_add_u32 v182, 1792, v181')
        a('v_lshrrev_b32 v10, 4, v0')
        a('v_xor_b32 v10, v3, v10')
        a('v_lshlrev_b32 v11, 7, v2')
        a('s_lshl_b32 s11, %s, 11' % sW)
        a('s_add_u32 s11, s11, %d' % self.P1_X)
        a('v_add_u32 v11, s11, v11')
        a('v_lshl_add_u32 v%d, v10, 4, v11' % T)
        a('v_xor_b32 v%d, 64, v%d' % (T + 1, T))
        a('v_add_u32 v%d, 1024, v%d' % (T + 1, T + 1))
        a('v_and_b32 v14, 31, v0')
        a('v_lshrrev_b32 v15, 5, v0')
        a('v_bfe_u32 v2, v0, 1, 3')
        a('v_xor_b32 v15, v15, v2')
        a('s_and_b32 s11, %s, 1' % sW)
        a('s_lshl_b32 s11, s11, 12')
        a('s_add_u32 s11, s11, %d' % self.P1_X)
        a('v_lshlrev_b32 v14, 7, v14')
        a('v_add_u32 v14, s11, v14')
        for u in range(4):
            a('v_xor_b32 v2, %d, v15' % (2 * u))
            a('v_lshl_add_u32 v%d, v2, 4, v14' % (T + 2 + u))
        self.tr_lane_addr('v14', 128, 32, 'v2', 'v3')
        a('v_bfe_u32 v2, v0, 3, 1')
        a('s_lshr_b32 s11, %s, 1' % sW)
        a('v_xor_b32 v2, s11, v2')
        a('v_lshl_add_u32 v%d, v2, 6, v14' % (T + 6))
        a('v_lshrrev_b32 v2, 5, v0')
        a('v_mul_u32_u24 v2, %d, v2' % (7168 - 1024))
        a('v_add_u32 v%d, v2, v%d' % (T + 6, T + 6))
        a('v_add_u32 v%d, %d, v%d' % (T + 7, 2 * SLOT, T + 6))
        ONE, SU, SQ, RS, NB, TMP = T + 9, ACC, ACC + 4, T + 10, T + 14, T + 18
        a('v_mov_b32 v%d, 0x3f803f80' % ONE)
        a('v_mov_b32 v%d, 0xffff0000' % TMP)
        st = []
        for s in range(7):
            for q in range(2):
                for d in range(4):
                    x = XR + (s * 2 + q) * 4 + d
                    k = q * 2 + (d & 1)
                    first = s == 0 and d < 2
                    st.append('v_dot2_f32_bf16 v%d, v%d, v%d, %s' % (SU + k, x, ONE, '0' if first else 'v%d' % (SU + k)))
                    st.append('v_dot2_f32_bf16 v%d, v%d, v%d, %s' % (SQ + k, x, x, '0' if first else 'v%d' % (SQ + k)))
        red = []
        for q in range(2):
            st.append('v_add_f32 v%d, v%d, v%d' % (SU + 2 * q, SU + 2 * q, SU + 2 * q + 1))
            st.append('v_add_f32 v%d, v%d, v%d' % (SQ + 2 * q, SQ + 2 * q, SQ + 2 * q + 1))
            red += [SU + 2 * q, SQ + 2 * q]
        for dpp in ('quad_perm:[1,0,3,2]', 'quad_perm:[2,3,0,1]', 'row_half_mirror'):
            for r in red:
                st.append('v_add_f32_dpp v%d, v%d, v%d %s row_mask:0xf bank_mask:0xf' % (r, r, r, dpp))
        for q in range(2):
            su, sq = SU + 2 * q, SQ + 2 * q
            st += ['v_mul_f32 v%d, %s, v%d' % (su, f32(1.0 / 448), su),
                   'v_mul_f32 v%d, %s, v%d' % (sq, f32(1.0 / 448), sq),
                   'v_fma_f32 v%d, -v%d, v%d, v%d' % (sq, su, su, sq),
                   'v_max_f32 v%d, 0, v%d' % (sq, sq),
                   'v_add_f32 v%d, %s, v%d' % (sq, f32(1e-5), sq),
                   'v_rsq_f32 v%d, v%d' % (RS + 2 * q, sq),
                   'v_mul_f32_e64 v%d, -v%d, v%d' % (NB + 2 * q, su, RS + 2 * q)]

        def norm(s, pk):
            o = []
            for q in range(2):
                b = XR + (s * 2 + q) * 4
                tb_ = PKR + q * 8
                for d in range(4):
                    o.append('v_lshlrev_b32 v%d, 16, v%d' % (tb_ + 2 * d, b + d))
                    o.append('v_and_b32 v%d, v%d, v%d' % (tb_ + 2 * d + 1, TMP, b + d))
                for d in range(4):
                    t0 = tb_ + 2 * d
                    if pk:
                        o.append('v_pk_fma_f32 %s, %s, %s, %s op_sel_hi:[1,0,0]' % (
                            vr(t0, 2), vr(t0, 2), vr(RS + 2 * q, 2), vr(NB + 2 * q, 2)))
                    else:
                        o.append('v_fma_f32 v%d, v%d, v%d, v%d' % (t0, t0, RS + 2 * q, NB + 2 * q))
                        o.append('v_fma_f32 v%d, v%d, v%d, v%d' % (t0 + 1, t0 + 1, RS + 2 * q, NB + 2 * q))
                for d in range(4):
                    o.append('v_cvt_pk_bf16_f32 v%d, v%d, v%d' % (b + d, tb_ + 2 * d, tb_ + 2 * d + 1))
                if s == 6 and q == 0:
                    o.append('s_barrier')
                o.append('ds_write_b128 v%d, %s offset:%d' % (T + q, vr(b), (s % 6) * 8192))
            return o

        def xread(ks):
            return 'ds_read_b128 %s, v%d offset:%d' % (ar(4 * ks), T + 2 + ks % 4, ((ks // 4) % 6) * 8192)

        cnt = [0]

        def wread(ss, k):
            b = WF + (cnt[0] % 8) * 4
            cnt[0] += 1
            sl = self.P1_SL[ss]
            return b, ['ds_read_b64_tr_b16 %s, v%d offset:%d' % (vr(b + 2 * z, 2), T + 6 + (sl >> 1), (sl & 1) * SLOT + (k & 1) * 14336 + (k >> 1) * 1024 + z * 512)
                       for z in range(2)]

        D = 6

        def store(g):
            so = ['s82', 'vcc_lo', 'vcc_hi'][g]
            o = []
            for h in range(2):
                pk = PKR + (g % 2) * 8 + 4 * h
                for d in range(4):
                    r = ACC + 16 * (g % 2) + 8 * h + 2 * d
                    o.append('v_cvt_pk_bf16_f32 v%d, v%d, v%d' % (pk + d, r, r + 1))
                o.append(('buffer_store_dwordx4 %s, %s, %s, %s offen offset:%d sc1' % (vr(pk), vL16, SRD_WS, so, h * 1024), 'q%d' % g))
            return o

        def sync(ss):
            return [Pseudo('wait_tok', 'w%d' % ss), 's_waitcnt lgkmcnt(0)', 's_barrier']
        a('s_lshl_b32 s13, %s, 1' % sM)
        a('s_and_b32 s12, %s, 1' % sW)
        a('s_add_u32 s13, s13, s12')
        a('s_lshr_b32 s12, %s, 1' % sW)
        a('s_lshl_b32 s11, %s, 1' % sN)
        a('s_add_u32 s12, s12, s11')
        a('s_mul_i32 vcc_lo, s13, %d' % (84 * 1024))
        a('s_lshl_b32 s11, s12, 11')
        a('s_add_u32 vcc_lo, vcc_lo, s11')
        a('s_add_u32 s82, vcc_lo, %d' % (28 * 1024))
        a('s_add_u32 vcc_hi, vcc_lo, %d' % (56 * 1024))
        a('s_lshl_b32 s16, s13, 4')
        a('s_add_u32 s16, s16, s12')
        a('s_lshl_b32 s16, s16, %d' % (FSH + 2))
        a('s_add_u32 s16, s16, %d' % (WS_FL + FL_F1 * FS))
        a('s_mov_b32 %s, s16' % sBK2)
        self.stamp(1)
        for s_ in range(NX0, 7):
            self.emit(xload(s_))
        self.emit(self.p2_setup_s())
        self.p2_setup_v()
        self.emit(self.rp_load()[0])
        if self.opt.get('pw', 3) == 2:
            self.emit(self.prewrite('A', 184))
        k = NWF
        for s in range(7):
            blk = st[16 * s:16 * s + 16]
            self.emit(blk[:9])
            if s in (0, 3, 6):
                self.stamp(42 + s // 3)
            if k + 2 <= self.opt.get('n0', 14):
                self.emit(wg[k] + blk[9:] + wg[k + 1])
                k += 2
            else:
                self.emit(blk[9:])
        n1 = self.opt.get('n1', 20)
        if self.opt.get('pw', 3) == 3:
            self.emit(self.prewrite('A', 184))
        nf, wl = self.opt.get('nf', 4), self.opt.get('wl', 0)
        pre = st[112:] + norm(0, True) + norm(1, True) + ['s_load_dword %s, %s, 0x0' % (sEP, DBGP)] + \
            [x for c_ in range(2, 7 if wl else nf) for x in norm(c_, True)]
        isw = lambda x: x.startswith('ds_write') or x == 's_barrier'
        late = []
        if wl:
            wr = [x for x in pre if isw(x)]
            pre = [x for x in pre if not isw(x)]
            late = wr[2 * nf:]
            self.emit(sprinkle(pre, wg[k:n1], 0.2, 1.0))
            self.stamp(58)
            if wl >= 2:
                a.wait_tok('w%d' % (wl - 1))
            self.emit(wr[:2 * nf])
        else:
            self.emit(sprinkle(pre, wg[k:n1], 0.3, 1.0))
        self.stamp(2)
        self.emit(sync(0))
        self.get_epoch(issued=True)
        self.stamp(3)
        seq = [(ss, kk) for ss in range(6) for kk in range(14)]

        def rds(i):
            ss, kk = seq[i]
            b, r = wread(ss, kk)
            o = sync(ss) if (kk == 0 and ss) else []
            if ss < 2:
                o.append(xread(14 * ss + kk))
            return b, o + r
        rd = [rds(i) for i in range(len(seq))]
        for i in range(D):
            self.emit(rd[i][1])
        self.stamp(57)
        for ss in range(6):
            g, h = ss // 2, ss % 2
            acc = vr(ACC + 16 * (g % 2), 16)
            A, B = [], []
            for kk in range(14):
                i = 14 * ss + kk
                m_ = '%s %s, %s, %s, %s' % (MFMA, acc, vr(rd[i][0]), ar(4 * (14 * h + kk)), acc if (kk or h) else '0')
                (A if kk <= 14 - D else B).append(m_)
                if i + D < len(seq):
                    (A if kk < 14 - D else B).extend(rd[i + D][1])
            sa, sb = [], []
            if ss == 0:
                sa = sprinkle([x for s in range(nf, 7) for x in norm(s, self.opt.get('pk0', 0))], wg[n1:], 0.0, 0.9) if not wl else [x for g_ in wg[n1:] for x in g_] + late
            if ss in (2, 4):
                sa = ['s_nop 0'] * 0 + store(ss // 2 - 1)
            fl = lambda gs: [x for g_ in gs for x in g_]
            if ss == 0:
                sb = fl(self.p1_wdma(4)[:4])
            if ss == 1:
                sa = fl(self.p1_wdma(4)[4:])
                sb = fl(self.p1_wdma(5)[:4])
            if ss == 2:
                sa = fl(self.p1_wdma(5)[4:]) + sa
            if ss == 2 and self.opt.get('rpl', 3) == 0:
                sb = self.rp_load()[0]
            if ss == 1 and self.opt.get('pw', 3) == 1:
                sa = sa + self.prewrite('A', 184)
            if ss == 3:
                sa = self.p2_masks()
            if ss == self.opt.get('kf', 3):
                sb = [[], [], [], [[Pseudo('wait_tok', 'q0')] + self.f1_set(0)]]
            A, r1 = weave(A, sa, start=1 if ss in (2, 4) else ((4 if wl else 2) if (ss == 0 and nf == 6) else 0))
            if ss == 5:
                B = B[:2] + ['s_waitcnt lgkmcnt(0)'] + self.poll_loads(self.kflags(0)) + B[2:] + [Pseudo('wait_tok', 'q1')] + self.f1_set(1)
                r2 = []
            else:
                B, r2 = weave(B, sb)
            self.emit(A + r1 + B + r2)
            self.stamp(27 + ss)
        self.emit(store(2))

    def kflags(self, part):
        return [('s%d' % (20 + g), k * 64 + part) for g in range(2) for k in range(3)]

    def qflags(self):
        return [('s22', 1), ('s23', 1)]

    def fo_items(self):
        return [('s18', k) for k in range(2)]

    def rp_load(self):
        o = ['v_lshrrev_b32 v220, 3, v0', 'v_and_b32 v221, 7, v0', 'v_mul_u32_u24 v220, 3584, v220',
             'v_lshl_add_u32 v220, v221, 4, v220', 'v_add_u32 v221, %d, v220' % (8 * 3584 - 1024),
             's_lshl_b32 s25, %s, 6' % sN, 's_lshl_b32 s28, %s, 4' % sW, 's_add_u32 s25, s25, s28', 's_mul_i32 s25, s25, 3584',
             's_lshl_b32 s28, %s, 7' % sM, 's_add_u32 s25, s25, s28',
             ['s_cmp_lt_u32 %s, 28' % sM, 's_cselect_b32 s25, s25, %d' % OOB], 's_lshl_b32 s28, %s, 11' % sW]
        d = []
        for img, srd in enumerate((SRD_G, SRD_U)):
            d.append('s_add_u32 m0, s28, %d' % (self.RP_LDS + img * 8192))
            for z in range(2):
                d.append(('buffer_load_dwordx4 v%d, %s, s25 offen offset:%d%s lds' % (220 + z, srd, z * 1024, ' nt' if self.opt['nt'] & 1 else ''), 'rp'))
        return o, d

    def rp_prep(self):
        a = self.a
        self.tr_lane_addr('v15', 128, 8192, 'v2', 'v3')
        a('s_lshl_b32 s11, %s, 5' % sW)
        a('s_add_u32 s11, s11, %d' % self.RP_LDS)
        a('v_add_u32 v15, s11, v15')
        a('s_lshl_b32 s13, %s, 2' % sM)
        a('s_add_u32 s13, s13, %s' % sW)
        a('s_mul_i32 s0, s13, 28672')
        a('s_lshl_b32 s12, %s, 12' % sN)
        a('s_add_u32 s0, s0, s12')
        a('s_add_u32 s0, s0, %d' % WS_WGU)
        a('s_mul_i32 s1, s13, 896')
        a('s_lshl_b32 s12, %s, 7' % sN)
        a('s_add_u32 s1, s1, s12')
        a('s_add_u32 s1, s1, %d' % WS_CS)
        a('s_lshl_b32 s12, %s, 2' % sN)
        a('s_max_u32 s12, s12, %s' % sM)
        a('s_cmp_lt_u32 s12, 28')
        a('s_cselect_b32 s0, s0, %d' % OOB)
        a('s_cselect_b32 s1, s1, %d' % OOB)

    def rp_frag(self):
        a = self.a
        for u in range(4):
            for z in range(2):
                a('ds_read_b64_tr_b16 %s, v15 offset:%d' % (ar(168 + u * 4 + z * 2, 2), (16 * u + 4 * z) * 128))
        for d in range(4):
            a('v_mov_b32 v%d, 0x3f803f80' % (160 + d))
        a('v_lshlrev_b32 v164, 2, v0')

    def rp_mm(self):
        for u in range(4):
            self.a('%s v[16:31], v[160:163], %s, %s' % (MFMA, ar(168 + u * 4), 'v[16:31]' if u else '0'))

    def rp_store(self):
        a = self.a
        for u in range(4):
            a('buffer_store_dwordx4 %s, %s, %s, s0 offen offset:%d sc1' % (ar(168 + u * 4), vL16, SRD_WS, u * 1024), tok='rs')
        a('s_mov_b32 exec_hi, 0')
        a('buffer_store_dword v16, v164, %s, s1 offen sc1' % SRD_WS, tok='rs')
        a('s_mov_b32 exec_hi, -1')

    def fg_set(self):
        a = self.a
        a('s_mul_i32 s11, %s, 7' % sM)
        a('s_add_u32 s11, s11, %s' % sN)
        a('s_cmp_ge_u32 %s, 7' % sN)
        a('s_cselect_b32 s11, %d, s11' % (FL_FD + 31 - FL_FG))
        self.flag_set_wg('s11', FL_FG)

    def prewrite(self, part, z):
        assert FS == 256
        st = lambda s_: 'buffer_store_dwordx4 %s, %s, %s, %s offen sc1' % (vr(z), vL16, SRD_WS, s_)
        o = ['v_mov_b32 v%d, 0' % (z + k) for k in range(4)]
        if part == 'A':
            return o + [st('s16')]
        o += ['s_lshl_b32 s12, %s, 2' % sR4, 's_add_u32 s12, s12, %s' % sW, 's_lshl_b32 s12, s12, 4', 's_add_u32 s12, s12, %s' % sJ,
              's_lshl_b32 s12, s12, 10', 's_add_u32 s12, s12, %d' % (WS_FL + FL_F4 * FS),
              ['s_mov_b32 exec_hi, 0xffff', st('s12'), 's_mov_b32 exec_hi, -1'] if self.opt.get('stg', 247) < 1000 else st('s12')]
        o += ['s_lshl_b32 s12, s24, 4', 's_add_u32 s12, s12, %s' % sHD,
              's_lshl_b32 s12, s12, 8', 's_add_u32 s12, s12, %d' % (WS_FL + FL_F2 * FS),
              ['s_mov_b64 exec, 0xffff', st('s12'), 's_mov_b64 exec, -1']]
        return o

    def prewrite_data(self, z):
        st = lambda s_, off: 'buffer_store_dwordx4 %s, %s, %s, %s offen offset:%d sc1' % (vr(z), vL16, SRD_WS, s_, off)
        o = ['s_lshl_b32 s11, s24, 4', 's_add_u32 s11, s11, %s' % sHD, 's_lshl_b32 s11, s11, 11', 's_add_u32 s11, s11, %d' % WS_O,
             st('s11', 0), st('s11', 1024),
             's_lshl_b32 s13, %s, 1' % sM, 's_and_b32 s12, %s, 1' % sW, 's_add_u32 s13, s13, s12', 's_mul_i32 s13, s13, 14',
             's_lshr_b32 s12, %s, 1' % sW, 's_add_u32 s13, s13, s12', 's_lshl_b32 s12, %s, 1' % sN, 's_add_u32 s13, s13, s12',
             's_lshl_b32 s13, s13, 11', 's_add_u32 s13, s13, %d' % WS_HB,
             's_cmp_ge_u32 %s, 7' % sN, 's_cselect_b32 s13, %d, s13' % OOB, st('s13', 0), st('s13', 1024)]
        return o

    def touch(self, v):
        sh = self.opt.get('tsh', 19)
        return ['v_lshlrev_b32 v%d, %d, v0' % (v, sh),
                'buffer_load_dword v%d, v%d, %s, 0 offen offset:2048' % (v + 1, v, SRD_WS),
                'buffer_load_dword v%d, v%d, %s, 0 offen offset:2048' % (v + 1, v, SRD_OUT)]

    def idle1(self):
        a = self.a
        self.srd(36, 16, 2048 * 896)
        self.srd(40, 34, WS_END)
        noep = self.label('noep')
        a('s_lshl_b32 s13, s2, 2')
        a('s_add_u32 s13, s13, %s' % sW)
        a('s_cmp_lg_u32 s13, 1020')
        a('s_cbranch_scc1 %s' % noep)
        a.begin_cond(noep)
        a('s_mov_b32 s13, %d' % WS_EP)
        a('s_load_dword s12, %s, s13 glc' % WSP)
        a('s_add_u32 s12, s12, 1')
        a('s_max_u32 s12, s12, 1')
        a('v_mov_b32 v8, s12')
        a('v_mov_b32 v9, 0')
        a('s_mov_b64 exec, 1')
        a('buffer_store_dword v8, off, %s, s13 sc1' % SRD_WS)
        a('global_store_dword v9, v8, %s sc1' % DBGP)
        a('s_mov_b64 exec, -1')
        a.end_cond()
        a(noep + ':')
        if self.opt.get('j0', 0):
            self.srd(52, 18, 448 * 2688)
            a('s_lshl_b32 s11, %s, 2' % sM)
            a('s_add_u32 s11, s11, %s' % sW)
            a('s_mul_i32 s11, s11, 9408')
            for k in range(10):
                if k and k % 4 == 0:
                    a('s_add_u32 s11, s11, 4096')
                a('buffer_load_dwordx4 v[40:43], %s, %s, s11 offen offset:%d' % (vL16, SRD_WQKV, (k % 4) * 1024))
        a('v_lshrrev_b32 v2, 3, v0')
        a('v_and_b32 v3, 7, v0')
        a('s_mul_i32 s17, %s, 40960' % sW)
        self.srd(60, 24, 448 * 3584)
        self.srd(64, 26, 448 * 3584)
        self.srd(52, 28, 1792 * 896)
        self.srd(56, 20, 448 * 896)
        self.roles()
        if self.opt.get('ti', 1):
            self.emit(self.touch(38))
            a('buffer_load_dword v39, v38, %s, 0 offen' % SRD_G)
            a('buffer_load_dword v39, v38, %s, 0 offen' % SRD_U)
        a('v_mul_u32_u24 v4, 896, v2')
        a('v_lshl_add_u32 v4, v3, 4, v4')
        a('s_and_b32 s12, %s, 3' % sM)
        a('s_mul_i32 s19, s12, 112')
        a('s_lshl_b32 s11, %s, 4' % sW)
        a('s_add_u32 s19, s19, s11')
        a('s_lshr_b32 s11, %s, 1' % sW)
        a('s_lshl_b32 s11, s11, 3')
        a('s_sub_u32 s19, s19, s11')
        a('s_mul_i32 s19, s19, 896')
        a('s_lshr_b32 s13, %s, 2' % sM)
        a('s_lshl_b32 s11, s13, 7')
        a('s_add_u32 s19, s19, s11')
        a('s_lshl_b32 s18, s13, 5')
        a('s_lshl_b32 s11, s12, 3')
        a('s_add_u32 s18, s18, s11')
        a('s_add_u32 s18, s18, %s' % sW)
        a('s_lshl_b32 s18, s18, 11')
        a('s_add_u32 s18, s18, %d' % WS_WO)
        a('s_lshl_b32 s20, %s, 2' % sM)
        a('s_add_u32 s20, s20, %s' % sW)
        a('s_lshl_b32 s21, s20, 11')
        a('s_add_u32 s21, s21, %d' % WS_WD)
        a('s_cmp_lt_u32 %s, 28' % sM)
        a('s_cselect_b32 s19, s19, %d' % OOB)
        a('s_cselect_b32 s18, s18, %d' % OOB)
        a('s_cselect_b32 s21, s21, %d' % OOB)
        for k in range(4):
            a('s_add_u32 m0, s17, %d' % (14336 + k * 1024))
            a('s_add_u32 s11, s19, %d' % (((k >> 1) * 56 + (k & 1) * 8) * 896))
            a('buffer_load_dwordx4 v4, %s, s11 offen%s lds' % (SRD_D, ' nt' if self.opt['nt'] & 2 else ''), tok='j2')
        self.tr_lane_addr('v6', 128, 32, 'v2', 'v3')
        a('v_add_u32 v6, s17, v6')
        self.tr_lane_addr('v7', 896, 32, 'v2', 'v3')
        a('v_add_u32 v7, s17, v7')

        def j3():
            a('s_lshl_b32 s11, %s, 2' % sM)
            a('s_add_u32 s11, s11, %s' % sW)
            a('s_mul_i32 s11, s11, 12544')
            for k in range(13):
                if k and k % 4 == 0:
                    a('s_add_u32 s11, s11, 4096')
                for srd in ((SRD_G, SRD_U) if self.opt.get('j3') in (1, 3) else (SRD_G,)):
                    a('buffer_load_dwordx4 v[40:43], %s, %s, s11 offen offset:%d' % (vL16, srd, (k % 4) * 1024))

        def j4():
            a('s_mul_i32 s22, s20, %d' % (16 * 896))
            for k in range(14):
                if k % 4 == 0:
                    a('s_add_u32 m0, s17, %d' % (18432 + k * 1024))
                    if k:
                        a('s_add_u32 s22, s22, 4096')
                a('buffer_load_dwordx4 %s, %s, s22 offen offset:%d%s lds' % (vL16, SRD_WQKV, (k % 4) * 1024, ' nt' if self.opt['nt'] & 2 else ''), tok='j4')

        def j2p():
            a.wait_tok('j2')
            for k in range(4):
                for z in range(2):
                    a('ds_read_b64_tr_b16 %s, v6 offset:%d' % (vr(24 + k * 4 + z * 2, 2), 14336 + (k >> 1) * 2048 + (k & 1) * 64 + z * 512))
            a('s_add_u32 s19, s18, 8192')
            for k in range(4):
                a('buffer_store_dwordx4 %s, %s, %s, s%d offen offset:%d sc1' % (vr(24 + k * 4), vL16, SRD_WS, 18 + (k >> 1), (k & 1) * 1024), tok='c2')

        def j4p():
            a.wait_tok('j4')
            for ct in range(14):
                for z in range(2):
                    a('ds_read_b64_tr_b16 %s, v110 offset:%d' % (vr(48 + ct * 4 + z * 2, 2), 18432 + ct * 64 + z * 4 * 896))
            for ct in range(14):
                if ct and ct % 2 == 0:
                    a('s_add_u32 s0, s0, %d' % (112 * 2048))
                a('buffer_store_dwordx4 %s, %s, %s, s0 offen offset:%d sc1' % (vr(48 + ct * 4), vL16, SRD_WS, (ct % 2) * 1024), tok='c4')

        def flag(tok, base):
            a.wait_tok(tok)
            a('s_barrier')
            a('s_mov_b32 s11, %s' % sM)
            self.flag_set_wg('s11', base)
        if self.opt.get('j4e', 0):
            j4()
            j2p()
        else:
            j2p()
            j4()
        a('v_mov_b32 v110, v7')
        a('s_mov_b32 s0, s21')
        self.p2_setup_v()
        self.emit(self.p2_masks())
        self.emit(self.p2_setup_s())
        self.res_voffset('v15', 's1')
        self.emit(self.rp_load()[0])
        self.get_epoch()
        flag('c2', FL_FO)
        self.stamp(1)
        if self.opt.get('j3', 0) in (3, 4):
            j3()
        j4p()
        self.stamp(2)
        a('s_lshl_b32 s0, %s, %d' % (sM, FSH + 7))
        a('s_add_u32 s0, s0, %d' % (WS_FL + (FL_F1 + 6 * 4 + self.opt.get('px', 1)) * FS))
        a('s_load_dword s12, %s, s0 offset:128' % WSP)
        flag('c4', FL_FD)
        if self.opt.get('j3', 0) in (1, 2):
            j3()
        self.stamp(3)
        a('s_cmp_eq_u32 s12, %s' % sEP)
        a('s_cbranch_scc1 L_nopw')
        a('s_cmp_lg_u32 %s, 0' % sW)
        a('s_cbranch_scc1 L_nopw')
        self.prewait('s0')
        a('L_nopw:')
        a('s_barrier')
        self.poll(self.kflags(0) + self.qflags())
        self.k_issue()
        a('s_mov_b32 s11, s1')

    KV_LDS = 4 * SLOT

    def p2_setup_s(self):
        o = []
        a = o.append
        a('s_mul_i32 s28, %s, 7' % sHD)
        a('s_lshr_b32 s28, s28, 1')
        a('s_lshl_b32 s11, %s, 2' % sR)
        a('s_add_u32 s12, s11, %s' % sW)
        a('s_mul_i32 s13, %s, 3' % sW)
        a('s_add_u32 s11, s11, s13')
        a('s_sub_i32 s18, s11, 8')
        a('s_max_i32 s13, s18, 0')
        a('s_lshl_b32 s13, s13, %d' % (FSH + 6))
        a('s_add_u32 s13, s13, %d' % (WS_FL + FL_F1 * FS))
        a('s_lshl_b32 s14, s12, %d' % (FSH + 6))
        a('s_add_u32 s14, s14, %d' % (WS_FL + FL_F1 * FS))
        for k, add in enumerate((0, 3)):
            a('s_add_u32 s15, s28, %d' % add)
            a('s_lshr_b32 s15, s15, 2')
            a('s_lshl_b32 s15, s15, %d' % (FSH + 2))
            a('s_add_u32 s%d, s15, s13' % (20 + k))
            a('s_add_u32 s%d, s15, s14' % (22 + k))
        a('s_mov_b32 s24, s12')
        a('s_lshl_b32 s28, s28, 9')
        a('s_mul_i32 s19, s12, %d' % (84 * 1024))
        a('s_add_u32 s19, s19, s28')
        for k in range(3):
            a('s_add_i32 s13, s18, %d' % k)
            a('s_mul_i32 s14, s13, %d' % (84 * 1024))
            a('s_add_u32 s14, s14, s28')
            a('s_add_u32 s14, s14, %d' % (56 * 512))
            a('s_cmp_lt_i32 s13, 0')
            a('s_cselect_b32 s%d, %d, s14' % (29 + k, OOB))
        a('s_mul_i32 s17, %s, %d' % (sW, 3 * 4096))
        a('v_lshrrev_b32 v5, 5, v0')
        a('v_lshlrev_b32 v5, 6, v5')
        a('v_xor_b32 v4, %s, v5' % vL16)
        a('v_xor_b32 v5, 128, v4')
        a('s_bitcmp1_b32 %s, 0' % sHD)
        a('s_cselect_b64 s[26:27], -1, 0')
        a('s_min_u32 s18, %s, 6' % sN)
        a('s_lshl_b32 s18, s18, 2')
        a('s_and_b32 s11, %s, 2' % sW)
        a('s_add_u32 s18, s18, s11')
        a('s_lshl_b32 s18, s18, %d' % FSH)
        a('s_add_u32 s18, s18, %d' % (WS_FL + FL_FO * FS))
        return o

    def p2_masks(self):
        o = ['v_and_b32 v2, 31, v0', 'v_lshrrev_b32 v3, 5, v0', 'v_lshlrev_b32 v3, 2, v3', 'v_sub_u32 v2, v2, v3']
        return o + ['v_cmp_le_i32 s[%d:%d], %d, v2' % (MASK0 + 2 * r, MASK0 + 2 * r + 1, (r & 3) + 8 * (r >> 2)) for r in range(16)]

    def p2_setup_v(self):
        a = self.a
        M = 224
        a('v_and_b32 v2, 31, v0')
        a('v_lshrrev_b32 v3, 5, v0')
        a('v_lshlrev_b32 v3, 2, v3')
        a('v_sub_u32 v2, v3, v2')
        a('s_mov_b32 s11, 0x03020706')
        for p in range(8):
            k0 = ((2 * p) & 3) + 8 * ((2 * p) >> 2)
            a('v_add_u32 v3, %d, v2' % (k0 - 1))
            a('v_add_u32 v8, %d, v2' % k0)
            a('v_perm_b32 v%d, v3, v8, s11' % (M + p))
        a('s_bitcmp1_b32 %s, 0' % sHD)
        a('s_cselect_b32 s12, -1, 0')
        a('s_mov_b32 s13, 0')
        a('v_cndmask_b32 v6, -1, 0, s[12:13]')
        a('s_cselect_b32 s13, 0, -1')
        a('s_mov_b32 s12, 0')
        a('v_cndmask_b32 v7, -1, 0, s[12:13]')
        a('s_cselect_b32 s11, 0, %d' % (3 * 512 + 8))
        a('s_mul_i32 s12, %s, %d' % (sW, 3 * 4096))
        a('s_add_u32 s11, s11, s12')
        a('s_add_u32 s11, s11, %d' % (self.KV_LDS + 2048))
        a('v_and_b32 v8, 31, v0')
        a('v_lshlrev_b32 v8, 4, v8')
        a('v_add_u32 v8, s11, v8')
        a('v_lshrrev_b32 v9, 5, v0')
        a('v_lshl_add_u32 v9, v9, 12, v8')
        a('v_mov_b32 v10, 0x3f80')
        a('v_mov_b32 v11, 0')
        a('s_lshl_b32 s11, %s, 12' % sW)
        a('s_add_u32 s11, s11, %d' % self.KV_LDS)
        a('v_add_u32 v12, s11, %s' % vL16)
        a('v_and_b32 v2, 1, v0')
        a('v_bfe_u32 v3, v0, 4, 1')
        a('v_lshrrev_b32 v13, 5, v0')
        a('v_xor_b32 v13, v13, v2')
        a('v_lshlrev_b32 v13, 6, v13')
        a('v_lshl_add_u32 v13, v3, 7, v13')
        a('v_lshl_add_u32 v13, v2, 9, v13')
        a('v_lshl_add_u32 v13, v3, 10, v13')
        a('v_bfe_u32 v2, v0, 2, 2')
        a('v_lshl_add_u32 v13, v2, 4, v13')
        a('v_bfe_u32 v2, v0, 1, 1')
        a('v_lshl_add_u32 v13, v2, 3, v13')
        a('v_xor_b32 v14, 128, v13')
        a('s_add_u32 s11, s11, 2048')
        a('v_add_u32 v13, s11, v13')
        a('v_add_u32 v14, s11, v14')

    def k_issue(self):
        a = self.a
        for k in range(3):
            a('s_add_u32 m0, s17, %d' % (self.KV_LDS + k * 4096))
            for t in range(2):
                a('buffer_load_dwordx4 %s, %s, s%d offen offset:%d sc1 lds' % (vL16, SRD_WS, 29 + k, t * 1024), tok='k')

    def q_issue(self):
        for t in range(2):
            self.a('buffer_load_dwordx4 %s, %s, %s, s19 offen offset:%d sc1' % (vr(232 + 4 * t), vL16, SRD_WS, t * 1024))

    def v_issue(self):
        a = self.a
        for k in range(3):
            a('s_add_u32 m0, s17, %d' % (self.KV_LDS + k * 4096 + 2048))
            a('s_add_u32 s13, s%d, %d' % (29 + k, 56 * 512))
            for t in range(2):
                a('buffer_load_dwordx4 v%d, %s, s13 offen offset:%d sc1 lds' % (4 + t, SRD_WS, t * 1024), tok='v')

    def p2(self):
        a = self.a
        S, KF, Q, VF, P, O, M = 16, 160, 232, 176, 192, 208, 224
        rpl = self.opt.get('rpl', 3)
        ve = self.opt.get('ve', 0)
        if ve:
            self.poll(self.kflags(2))
            self.v_issue()
            if self.opt.get('ro', 0) == 4:
                self.emit(self.rp_load()[1])
        a('v_and_b32 v%d, v%d, v6' % (Q, Q))
        a('v_and_b32 v%d, v%d, v6' % (Q + 1, Q + 1))
        a('v_and_b32 v%d, v%d, v7' % (Q + 6, Q + 6))
        a('v_and_b32 v%d, v%d, v7' % (Q + 7, Q + 7))
        a.wait_tok('k')
        a('s_barrier')
        self.stamp(8)
        order = [0, 8, 1, 2, 3, 4, 5, 6, 7]
        KB = [KF, KF + 8, VF, VF + 8]
        MX = 216

        def kread(i):
            return ['ds_read_b128 %s, v12 offset:%d' % (vr(KB[i % 4] + h * 4), order[i] * 4096 + h * 1024) for h in range(2)]

        def smm(i):
            t = order[i]
            return ['%s %s, %s, %s, %s' % (MFMA, vr(S + 16 * t, 16), vr(KB[i % 4] + h * 4), vr(Q + 4 * h),
                                           vr(S + 16 * t, 16) if h else '0') for h in range(2)]

        def fill(t):
            lab = self.label('fill')
            self.cold += [lab + ':', 's_nop 15'] + ['v_mov_b32 v%d, 0xff800000' % (S + 16 * t + r) for r in range(16)] + ['s_branch %s_r' % lab]
            return ['s_cmp_lt_u32 s24, %d' % (8 - t), 's_cbranch_scc1 %s' % lab, lab + '_r:']

        def mx(t):
            m3 = ['v_max3_f32 v%d, v%d, v%d, v%d' % (MX + k % 4, MX + k % 4, S + 2 * k, S + 2 * k + 1) for k in range(8 * t, 8 * t + 8)]
            if t == 0:
                o = fill(0)
                o += ['v_cndmask_b32 v%d, v%d, v%d, s[%d:%d]' % (S + r, S + r, S + 128 + r, MASK0 + 2 * r, MASK0 + 2 * r + 1) for r in range(16)]
                o += ['v_max_f32 v%d, v%d, v%d' % (MX + k, S + 2 * k, S + 2 * k + 1) for k in range(4)] + m3[4:]
                return o[:15], o[15:]
            la, lb = self.label('mxa'), self.label('mxb')
            c = 's_cmp_lt_u32 s24, %d' % (8 - t)
            return ([c, 's_cbranch_scc1 %s' % la, Pseudo('begin', la)] + m3[:4] + [Pseudo('end'), la + ':'],
                    ['s_cbranch_scc1 %s' % lb, Pseudo('begin', lb)] + m3[4:] + [Pseudo('end'), lb + ':'])

        def fill_rest():
            lab = self.label('fillr')
            o = [lab + ':', 's_nop 15']
            for t in range(1, 8):
                if t > 1:
                    o += ['s_cmp_lt_u32 s24, %d' % (8 - t), 's_cbranch_scc0 %s_r' % lab]
                o += ['v_mov_b32 v%d, 0xff800000' % (S + 16 * t + r) for r in range(16)]
            self.cold += o + ['s_branch %s_r' % lab]
            return ['s_cmp_lt_u32 s24, 7', 's_cbranch_scc1 %s' % lab, lab + '_r:']
        wo = self.wo_rest
        self.emit(kread(0) + kread(1) + kread(2))
        for i in range(9):
            m0_, m1_ = smm(i)
            va, vb = mx(i - 4) if i >= 4 else ([], [])
            sl_ = [wo.pop(0)] if (wo and i < self.opt.get('sw', 8)) else []
            self.emit([m0_] + (kread(i + 3) if i + 3 < 9 else []) + sl_ + va + [m1_] + vb)
        if self.opt.get('ro', 0) == 2:
            self.emit(self.rp_load()[1])
        if ve:
            self.p4_wsetup()
            fg, fd = self.fg_items()
            self.emit(self.poll_loads(fd))
        else:
            self.emit(self.poll_loads(self.kflags(2)))
        for t in range(5, 8):
            self.emit(list(mx(t)))
        self.emit(fill_rest())
        CC = S + 128
        a('v_max3_f32 v%d, v%d, v%d, v%d' % (MX, MX, MX + 1, MX + 2))
        a('v_max_f32 v%d, v%d, v%d' % (MX, MX, MX + 3))
        a('v_mov_b32 v%d, v%d' % (MX + 1, MX))
        c = 28 ** -0.5 * 1.4426950408889634
        a('v_mov_b32 v%d, %s' % (CC + 2, f32(c)))
        a('v_permlane32_swap_b32 v%d, v%d' % (MX, MX + 1))
        a('v_max_f32 v%d, v%d, v%d' % (MX, MX, MX + 1))
        a('v_mul_f32 v%d, %s, v%d' % (CC + 4, f32(-c), MX))
        self.stamp(9)
        VA = 184

        def vread(t):
            return ['ds_read_b64_tr_b16 %s, v%d offset:%d' % (ar(VA + t * 8 + k * 4 + z * 2, 2), 13 + z, t * 4096 + k * 256)
                    for k in range(2) for z in range(2)]

        def pkf(t):
            b = S + 16 * t
            return ['v_pk_fma_f32 %s, %s, %s, %s op_sel_hi:[1,0,0]' % (vr(b + 2 * p, 2), vr(b + 2 * p, 2), vr(CC + 2, 2), vr(CC + 4, 2))
                    for p in range(8)]

        def exps(t):
            return ['v_exp_f32 v%d, v%d' % (S + 16 * t + r, S + 16 * t + r) for r in range(16)]

        def cvt(t, pb):
            b = S + 16 * t
            return ['v_cvt_pk_bf16_f32 v%d, v%d, v%d' % (pb + p, b + 2 * p, b + 2 * p + 1) for p in range(8)]
        first = [True]

        def pv(t, pb):
            o = []
            for k in range(2):
                o.append('%s %s, %s, %s, %s' % (MFMA, vr(O, 16), ar(VA + t * 8 + k * 4), vr(pb + 4 * k), '0' if first[0] else vr(O, 16)))
                first[0] = False
            return o
        PB = lambda t: P if t == 0 else S + 16 * t
        vr_all = [x for t in order for x in vread(t)]
        vc, vb = self.opt.get('vc', 0), self.opt.get('vb', 3)
        nb = self.opt.get('nb', 4)
        assert vb >= 2
        pvq = [(0, P), (8, P + 8)] + [(t, PB(t)) for t in range(1, 8)]
        self.emit(pkf(0))
        for t in range(8):
            if ve and t == 0:
                self.poll_check(fd)
                self.emit(self.prewrite('B', 208))
            if t == vc and not ve:
                self.poll_check(self.kflags(2))
                self.v_issue()
                if self.opt.get('ro', 0) == 3:
                    self.emit(self.rp_load()[1])
                self.p4_wsetup()
                fg, fd = self.fg_items()
                self.emit(self.poll_loads(fd))
                if self.opt.get('pb', 1) == 1:
                    self.emit(self.prewrite('B', 208))
                if self.opt.get('pd', 0):
                    self.emit(self.prewrite_data(M))
                self.stamp(41)
            if t == vc + 2 and not ve:
                self.poll_check(fd)
            side = []
            if t >= 1:
                side += cvt(t - 1, PB(t - 1))
                if t == 1:
                    for p in range(8):
                        side.append('v_and_b32 v%d, v%d, v%d' % (P + 8 + p, P + p, M + p))
                        side.append('v_bfi_b32 v%d, v%d, 0, v%d' % (P + p, M + p, P + p))
            if t == vb:
                a.wait_tok('v')
                a.wait_tok('rp')
                a('ds_write_b64 v9, v[10:11]')
                a('ds_write_b64 v8, v[10:11] offset:8192')
                a('s_waitcnt lgkmcnt(0)')
                a('s_barrier')
                self.stamp(45)
            if vb <= t < vb + 3:
                side = vr_all[12 * (t - vb):12 * (t - vb) + 12] + side
            pk_ = pkf(t + 1) if t < 7 else []
            mm = []
            if t > vb:
                for _ in range(self.opt.get('npv', 2)):
                    if pvq and pvq[0][0] % 8 < t:
                        mm += pv(*pvq.pop(0))
            ex = exps(t)
            blk = []
            pre = pk_ + side
            n1_ = 16 - 3 * len(mm) if mm else 16
            for r in range(n1_):
                blk.append(ex[r])
                blk += pre[len(pre) * r // n1_:len(pre) * (r + 1) // n1_]
            for k, m_ in enumerate(mm):
                blk += [m_] + ex[n1_ + 3 * k:n1_ + 3 * k + 3]
            if t == vb and self.opt.get('ro', 0) != 3:
                blk = [x for x in self.capture(self.rp_frag)] + blk
                st_ = self.capture(self.rp_store)
                mm_ = self.capture(self.rp_mm)
                blk = sprinkle(blk, [[mm_[u], st_[u]] for u in range(4)], 0.7, 1.0)
            if t == vb + 1 and self.opt.get('ro', 0) != 3:
                blk = blk[:12] + [st_[4:]] + blk[12:]
            src = wo if wo else (self.wd if (ve or t >= vc + 2) else [])
            take_ = src[:nb] if vc <= t < self.opt.get('tb', 7) else []
            del src[:len(take_)]
            self.emit(sprinkle(blk, take_, 0.1, 0.95))
            if self.opt.get('bs'):
                self.stamp(50 + t)
        self.fg = fg
        assert not wo
        last = cvt(7, PB(7))
        rest = [m_ for x in pvq for m_ in pv(*x)]
        self.emit(sprinkle(last, [[m_] for m_ in rest[:-2]], 0.0, 1.0) + rest[-2:])
        a.wait_tok('wo')
        a.wait_tok('rp')
        a('s_barrier')
        if self.opt.get('ro', 0) == 3:
            self.rp_frag()
        self.stamp(10)
        a('v_cndmask_b32 v2, v%d, v%d, s[26:27]' % (O + 12, O))
        a('v_mov_b32 v3, v2')
        a('v_permlane32_swap_b32 v2, v3')
        a('v_cndmask_b32 v2, v3, v2, s[26:27]')
        a('v_rcp_f32 v2, v2')
        a('s_lshl_b32 s16, %s, 2' % sR)
        a('s_add_u32 s16, s16, %s' % sW)
        a('s_lshl_b32 s16, s16, 4')
        a('s_add_u32 s16, s16, %s' % sHD)
        a('s_lshl_b32 s11, s16, 11')
        a('s_add_u32 s11, s11, %d' % WS_O)
        for p in range(8):
            a('v_pk_mul_f32 %s, %s, v[2:3] op_sel_hi:[1,0]' % (vr(O + 2 * p, 2), vr(O + 2 * p, 2)))
        for p in range(8):
            a('v_cvt_pk_bf16_f32 v%d, v%d, v%d' % (P + p, O + 2 * p, O + 2 * p + 1))
        a('v_and_b32 v%d, v%d, v6' % (P, P))
        a('v_and_b32 v%d, v%d, v6' % (P + 1, P + 1))
        a('v_and_b32 v%d, v%d, v7' % (P + 6, P + 6))
        a('v_and_b32 v%d, v%d, v7' % (P + 7, P + 7))
        for t in range(2):
            a('buffer_store_dwordx4 %s, %s, %s, s11 offen offset:%d sc1' % (vr(P + 4 * t), vL16, SRD_WS, t * 1024), tok='o')

    WO_A = 112
    HRES = 240

    WO_LDS = 0

    def wo_bulk(self):
        g0 = ['s_lshl_b32 %s, %s, 14' % (sBK2, sW), 's_lshl_b32 %s, %s, 16' % (sBK, sN), 's_add_u32 %s, %s, %s' % (sBK, sBK, sBK2),
              's_add_u32 %s, %s, %d' % (sBK, sBK, WS_WO), 's_cmp_ge_u32 %s, 7' % sN, 's_cselect_b32 %s, %d, %s' % (sBK, OOB, sBK)]
        out = []
        for i in range(16):
            g = list(g0) if i == 0 else (['s_add_u32 %s, %s, 4096' % (sBK, sBK)] if i % 4 == 0 else [])
            if i % 4 == 0:
                g.append('s_add_u32 m0, %s, %d' % (sBK2, self.WO_LDS + i * 1024))
            out.append(g + [('buffer_load_dwordx4 %s, %s, %s offen offset:%d sc1 lds' % (vL16, SRD_WS, sBK, (i % 4) * 1024), 'wo')])
        return out

    def wo_read(self):
        a = self.a
        a('s_lshr_b32 s11, %s, 1' % sW)
        a('s_lshl_b32 s11, s11, 15')
        a('s_add_u32 s11, s11, %d' % self.WO_LDS)
        a('v_add_u32 v2, s11, %s' % vXA)
        a('v_add_u32 v3, s11, %s' % vXB)
        for f in range(16):
            for rel in range(2):
                a('ds_read_b128 %s, v%d offset:%d' % (vr(self.WO_A + (f * 2 + rel) * 4), 2 + rel, f * 2048))

    def wd_bulk(self):
        g0 = ['s_mul_i32 %s, %s, %d' % (sBK, sN, 112 * 2048), 's_mul_i32 %s, %s, %d' % (sBK2, sW, 28 * 2048),
              's_add_u32 %s, %s, %s' % (sBK, sBK, sBK2), 's_add_u32 %s, %s, %d' % (sBK, sBK, WS_WD),
              's_cmp_ge_u32 %s, 7' % sN, 's_cselect_b32 %s, %d, %s' % (sBK, OOB, sBK)]
        out = []
        cur = 0
        for slot in range(28):
            f = (slot % 4) * 7 + slot // 4
            for rel in range(2):
                g = list(g0) if (slot == 0 and rel == 0) else []
                if rel == 0 and f != cur:
                    d = (f - cur) * 2048
                    g.append('s_add_u32 %s, %s, %d' % (sBK, sBK, d) if d > 0 else 's_sub_u32 %s, %s, %d' % (sBK, sBK, -d))
                    cur = f
                out.append(g + ['buffer_load_dwordx4 %s, %s, %s, %s offen sc1' % (
                    ar((slot * 2 + rel) * 4), (vXA, vXB)[rel], SRD_WS, sBK)])
        return out

    def gu_bulk(self, tile):
        o = []
        for i in range(7):
            g = []
            if i % 4 == 0:
                g = ['s_add_u32 m0, s31, %d' % ((tile % 5) * SLOT + i * 1024),
                     's_add_u32 %s, s30, %d' % (sBK2, tile * 28672 + i * 1024)]
            o.append(g + [('buffer_load_dwordx4 %s, %s, %s offen offset:%d sc1 lds' % (vL16, SRD_WS, sBK2, (i % 4) * 1024), 'g%d' % tile)])
        return o

    def warm(self):
        return ['s_lshr_b32 s11, s2, 3', 's_and_b32 s11, s11, 3', 's_lshl_b32 s11, s11, 7',
                'v_lshlrev_b32 v15, 9, v0',
                's_mul_i32 s12, %s, %d' % (sJ, 7 * 28672), 's_lshl_b32 s13, %s, 15' % sW, 's_add_u32 s12, s12, s13',
                's_add_u32 s12, s12, s11', 's_add_u32 s12, s12, %d' % WS_WGU,
                'buffer_load_dword v2, v15, %s, s12 offen' % SRD_WS]

    def p4_wsetup(self):
        a = self.a
        a('s_mul_i32 s31, %s, 7168' % sW)
        a('s_mul_i32 s30, %s, %d' % (sJ, 7 * 28672))
        a('s_add_u32 s30, s30, s31')
        a('s_add_u32 s30, s30, %d' % WS_WGU)

    def seq_loads(self, dst, n, sreg):
        o = []
        for i in range(n):
            if i and i % 4 == 0:
                o.append('s_add_u32 %s, %s, 4096' % (sreg, sreg))
            o.append('buffer_load_dwordx4 %s, %s, %s, %s offen offset:%d sc1' % (
                vr(dst + 4 * i), vL16, SRD_WS, sreg, (i % 4) * 1024))
        return o

    def res_voffset(self, dst, sreg):
        a = self.a
        a('v_and_b32 %s, 31, v0' % dst)
        a('v_mul_u32_u24 %s, 896, %s' % (dst, dst))
        a('v_lshrrev_b32 v2, 5, v0')
        a('v_lshl_add_u32 %s, v2, 4, %s' % (dst, dst))
        a('s_lshl_b32 %s, %s, 1' % (sreg, sM))
        a('s_and_b32 s12, %s, 1' % sW)
        a('s_add_u32 %s, %s, s12' % (sreg, sreg))
        a('s_mul_i32 %s, %s, %d' % (sreg, sreg, 32 * 896))
        a('s_lshl_b32 s12, %s, 7' % sN)
        a('s_add_u32 %s, %s, s12' % (sreg, sreg))
        a('s_lshr_b32 s12, %s, 1' % sW)
        a('s_lshl_b32 s12, s12, 6')
        a('s_add_u32 %s, %s, s12' % (sreg, sreg))

    def unpack8(self, dst, src):
        for p in range(8):
            self.a('v_lshlrev_b32 v%d, 16, v%d' % (dst + 2 * p, src + p))
            self.a('v_and_b32 v%d, 0xffff0000, v%d' % (dst + 2 * p + 1, src + p))

    P3_ACC, P3_OF = 16, 48

    def p3_setup(self):
        a = self.a
        EX = XTRA + 1024
        self.unpack8(self.P3_ACC, self.HRES)
        a('s_lshl_b32 s13, %s, 1' % sM)
        a('s_and_b32 s12, %s, 1' % sW)
        a('s_add_u32 s13, s13, s12')
        a('s_lshr_b32 s12, %s, 1' % sW)
        a('s_lshl_b32 s18, s13, 1')
        a('s_add_u32 s18, s18, s12')
        a('s_lshl_b32 s20, s18, %d' % (FSH + 3))
        a('s_add_u32 s20, s20, %d' % (WS_FL + FL_F2 * FS))
        a('s_lshl_b32 s18, s18, 14')
        a('s_add_u32 s18, s18, %d' % WS_O)
        a('s_xor_b32 s11, %s, 2' % sW)
        a('s_lshl_b32 s11, s11, 12')
        a('s_add_u32 s11, s11, %d' % EX)
        a('v_add_u32 v4, s11, %s' % vL16)
        a('s_lshl_b32 s11, %s, 12' % sW)
        a('s_add_u32 s11, s11, %d' % EX)
        a('v_add_u32 v5, s11, %s' % vL16)
        a('s_lshl_b32 s14, %s, 1' % sN)
        a('s_add_u32 s14, s14, s12')
        a('s_mul_i32 s19, s13, 28672')
        a('s_lshl_b32 s12, s14, 11')
        a('s_add_u32 s19, s19, s12')
        a('s_add_u32 s19, s19, %d' % WS_HB)
        a('s_lshl_b32 s17, s13, 4')
        a('s_add_u32 s17, s17, s14')
        a('s_lshl_b32 s29, s17, 8')
        a('s_add_u32 s29, s29, %d' % WS_ST)
        a('v_mov_b32 v6, 0x3f803f80')
        a('v_lshlrev_b32 v7, 3, v0')

    def p3(self, early):
        a = self.a
        ACC, OF = self.P3_ACC, self.P3_OF
        self.poll([('s20', k) for k in range(8)])
        self.stamp(12)
        self.emit(self.seq_loads(OF, 16, 's18'))
        early = list(early)
        fc = self.opt.get('fc', 4)
        if early:
            self.emit(self.poll_loads(self.fg))
        for f in range(16):
            if early and f == fc:
                self.poll_check(self.fg)
            if early and f >= fc:
                n_ = -(-len(early) // (16 - f))
                self.emit(early[:n_])
                del early[:n_]
            for rel in (1, 0):
                a('%s %s, %s, %s, %s' % (MFMA, vr(ACC + 16 * rel, 16), vr(self.WO_A + (f * 2 + rel) * 4), vr(OF + 4 * f),
                                         '0' if (rel == 1 and f == 0) else vr(ACC + 16 * rel, 16)))
        self.stamp(13)
        for k in range(4):
            a('ds_write_b128 v4, %s offset:%d' % (vr(ACC + 16 + 4 * k), k * 1024))
        a('s_waitcnt lgkmcnt(0)')
        a('s_barrier')
        for k in range(4):
            a('ds_read_b128 %s, v5 offset:%d' % (vr(OF + 4 * k), k * 1024))
        H = self.HRES
        for p in range(8):
            a('v_pk_add_f32 %s, %s, %s' % (vr(ACC + 2 * p, 2), vr(ACC + 2 * p, 2), vr(OF + 2 * p, 2)))
            a('v_cvt_pk_bf16_f32 v%d, v%d, v%d' % (H + p, ACC + 2 * p, ACC + 2 * p + 1))
            if p % 4 == 3:
                a('buffer_store_dwordx4 %s, %s, %s, s19 offen offset:%d sc1' % (vr(H + p - 3), vL16, SRD_WS, (p // 4) * 1024), tok='h')
        for p in range(8):
            a('v_dot2_f32_bf16 v8, v%d, v6, %s' % (H + p, 'v8' if p else '0'))
            a('v_dot2_f32_bf16 v9, v%d, v%d, %s' % (H + p, H + p, 'v9' if p else '0'))
        a('v_mov_b32 v10, v8')
        a('v_mov_b32 v11, v9')
        a('v_permlane32_swap_b32 v8, v10')
        a('v_permlane32_swap_b32 v9, v11')
        a('v_add_f32 v8, v8, v10')
        a('v_add_f32 v9, v9, v11')
        a('s_mov_b32 exec_hi, 0')
        a('buffer_store_dwordx2 v[8:9], v7, %s, s29 offen sc1' % SRD_WS, tok='h')
        a('s_mov_b64 exec, -1')

    def p4_cs_issue(self):
        a = self.a
        a('s_lshl_b32 s11, %s, 1' % sW)
        a('v_lshrrev_b32 v112, 5, v0')
        a('v_add_u32 v112, s11, v112')
        a('v_min_u32 v113, 6, v112')
        a('v_mul_u32_u24 v113, 896, v113')
        a('v_and_b32 v114, 31, v0')
        a('v_lshl_add_u32 v113, v114, 2, v113')
        a('s_mul_i32 s11, %s, %d' % (sJ, 7 * 896))
        a('s_add_u32 s11, s11, %d' % WS_CS)
        for k in range(7):
            a('buffer_load_dword v%d, v113, %s, s11 offen offset:%d sc1' % (116 + k, SRD_WS, 128 * k))
        a('v_lshlrev_b32 v112, 9, v112')
        a('v_lshl_add_u32 v112, v114, 4, v112')
        a('v_add_u32 v112, %d, v112' % self.CF_LDS)

    CF_LDS = XTRA

    def split_bf16(self, x, hi, lo):
        raise NotImplementedError

    def p4_cs_finish(self):
        a = self.a
        for k in range(1, 7):
            a('v_add_f32 v116, v116, v%d' % (116 + k))
        a('v_mov_b32 v122, 0')
        a('v_mov_b32 v123, 0')
        a('v_cvt_pk_bf16_f32 v121, v116, 0')
        a('v_lshlrev_b32 v117, 16, v121')
        a('v_sub_f32 v117, v116, v117')
        a('v_cvt_pk_bf16_f32 v120, v116, v117')
        a('ds_write_b128 v112, v[120:123]')

    def fg_items(self):
        a = self.a
        a('s_mul_i32 s23, %s, 7' % sJ)
        a('s_lshr_b32 s23, s23, 2')
        a('s_min_u32 s23, s23, 25')
        a('s_mul_i32 s23, s23, 7')
        a('s_mul_i32 s11, %s, 7' % sW)
        a('s_lshr_b32 s11, s11, 2')
        a('s_min_u32 s11, s11, 4')
        a('s_add_u32 s23, s23, s11')
        a('s_lshl_b32 s23, s23, %d' % FSH)
        a('s_add_u32 s23, s23, %d' % (WS_FL + FL_FG * FS))
        a('s_mul_i32 s22, %s, %d' % (sW, 7 * FS))
        a('s_add_u32 s22, s22, %d' % (WS_FL + FL_FD * FS))
        return [('s23', 7 * g + k) for g in range(3) for k in range(3)], [('s22', k) for k in range(7)]

    def p4_setup(self):
        a = self.a
        a('s_lshl_b32 s13, %s, 2' % sR4)
        a('s_add_u32 s13, s13, %s' % sW)
        a('s_mul_i32 s18, s13, 28672')
        a('s_add_u32 s18, s18, %d' % WS_HB)
        a('s_lshl_b32 s20, s13, %d' % (FSH + 6))
        a('s_add_u32 s20, s20, %d' % (WS_FL + FL_F3 * FS))
        a('v_and_b32 v2, 31, v0')
        a('v_lshlrev_b32 v2, 3, v2')
        a('v_lshrrev_b32 v3, 5, v0')
        a('v_mul_u32_u24 v4, %d, v3' % (7 * 256))
        a('v_add_u32 v14, v2, v4')
        a('s_lshl_b32 s19, s13, 12')
        a('s_add_u32 s19, s19, %d' % WS_ST)
        a('v_add_u32 v5, %d, %s' % (2 * SLOT, vL16))
        a('v_add_u32 v6, %d, %s' % (4 * SLOT, vL16))
        a('v_and_b32 v7, 0x1f0, %s' % vL16)
        a('v_add_u32 v7, %d, v7' % self.CF_LDS)
        a('s_mul_i32 s29, s13, %d' % (112 * 1024))
        a('s_mul_i32 s12, %s, %d' % (sJ, 7 * 1024))
        a('s_add_u32 s29, s29, s12')
        a('s_add_u32 s29, s29, %d' % WS_HH)
        a('s_add_u32 s28, s29, 4096')
        a('s_lshl_b32 s27, s13, 4')
        a('s_add_u32 s27, s27, %s' % sJ)

    def f1_set(self, part):
        return ['s_mov_b64 exec, 0xffff',
                'buffer_store_dwordx4 %s, %s, %s, s16 offen offset:%d sc1' % (vr(vFL), vL16, SRD_WS, part * FS),
                's_mov_b64 exec, -1']

    def f4_set(self, stage):
        return ['s_mov_b32 s11, s27'] + self.flag_set('s11', FL_F4 + stage, 2)

    def p4(self, wd_rest):
        a = self.a
        T0 = self.opt['T0']
        HF, ACC, WF, CSR, TM, PK = 16, 128, 192, 208, 224, 232
        NACC = 5
        MB = CSR
        self.poll([('s20', 4 * k) for k in range(14)])
        self.stamp(16)
        hl = self.seq_loads(HF, 28, 's18')
        for k in range(7):
            hl.append('buffer_load_dwordx2 %s, v14, %s, s19 offen offset:%d sc1' % (vr(CSR + 2 * k, 2), SRD_WS, 256 * k))
        base = [vL16, 'v5', 'v6']
        cnt = [0]

        def wread(tile, k):
            s = tile % 5
            b = 224 + (cnt[0] % 8) * 4
            cnt[0] += 1
            if k == 28:
                return b, ('ds_read_b128 %s, v7 offset:%d' % (ar(b), tile * 512), 'wr%d' % cnt[0])
            return b, ('ds_read_b128 %s, %s offset:%d' % (ar(b), base[s >> 1], (s & 1) * SLOT + k * 1024), 'wr%d' % cnt[0])

        C1 = -2.0 * 1.4426950408889634 * 0.7978845608028654
        st = []
        for k in range(1, 7):
            st.append('v_add_f32 v%d, v%d, v%d' % (CSR, CSR, CSR + 2 * k))
            st.append('v_add_f32 v%d, v%d, v%d' % (CSR + 1, CSR + 1, CSR + 2 * k + 1))
        st += ['v_mov_b32 v12, v%d' % CSR, 'v_mov_b32 v13, v%d' % (CSR + 1),
               'v_permlane32_swap_b32 v%d, v12' % CSR, 'v_permlane32_swap_b32 v%d, v13' % (CSR + 1),
               'v_add_f32 v12, v12, v%d' % CSR, 'v_add_f32 v13, v13, v%d' % (CSR + 1),
               'v_mul_f32 v8, %s, v12' % f32(-1.0 / 448), 'v_mul_f32 v13, %s, v13' % f32(1.0 / 448),
               'v_fma_f32 v13, -v8, v8, v13', 'v_max_f32 v13, 0, v13', 'v_add_f32 v11, %s, v13' % f32(1e-5),
               'v_rsq_f32 v12, v11', 'v_mul_f32 v9, %s, v12' % f32(C1), 'v_mul_f32 v13, v12, v12',
               'v_mul_f32 v10, v9, v13', 'v_mul_f32 v10, %s, v10' % f32(0.044715),
               's_mov_b32 s12, -1', 's_mov_b32 s13, 0', 'v_cndmask_b32 v8, 0, v8, s[12:13]',
               'v_mov_b32 v%d, 0' % (MB + 2), 'v_mov_b32 v%d, 0' % (MB + 3),
               'v_cvt_pk_bf16_f32 v%d, v8, v8' % MB, 'v_lshlrev_b32 v12, 16, v%d' % MB,
               'v_sub_f32 v12, v8, v12', 'v_cvt_pk_bf16_f32 v%d, v12, 0' % (MB + 1)]

        def csread(tile):
            return ['ds_read_b128 %s, v7 offset:%d' % (vr(CSR + 4 * k), tile * 128 + 32 * k) for k in range(4)]

        def gelu(tile):
            b = ACC + 16 * (tile % NACC)
            pk = PK + (tile % 2) * 4
            o = []
            E = range(8)
            o += ['v_mul_f32 v%d, v%d, v%d' % (TM + e, b + e, b + e) for e in E]
            o += ['v_fma_f32 v%d, v%d, v10, v9' % (TM + e, TM + e) for e in E]
            o += ['v_mul_f32 v%d, v%d, v%d' % (TM + e, TM + e, b + e) for e in E]
            for e in E:
                o.append('v_exp_f32 v%d, v%d' % (TM + e, TM + e))
                o.append('v_mul_f32 v%d, v%d, v%d' % (b + e, b + e, b + 8 + e))
            for e in range(11):
                if e < 8:
                    o.append('v_fma_f32 v%d, v%d, v11, v11' % (TM + e, TM + e))
                if e >= 3:
                    o.append('v_rcp_f32 v%d, v%d' % (TM + e - 3, TM + e - 3))
            o += ['v_mul_f32 v%d, v%d, v%d' % (b + e, b + e, TM + e) for e in E]
            o += ['v_cvt_pk_bf16_f32 v%d, v%d, v%d' % (pk + p, b + 2 * p, b + 2 * p + 1) for p in range(4)]
            o.append(('buffer_store_dwordx4 %s, %s, %s, s%d offen offset:%d sc1' % (
                vr(pk), vL16, SRD_WS, 29 if tile < 4 else 28, (tile % 4) * 1024), 'hh%d' % tile))
            return o

        def gelu_pk(tile, csr):
            b = ACC + 16 * (tile % NACC)
            pk = PK + (tile % 2) * 4
            P2 = lambda r: vr(r, 2)
            o = []
            E = (0, 2, 4, 6)
            o += ['v_pk_mul_f32 %s, %s, %s' % (P2(csr + e), P2(b + e), P2(b + e)) for e in E]
            o += ['v_pk_fma_f32 %s, %s, v[10:11], v[8:9] op_sel:[0,0,1] op_sel_hi:[1,0,1]' % (P2(csr + e), P2(csr + e)) for e in E]
            o += ['v_pk_mul_f32 %s, %s, %s' % (P2(csr + e), P2(csr + e), P2(b + e)) for e in E]
            for e in E:
                o += ['v_exp_f32 v%d, v%d' % (csr + e, csr + e), 'v_exp_f32 v%d, v%d' % (csr + e + 1, csr + e + 1)]
            o += ['v_pk_fma_f32 %s, %s, v[10:11], v[10:11] op_sel:[0,1,1] op_sel_hi:[1,1,1]' % (P2(csr + e), P2(csr + e)) for e in E]
            for e in E:
                o += ['v_rcp_f32 v%d, v%d' % (csr + e, csr + e),
                      'v_pk_mul_f32 %s, %s, %s' % (P2(b + e), P2(b + e), P2(b + 8 + e)),
                      'v_rcp_f32 v%d, v%d' % (csr + e + 1, csr + e + 1)]
            o += ['v_pk_mul_f32 %s, %s, %s' % (P2(b + e), P2(b + e), P2(csr + e)) for e in E]
            o += ['v_cvt_pk_bf16_f32 v%d, v%d, v%d' % (pk + e // 2, b + e, b + e + 1) for e in E]
            o.append(('buffer_store_dwordx4 %s, %s, %s, s%d offen offset:%d sc1' % (
                vr(pk), vL16, SRD_WS, 29 if tile < 4 else 28, (tile % 4) * 1024), 'hh%d' % tile))
            return o
        nup = 15
        self.emit(hl[:nup])
        for t in range(3):
            a.wait_tok('g%d' % t)
        a('s_waitcnt lgkmcnt(0)')
        a('s_barrier')
        self.stamp(40)
        k3 = self.opt.get('k3', 4)
        seq = []
        done3 = 0
        for k in range(28):
            seq += [(t, k) for t in range(3)]
            if k >= k3:
                tgt = 28 * (k - k3 + 1) // (28 - k3)
                seq += [(3, kk) for kk in range(done3, tgt)]
                assert tgt <= k + 1
                done3 = tgt
        seq += [(t, 28) for t in range(4)]
        seq += [(t, k) for t in range(4, 7) for k in range(29)]
        rd = [wread(t, k) for t, k in seq]
        D, WE = 7, self.opt.get('we', 2)
        presync = {(t, 0): [Pseudo('wait_tok', 'g%d' % t)] + (['s_waitcnt lgkmcnt(0)'] if t == 4 else []) + ['s_barrier'] for t in range(3, 7)}
        self.emit([rd[i][1] for i in range(D)])
        gaps = []
        for i, (t, k) in enumerate(seq):
            acc = vr(ACC + 16 * (t % NACC), 16)
            g = ['%s %s, %s, %s, %s' % (MFMA, acc, ar(rd[i][0]), vr(HF + 4 * k if k < 28 else MB), acc if k else '0')]
            if i + D < len(seq):
                g.append([presync.get(seq[i + D], []), rd[i + D][1]])
            else:
                g.append([])
            if (i + 1) % WE == 0 and i + WE < len(seq):
                g.append(Pseudo('wait_tok', rd[i + WE][1][1]))
            gaps.append(g)
        n1 = 116
        isg = lambda g, t: isinstance(g[-1], tuple) and g[-1][1] == 'g%d' % t
        g3 = [g for g in wd_rest if isg(g, 3)]
        g4 = [g for g in wd_rest if isg(g, 4)]
        wdr = wd_rest[len(g3) + len(g4):]
        nw1 = self.opt.get('nw1', 2)
        hg = []
        for x in hl[nup:]:
            if hg and isinstance(hg[-1][-1], str) and hg[-1][-1].startswith('s_add'):
                hg[-1].append(x)
            else:
                hg.append([x])
        side = g3 + hg + g4 + wdr[:nw1]
        w1 = gaps[:n1]
        sp = self.opt.get('sp', 2)
        for i, x in enumerate(side):
            p_ = i * sp if i >= len(g3) else i
            p_ -= len(g3) * (sp - 1) if i >= len(g3) else 0
            w1[p_] = w1[p_][:2] + [x] + w1[p_][2:]
        assert p_ < n1 - D - 8
        m_ = n1 - 44
        self.emit(w1[:m_])
        self.emit(cweave(w1[m_:n1 - 6], st) + w1[n1 - 6:])
        self.stamp(17)
        bulk = self.gu_bulk(5) + self.gu_bulk(6) + wdr[nw1:]
        l6 = self.opt.get('l6', 6)
        share = [(len(bulk) - l6 + 1) // 2] * 2 + [l6]
        assert share[0] >= 12
        gw = [int(c) for c in str(self.opt.get('gw', 222))]
        self.stg = stg = [int(c) for c in str(self.opt.get('stg', 247))]
        nx, pub = 0, 0
        for t in range(4, 7):
            n = share[t - 4]
            assert nx >= t - 4 and nx + gw[t - 4] <= t
            gl = [x for q in range(nx, nx + gw[t - 4]) for x in gelu(q)]
            if pub < len(stg) and stg[pub] <= nx:
                c_ = len(gl) * self.opt.get('fpos', 50) // 100
                gl = gl[:c_] + [[Pseudo('wait_tok', 'hh%d' % (stg[pub] - 1))] + self.f4_set(pub)] + gl[c_:]
                pub += 1
            nx += gw[t - 4]
            side = sprinkle(gl, bulk[:n], 0.0, 0.9 if t < 6 else 0.5)
            bulk = bulk[n:]
            if t == 6:
                side = side[:20] + self.p5_setup() + side[20:]
            gp = gaps[29 * t:29 * t + 29]
            if t == 6 and self.opt.get('ep', 1):
                q_ = 29 - D + 2
                gp[q_] = gp[q_][:2] + [['s_waitcnt lgkmcnt(0)'] + self.poll_loads(self.f4_items(0))]
                for q2 in range(q_ + 1, 29):
                    gp[q2] = gp[q2][:2]
            self.emit(cweave(gp, side, skip=1))
            self.stamp(15 + t)
        assert not bulk
        self.tail = [(q, gelu_pk(q, TM)) for q in range(nx, 7)]
        self.pub = pub

    def f4_items(self, st):
        return [('s20', (r * 16 + jj) * 4 + st) for r in range(2) for jj in range(4)]

    def p5_setup(self):
        o = []
        a = o.append
        a('s_and_b32 s13, %s, 1' % sW)
        a('s_lshl_b32 s14, %s, 1' % sM)
        a('s_lshl_b32 s20, s14, %d' % (FSH + 6))
        a('s_lshl_b32 s15, %s, %d' % (sW, FSH + 4))
        a('s_add_u32 s20, s20, s15')
        a('s_add_u32 s20, s20, %d' % (WS_FL + FL_F4 * FS))
        a('s_add_u32 s13, s14, s13')
        a('s_xor_b32 s12, s13, 1')
        a('s_mul_i32 s14, %s, %d' % (sW, 28 * 1024))
        a('s_add_u32 s14, s14, %d' % WS_HH)
        for ra, r in enumerate(('s13', 's12')):
            a('s_mul_i32 %s, %s, %d' % (r, r, 112 * 1024))
            a('s_add_u32 s%d, %s, s14' % (68 + 8 * ra, r))
            for q in range(1, 7):
                a('s_add_u32 s%d, s%d, %d' % (68 + 8 * ra + q, 68 + 8 * ra, q * 4096))
        return o

    def p5(self):
        a = self.a
        ACC, HHF, NBUF = 128, 16, 24
        fl = lambda st: [('s20', (r * 16 + jj) * 4 + st) for r in range(2) for jj in range(4)]
        seq = [(jj * 7 + tau, ra) for tau in range(7) for jj in range(4) for ra in range(2)]
        ne = self.opt.get('ne', 16)
        seq = seq[:56 - ne] + [x for x in seq[56 - ne:] if x[1] == 1] + [x for x in seq[56 - ne:] if x[1] == 0]
        send = lambda rel: ['ds_write_b128 v%d, %s offset:%d' % (12 + rel, vr(ACC + 16 * rel + 4 * k), (rel - 1) * 4096 + k * 1024) for k in range(4)]
        early = send(1) + send(3) if ne >= 16 else []

        def load(i):
            f, ra = seq[i]
            return 'buffer_load_dwordx4 %s, %s, %s, s%d offen offset:%d sc1' % (
                vr(HHF + (i % NBUF) * 4), vL16, SRD_WS, 68 + 8 * ra + f // 4, (f % 4) * 1024)
        stg, pub = self.stg, self.pub
        rest_flags = lambda p: [x for q in range(p, len(stg)) for x in self.f4_set(q)]
        n6 = min(self.opt.get('n6', 10), 8 * stg[0])
        tail = [x for q, g in self.tail for x in g]
        if self.opt.get('ep', 1):
            a('s_waitcnt lgkmcnt(0)')
            for k in range(4):
                p = 's[%d:%d]' % (PT + 2 * k, PT + 2 * k + 1)
                a('s_xor_b64 %s, %s, %s' % (p, p, sEP2))
                if k:
                    a('s_or_b64 s[%d:%d], s[%d:%d], %s' % (PT, PT + 1, PT, PT + 1, p))
            a('s_cbranch_scc1 L_p5slow')
            self.emit(sprinkle(tail, [[load(i)] for i in range(n6)], 0.0, 0.9))
            a('L_p5join:')
            keep = self.a
            self.a = a2 = self.side
            a2('L_p5slow:')
            a2.fresh()
            a2('s_nop 15')
            self.emit(tail)
            a2('s_waitcnt vmcnt(0)')
            self.emit(rest_flags(pub))
            a2('s_add_u32 s20, s20, 128')
            self.emit(self.poll_loads(fl(0)))
            self.poll_check(fl(0), tries=1)
            a2('s_sub_u32 s20, s20, 128')
            self.emit([load(i) for i in range(n6)])
            a2('s_waitcnt vmcnt(0)')
            a2('s_branch L_p5join')
            self.a = keep
        else:
            self.emit(self.poll_loads(fl(0)))
            self.emit(tail)
            self.poll_check(fl(0), onfail=rest_flags(pub))
            self.emit([load(i) for i in range(n6)])
        self.stamp(22)
        self.unpack8(ACC, self.HRES)
        AHEAD = self.opt.get('ahead', 14)
        cur = min(AHEAD, 8 * stg[0])
        self.emit([load(i) for i in range(n6, cur)])
        self.stamp(23)
        misc = self.capture(self.res_voffset, 'v4', 's18')
        for rel in range(4):
            misc += ['s_xor_b32 s12, %s, %d' % (sW, rel), 's_mul_i32 s12, s12, 12288', 's_add_u32 s12, s12, %d' % (2 * SLOT),
                     'v_add_u32 v%d, s12, %s' % (12 + rel, vL16)]
        fi = self.opt.get('fi', 7)
        nxt = [max(cur, n6)]
        lead, dly = self.opt.get('lead', 20), self.opt.get('dly', 8)
        bnd = [8 * x for x in stg[:-1]]
        pi, ok = [], []
        for q, b_ in enumerate(bnd):
            p_ = max(b_ - lead, ok[-1] + 1 if ok else 0)
            pi.append(p_)
            ok.append(min(p_ + dly, b_ - 1))

        def issue_upto(n):
            while nxt[0] < min(n, len(seq)):
                i = nxt[0]
                if i in bnd:
                    self.poll_check(fl(bnd.index(i) + 1))
                    self.stamp(47 + bnd.index(i))
                a(load(i))
                nxt[0] += 1
        seen = set([(0, 0)])
        for i, (f, ra) in enumerate(seq):
            assert nxt[0] > i
            if i in pi:
                q = pi.index(i)
                assert q == 0 or nxt[0] > bnd[q - 1], (i, q, nxt[0])
                self.emit(self.poll_loads(fl(q + 1)))
            for rb in ((1, 0) if i == 55 else (0, 1)):
                if early and i > 56 - ne // 2 + 1:
                    a(early.pop(0))
                acc = vr(ACC + 16 * (ra + 2 * rb), 16)
                a('%s %s, %s, %s, %s' % (MFMA, acc, ar((((f % 7) * 4 + f // 7) * 2 + rb) * 4), vr(HHF + (i % NBUF) * 4),
                                         acc if (ra, rb) in seen else '0'))
                seen.add((ra, rb))
            if i == fi:
                assert fi <= ok[0]
                while pub < len(stg):
                    a.wait_tok('hh%d' % (stg[pub] - 1))
                    self.emit(self.f4_set(pub))
                    pub += 1
            if i >= 20:
                self.emit(misc[:3])
                del misc[:3]
            lim = min([b_ for b_, o_ in zip(bnd, ok) if i < o_] + [len(seq)])
            issue_upto(min(i + 1 + AHEAD, lim))
        self.stamp(24)
        assert not early
        self.emit(send(2) if ne >= 16 else send(2) + send(1) + send(3))
        a('s_waitcnt lgkmcnt(0)')
        a('s_barrier')
        for k in range(12):
            a('ds_read_b128 %s, v12 offset:%d' % (vr(HHF + 4 * k), k * 1024))
        for rel in range(3):
            for p in range(8):
                a('v_pk_add_f32 %s, %s, %s' % (vr(ACC + 2 * p, 2), vr(ACC + 2 * p, 2), vr(HHF + 16 * rel + 2 * p, 2)))
        for p in range(8):
            a('v_cvt_pk_bf16_f32 v%d, v%d, v%d' % (112 + p, ACC + 2 * p, ACC + 2 * p + 1))
            if p % 4 == 3:
                a('buffer_store_dwordx4 %s, v4, %s, s18 offen offset:%d' % (vr(112 + p - 3), SRD_OUT, (p // 4) * 32) + ['', ' sc1', ' nt', ' sc0 sc1'][self.opt.get('ost', 0)])
        self.stamp(25)

    def build(self):
        a = self.a
        nm = NAME + '_kernel'
        a('.globl %s\n.p2align 8\n.type %s,@function\n%s:' % (nm, nm, nm))
        self.prologue()
        a('s_cmp_ge_u32 %s, 7' % sN)
        a('s_cbranch_scc1 L_idle1')
        self.p1()
        self.stamp(5)
        self.poll_check(self.kflags(0), onfail=self.f1_set(2))
        self.k_issue()
        self.stamp(7)
        if not self.opt.get('ql', 0):
            self.emit(self.poll_loads(self.qflags() + self.fo_items()))
        a.wait_tok('q2')
        if self.opt.get('ql', 0):
            self.emit(self.poll_loads(self.qflags() + self.fo_items()))
        self.emit(self.f1_set(2))
        self.stamp(36)
        self.wd = self.wd_bulk()
        nl = self.opt.get('nl', 0)
        self.wd_late = self.wd[56 - nl:]
        del self.wd[56 - nl:]
        wo = self.wo_bulk()
        w2 = self.opt.get('w2', 0)
        assert w2 % 4 == 0
        self.res_voffset('v15', 's11')
        self.poll_check(self.qflags() + self.fo_items())
        a('L_join1:')
        self.q_issue()
        for t in range(2):
            a('buffer_load_dwordx4 %s, v15, %s, s11 offen offset:%d' % (vr(self.HRES + 4 * t), SRD_X, 32 * t))
        self.stamp(46)
        if w2 or self.opt.get('ro', 0) in (0, 1, 4):
            a('s_barrier')
        if self.opt.get('ro', 0) == 0:
            self.emit(self.rp_load()[1])
        self.emit(wo[:w2])
        if self.opt.get('ro', 0) == 1:
            self.emit(self.rp_load()[1])
        self.wo_rest = wo[w2:]
        self.rp_prep()
        if self.opt.get('pb', 1) == 0:
            self.emit(self.prewrite('B', 208))
        self.stamp(6)
        self.p2()
        if self.opt.get('ro', 0) == 3:
            self.rp_mm()
            self.rp_store()
        self.wo_read()
        self.p3_setup()
        a.wait_tok('o')
        self.emit(self.flag_set('s16', FL_F2))
        self.stamp(11)
        rpl = self.opt.get('rpl', 3)
        if rpl:
            a.wait_tok('rs')
            a('s_waitcnt lgkmcnt(0)')
            a('s_barrier')
            self.fg_set()
        else:
            self.poll(self.fg)
            a('s_barrier')
        self.stamp(37)
        b = [self.opt.get('b%d' % k, d) for k, d in ((2, 12), (4, 8), (5, 12))]
        if rpl or self.opt.get('h1wd'):
            self.emit(self.wd[:b[0]])
            del self.wd[:b[0]]
            b[0] = 0
        Q = [g for t in range(5) for g in self.gu_bulk(t)] + self.wd

        def take(n):
            self.emit(Q[:n])
            del Q[:n]
        take(b[0])
        self.stamp(38)
        a('s_cmp_ge_u32 %s, 7' % sN)
        a('s_cbranch_scc1 L_idle3')
        b3 = self.opt.get('b3', 8)
        self.early3 = Q[:b3]
        del Q[:b3]
        a.begin_cond('p3')
        self.p3(self.early3)
        a.end_cond()
        a('L_skip3:')
        self.stamp(14)
        if rpl and not b3:
            self.poll(self.fg)
        take(b[1])
        if not rpl:
            self.p4_cs_issue()
        a('s_cmp_ge_u32 %s, 7' % sN)
        a('s_cbranch_scc1 L_skip3b')
        a.begin_cond('p3')
        a.wait_tok('h')
        self.emit(self.flag_set('s17', FL_F3, 2))
        a.end_cond()
        a('L_skip3b:')
        self.stamp(15)
        if rpl:
            a('s_barrier')
            self.p4_cs_issue()
        take(b[2])
        assert 21 <= sum(b) + b3 <= 35
        self.p4_cs_finish()
        self.p4_setup()
        self.stamp(39)
        a('s_cmp_ge_u32 %s, 7' % sN)
        a('s_cbranch_scc1 L_idle3b')
        a('L_go4:')
        self.p4(Q)
        a('s_cmp_ge_u32 %s, 7' % sN)
        a('s_cbranch_scc1 L_idle5')
        self.p5()
        self.stamp_out()
        a('L_exit:')
        a('s_endpgm')
        a('L_idle5:')
        a.fresh()
        a('s_nop 15')
        a('s_waitcnt lgkmcnt(0)')
        self.emit([x for q, g in self.tail for x in g])
        for q in range(self.pub, len(self.stg)):
            a('s_waitcnt vmcnt(%d)' % (7 - self.stg[q] + q - self.pub if self.stg[q] > self.tail[0][0] else len(self.tail) + q - self.pub))
            self.emit(self.f4_set(q))
        a('s_lshl_b32 s11, s2, 2')
        a('s_add_u32 s11, s11, %s' % sW)
        a('s_cmp_lg_u32 s11, 1020')
        a('s_cbranch_scc1 L_noclr')
        a('v_lshlrev_b32 v2, %d, v0' % FSH)
        for k in range(4):
            a('s_mov_b32 s11, %d' % (WS_FL + (FL_FG + 64 * k) * FS))
            a('buffer_load_dword v%d, v2, %s, s11 offen sc1' % (4 + k, SRD_WS))
        for k in range(4):
            a('v_xor_b32 v%d, %s, v%d' % (4 + k, sEP, 4 + k))
        a('v_or3_b32 v4, v4, v5, v6')
        a('v_or_b32 v4, v4, v7')
        a('v_cmp_ne_u32 vcc, 0, v4')
        a('s_nop 4')
        a('s_cbranch_vccnz L_noclr')
        a('v_mov_b32 v2, 0')
        a('s_mov_b64 exec, 1')
        a('global_store_dword v2, v2, %s sc1' % DBGP)
        a('s_mov_b64 exec, -1')
        a('L_noclr:')
        self.stamp_out()
        a('s_endpgm')
        a('L_idle3:')
        a.fresh()
        self.prewait('s20')
        if self.early3:
            self.poll(self.fg)
            self.emit(self.early3)
            a('s_waitcnt vmcnt(0)')
        a('s_branch L_skip3')
        a('L_idle3b:')
        a.fresh()
        self.prewait('s20')
        a('s_branch L_go4')
        a('L_idle1:')
        a.fresh()
        a('s_waitcnt lgkmcnt(0)')
        self.idle1()
        a('s_branch L_join1')
        a.items += self.side.items
        for x in self.cold:
            a.raw(x)
        a('L_code_end:')
        a.raw('s_endpgm')
        hdr = open('cdna_kernels/%s.s.ref' % NAME).read().split('; Override launch')[0]
        hdr += '; @launch grid=(256,1,1) block=(256,1,1) lds=%d\n' % LDS_BYTES
        hdr += '.amdgcn_target "amdgcn-amd-amdhsa--gfx950"\n.text\n'
        body = a.finalize()
        tail = ('.section .rodata,"a"\n.p2align 6\n.amdhsa_kernel %s\n  .amdhsa_next_free_vgpr 512\n  .amdhsa_next_free_sgpr 102\n'
                '  .amdhsa_accum_offset 256\n  .amdhsa_group_segment_fixed_size 0\n  .amdhsa_kernarg_size 80\n'
                '  .amdhsa_user_sgpr_count 2\n  .amdhsa_user_sgpr_kernarg_segment_ptr 1\n'
                '  .amdhsa_system_sgpr_workgroup_id_x 1\n.end_amdhsa_kernel\n' % nm)
        return hdr + body + tail


if __name__ == '__main__':
    out = sys.argv[1]
    opt = {}
    for x in sys.argv[2:]:
        if '=' in x:
            k, v = x.split('=')
            opt[k] = int(v) if v.lstrip('-').isdigit() else v
    txt = Gen(stamps='--ts' in sys.argv, **opt).build()
    open(out, 'w').write(txt)
    print('wrote', out, len(txt), 'bytes')
```

```python
import sys, struct
from asmlib import Asm, weave, Pseudo

NAME = 'sequential_preLN__sliding_block__glu_gated_geglu__prompt'

WS_QKV = 0
WS_O = WS_QKV + 64 * 84 * 1024
WS_HB = WS_O + 64 * 32768
WS_ST = WS_HB + 64 * 28672
WS_HH = WS_ST + 64 * 4096
WS_WGU = WS_HH + 64 * 112 * 1024
WS_CS = WS_WGU + 112 * 28672
WS_WD = WS_CS + 112 * 896
WS_WO = WS_WD + 7 * 112 * 2048
WS_CQ = WS_WO + 7 * 32 * 2048
WS_FL = WS_CQ + 8192
FS, FSH = (512, 9) if 'fs=512' in sys.argv else (256, 8)
FL_F1 = 0
FL_F3 = 3
FL_F4 = 4096
FL_F2 = FL_F4 + 4096
FL_FG = FL_F2 + 1024
FL_FO = FL_FG + 224
FL_FD = FL_FO + 32
FL_END = FL_FD + 32
WS_EP = WS_FL + FL_END * FS
WS_TS = 28 << 20
WS_END = WS_TS + 256 * 4 * 256
OOB = 0x7ff00000

LDS_BYTES = 163840
SLOT = 28672
XTRA = 5 * SLOT

sW, sXCD, sI, sM, sN, sR, sHD, sCT = 's3', 's4', 's5', 's6', 's7', 's8', 's9', 's10'
SRD_X, SRD_WS, SRD_OUT = 's[36:39]', 's[40:43]', 's[44:47]'
SRD_WQKV, SRD_D, SRD_G, SRD_U = 's[52:55]', 's[56:59]', 's[60:63]', 's[64:67]'
PT = 52
sBK, sBK2, sR4, sJ = 's48', 's49', 's4', 's5'
sEP, sEP2 = 's50', 's[50:51]'
DBGP, WSP = 's[32:33]', 's[34:35]'
MASK0 = 68
vL16 = 'v1'
vXA, vXB, vFL = 'v248', 'v249', 250


def f32(x):
    return '0x%08x' % struct.unpack('<I', struct.pack('<f', x))[0]


def vr(b, n=4, t='v'):
    return '%s[%d:%d]' % (t, b, b + n - 1)


def ar(b, n=4):
    return vr(b, n, 'a')


MFMA = 'v_mfma_f32_32x32x16_bf16'


def sprinkle(main, groups, lo=0.0, hi=1.0):
    n = len(main)
    a, b = int(n * lo), int(n * hi)
    out, k = [], 0
    for i, x in enumerate(main):
        while k < len(groups) and i >= a + (b - a) * k // max(len(groups), 1):
            out.extend(groups[k]); k += 1
        out.append(x)
    for g in groups[k:]:
        out.extend(g)
    return out


def cost(x):
    if isinstance(x, list):
        return sum(cost(y) for y in x)
    if isinstance(x, tuple):
        x = x[0]
    if not isinstance(x, str):
        return 4.2 if getattr(x, 'what', '') == 'wait_tok' else 0
    m = x.split()[0]
    if m.endswith(':'):
        return 0
    if m.startswith('v_mfma'):
        return 8
    if m in ('v_exp_f32', 'v_rcp_f32', 'v_rsq_f32'):
        return 8.4
    if m.startswith('buffer_'):
        return 10
    if m.startswith('v_pk_') or m.startswith('v_cvt_pk') or m.startswith('v_max3'):
        return 5.2
    if m.startswith('v_fma') and not m.startswith('v_fmac'):
        return 4.6
    return 4.2


def cweave(gaps, side, skip=0):
    n = len(gaps) - skip
    base = [cost(g) for g in gaps]
    tot = sum(base[skip:]) + cost(list(side))
    out, k, acc = [], 0, 0.0
    for i, g in enumerate(gaps):
        if i < skip:
            out += g
            continue
        acc += base[i]
        tgt = tot * (i - skip + 1) / n
        ins = []
        while k < len(side) and (acc + cost(side[k]) / 2 <= tgt or i == len(gaps) - 1):
            acc += cost(side[k]); ins.append(side[k]); k += 1
        out += g[:2] + ins + g[2:]
    return out


class Gen:
    def __init__(self, stamps=False, **opt):
        self.a = Asm()
        self.stamps = stamps
        self.nl = 0
        self.cold = []
        self.side = Asm()
        self.PT = PT
        self.opt = dict(p2map='C', p4map='B', rot=3, T0=3, nA=24, codepf=1, nt=3)
        self.opt.update(opt)

    def label(self, s):
        self.nl += 1
        return 'L_%s_%d' % (s, self.nl)

    def emit(self, lst):
        for x in lst:
            if isinstance(x, tuple):
                self.a(x[0], tok=x[1])
            elif isinstance(x, str):
                self.a(x)
            elif isinstance(x, list):
                self.emit(x)
            else:
                self.a.items.append(x)

    def capture(self, fn, *args):
        keep = self.a
        self.a = Asm()
        fn(*args)
        items = self.a.items
        self.a = keep
        return items

    def stamp(self, k):
        if self.opt.get('jit') and k in (1, 3, 29, 31, 5, 36, 8, 45, 10, 37, 13, 15, 40, 17, 20, 21, 23, 24):
            lab = self.label('jit')
            self.a('s_memtime s[100:101]\ns_waitcnt lgkmcnt(0)')
            self.a.raw('s_cselect_b32 s101, 1, 0')
            self.a.raw('s_lshr_b32 s100, s100, 2')
            self.a.raw('s_and_b32 s100, s100, %d' % self.opt['jit'])
            self.a.raw('s_cbranch_scc1 %s' % lab)
            self.a.raw('s_sleep 100')
            self.a.raw(lab + ':')
            self.a.raw('s_cmp_eq_u32 s101, 1')
            return
        rt = {3: 50, 32: 51, 9: 52, 10: 53, 40: 54, 17: 55, 21: 56, 23: 57, 24: 58}
        if self.stamps and self.opt.get('lite') == 2 and k in rt:
            self.a('s_memtime s[100:101]\ns_waitcnt lgkmcnt(0)\nv_writelane_b32 v254, s100, %d' % k)
            self.a('s_memrealtime s[100:101]\ns_waitcnt lgkmcnt(0)\nv_writelane_b32 v254, s100, %d' % rt[k])
        if self.stamps and (k == 0 or not self.opt.get('lite')):
            self.a('s_memtime s[100:101]\ns_waitcnt lgkmcnt(0)\nv_writelane_b32 v254, s100, %d' % k)

    def stamp_out(self, idle=False):
        if self.stamps:
            a = self.a
            a('s_waitcnt vmcnt(0)')
            a('s_memrealtime s[100:101]\ns_waitcnt lgkmcnt(0)\nv_writelane_b32 v254, s100, 62')
            a('s_memtime s[100:101]\ns_waitcnt lgkmcnt(0)\nv_writelane_b32 v254, s100, 61')
            if self.opt.get('spin') and not idle:
                lab = self.label('spin')
                a('v_readlane_b32 s12, v254, 63')
                a('v_readlane_b32 s13, v254, %d' % self.opt['spin'])
                a('v_readlane_b32 s14, v254, 62')
                a('s_nop 4')
                a('s_sub_u32 s13, s13, s12')
                a('s_lshl_b32 s13, s13, 1')
                a('s_min_u32 s13, s13, 20000')
                a(lab + ':')
                a('s_memrealtime s[100:101]')
                a('s_waitcnt lgkmcnt(0)')
                a('s_sub_u32 s12, s100, s14')
                a('s_cmp_lt_u32 s12, s13')
                a('s_cbranch_scc1 %s' % lab)
            a('s_lshl_b32 s11, s2, 2')
            a('s_add_u32 s11, s11, %s' % sW)
            a('s_lshl_b32 s11, s11, 8')
            a('s_add_u32 s11, s11, %d' % WS_TS)
            a('v_lshlrev_b32 v2, 2, v0')
            a('buffer_store_dword v254, v2, %s, s11 offen' % SRD_WS)
            if self.opt.get('dbg'):
                skip = self.label('dbg')
                a('s_memrealtime s[100:101]')
                a('s_lshl_b32 s11, s2, 2')
                a('s_add_u32 s11, s11, %s' % sW)
                a('s_cmp_lg_u32 s11, %d' % (self.opt['dbg'] * 4))
                a('s_cbranch_scc1 %s' % skip)
                a('v_readlane_b32 s12, v254, 0')
                a('v_readlane_b32 s14, v254, 63')
                for k, st in enumerate([1, 2, 4, 6, 7, 8, 9, 11, 12, 15, 16, 17, 22, 25]):
                    a('v_readlane_b32 s13, v254, %d' % st)
                    a('s_nop 3')
                    a('s_sub_u32 s13, s13, s12')
                    a('v_writelane_b32 v3, s13, %d' % (k + 1))
                a('s_waitcnt lgkmcnt(0)')
                a('s_sub_u32 s13, s100, s14')
                a('v_writelane_b32 v3, s13, 15')
                a('s_mov_b64 exec, 0xfffe')
                a('global_store_dword v2, v3, %s' % DBGP)
                a('s_mov_b64 exec, -1')
                a(skip + ':')

    def srd(self, d, p, size):
        a = self.a
        a('s_mov_b32 s%d, s%d' % (d, p))
        a('s_and_b32 s%d, s%d, 0xffff' % (d + 1, p + 1))
        a('s_mov_b32 s%d, %d' % (d + 2, size))
        a('s_mov_b32 s%d, 0x20000' % (d + 3))

    def flag_set(self, sidx, base, sh=0):
        return ['s_lshl_b32 %s, %s, %d' % (sidx, sidx, FSH + sh),
                's_add_u32 %s, %s, %d' % (sidx, sidx, WS_FL + base * FS),
                's_mov_b64 exec, 0xffff' if FS == 256 else 's_mov_b32 exec_hi, 0',
                'buffer_store_dwordx4 %s, %s, %s, %s offen sc1' % (vr(vFL), vL16, SRD_WS, sidx),
                's_mov_b64 exec, -1']

    def poll_loads(self, items, first=True):
        items = list(items)
        if len(items) % 2:
            items.append(items[-1])
        assert len(items) <= 16
        base = WSP if first else 's[14:15]'
        return ['s_load_dword s%d, %s, %s offset:%d' % (self.PT + k, base, so, imm * FS) for k, (so, imm) in enumerate(items)]

    def poll_check(self, items, onfail=None, tries=None):
        a = self.a
        n = (len(items) + 1) // 2
        top, done, slow = self.label('poll'), self.label('pdone'), self.label('pslow')
        a('s_mov_b64 s[14:15], %s' % WSP)
        a('s_mov_b32 s13, %d' % (tries if tries is not None else FS // 64 - 1))
        a(top + ':')
        a('s_waitcnt lgkmcnt(0)')
        for k in range(n):
            p = 's[%d:%d]' % (self.PT + 2 * k, self.PT + 2 * k + 1)
            a('s_xor_b64 %s, %s, %s' % (p, p, sEP2))
            if k:
                a('s_or_b64 s[%d:%d], s[%d:%d], %s' % (self.PT, self.PT + 1, self.PT, self.PT + 1, p))
        a('s_cbranch_scc0 %s' % done)
        if onfail:
            a.raw('s_cmp_lg_u32 s13, %d' % (FS // 64 - 1))
            a.raw('s_cbranch_scc1 %s_nf' % top)
            for x in ['s_waitcnt vmcnt(0)'] + onfail:
                a.raw(x)
            a.raw('%s_nf:' % top)
        a.raw('s_sub_u32 s13, s13, 1')
        a.raw('s_cbranch_scc1 %s' % slow)
        a.raw('s_sleep %d' % self.opt.get('sl1', 4))
        a.raw('s_add_u32 s14, s14, 64')
        a.raw('s_addc_u32 s15, s15, 0')
        for x in self.poll_loads(items, first=False):
            a.raw(x)
        a.raw('s_branch %s' % top)
        a(done + ':')
        o = [slow + ':', 'v_mov_b32 v255, 0']
        for k, (so, imm) in enumerate(items):
            o += ['s_add_u32 s13, %s, %d' % (so, imm * FS), 'v_writelane_b32 v255, s13, %d' % k]
        o += ['s_mov_b64 exec, 0x%x' % ((1 << len(items)) - 1), slow + '_l:',
              'buffer_load_dword v253, v255, %s, 0 offen sc1' % SRD_WS, 's_waitcnt vmcnt(0)',
              'v_cmp_ne_u32 vcc, %s, v253' % sEP, 's_nop 4', 's_cbranch_vccz %s_d' % slow,
              's_sub_u32 %s, %s, 1' % (sCT, sCT), 's_cbranch_scc1 L_exit', 's_sleep %d' % self.opt.get('sl2', 6), 's_branch %s_l' % slow,
              slow + '_d:', 'v_mov_b32 v253, %s' % sEP, 's_mov_b64 exec, -1', 's_nop 4', 's_branch %s' % done]
        self.cold += o

    def poll(self, items):
        self.emit(self.poll_loads(items))
        self.poll_check(items)

    def prewait(self, soff):
        a = self.a
        top, done = self.label('pw'), self.label('pwd')
        a('s_waitcnt vmcnt(0)')
        a(top + ':')
        a.raw('buffer_load_dword v255, off, %s, %s offset:%d sc1' % (SRD_WS, soff, FS - 64))
        a.raw('s_waitcnt vmcnt(0)')
        a.raw('v_cmp_ne_u32 vcc, %s, v255' % sEP)
        a.raw('s_nop 4')
        a.raw('s_cbranch_vccz %s' % done)
        a.raw('s_sub_u32 %s, %s, 1' % (sCT, sCT))
        a.raw('s_cbranch_scc1 L_exit')
        a.raw('s_sleep %d' % self.opt.get('sl3', 8))
        a.raw('s_branch %s' % top)
        a(done + ':')

    def epoch_issue(self):
        self.a('s_load_dword %s, %s, 0x0' % (sEP, DBGP))

    def flag_set_wg(self, sidx, base):
        o = self.flag_set(sidx, base)
        self.emit(o[:2] + ['s_cmp_eq_u32 %s, 0' % sW, 's_cselect_b32 %s, %s, %d' % (sidx, sidx, OOB)] + o[2:])

    def get_epoch(self, issued=False):
        a = self.a
        top, done = self.label('ep'), self.label('epd')
        if not issued:
            self.epoch_issue()
        a('s_waitcnt lgkmcnt(0)')
        a('s_cmp_lg_u32 %s, 0' % sEP)
        a('s_cbranch_scc0 %s' % top)
        a(done + ':')
        self.cold += [top + ':', 'v_mov_b32 v255, 0', top + '_l:', 'global_load_dword v253, v255, %s sc1' % DBGP,
                      's_waitcnt vmcnt(0)', 'v_readfirstlane_b32 %s, v253' % sEP, 's_nop 4', 's_cmp_lg_u32 %s, 0' % sEP,
                      's_cbranch_scc1 %s' % done, 's_sub_u32 %s, %s, 1' % (sCT, sCT), 's_cbranch_scc1 L_exit',
                      's_sleep 4', 's_branch %s_l' % top]
        a('s_mov_b32 s51, s50')
        for k in range(4):
            a('v_mov_b32 v%d, %s' % (vFL + k, sEP))

    def tr_lane_addr(self, dst, pitch, h16, t0, t1):
        a = self.a
        a('v_lshrrev_b32 %s, 5, v0' % t0)
        a('v_lshlrev_b32 %s, 3, %s' % (t0, t0))
        a('v_bfe_u32 %s, v0, 2, 2' % t1)
        a('v_add_u32 %s, %s, %s' % (t0, t0, t1))
        a('v_mul_u32_u24 %s, %d, %s' % (dst, pitch, t0))
        a('v_bfe_u32 %s, v0, 4, 1' % t0)
        a('v_mul_u32_u24 %s, %d, %s' % (t0, h16, t0))
        a('v_add_u32 %s, %s, %s' % (dst, dst, t0))
        a('v_and_b32 %s, 1, v0' % t0)
        a('v_lshl_add_u32 %s, %s, 4, %s' % (dst, t0, dst))
        a('v_bfe_u32 %s, v0, 1, 1' % t0)
        a('v_lshl_add_u32 %s, %s, 3, %s' % (dst, t0, dst))

    def prologue(self):
        a = self.a
        a.fresh()
        a('s_cmp_ge_u32 s2, 256')
        a('s_cbranch_scc1 L_exit')
        if self.stamps:
            a('v_mov_b32 v254, 0')
            a('s_memrealtime s[100:101]\ns_waitcnt lgkmcnt(0)\nv_writelane_b32 v254, s100, 63')
            self.stamp(0)
        a('s_load_dwordx16 s[16:31], s[0:1], 0')
        a('s_load_dwordx4 s[32:35], s[0:1], 64')
        self.code_prefetch(232)
        a('v_lshrrev_b32 v2, 6, v0')
        a('v_and_b32 v0, 63, v0')
        a('v_readfirstlane_b32 %s, v2' % sW)
        a('v_lshlrev_b32 %s, 4, v0' % vL16)
        a('s_and_b32 %s, s2, 7' % sXCD)
        a('s_lshr_b32 %s, s2, 3' % sI)
        a('s_and_b32 s11, %s, 3' % sI)
        a('s_lshl_b32 %s, %s, 2' % (sM, sXCD))
        a('s_add_u32 %s, %s, s11' % (sM, sM))
        a('s_lshr_b32 %s, %s, 2' % (sN, sI))
        a('s_mov_b32 %s, 0x40000' % sCT)

    def roles(self):
        a = self.a
        self.srd(40, 34, WS_END)
        self.srd(44, 30, 2048 * 896)
        a('s_and_b32 s11, %s, 1' % sI)
        a('s_lshl_b32 s12, %s, 1' % sN)
        a('s_add_u32 s12, s12, s11')
        a('s_lshr_b32 s13, %s, 1' % sM)
        if self.opt['p2map'] == 'A':
            a('s_mov_b32 %s, s13' % sR)
            a('s_mov_b32 %s, s12' % sHD)
        else:
            a('s_lshr_b32 %s, %s, 1' % (sR, sI))
            a('s_lshl_b32 %s, %s, 1' % (sHD, sXCD))
            a('s_add_u32 %s, %s, s11' % (sHD, sHD))
        if self.opt['p4map'] == 'A':
            a('s_mov_b32 %s, s13' % sR4)
            a('s_mov_b32 %s, s12' % sJ)
        else:
            a('s_and_b32 s11, %s, 1' % sXCD)
            a('s_lshl_b32 s11, s11, 3')
            a('s_add_u32 s11, s11, %s' % sN)
            a('s_lshr_b32 s12, %s, 1' % sXCD)
            a('s_lshl_b32 s12, s12, 2')
            a('s_and_b32 s13, %s, 3' % sI)
            a('s_add_u32 %s, s12, s13' % sR4)
            a('s_mov_b32 %s, s11' % sJ)
        a('s_lshr_b32 s11, %s, 1' % sW)
        a('s_lshl_b32 s11, s11, 10')
        a('v_xor_b32 %s, s11, %s' % (vXA, vL16))
        a('v_xor_b32 %s, 1024, %s' % (vXB, vXA))

    def code_prefetch(self, dst):
        if not self.opt['codepf']:
            return
        a = self.a
        a('s_getpc_b64 s[12:13]')
        a('L_code_pc:')
        a('s_lshr_b32 s11, s2, 3')
        a('s_lshl_b32 s11, s11, 12')
        a('v_lshl_add_u32 v%d, v0, 4, s11' % dst)
        a('v_min_u32 v%d, L_code_end-L_code_pc-16, v%d' % (dst, dst))
        a('v_mov_b32 v%d, s13' % (dst + 1))
        a('v_add_co_u32 v%d, vcc, s12, v%d' % (dst, dst))
        a('v_addc_co_u32 v%d, vcc, 0, v%d, vcc' % (dst + 1, dst + 1))
        a('global_load_dwordx4 %s, %s, off' % (vr(dst + 2), vr(dst, 2)))

    P1_X = 4 * SLOT
    P1_SL = [0, 1, 2, 3, 0, 1]
    RP_LDS = 3 * SLOT

    def p1_wdma(self, ss):
        g, h = ss // 2, ss % 2
        o = []
        for i in range(7):
            pre = ['s_add_u32 m0, s83, %d' % (self.P1_SL[ss] * SLOT + i * 1024)] if i % 4 == 0 else []
            o.append(pre + [('buffer_load_dwordx4 v%d, %s, s%d offen offset:%d lds' % (180 + g, SRD_WQKV, 68 + 7 * h + i, (i % 4) * 1024), 'w%d' % ss)])
        return o

    def p1(self):
        a = self.a
        XR, ACC, WF, PKR, T = 16, 72, 104, 136, 152
        VX, VX2 = 178, 179
        a('v_lshrrev_b32 v2, 3, v0')
        a('v_and_b32 v3, 7, v0')
        a('v_mul_u32_u24 v%d, 896, v2' % VX)
        a('v_lshl_add_u32 v%d, v3, 4, v%d' % (VX, VX))
        a('v_add_u32 v%d, %d, v%d' % (VX2, 8 * 896, VX))
        a('s_lshl_b32 s11, %s, 6' % sM)
        a('s_lshl_b32 s12, %s, 4' % sW)
        a('s_add_u32 s11, s11, s12')
        a('s_mul_i32 s14, s11, 896')
        a('s_add_u32 s15, %s, %s' % (sXCD if self.opt['rot'] == 3 else '0', sN))
        a('s_sub_u32 s13, s15, 7')
        a('s_cselect_b32 s15, s15, s13')
        a('s_lshl_b32 s15, s15, 7')
        for s in range(7):
            a('s_add_u32 s%d, s14, s15' % (92 + s))
            a('s_mul_i32 s%d, s15, 1344' % (84 + s))
            if s < 6:
                a('s_add_u32 s15, s15, 128')
                a('s_cmp_eq_u32 s15, 896')
                a('s_cselect_b32 s15, 0, s15')

        def wtab(h):
            for i in range(7):
                B = 28 * h + 4 * i
                a('s_add_u32 s%d, s%d, %d' % (68 + 7 * h + i, 84 + (B >> 3), (B & 7) * 8 * 2688 + 4096 - (i % 4) * 1024))
        wtab(0)
        a('s_mul_i32 s83, %s, 7168' % sW)
        a('s_mul_i32 s11, %s, %d' % (sW, 8 * 2688))
        a('s_lshl_b32 s12, %s, 7' % sN)
        a('s_add_u32 s11, s11, s12')
        a('v_bfe_u32 v176, v0, 4, 1')
        a('v_lshlrev_b32 v176, 2, v176')
        a('v_xor_b32 v176, v176, v3')
        a('v_mul_u32_u24 v177, 2688, v2')
        a('v_lshl_add_u32 v176, v176, 4, v177')
        a('v_add_u32 v181, s11, v176')
        a('v_add_u32 v180, 896, v181')
        self.srd(36, 16, 2048 * 896)
        self.stamp(34)
        NX0, NWF = self.opt.get('nx0', 5), self.opt.get('nwf', 0)

        def xload(s):
            return ['buffer_load_dwordx4 %s, v%d, %s, s%d offen%s' % (vr(XR + (s * 2 + q) * 4), VX2 if q else VX, SRD_X, 92 + s, ' nt' if self.opt['nt'] & 4 else '') for q in range(2)]
        for s in range(NX0):
            self.emit(xload(s))
        a('s_sub_u32 s18, s18, 4096')
        a('s_subb_u32 s19, s19, 0')
        self.srd(52, 18, 448 * 2688 + 4096)
        if self.opt.get('aw', 1):
            a('s_lshl_b32 s11, s2, 2')
            a('s_add_u32 s11, s11, %s' % sW)
            a('s_mul_i32 s11, s11, 1344')
            a('s_add_u32 s11, s11, 4096')
            a('v_lshlrev_b32 v190, 7, v0')
            a('s_mov_b64 exec, 0x7ff')
            a('buffer_load_dword v191, v190, %s, s11 offen' % SRD_WQKV)
            a('s_mov_b64 exec, -1')
        wg = self.p1_wdma(0) + self.p1_wdma(1) + self.p1_wdma(2) + self.p1_wdma(3)
        self.emit(wg[:min(NWF, 7)])
        wtab(1)
        self.emit(wg[7:NWF])
        self.stamp(26)
        self.srd(60, 24, 448 * 3584)
        self.srd(64, 26, 448 * 3584)
        self.roles()
        a('v_add_u32 v182, 1792, v181')
        a('v_lshrrev_b32 v10, 4, v0')
        a('v_xor_b32 v10, v3, v10')
        a('v_lshlrev_b32 v11, 7, v2')
        a('s_lshl_b32 s11, %s, 11' % sW)
        a('s_add_u32 s11, s11, %d' % self.P1_X)
        a('v_add_u32 v11, s11, v11')
        a('v_lshl_add_u32 v%d, v10, 4, v11' % T)
        a('v_xor_b32 v%d, 64, v%d' % (T + 1, T))
        a('v_add_u32 v%d, 1024, v%d' % (T + 1, T + 1))
        a('v_and_b32 v14, 31, v0')
        a('v_lshrrev_b32 v15, 5, v0')
        a('v_bfe_u32 v2, v0, 1, 3')
        a('v_xor_b32 v15, v15, v2')
        a('s_and_b32 s11, %s, 1' % sW)
        a('s_lshl_b32 s11, s11, 12')
        a('s_add_u32 s11, s11, %d' % self.P1_X)
        a('v_lshlrev_b32 v14, 7, v14')
        a('v_add_u32 v14, s11, v14')
        for u in range(4):
            a('v_xor_b32 v2, %d, v15' % (2 * u))
            a('v_lshl_add_u32 v%d, v2, 4, v14' % (T + 2 + u))
        self.tr_lane_addr('v14', 128, 32, 'v2', 'v3')
        a('v_bfe_u32 v2, v0, 3, 1')
        a('s_lshr_b32 s11, %s, 1' % sW)
        a('v_xor_b32 v2, s11, v2')
        a('v_lshl_add_u32 v%d, v2, 6, v14' % (T + 6))
        a('v_lshrrev_b32 v2, 5, v0')
        a('v_mul_u32_u24 v2, %d, v2' % (7168 - 1024))
        a('v_add_u32 v%d, v2, v%d' % (T + 6, T + 6))
        a('v_add_u32 v%d, %d, v%d' % (T + 7, 2 * SLOT, T + 6))
        ONE, SU, SQ, RS, NB, TMP = T + 9, ACC, ACC + 4, T + 10, T + 14, T + 18
        a('v_mov_b32 v%d, 0x3f803f80' % ONE)
        a('v_mov_b32 v%d, 0xffff0000' % TMP)
        st = []
        for s in range(7):
            for q in range(2):
                for d in range(4):
                    x = XR + (s * 2 + q) * 4 + d
                    k = q * 2 + (d & 1)
                    first = s == 0 and d < 2
                    st.append('v_dot2_f32_bf16 v%d, v%d, v%d, %s' % (SU + k, x, ONE, '0' if first else 'v%d' % (SU + k)))
                    st.append('v_dot2_f32_bf16 v%d, v%d, v%d, %s' % (SQ + k, x, x, '0' if first else 'v%d' % (SQ + k)))
        red = []
        for q in range(2):
            st.append('v_add_f32 v%d, v%d, v%d' % (SU + 2 * q, SU + 2 * q, SU + 2 * q + 1))
            st.append('v_add_f32 v%d, v%d, v%d' % (SQ + 2 * q, SQ + 2 * q, SQ + 2 * q + 1))
            red += [SU + 2 * q, SQ + 2 * q]
        for dpp in ('quad_perm:[1,0,3,2]', 'quad_perm:[2,3,0,1]', 'row_half_mirror'):
            for r in red:
                st.append('v_add_f32_dpp v%d, v%d, v%d %s row_mask:0xf bank_mask:0xf' % (r, r, r, dpp))
        for q in range(2):
            su, sq = SU + 2 * q, SQ + 2 * q
            st += ['v_mul_f32 v%d, %s, v%d' % (su, f32(1.0 / 448), su),
                   'v_mul_f32 v%d, %s, v%d' % (sq, f32(1.0 / 448), sq),
                   'v_fma_f32 v%d, -v%d, v%d, v%d' % (sq, su, su, sq),
                   'v_max_f32 v%d, 0, v%d' % (sq, sq),
                   'v_add_f32 v%d, %s, v%d' % (sq, f32(1e-5), sq),
                   'v_rsq_f32 v%d, v%d' % (RS + 2 * q, sq),
                   'v_mul_f32_e64 v%d, -v%d, v%d' % (NB + 2 * q, su, RS + 2 * q)]

        def norm(s, pk):
            o = []
            for q in range(2):
                b = XR + (s * 2 + q) * 4
                tb_ = PKR + q * 8
                for d in range(4):
                    o.append('v_lshlrev_b32 v%d, 16, v%d' % (tb_ + 2 * d, b + d))
                    o.append('v_and_b32 v%d, v%d, v%d' % (tb_ + 2 * d + 1, TMP, b + d))
                for d in range(4):
                    t0 = tb_ + 2 * d
                    if pk:
                        o.append('v_pk_fma_f32 %s, %s, %s, %s op_sel_hi:[1,0,0]' % (
                            vr(t0, 2), vr(t0, 2), vr(RS + 2 * q, 2), vr(NB + 2 * q, 2)))
                    else:
                        o.append('v_fma_f32 v%d, v%d, v%d, v%d' % (t0, t0, RS + 2 * q, NB + 2 * q))
                        o.append('v_fma_f32 v%d, v%d, v%d, v%d' % (t0 + 1, t0 + 1, RS + 2 * q, NB + 2 * q))
                for d in range(4):
                    o.append('v_cvt_pk_bf16_f32 v%d, v%d, v%d' % (b + d, tb_ + 2 * d, tb_ + 2 * d + 1))
                if s == 6 and q == 0:
                    o.append('s_barrier')
                o.append('ds_write_b128 v%d, %s offset:%d' % (T + q, vr(b), (s % 6) * 8192))
            return o

        def xread(ks):
            return 'ds_read_b128 %s, v%d offset:%d' % (ar(4 * ks), T + 2 + ks % 4, ((ks // 4) % 6) * 8192)

        cnt = [0]

        def wread(ss, k):
            b = WF + (cnt[0] % 8) * 4
            cnt[0] += 1
            sl = self.P1_SL[ss]
            return b, ['ds_read_b64_tr_b16 %s, v%d offset:%d' % (vr(b + 2 * z, 2), T + 6 + (sl >> 1), (sl & 1) * SLOT + (k & 1) * 14336 + (k >> 1) * 1024 + z * 512)
                       for z in range(2)]

        D = 6

        def store(g):
            so = ['s82', 'vcc_lo', 'vcc_hi'][g]
            o = []
            for h in range(2):
                pk = PKR + (g % 2) * 8 + 4 * h
                for d in range(4):
                    r = ACC + 16 * (g % 2) + 8 * h + 2 * d
                    o.append('v_cvt_pk_bf16_f32 v%d, v%d, v%d' % (pk + d, r, r + 1))
                o.append(('buffer_store_dwordx4 %s, %s, %s, %s offen offset:%d sc1' % (vr(pk), vL16, SRD_WS, so, h * 1024), 'q%d' % g))
            return o

        def sync(ss):
            return [Pseudo('wait_tok', 'w%d' % ss), 's_waitcnt lgkmcnt(0)', 's_barrier']
        a('s_lshl_b32 s13, %s, 1' % sM)
        a('s_and_b32 s12, %s, 1' % sW)
        a('s_add_u32 s13, s13, s12')
        a('s_lshr_b32 s12, %s, 1' % sW)
        a('s_lshl_b32 s11, %s, 1' % sN)
        a('s_add_u32 s12, s12, s11')
        a('s_mul_i32 vcc_lo, s13, %d' % (84 * 1024))
        a('s_lshl_b32 s11, s12, 11')
        a('s_add_u32 vcc_lo, vcc_lo, s11')
        a('s_add_u32 s82, vcc_lo, %d' % (28 * 1024))
        a('s_add_u32 vcc_hi, vcc_lo, %d' % (56 * 1024))
        a('s_lshl_b32 s16, s13, 4')
        a('s_add_u32 s16, s16, s12')
        a('s_lshl_b32 s16, s16, %d' % (FSH + 2))
        a('s_add_u32 s16, s16, %d' % (WS_FL + FL_F1 * FS))
        a('s_mov_b32 %s, s16' % sBK2)
        self.stamp(1)
        for s_ in range(NX0, 7):
            self.emit(xload(s_))
        self.emit(self.p2_setup_s())
        self.p2_setup_v()
        self.emit(self.rp_load()[0])
        if self.opt.get('pw', 3) == 2:
            self.emit(self.prewrite('A', 184))
        k = NWF
        for s in range(7):
            blk = st[16 * s:16 * s + 16]
            self.emit(blk[:9])
            if s in (0, 3, 6):
                self.stamp(42 + s // 3)
            if k + 2 <= self.opt.get('n0', 14):
                self.emit(wg[k] + blk[9:] + wg[k + 1])
                k += 2
            else:
                self.emit(blk[9:])
        n1 = self.opt.get('n1', 20)
        if self.opt.get('pw', 3) == 3:
            self.emit(self.prewrite('A', 184))
        nf, wl = self.opt.get('nf', 4), self.opt.get('wl', 0)
        pre = st[112:] + norm(0, True) + norm(1, True) + ['s_load_dword %s, %s, 0x0' % (sEP, DBGP)] + \
            [x for c_ in range(2, 7 if wl else nf) for x in norm(c_, True)]
        isw = lambda x: x.startswith('ds_write') or x == 's_barrier'
        late = []
        if wl:
            wr = [x for x in pre if isw(x)]
            pre = [x for x in pre if not isw(x)]
            late = wr[2 * nf:]
            self.emit(sprinkle(pre, wg[k:n1], 0.2, 1.0))
            self.stamp(58)
            if wl >= 2:
                a.wait_tok('w%d' % (wl - 1))
            self.emit(wr[:2 * nf])
        else:
            self.emit(sprinkle(pre, wg[k:n1], 0.3, 1.0))
        self.stamp(2)
        self.emit(sync(0))
        self.get_epoch(issued=True)
        self.stamp(3)
        seq = [(ss, kk) for ss in range(6) for kk in range(14)]

        def rds(i):
            ss, kk = seq[i]
            b, r = wread(ss, kk)
            o = sync(ss) if (kk == 0 and ss) else []
            if ss < 2:
                o.append(xread(14 * ss + kk))
            return b, o + r
        rd = [rds(i) for i in range(len(seq))]
        for i in range(D):
            self.emit(rd[i][1])
        self.stamp(57)
        for ss in range(6):
            g, h = ss // 2, ss % 2
            acc = vr(ACC + 16 * (g % 2), 16)
            A, B = [], []
            for kk in range(14):
                i = 14 * ss + kk
                m_ = '%s %s, %s, %s, %s' % (MFMA, acc, vr(rd[i][0]), ar(4 * (14 * h + kk)), acc if (kk or h) else '0')
                (A if kk <= 14 - D else B).append(m_)
                if i + D < len(seq):
                    (A if kk < 14 - D else B).extend(rd[i + D][1])
            sa, sb = [], []
            if ss == 0:
                sa = sprinkle([x for s in range(nf, 7) for x in norm(s, self.opt.get('pk0', 0))], wg[n1:], 0.0, 0.9) if not wl else [x for g_ in wg[n1:] for x in g_] + late
            if ss in (2, 4):
                sa = ['s_nop 0'] * 0 + store(ss // 2 - 1)
            fl = lambda gs: [x for g_ in gs for x in g_]
            if ss == 0:
                sb = fl(self.p1_wdma(4)[:4])
            if ss == 1:
                sa = fl(self.p1_wdma(4)[4:])
                sb = fl(self.p1_wdma(5)[:4])
            if ss == 2:
                sa = fl(self.p1_wdma(5)[4:]) + sa
            if ss == 2 and self.opt.get('rpl', 3) == 0:
                sb = self.rp_load()[0]
            if ss == 1 and self.opt.get('pw', 3) == 1:
                sa = sa + self.prewrite('A', 184)
            if ss == 3:
                sa = self.p2_masks()
            if ss == self.opt.get('kf', 3):
                sb = [[], [], [], [[Pseudo('wait_tok', 'q0')] + self.f1_set(0)]]
            A, r1 = weave(A, sa, start=1 if ss in (2, 4) else ((4 if wl else 2) if (ss == 0 and nf == 6) else 0))
            if ss == 5:
                B = B[:2] + ['s_waitcnt lgkmcnt(0)'] + self.poll_loads(self.kflags(0)) + B[2:] + [Pseudo('wait_tok', 'q1')] + self.f1_set(1)
                r2 = []
            else:
                B, r2 = weave(B, sb)
            self.emit(A + r1 + B + r2)
            self.stamp(27 + ss)
        self.emit(store(2))

    def kflags(self, part):
        return [('s%d' % (20 + g), k * 64 + part) for g in range(2) for k in range(3)]

    def qflags(self):
        return [('s22', 1), ('s23', 1)]

    def fo_items(self):
        return [('s18', k) for k in range(2)]

    def rp_load(self):
        o = ['v_lshrrev_b32 v220, 3, v0', 'v_and_b32 v221, 7, v0', 'v_mul_u32_u24 v220, 3584, v220',
             'v_lshl_add_u32 v220, v221, 4, v220', 'v_add_u32 v221, %d, v220' % (8 * 3584 - 1024),
             's_lshl_b32 s25, %s, 6' % sN, 's_lshl_b32 s28, %s, 4' % sW, 's_add_u32 s25, s25, s28', 's_mul_i32 s25, s25, 3584',
             's_lshl_b32 s28, %s, 7' % sM, 's_add_u32 s25, s25, s28',
             ['s_cmp_lt_u32 %s, 28' % sM, 's_cselect_b32 s25, s25, %d' % OOB], 's_lshl_b32 s28, %s, 11' % sW]
        d = []
        for img, srd in enumerate((SRD_G, SRD_U)):
            d.append('s_add_u32 m0, s28, %d' % (self.RP_LDS + img * 8192))
            for z in range(2):
                d.append(('buffer_load_dwordx4 v%d, %s, s25 offen offset:%d%s lds' % (220 + z, srd, z * 1024, ' nt' if self.opt['nt'] & 1 else ''), 'rp'))
        return o, d

    def rp_prep(self):
        a = self.a
        self.tr_lane_addr('v15', 128, 8192, 'v2', 'v3')
        a('s_lshl_b32 s11, %s, 5' % sW)
        a('s_add_u32 s11, s11, %d' % self.RP_LDS)
        a('v_add_u32 v15, s11, v15')
        a('s_lshl_b32 s13, %s, 2' % sM)
        a('s_add_u32 s13, s13, %s' % sW)
        a('s_mul_i32 s0, s13, 28672')
        a('s_lshl_b32 s12, %s, 12' % sN)
        a('s_add_u32 s0, s0, s12')
        a('s_add_u32 s0, s0, %d' % WS_WGU)
        a('s_mul_i32 s1, s13, 896')
        a('s_lshl_b32 s12, %s, 7' % sN)
        a('s_add_u32 s1, s1, s12')
        a('s_add_u32 s1, s1, %d' % WS_CS)
        a('s_lshl_b32 s12, %s, 2' % sN)
        a('s_max_u32 s12, s12, %s' % sM)
        a('s_cmp_lt_u32 s12, 28')
        a('s_cselect_b32 s0, s0, %d' % OOB)
        a('s_cselect_b32 s1, s1, %d' % OOB)

    def rp_frag(self):
        a = self.a
        for u in range(4):
            for z in range(2):
                a('ds_read_b64_tr_b16 %s, v15 offset:%d' % (ar(168 + u * 4 + z * 2, 2), (16 * u + 4 * z) * 128))
        for d in range(4):
            a('v_mov_b32 v%d, 0x3f803f80' % (160 + d))
        a('v_lshlrev_b32 v164, 2, v0')

    def rp_mm(self):
        for u in range(4):
            self.a('%s v[16:31], v[160:163], %s, %s' % (MFMA, ar(168 + u * 4), 'v[16:31]' if u else '0'))

    def rp_store(self):
        a = self.a
        for u in range(4):
            a('buffer_store_dwordx4 %s, %s, %s, s0 offen offset:%d sc1' % (ar(168 + u * 4), vL16, SRD_WS, u * 1024), tok='rs')
        a('s_mov_b32 exec_hi, 0')
        a('buffer_store_dword v16, v164, %s, s1 offen sc1' % SRD_WS, tok='rs')
        a('s_mov_b32 exec_hi, -1')

    def fg_set(self):
        a = self.a
        a('s_mul_i32 s11, %s, 7' % sM)
        a('s_add_u32 s11, s11, %s' % sN)
        a('s_cmp_ge_u32 %s, 7' % sN)
        a('s_cselect_b32 s11, %d, s11' % (FL_FD + 31 - FL_FG))
        self.flag_set_wg('s11', FL_FG)

    def prewrite(self, part, z):
        assert FS == 256
        st = lambda s_: 'buffer_store_dwordx4 %s, %s, %s, %s offen sc1' % (vr(z), vL16, SRD_WS, s_)
        o = ['v_mov_b32 v%d, 0' % (z + k) for k in range(4)]
        if part == 'A':
            return o + [st('s16')]
        o += ['s_lshl_b32 s12, %s, 2' % sR4, 's_add_u32 s12, s12, %s' % sW, 's_lshl_b32 s12, s12, 4', 's_add_u32 s12, s12, %s' % sJ,
              's_lshl_b32 s12, s12, 10', 's_add_u32 s12, s12, %d' % (WS_FL + FL_F4 * FS),
              ['s_mov_b32 exec_hi, 0xffff', st('s12'), 's_mov_b32 exec_hi, -1'] if self.opt.get('stg', 247) < 1000 else st('s12')]
        o += ['s_lshl_b32 s12, s24, 4', 's_add_u32 s12, s12, %s' % sHD,
              's_lshl_b32 s12, s12, 8', 's_add_u32 s12, s12, %d' % (WS_FL + FL_F2 * FS),
              ['s_mov_b64 exec, 0xffff', st('s12'), 's_mov_b64 exec, -1']]
        return o

    def prewrite_data(self, z):
        st = lambda s_, off: 'buffer_store_dwordx4 %s, %s, %s, %s offen offset:%d sc1' % (vr(z), vL16, SRD_WS, s_, off)
        o = ['s_lshl_b32 s11, s24, 4', 's_add_u32 s11, s11, %s' % sHD, 's_lshl_b32 s11, s11, 11', 's_add_u32 s11, s11, %d' % WS_O,
             st('s11', 0), st('s11', 1024),
             's_lshl_b32 s13, %s, 1' % sM, 's_and_b32 s12, %s, 1' % sW, 's_add_u32 s13, s13, s12', 's_mul_i32 s13, s13, 14',
             's_lshr_b32 s12, %s, 1' % sW, 's_add_u32 s13, s13, s12', 's_lshl_b32 s12, %s, 1' % sN, 's_add_u32 s13, s13, s12',
             's_lshl_b32 s13, s13, 11', 's_add_u32 s13, s13, %d' % WS_HB,
             's_cmp_ge_u32 %s, 7' % sN, 's_cselect_b32 s13, %d, s13' % OOB, st('s13', 0), st('s13', 1024)]
        return o

    def touch(self, v):
        sh = self.opt.get('tsh', 19)
        return ['v_lshlrev_b32 v%d, %d, v0' % (v, sh),
                'buffer_load_dword v%d, v%d, %s, 0 offen offset:2048' % (v + 1, v, SRD_WS),
                'buffer_load_dword v%d, v%d, %s, 0 offen offset:2048' % (v + 1, v, SRD_OUT)]

    def idle1(self):
        a = self.a
        self.srd(36, 16, 2048 * 896)
        self.srd(40, 34, WS_END)
        noep = self.label('noep')
        a('s_lshl_b32 s13, s2, 2')
        a('s_add_u32 s13, s13, %s' % sW)
        a('s_cmp_lg_u32 s13, 1020')
        a('s_cbranch_scc1 %s' % noep)
        a.begin_cond(noep)
        a('s_mov_b32 s13, %d' % WS_EP)
        a('s_load_dword s12, %s, s13 glc' % WSP)
        a('s_add_u32 s12, s12, 1')
        a('s_max_u32 s12, s12, 1')
        a('v_mov_b32 v8, s12')
        a('v_mov_b32 v9, 0')
        a('s_mov_b64 exec, 1')
        a('buffer_store_dword v8, off, %s, s13 sc1' % SRD_WS)
        a('global_store_dword v9, v8, %s sc1' % DBGP)
        a('s_mov_b64 exec, -1')
        a.end_cond()
        a(noep + ':')
        if self.opt.get('j0', 0):
            self.srd(52, 18, 448 * 2688)
            a('s_lshl_b32 s11, %s, 2' % sM)
            a('s_add_u32 s11, s11, %s' % sW)
            a('s_mul_i32 s11, s11, 9408')
            for k in range(10):
                if k and k % 4 == 0:
                    a('s_add_u32 s11, s11, 4096')
                a('buffer_load_dwordx4 v[40:43], %s, %s, s11 offen offset:%d' % (vL16, SRD_WQKV, (k % 4) * 1024))
        a('v_lshrrev_b32 v2, 3, v0')
        a('v_and_b32 v3, 7, v0')
        a('s_mul_i32 s17, %s, 40960' % sW)
        self.srd(60, 24, 448 * 3584)
        self.srd(64, 26, 448 * 3584)
        self.srd(52, 28, 1792 * 896)
        self.srd(56, 20, 448 * 896)
        self.roles()
        if self.opt.get('ti', 1):
            self.emit(self.touch(38))
            a('buffer_load_dword v39, v38, %s, 0 offen' % SRD_G)
            a('buffer_load_dword v39, v38, %s, 0 offen' % SRD_U)
        a('v_mul_u32_u24 v4, 896, v2')
        a('v_lshl_add_u32 v4, v3, 4, v4')
        a('s_and_b32 s12, %s, 3' % sM)
        a('s_mul_i32 s19, s12, 112')
        a('s_lshl_b32 s11, %s, 4' % sW)
        a('s_add_u32 s19, s19, s11')
        a('s_lshr_b32 s11, %s, 1' % sW)
        a('s_lshl_b32 s11, s11, 3')
        a('s_sub_u32 s19, s19, s11')
        a('s_mul_i32 s19, s19, 896')
        a('s_lshr_b32 s13, %s, 2' % sM)
        a('s_lshl_b32 s11, s13, 7')
        a('s_add_u32 s19, s19, s11')
        a('s_lshl_b32 s18, s13, 5')
        a('s_lshl_b32 s11, s12, 3')
        a('s_add_u32 s18, s18, s11')
        a('s_add_u32 s18, s18, %s' % sW)
        a('s_lshl_b32 s18, s18, 11')
        a('s_add_u32 s18, s18, %d' % WS_WO)
        a('s_lshl_b32 s20, %s, 2' % sM)
        a('s_add_u32 s20, s20, %s' % sW)
        a('s_lshl_b32 s21, s20, 11')
        a('s_add_u32 s21, s21, %d' % WS_WD)
        a('s_cmp_lt_u32 %s, 28' % sM)
        a('s_cselect_b32 s19, s19, %d' % OOB)
        a('s_cselect_b32 s18, s18, %d' % OOB)
        a('s_cselect_b32 s21, s21, %d' % OOB)
        for k in range(4):
            a('s_add_u32 m0, s17, %d' % (14336 + k * 1024))
            a('s_add_u32 s11, s19, %d' % (((k >> 1) * 56 + (k & 1) * 8) * 896))
            a('buffer_load_dwordx4 v4, %s, s11 offen%s lds' % (SRD_D, ' nt' if self.opt['nt'] & 2 else ''), tok='j2')
        self.tr_lane_addr('v6', 128, 32, 'v2', 'v3')
        a('v_add_u32 v6, s17, v6')
        self.tr_lane_addr('v7', 896, 32, 'v2', 'v3')
        a('v_add_u32 v7, s17, v7')

        def j3():
            a('s_lshl_b32 s11, %s, 2' % sM)
            a('s_add_u32 s11, s11, %s' % sW)
            a('s_mul_i32 s11, s11, 12544')
            for k in range(13):
                if k and k % 4 == 0:
                    a('s_add_u32 s11, s11, 4096')
                for srd in ((SRD_G, SRD_U) if self.opt.get('j3') in (1, 3) else (SRD_G,)):
                    a('buffer_load_dwordx4 v[40:43], %s, %s, s11 offen offset:%d' % (vL16, srd, (k % 4) * 1024))

        def j4():
            a('s_mul_i32 s22, s20, %d' % (16 * 896))
            for k in range(14):
                if k % 4 == 0:
                    a('s_add_u32 m0, s17, %d' % (18432 + k * 1024))
                    if k:
                        a('s_add_u32 s22, s22, 4096')
                a('buffer_load_dwordx4 %s, %s, s22 offen offset:%d%s lds' % (vL16, SRD_WQKV, (k % 4) * 1024, ' nt' if self.opt['nt'] & 2 else ''), tok='j4')

        def j2p():
            a.wait_tok('j2')
            for k in range(4):
                for z in range(2):
                    a('ds_read_b64_tr_b16 %s, v6 offset:%d' % (vr(24 + k * 4 + z * 2, 2), 14336 + (k >> 1) * 2048 + (k & 1) * 64 + z * 512))
            a('s_add_u32 s19, s18, 8192')
            for k in range(4):
                a('buffer_store_dwordx4 %s, %s, %s, s%d offen offset:%d sc1' % (vr(24 + k * 4), vL16, SRD_WS, 18 + (k >> 1), (k & 1) * 1024), tok='c2')

        def j4p():
            a.wait_tok('j4')
            for ct in range(14):
                for z in range(2):
                    a('ds_read_b64_tr_b16 %s, v110 offset:%d' % (vr(48 + ct * 4 + z * 2, 2), 18432 + ct * 64 + z * 4 * 896))
            for ct in range(14):
                if ct and ct % 2 == 0:
                    a('s_add_u32 s0, s0, %d' % (112 * 2048))
                a('buffer_store_dwordx4 %s, %s, %s, s0 offen offset:%d sc1' % (vr(48 + ct * 4), vL16, SRD_WS, (ct % 2) * 1024), tok='c4')

        def flag(tok, base):
            a.wait_tok(tok)
            a('s_barrier')
            a('s_mov_b32 s11, %s' % sM)
            self.flag_set_wg('s11', base)
        if self.opt.get('j4e', 0):
            j4()
            j2p()
        else:
            j2p()
            j4()
        a('v_mov_b32 v110, v7')
        a('s_mov_b32 s0, s21')
        self.p2_setup_v()
        self.emit(self.p2_masks())
        self.emit(self.p2_setup_s())
        self.res_voffset('v15', 's1')
        self.emit(self.rp_load()[0])
        self.get_epoch()
        flag('c2', FL_FO)
        self.stamp(1)
        if self.opt.get('j3', 0) in (3, 4):
            j3()
        j4p()
        self.stamp(2)
        a('s_lshl_b32 s0, %s, %d' % (sM, FSH + 7))
        a('s_add_u32 s0, s0, %d' % (WS_FL + (FL_F1 + 6 * 4 + self.opt.get('px', 1)) * FS))
        a('s_load_dword s12, %s, s0 offset:128' % WSP)
        flag('c4', FL_FD)
        if self.opt.get('j3', 0) in (1, 2):
            j3()
        self.stamp(3)
        a('s_cmp_eq_u32 s12, %s' % sEP)
        a('s_cbranch_scc1 L_nopw')
        a('s_cmp_lg_u32 %s, 0' % sW)
        a('s_cbranch_scc1 L_nopw')
        self.prewait('s0')
        a('L_nopw:')
        a('s_barrier')
        self.poll(self.kflags(0) + self.qflags())
        self.k_issue()
        a('s_mov_b32 s11, s1')

    KV_LDS = 4 * SLOT

    def p2_setup_s(self):
        o = []
        a = o.append
        a('s_mul_i32 s28, %s, 7' % sHD)
        a('s_lshr_b32 s28, s28, 1')
        a('s_lshl_b32 s11, %s, 2' % sR)
        a('s_add_u32 s12, s11, %s' % sW)
        a('s_mul_i32 s13, %s, 3' % sW)
        a('s_add_u32 s11, s11, s13')
        a('s_sub_i32 s18, s11, 8')
        a('s_max_i32 s13, s18, 0')
        a('s_lshl_b32 s13, s13, %d' % (FSH + 6))
        a('s_add_u32 s13, s13, %d' % (WS_FL + FL_F1 * FS))
        a('s_lshl_b32 s14, s12, %d' % (FSH + 6))
        a('s_add_u32 s14, s14, %d' % (WS_FL + FL_F1 * FS))
        for k, add in enumerate((0, 3)):
            a('s_add_u32 s15, s28, %d' % add)
            a('s_lshr_b32 s15, s15, 2')
            a('s_lshl_b32 s15, s15, %d' % (FSH + 2))
            a('s_add_u32 s%d, s15, s13' % (20 + k))
            a('s_add_u32 s%d, s15, s14' % (22 + k))
        a('s_mov_b32 s24, s12')
        a('s_lshl_b32 s28, s28, 9')
        a('s_mul_i32 s19, s12, %d' % (84 * 1024))
        a('s_add_u32 s19, s19, s28')
        for k in range(3):
            a('s_add_i32 s13, s18, %d' % k)
            a('s_mul_i32 s14, s13, %d' % (84 * 1024))
            a('s_add_u32 s14, s14, s28')
            a('s_add_u32 s14, s14, %d' % (56 * 512))
            a('s_cmp_lt_i32 s13, 0')
            a('s_cselect_b32 s%d, %d, s14' % (29 + k, OOB))
        a('s_mul_i32 s17, %s, %d' % (sW, 3 * 4096))
        a('v_lshrrev_b32 v5, 5, v0')
        a('v_lshlrev_b32 v5, 6, v5')
        a('v_xor_b32 v4, %s, v5' % vL16)
        a('v_xor_b32 v5, 128, v4')
        a('s_bitcmp1_b32 %s, 0' % sHD)
        a('s_cselect_b64 s[26:27], -1, 0')
        a('s_min_u32 s18, %s, 6' % sN)
        a('s_lshl_b32 s18, s18, 2')
        a('s_and_b32 s11, %s, 2' % sW)
        a('s_add_u32 s18, s18, s11')
        a('s_lshl_b32 s18, s18, %d' % FSH)
        a('s_add_u32 s18, s18, %d' % (WS_FL + FL_FO * FS))
        return o

    def p2_masks(self):
        o = ['v_and_b32 v2, 31, v0', 'v_lshrrev_b32 v3, 5, v0', 'v_lshlrev_b32 v3, 2, v3', 'v_sub_u32 v2, v2, v3']
        return o + ['v_cmp_le_i32 s[%d:%d], %d, v2' % (MASK0 + 2 * r, MASK0 + 2 * r + 1, (r & 3) + 8 * (r >> 2)) for r in range(16)]

    def p2_setup_v(self):
        a = self.a
        M = 224
        a('v_and_b32 v2, 31, v0')
        a('v_lshrrev_b32 v3, 5, v0')
        a('v_lshlrev_b32 v3, 2, v3')
        a('v_sub_u32 v2, v3, v2')
        a('s_mov_b32 s11, 0x03020706')
        for p in range(8):
            k0 = ((2 * p) & 3) + 8 * ((2 * p) >> 2)
            a('v_add_u32 v3, %d, v2' % (k0 - 1))
            a('v_add_u32 v8, %d, v2' % k0)
            a('v_perm_b32 v%d, v3, v8, s11' % (M + p))
        a('s_bitcmp1_b32 %s, 0' % sHD)
        a('s_cselect_b32 s12, -1, 0')
        a('s_mov_b32 s13, 0')
        a('v_cndmask_b32 v6, -1, 0, s[12:13]')
        a('s_cselect_b32 s13, 0, -1')
        a('s_mov_b32 s12, 0')
        a('v_cndmask_b32 v7, -1, 0, s[12:13]')
        a('s_cselect_b32 s11, 0, %d' % (3 * 512 + 8))
        a('s_mul_i32 s12, %s, %d' % (sW, 3 * 4096))
        a('s_add_u32 s11, s11, s12')
        a('s_add_u32 s11, s11, %d' % (self.KV_LDS + 2048))
        a('v_and_b32 v8, 31, v0')
        a('v_lshlrev_b32 v8, 4, v8')
        a('v_add_u32 v8, s11, v8')
        a('v_lshrrev_b32 v9, 5, v0')
        a('v_lshl_add_u32 v9, v9, 12, v8')
        a('v_mov_b32 v10, 0x3f80')
        a('v_mov_b32 v11, 0')
        a('s_lshl_b32 s11, %s, 12' % sW)
        a('s_add_u32 s11, s11, %d' % self.KV_LDS)
        a('v_add_u32 v12, s11, %s' % vL16)
        a('v_and_b32 v2, 1, v0')
        a('v_bfe_u32 v3, v0, 4, 1')
        a('v_lshrrev_b32 v13, 5, v0')
        a('v_xor_b32 v13, v13, v2')
        a('v_lshlrev_b32 v13, 6, v13')
        a('v_lshl_add_u32 v13, v3, 7, v13')
        a('v_lshl_add_u32 v13, v2, 9, v13')
        a('v_lshl_add_u32 v13, v3, 10, v13')
        a('v_bfe_u32 v2, v0, 2, 2')
        a('v_lshl_add_u32 v13, v2, 4, v13')
        a('v_bfe_u32 v2, v0, 1, 1')
        a('v_lshl_add_u32 v13, v2, 3, v13')
        a('v_xor_b32 v14, 128, v13')
        a('s_add_u32 s11, s11, 2048')
        a('v_add_u32 v13, s11, v13')
        a('v_add_u32 v14, s11, v14')

    def k_issue(self):
        a = self.a
        for k in range(3):
            a('s_add_u32 m0, s17, %d' % (self.KV_LDS + k * 4096))
            for t in range(2):
                a('buffer_load_dwordx4 %s, %s, s%d offen offset:%d sc1 lds' % (vL16, SRD_WS, 29 + k, t * 1024), tok='k')

    def q_issue(self):
        for t in range(2):
            self.a('buffer_load_dwordx4 %s, %s, %s, s19 offen offset:%d sc1' % (vr(232 + 4 * t), vL16, SRD_WS, t * 1024))

    def v_issue(self):
        a = self.a
        for k in range(3):
            a('s_add_u32 m0, s17, %d' % (self.KV_LDS + k * 4096 + 2048))
            a('s_add_u32 s13, s%d, %d' % (29 + k, 56 * 512))
            for t in range(2):
                a('buffer_load_dwordx4 v%d, %s, s13 offen offset:%d sc1 lds' % (4 + t, SRD_WS, t * 1024), tok='v')

    def p2(self):
        a = self.a
        S, KF, Q, VF, P, O, M = 16, 160, 232, 176, 192, 208, 224
        rpl = self.opt.get('rpl', 3)
        ve = self.opt.get('ve', 0)
        if ve:
            self.poll(self.kflags(2))
            self.v_issue()
            if self.opt.get('ro', 0) == 4:
                self.emit(self.rp_load()[1])
        a('v_and_b32 v%d, v%d, v6' % (Q, Q))
        a('v_and_b32 v%d, v%d, v6' % (Q + 1, Q + 1))
        a('v_and_b32 v%d, v%d, v7' % (Q + 6, Q + 6))
        a('v_and_b32 v%d, v%d, v7' % (Q + 7, Q + 7))
        a.wait_tok('k')
        a('s_barrier')
        self.stamp(8)
        order = [0, 8, 1, 2, 3, 4, 5, 6, 7]
        KB = [KF, KF + 8, VF, VF + 8]
        MX = 216

        def kread(i):
            return ['ds_read_b128 %s, v12 offset:%d' % (vr(KB[i % 4] + h * 4), order[i] * 4096 + h * 1024) for h in range(2)]

        def smm(i):
            t = order[i]
            return ['%s %s, %s, %s, %s' % (MFMA, vr(S + 16 * t, 16), vr(KB[i % 4] + h * 4), vr(Q + 4 * h),
                                           vr(S + 16 * t, 16) if h else '0') for h in range(2)]

        def fill(t):
            lab = self.label('fill')
            self.cold += [lab + ':', 's_nop 15'] + ['v_mov_b32 v%d, 0xff800000' % (S + 16 * t + r) for r in range(16)] + ['s_branch %s_r' % lab]
            return ['s_cmp_lt_u32 s24, %d' % (8 - t), 's_cbranch_scc1 %s' % lab, lab + '_r:']

        def mx(t):
            m3 = ['v_max3_f32 v%d, v%d, v%d, v%d' % (MX + k % 4, MX + k % 4, S + 2 * k, S + 2 * k + 1) for k in range(8 * t, 8 * t + 8)]
            if t == 0:
                o = fill(0)
                o += ['v_cndmask_b32 v%d, v%d, v%d, s[%d:%d]' % (S + r, S + r, S + 128 + r, MASK0 + 2 * r, MASK0 + 2 * r + 1) for r in range(16)]
                o += ['v_max_f32 v%d, v%d, v%d' % (MX + k, S + 2 * k, S + 2 * k + 1) for k in range(4)] + m3[4:]
                return o[:15], o[15:]
            la, lb = self.label('mxa'), self.label('mxb')
            c = 's_cmp_lt_u32 s24, %d' % (8 - t)
            return ([c, 's_cbranch_scc1 %s' % la, Pseudo('begin', la)] + m3[:4] + [Pseudo('end'), la + ':'],
                    ['s_cbranch_scc1 %s' % lb, Pseudo('begin', lb)] + m3[4:] + [Pseudo('end'), lb + ':'])

        def fill_rest():
            lab = self.label('fillr')
            o = [lab + ':', 's_nop 15']
            for t in range(1, 8):
                if t > 1:
                    o += ['s_cmp_lt_u32 s24, %d' % (8 - t), 's_cbranch_scc0 %s_r' % lab]
                o += ['v_mov_b32 v%d, 0xff800000' % (S + 16 * t + r) for r in range(16)]
            self.cold += o + ['s_branch %s_r' % lab]
            return ['s_cmp_lt_u32 s24, 7', 's_cbranch_scc1 %s' % lab, lab + '_r:']
        wo = self.wo_rest
        self.emit(kread(0) + kread(1) + kread(2))
        for i in range(9):
            m0_, m1_ = smm(i)
            va, vb = mx(i - 4) if i >= 4 else ([], [])
            sl_ = [wo.pop(0)] if (wo and i < self.opt.get('sw', 8)) else []
            self.emit([m0_] + (kread(i + 3) if i + 3 < 9 else []) + sl_ + va + [m1_] + vb)
        if self.opt.get('ro', 0) == 2:
            self.emit(self.rp_load()[1])
        if ve:
            self.p4_wsetup()
            fg, fd = self.fg_items()
            self.emit(self.poll_loads(fd))
        else:
            self.emit(self.poll_loads(self.kflags(2)))
        for t in range(5, 8):
            self.emit(list(mx(t)))
        self.emit(fill_rest())
        CC = S + 128
        a('v_max3_f32 v%d, v%d, v%d, v%d' % (MX, MX, MX + 1, MX + 2))
        a('v_max_f32 v%d, v%d, v%d' % (MX, MX, MX + 3))
        a('v_mov_b32 v%d, v%d' % (MX + 1, MX))
        c = 28 ** -0.5 * 1.4426950408889634
        a('v_mov_b32 v%d, %s' % (CC + 2, f32(c)))
        a('v_permlane32_swap_b32 v%d, v%d' % (MX, MX + 1))
        a('v_max_f32 v%d, v%d, v%d' % (MX, MX, MX + 1))
        a('v_mul_f32 v%d, %s, v%d' % (CC + 4, f32(-c), MX))
        self.stamp(9)
        VA = 184

        def vread(t):
            return ['ds_read_b64_tr_b16 %s, v%d offset:%d' % (ar(VA + t * 8 + k * 4 + z * 2, 2), 13 + z, t * 4096 + k * 256)
                    for k in range(2) for z in range(2)]

        def pkf(t):
            b = S + 16 * t
            return ['v_pk_fma_f32 %s, %s, %s, %s op_sel_hi:[1,0,0]' % (vr(b + 2 * p, 2), vr(b + 2 * p, 2), vr(CC + 2, 2), vr(CC + 4, 2))
                    for p in range(8)]

        def exps(t):
            return ['v_exp_f32 v%d, v%d' % (S + 16 * t + r, S + 16 * t + r) for r in range(16)]

        def cvt(t, pb):
            b = S + 16 * t
            return ['v_cvt_pk_bf16_f32 v%d, v%d, v%d' % (pb + p, b + 2 * p, b + 2 * p + 1) for p in range(8)]
        first = [True]

        def pv(t, pb):
            o = []
            for k in range(2):
                o.append('%s %s, %s, %s, %s' % (MFMA, vr(O, 16), ar(VA + t * 8 + k * 4), vr(pb + 4 * k), '0' if first[0] else vr(O, 16)))
                first[0] = False
            return o
        PB = lambda t: P if t == 0 else S + 16 * t
        vr_all = [x for t in order for x in vread(t)]
        vc, vb = self.opt.get('vc', 0), self.opt.get('vb', 3)
        nb = self.opt.get('nb', 4)
        assert vb >= 2
        pvq = [(0, P), (8, P + 8)] + [(t, PB(t)) for t in range(1, 8)]
        self.emit(pkf(0))
        for t in range(8):
            if ve and t == 0:
                self.poll_check(fd)
                self.emit(self.prewrite('B', 208))
            if t == vc and not ve:
                self.poll_check(self.kflags(2))
                self.v_issue()
                if self.opt.get('ro', 0) == 3:
                    self.emit(self.rp_load()[1])
                self.p4_wsetup()
                fg, fd = self.fg_items()
                self.emit(self.poll_loads(fd))
                if self.opt.get('pb', 1) == 1:
                    self.emit(self.prewrite('B', 208))
                if self.opt.get('pd', 0):
                    self.emit(self.prewrite_data(M))
                self.stamp(41)
            if t == vc + 2 and not ve:
                self.poll_check(fd)
            side = []
            if t >= 1:
                side += cvt(t - 1, PB(t - 1))
                if t == 1:
                    for p in range(8):
                        side.append('v_and_b32 v%d, v%d, v%d' % (P + 8 + p, P + p, M + p))
                        side.append('v_bfi_b32 v%d, v%d, 0, v%d' % (P + p, M + p, P + p))
            if t == vb:
                a.wait_tok('v')
                a.wait_tok('rp')
                a('ds_write_b64 v9, v[10:11]')
                a('ds_write_b64 v8, v[10:11] offset:8192')
                a('s_waitcnt lgkmcnt(0)')
                a('s_barrier')
                self.stamp(45)
            if vb <= t < vb + 3:
                side = vr_all[12 * (t - vb):12 * (t - vb) + 12] + side
            pk_ = pkf(t + 1) if t < 7 else []
            mm = []
            if t > vb:
                for _ in range(self.opt.get('npv', 2)):
                    if pvq and pvq[0][0] % 8 < t:
                        mm += pv(*pvq.pop(0))
            ex = exps(t)
            blk = []
            pre = pk_ + side
            n1_ = 16 - 3 * len(mm) if mm else 16
            for r in range(n1_):
                blk.append(ex[r])
                blk += pre[len(pre) * r // n1_:len(pre) * (r + 1) // n1_]
            for k, m_ in enumerate(mm):
                blk += [m_] + ex[n1_ + 3 * k:n1_ + 3 * k + 3]
            if t == vb and self.opt.get('ro', 0) != 3:
                blk = [x for x in self.capture(self.rp_frag)] + blk
                st_ = self.capture(self.rp_store)
                mm_ = self.capture(self.rp_mm)
                blk = sprinkle(blk, [[mm_[u], st_[u]] for u in range(4)], 0.7, 1.0)
            if t == vb + 1 and self.opt.get('ro', 0) != 3:
                blk = blk[:12] + [st_[4:]] + blk[12:]
            src = wo if wo else (self.wd if (ve or t >= vc + 2) else [])
            take_ = src[:nb] if vc <= t < self.opt.get('tb', 7) else []
            del src[:len(take_)]
            self.emit(sprinkle(blk, take_, 0.1, 0.95))
            if self.opt.get('bs'):
                self.stamp(50 + t)
        self.fg = fg
        assert not wo
        last = cvt(7, PB(7))
        rest = [m_ for x in pvq for m_ in pv(*x)]
        self.emit(sprinkle(last, [[m_] for m_ in rest[:-2]], 0.0, 1.0) + rest[-2:])
        a.wait_tok('wo')
        a.wait_tok('rp')
        a('s_barrier')
        if self.opt.get('ro', 0) == 3:
            self.rp_frag()
        self.stamp(10)
        a('v_cndmask_b32 v2, v%d, v%d, s[26:27]' % (O + 12, O))
        a('v_mov_b32 v3, v2')
        a('v_permlane32_swap_b32 v2, v3')
        a('v_cndmask_b32 v2, v3, v2, s[26:27]')
        a('v_rcp_f32 v2, v2')
        a('s_lshl_b32 s16, %s, 2' % sR)
        a('s_add_u32 s16, s16, %s' % sW)
        a('s_lshl_b32 s16, s16, 4')
        a('s_add_u32 s16, s16, %s' % sHD)
        a('s_lshl_b32 s11, s16, 11')
        a('s_add_u32 s11, s11, %d' % WS_O)
        for p in range(8):
            a('v_pk_mul_f32 %s, %s, v[2:3] op_sel_hi:[1,0]' % (vr(O + 2 * p, 2), vr(O + 2 * p, 2)))
        for p in range(8):
            a('v_cvt_pk_bf16_f32 v%d, v%d, v%d' % (P + p, O + 2 * p, O + 2 * p + 1))
        a('v_and_b32 v%d, v%d, v6' % (P, P))
        a('v_and_b32 v%d, v%d, v6' % (P + 1, P + 1))
        a('v_and_b32 v%d, v%d, v7' % (P + 6, P + 6))
        a('v_and_b32 v%d, v%d, v7' % (P + 7, P + 7))
        for t in range(2):
            a('buffer_store_dwordx4 %s, %s, %s, s11 offen offset:%d sc1' % (vr(P + 4 * t), vL16, SRD_WS, t * 1024), tok='o')

    WO_A = 112
    HRES = 240

    WO_LDS = 0

    def wo_bulk(self):
        g0 = ['s_lshl_b32 %s, %s, 14' % (sBK2, sW), 's_lshl_b32 %s, %s, 16' % (sBK, sN), 's_add_u32 %s, %s, %s' % (sBK, sBK, sBK2),
              's_add_u32 %s, %s, %d' % (sBK, sBK, WS_WO), 's_cmp_ge_u32 %s, 7' % sN, 's_cselect_b32 %s, %d, %s' % (sBK, OOB, sBK)]
        out = []
        for i in range(16):
            g = list(g0) if i == 0 else (['s_add_u32 %s, %s, 4096' % (sBK, sBK)] if i % 4 == 0 else [])
            if i % 4 == 0:
                g.append('s_add_u32 m0, %s, %d' % (sBK2, self.WO_LDS + i * 1024))
            out.append(g + [('buffer_load_dwordx4 %s, %s, %s offen offset:%d sc1 lds' % (vL16, SRD_WS, sBK, (i % 4) * 1024), 'wo')])
        return out

    def wo_read(self):
        a = self.a
        a('s_lshr_b32 s11, %s, 1' % sW)
        a('s_lshl_b32 s11, s11, 15')
        a('s_add_u32 s11, s11, %d' % self.WO_LDS)
        a('v_add_u32 v2, s11, %s' % vXA)
        a('v_add_u32 v3, s11, %s' % vXB)
        for f in range(16):
            for rel in range(2):
                a('ds_read_b128 %s, v%d offset:%d' % (vr(self.WO_A + (f * 2 + rel) * 4), 2 + rel, f * 2048))

    def wd_bulk(self):
        g0 = ['s_mul_i32 %s, %s, %d' % (sBK, sN, 112 * 2048), 's_mul_i32 %s, %s, %d' % (sBK2, sW, 28 * 2048),
              's_add_u32 %s, %s, %s' % (sBK, sBK, sBK2), 's_add_u32 %s, %s, %d' % (sBK, sBK, WS_WD),
              's_cmp_ge_u32 %s, 7' % sN, 's_cselect_b32 %s, %d, %s' % (sBK, OOB, sBK)]
        out = []
        cur = 0
        for slot in range(28):
            f = (slot % 4) * 7 + slot // 4
            for rel in range(2):
                g = list(g0) if (slot == 0 and rel == 0) else []
                if rel == 0 and f != cur:
                    d = (f - cur) * 2048
                    g.append('s_add_u32 %s, %s, %d' % (sBK, sBK, d) if d > 0 else 's_sub_u32 %s, %s, %d' % (sBK, sBK, -d))
                    cur = f
                out.append(g + ['buffer_load_dwordx4 %s, %s, %s, %s offen sc1' % (
                    ar((slot * 2 + rel) * 4), (vXA, vXB)[rel], SRD_WS, sBK)])
        return out

    def gu_bulk(self, tile):
        o = []
        for i in range(7):
            g = []
            if i % 4 == 0:
                g = ['s_add_u32 m0, s31, %d' % ((tile % 5) * SLOT + i * 1024),
                     's_add_u32 %s, s30, %d' % (sBK2, tile * 28672 + i * 1024)]
            o.append(g + [('buffer_load_dwordx4 %s, %s, %s offen offset:%d sc1 lds' % (vL16, SRD_WS, sBK2, (i % 4) * 1024), 'g%d' % tile)])
        return o

    def warm(self):
        return ['s_lshr_b32 s11, s2, 3', 's_and_b32 s11, s11, 3', 's_lshl_b32 s11, s11, 7',
                'v_lshlrev_b32 v15, 9, v0',
                's_mul_i32 s12, %s, %d' % (sJ, 7 * 28672), 's_lshl_b32 s13, %s, 15' % sW, 's_add_u32 s12, s12, s13',
                's_add_u32 s12, s12, s11', 's_add_u32 s12, s12, %d' % WS_WGU,
                'buffer_load_dword v2, v15, %s, s12 offen' % SRD_WS]

    def p4_wsetup(self):
        a = self.a
        a('s_mul_i32 s31, %s, 7168' % sW)
        a('s_mul_i32 s30, %s, %d' % (sJ, 7 * 28672))
        a('s_add_u32 s30, s30, s31')
        a('s_add_u32 s30, s30, %d' % WS_WGU)

    def seq_loads(self, dst, n, sreg):
        o = []
        for i in range(n):
            if i and i % 4 == 0:
                o.append('s_add_u32 %s, %s, 4096' % (sreg, sreg))
            o.append('buffer_load_dwordx4 %s, %s, %s, %s offen offset:%d sc1' % (
                vr(dst + 4 * i), vL16, SRD_WS, sreg, (i % 4) * 1024))
        return o

    def res_voffset(self, dst, sreg):
        a = self.a
        a('v_and_b32 %s, 31, v0' % dst)
        a('v_mul_u32_u24 %s, 896, %s' % (dst, dst))
        a('v_lshrrev_b32 v2, 5, v0')
        a('v_lshl_add_u32 %s, v2, 4, %s' % (dst, dst))
        a('s_lshl_b32 %s, %s, 1' % (sreg, sM))
        a('s_and_b32 s12, %s, 1' % sW)
        a('s_add_u32 %s, %s, s12' % (sreg, sreg))
        a('s_mul_i32 %s, %s, %d' % (sreg, sreg, 32 * 896))
        a('s_lshl_b32 s12, %s, 7' % sN)
        a('s_add_u32 %s, %s, s12' % (sreg, sreg))
        a('s_lshr_b32 s12, %s, 1' % sW)
        a('s_lshl_b32 s12, s12, 6')
        a('s_add_u32 %s, %s, s12' % (sreg, sreg))

    def unpack8(self, dst, src):
        for p in range(8):
            self.a('v_lshlrev_b32 v%d, 16, v%d' % (dst + 2 * p, src + p))
            self.a('v_and_b32 v%d, 0xffff0000, v%d' % (dst + 2 * p + 1, src + p))

    P3_ACC, P3_OF = 16, 48

    def p3_setup(self):
        a = self.a
        EX = XTRA + 1024
        self.unpack8(self.P3_ACC, self.HRES)
        a('s_lshl_b32 s13, %s, 1' % sM)
        a('s_and_b32 s12, %s, 1' % sW)
        a('s_add_u32 s13, s13, s12')
        a('s_lshr_b32 s12, %s, 1' % sW)
        a('s_lshl_b32 s18, s13, 1')
        a('s_add_u32 s18, s18, s12')
        a('s_lshl_b32 s20, s18, %d' % (FSH + 3))
        a('s_add_u32 s20, s20, %d' % (WS_FL + FL_F2 * FS))
        a('s_lshl_b32 s18, s18, 14')
        a('s_add_u32 s18, s18, %d' % WS_O)
        a('s_xor_b32 s11, %s, 2' % sW)
        a('s_lshl_b32 s11, s11, 12')
        a('s_add_u32 s11, s11, %d' % EX)
        a('v_add_u32 v4, s11, %s' % vL16)
        a('s_lshl_b32 s11, %s, 12' % sW)
        a('s_add_u32 s11, s11, %d' % EX)
        a('v_add_u32 v5, s11, %s' % vL16)
        a('s_lshl_b32 s14, %s, 1' % sN)
        a('s_add_u32 s14, s14, s12')
        a('s_mul_i32 s19, s13, 28672')
        a('s_lshl_b32 s12, s14, 11')
        a('s_add_u32 s19, s19, s12')
        a('s_add_u32 s19, s19, %d' % WS_HB)
        a('s_lshl_b32 s17, s13, 4')
        a('s_add_u32 s17, s17, s14')
        a('s_lshl_b32 s29, s17, 8')
        a('s_add_u32 s29, s29, %d' % WS_ST)
        a('v_mov_b32 v6, 0x3f803f80')
        a('v_lshlrev_b32 v7, 3, v0')

    def p3(self, early):
        a = self.a
        ACC, OF = self.P3_ACC, self.P3_OF
        self.poll([('s20', k) for k in range(8)])
        self.stamp(12)
        self.emit(self.seq_loads(OF, 16, 's18'))
        early = list(early)
        fc = self.opt.get('fc', 4)
        if early:
            self.emit(self.poll_loads(self.fg))
        for f in range(16):
            if early and f == fc:
                self.poll_check(self.fg)
            if early and f >= fc:
                n_ = -(-len(early) // (16 - f))
                self.emit(early[:n_])
                del early[:n_]
            for rel in (1, 0):
                a('%s %s, %s, %s, %s' % (MFMA, vr(ACC + 16 * rel, 16), vr(self.WO_A + (f * 2 + rel) * 4), vr(OF + 4 * f),
                                         '0' if (rel == 1 and f == 0) else vr(ACC + 16 * rel, 16)))
        self.stamp(13)
        for k in range(4):
            a('ds_write_b128 v4, %s offset:%d' % (vr(ACC + 16 + 4 * k), k * 1024))
        a('s_waitcnt lgkmcnt(0)')
        a('s_barrier')
        for k in range(4):
            a('ds_read_b128 %s, v5 offset:%d' % (vr(OF + 4 * k), k * 1024))
        H = self.HRES
        for p in range(8):
            a('v_pk_add_f32 %s, %s, %s' % (vr(ACC + 2 * p, 2), vr(ACC + 2 * p, 2), vr(OF + 2 * p, 2)))
            a('v_cvt_pk_bf16_f32 v%d, v%d, v%d' % (H + p, ACC + 2 * p, ACC + 2 * p + 1))
            if p % 4 == 3:
                a('buffer_store_dwordx4 %s, %s, %s, s19 offen offset:%d sc1' % (vr(H + p - 3), vL16, SRD_WS, (p // 4) * 1024), tok='h')
        for p in range(8):
            a('v_dot2_f32_bf16 v8, v%d, v6, %s' % (H + p, 'v8' if p else '0'))
            a('v_dot2_f32_bf16 v9, v%d, v%d, %s' % (H + p, H + p, 'v9' if p else '0'))
        a('v_mov_b32 v10, v8')
        a('v_mov_b32 v11, v9')
        a('v_permlane32_swap_b32 v8, v10')
        a('v_permlane32_swap_b32 v9, v11')
        a('v_add_f32 v8, v8, v10')
        a('v_add_f32 v9, v9, v11')
        a('s_mov_b32 exec_hi, 0')
        a('buffer_store_dwordx2 v[8:9], v7, %s, s29 offen sc1' % SRD_WS, tok='h')
        a('s_mov_b64 exec, -1')

    def p4_cs_issue(self):
        a = self.a
        a('s_lshl_b32 s11, %s, 1' % sW)
        a('v_lshrrev_b32 v112, 5, v0')
        a('v_add_u32 v112, s11, v112')
        a('v_min_u32 v113, 6, v112')
        a('v_mul_u32_u24 v113, 896, v113')
        a('v_and_b32 v114, 31, v0')
        a('v_lshl_add_u32 v113, v114, 2, v113')
        a('s_mul_i32 s11, %s, %d' % (sJ, 7 * 896))
        a('s_add_u32 s11, s11, %d' % WS_CS)
        for k in range(7):
            a('buffer_load_dword v%d, v113, %s, s11 offen offset:%d sc1' % (116 + k, SRD_WS, 128 * k))
        a('v_lshlrev_b32 v112, 9, v112')
        a('v_lshl_add_u32 v112, v114, 4, v112')
        a('v_add_u32 v112, %d, v112' % self.CF_LDS)

    CF_LDS = XTRA

    def split_bf16(self, x, hi, lo):
        raise NotImplementedError

    def p4_cs_finish(self):
        a = self.a
        for k in range(1, 7):
            a('v_add_f32 v116, v116, v%d' % (116 + k))
        a('v_mov_b32 v122, 0')
        a('v_mov_b32 v123, 0')
        a('v_cvt_pk_bf16_f32 v121, v116, 0')
        a('v_lshlrev_b32 v117, 16, v121')
        a('v_sub_f32 v117, v116, v117')
        a('v_cvt_pk_bf16_f32 v120, v116, v117')
        a('ds_write_b128 v112, v[120:123]')

    def fg_items(self):
        a = self.a
        a('s_mul_i32 s23, %s, 7' % sJ)
        a('s_lshr_b32 s23, s23, 2')
        a('s_min_u32 s23, s23, 25')
        a('s_mul_i32 s23, s23, 7')
        a('s_mul_i32 s11, %s, 7' % sW)
        a('s_lshr_b32 s11, s11, 2')
        a('s_min_u32 s11, s11, 4')
        a('s_add_u32 s23, s23, s11')
        a('s_lshl_b32 s23, s23, %d' % FSH)
        a('s_add_u32 s23, s23, %d' % (WS_FL + FL_FG * FS))
        a('s_mul_i32 s22, %s, %d' % (sW, 7 * FS))
        a('s_add_u32 s22, s22, %d' % (WS_FL + FL_FD * FS))
        return [('s23', 7 * g + k) for g in range(3) for k in range(3)], [('s22', k) for k in range(7)]

    def p4_setup(self):
        a = self.a
        a('s_lshl_b32 s13, %s, 2' % sR4)
        a('s_add_u32 s13, s13, %s' % sW)
        a('s_mul_i32 s18, s13, 28672')
        a('s_add_u32 s18, s18, %d' % WS_HB)
        a('s_lshl_b32 s20, s13, %d' % (FSH + 6))
        a('s_add_u32 s20, s20, %d' % (WS_FL + FL_F3 * FS))
        a('v_and_b32 v2, 31, v0')
        a('v_lshlrev_b32 v2, 3, v2')
        a('v_lshrrev_b32 v3, 5, v0')
        a('v_mul_u32_u24 v4, %d, v3' % (7 * 256))
        a('v_add_u32 v14, v2, v4')
        a('s_lshl_b32 s19, s13, 12')
        a('s_add_u32 s19, s19, %d' % WS_ST)
        a('v_add_u32 v5, %d, %s' % (2 * SLOT, vL16))
        a('v_add_u32 v6, %d, %s' % (4 * SLOT, vL16))
        a('v_and_b32 v7, 0x1f0, %s' % vL16)
        a('v_add_u32 v7, %d, v7' % self.CF_LDS)
        a('s_mul_i32 s29, s13, %d' % (112 * 1024))
        a('s_mul_i32 s12, %s, %d' % (sJ, 7 * 1024))
        a('s_add_u32 s29, s29, s12')
        a('s_add_u32 s29, s29, %d' % WS_HH)
        a('s_add_u32 s28, s29, 4096')
        a('s_lshl_b32 s27, s13, 4')
        a('s_add_u32 s27, s27, %s' % sJ)

    def f1_set(self, part):
        return ['s_mov_b64 exec, 0xffff',
                'buffer_store_dwordx4 %s, %s, %s, s16 offen offset:%d sc1' % (vr(vFL), vL16, SRD_WS, part * FS),
                's_mov_b64 exec, -1']

    def f4_set(self, stage):
        return ['s_mov_b32 s11, s27'] + self.flag_set('s11', FL_F4 + stage, 2)

    def p4(self, wd_rest):
        a = self.a
        T0 = self.opt['T0']
        HF, ACC, WF, CSR, TM, PK = 16, 128, 192, 208, 224, 232
        NACC = 5
        MB = CSR
        self.poll([('s20', 4 * k) for k in range(14)])
        self.stamp(16)
        hl = self.seq_loads(HF, 28, 's18')
        for k in range(7):
            hl.append('buffer_load_dwordx2 %s, v14, %s, s19 offen offset:%d sc1' % (vr(CSR + 2 * k, 2), SRD_WS, 256 * k))
        base = [vL16, 'v5', 'v6']
        cnt = [0]

        def wread(tile, k):
            s = tile % 5
            b = 224 + (cnt[0] % 8) * 4
            cnt[0] += 1
            if k == 28:
                return b, ('ds_read_b128 %s, v7 offset:%d' % (ar(b), tile * 512), 'wr%d' % cnt[0])
            return b, ('ds_read_b128 %s, %s offset:%d' % (ar(b), base[s >> 1], (s & 1) * SLOT + k * 1024), 'wr%d' % cnt[0])

        C1 = -2.0 * 1.4426950408889634 * 0.7978845608028654
        st = []
        for k in range(1, 7):
            st.append('v_add_f32 v%d, v%d, v%d' % (CSR, CSR, CSR + 2 * k))
            st.append('v_add_f32 v%d, v%d, v%d' % (CSR + 1, CSR + 1, CSR + 2 * k + 1))
        st += ['v_mov_b32 v12, v%d' % CSR, 'v_mov_b32 v13, v%d' % (CSR + 1),
               'v_permlane32_swap_b32 v%d, v12' % CSR, 'v_permlane32_swap_b32 v%d, v13' % (CSR + 1),
               'v_add_f32 v12, v12, v%d' % CSR, 'v_add_f32 v13, v13, v%d' % (CSR + 1),
               'v_mul_f32 v8, %s, v12' % f32(-1.0 / 448), 'v_mul_f32 v13, %s, v13' % f32(1.0 / 448),
               'v_fma_f32 v13, -v8, v8, v13', 'v_max_f32 v13, 0, v13', 'v_add_f32 v11, %s, v13' % f32(1e-5),
               'v_rsq_f32 v12, v11', 'v_mul_f32 v9, %s, v12' % f32(C1), 'v_mul_f32 v13, v12, v12',
               'v_mul_f32 v10, v9, v13', 'v_mul_f32 v10, %s, v10' % f32(0.044715),
               's_mov_b32 s12, -1', 's_mov_b32 s13, 0', 'v_cndmask_b32 v8, 0, v8, s[12:13]',
               'v_mov_b32 v%d, 0' % (MB + 2), 'v_mov_b32 v%d, 0' % (MB + 3),
               'v_cvt_pk_bf16_f32 v%d, v8, v8' % MB, 'v_lshlrev_b32 v12, 16, v%d' % MB,
               'v_sub_f32 v12, v8, v12', 'v_cvt_pk_bf16_f32 v%d, v12, 0' % (MB + 1)]

        def csread(tile):
            return ['ds_read_b128 %s, v7 offset:%d' % (vr(CSR + 4 * k), tile * 128 + 32 * k) for k in range(4)]

        def gelu(tile):
            b = ACC + 16 * (tile % NACC)
            pk = PK + (tile % 2) * 4
            o = []
            E = range(8)
            o += ['v_mul_f32 v%d, v%d, v%d' % (TM + e, b + e, b + e) for e in E]
            o += ['v_fma_f32 v%d, v%d, v10, v9' % (TM + e, TM + e) for e in E]
            o += ['v_mul_f32 v%d, v%d, v%d' % (TM + e, TM + e, b + e) for e in E]
            for e in E:
                o.append('v_exp_f32 v%d, v%d' % (TM + e, TM + e))
                o.append('v_mul_f32 v%d, v%d, v%d' % (b + e, b + e, b + 8 + e))
            for e in range(11):
                if e < 8:
                    o.append('v_fma_f32 v%d, v%d, v11, v11' % (TM + e, TM + e))
                if e >= 3:
                    o.append('v_rcp_f32 v%d, v%d' % (TM + e - 3, TM + e - 3))
            o += ['v_mul_f32 v%d, v%d, v%d' % (b + e, b + e, TM + e) for e in E]
            o += ['v_cvt_pk_bf16_f32 v%d, v%d, v%d' % (pk + p, b + 2 * p, b + 2 * p + 1) for p in range(4)]
            o.append(('buffer_store_dwordx4 %s, %s, %s, s%d offen offset:%d sc1' % (
                vr(pk), vL16, SRD_WS, 29 if tile < 4 else 28, (tile % 4) * 1024), 'hh%d' % tile))
            return o

        def gelu_pk(tile, csr):
            b = ACC + 16 * (tile % NACC)
            pk = PK + (tile % 2) * 4
            P2 = lambda r: vr(r, 2)
            o = []
            E = (0, 2, 4, 6)
            o += ['v_pk_mul_f32 %s, %s, %s' % (P2(csr + e), P2(b + e), P2(b + e)) for e in E]
            o += ['v_pk_fma_f32 %s, %s, v[10:11], v[8:9] op_sel:[0,0,1] op_sel_hi:[1,0,1]' % (P2(csr + e), P2(csr + e)) for e in E]
            o += ['v_pk_mul_f32 %s, %s, %s' % (P2(csr + e), P2(csr + e), P2(b + e)) for e in E]
            for e in E:
                o += ['v_exp_f32 v%d, v%d' % (csr + e, csr + e), 'v_exp_f32 v%d, v%d' % (csr + e + 1, csr + e + 1)]
            o += ['v_pk_fma_f32 %s, %s, v[10:11], v[10:11] op_sel:[0,1,1] op_sel_hi:[1,1,1]' % (P2(csr + e), P2(csr + e)) for e in E]
            for e in E:
                o += ['v_rcp_f32 v%d, v%d' % (csr + e, csr + e),
                      'v_pk_mul_f32 %s, %s, %s' % (P2(b + e), P2(b + e), P2(b + 8 + e)),
                      'v_rcp_f32 v%d, v%d' % (csr + e + 1, csr + e + 1)]
            o += ['v_pk_mul_f32 %s, %s, %s' % (P2(b + e), P2(b + e), P2(csr + e)) for e in E]
            o += ['v_cvt_pk_bf16_f32 v%d, v%d, v%d' % (pk + e // 2, b + e, b + e + 1) for e in E]
            o.append(('buffer_store_dwordx4 %s, %s, %s, s%d offen offset:%d sc1' % (
                vr(pk), vL16, SRD_WS, 29 if tile < 4 else 28, (tile % 4) * 1024), 'hh%d' % tile))
            return o
        nup = 15
        self.emit(hl[:nup])
        for t in range(3):
            a.wait_tok('g%d' % t)
        a('s_waitcnt lgkmcnt(0)')
        a('s_barrier')
        self.stamp(40)
        k3 = self.opt.get('k3', 4)
        seq = []
        done3 = 0
        for k in range(28):
            seq += [(t, k) for t in range(3)]
            if k >= k3:
                tgt = 28 * (k - k3 + 1) // (28 - k3)
                seq += [(3, kk) for kk in range(done3, tgt)]
                assert tgt <= k + 1
                done3 = tgt
        seq += [(t, 28) for t in range(4)]
        seq += [(t, k) for t in range(4, 7) for k in range(29)]
        rd = [wread(t, k) for t, k in seq]
        D, WE = 7, self.opt.get('we', 2)
        presync = {(t, 0): [Pseudo('wait_tok', 'g%d' % t)] + (['s_waitcnt lgkmcnt(0)'] if t == 4 else []) + ['s_barrier'] for t in range(3, 7)}
        self.emit([rd[i][1] for i in range(D)])
        gaps = []
        for i, (t, k) in enumerate(seq):
            acc = vr(ACC + 16 * (t % NACC), 16)
            g = ['%s %s, %s, %s, %s' % (MFMA, acc, ar(rd[i][0]), vr(HF + 4 * k if k < 28 else MB), acc if k else '0')]
            if i + D < len(seq):
                g.append([presync.get(seq[i + D], []), rd[i + D][1]])
            else:
                g.append([])
            if (i + 1) % WE == 0 and i + WE < len(seq):
                g.append(Pseudo('wait_tok', rd[i + WE][1][1]))
            gaps.append(g)
        n1 = 116
        isg = lambda g, t: isinstance(g[-1], tuple) and g[-1][1] == 'g%d' % t
        g3 = [g for g in wd_rest if isg(g, 3)]
        g4 = [g for g in wd_rest if isg(g, 4)]
        wdr = wd_rest[len(g3) + len(g4):]
        nw1 = self.opt.get('nw1', 2)
        hg = []
        for x in hl[nup:]:
            if hg and isinstance(hg[-1][-1], str) and hg[-1][-1].startswith('s_add'):
                hg[-1].append(x)
            else:
                hg.append([x])
        side = g3 + hg + g4 + wdr[:nw1]
        w1 = gaps[:n1]
        sp = self.opt.get('sp', 2)
        for i, x in enumerate(side):
            p_ = i * sp if i >= len(g3) else i
            p_ -= len(g3) * (sp - 1) if i >= len(g3) else 0
            w1[p_] = w1[p_][:2] + [x] + w1[p_][2:]
        assert p_ < n1 - D - 8
        m_ = n1 - 44
        self.emit(w1[:m_])
        self.emit(cweave(w1[m_:n1 - 6], st) + w1[n1 - 6:])
        self.stamp(17)
        bulk = self.gu_bulk(5) + self.gu_bulk(6) + wdr[nw1:]
        l6 = self.opt.get('l6', 6)
        share = [(len(bulk) - l6 + 1) // 2] * 2 + [l6]
        assert share[0] >= 12
        gw = [int(c) for c in str(self.opt.get('gw', 222))]
        self.stg = stg = [int(c) for c in str(self.opt.get('stg', 247))]
        nx, pub = 0, 0
        for t in range(4, 7):
            n = share[t - 4]
            assert nx >= t - 4 and nx + gw[t - 4] <= t
            gl = [x for q in range(nx, nx + gw[t - 4]) for x in gelu(q)]
            if pub < len(stg) and stg[pub] <= nx:
                c_ = len(gl) * self.opt.get('fpos', 50) // 100
                gl = gl[:c_] + [[Pseudo('wait_tok', 'hh%d' % (stg[pub] - 1))] + self.f4_set(pub)] + gl[c_:]
                pub += 1
            nx += gw[t - 4]
            side = sprinkle(gl, bulk[:n], 0.0, 0.9 if t < 6 else 0.5)
            bulk = bulk[n:]
            if t == 6:
                side = side[:20] + self.p5_setup() + side[20:]
            gp = gaps[29 * t:29 * t + 29]
            if t == 6 and self.opt.get('ep', 1):
                q_ = 29 - D + 2
                gp[q_] = gp[q_][:2] + [['s_waitcnt lgkmcnt(0)'] + self.poll_loads(self.f4_items(0))]
                for q2 in range(q_ + 1, 29):
                    gp[q2] = gp[q2][:2]
            self.emit(cweave(gp, side, skip=1))
            self.stamp(15 + t)
        assert not bulk
        self.tail = [(q, gelu_pk(q, TM)) for q in range(nx, 7)]
        self.pub = pub

    def f4_items(self, st):
        return [('s20', (r * 16 + jj) * 4 + st) for r in range(2) for jj in range(4)]

    def p5_setup(self):
        o = []
        a = o.append
        a('s_and_b32 s13, %s, 1' % sW)
        a('s_lshl_b32 s14, %s, 1' % sM)
        a('s_lshl_b32 s20, s14, %d' % (FSH + 6))
        a('s_lshl_b32 s15, %s, %d' % (sW, FSH + 4))
        a('s_add_u32 s20, s20, s15')
        a('s_add_u32 s20, s20, %d' % (WS_FL + FL_F4 * FS))
        a('s_add_u32 s13, s14, s13')
        a('s_xor_b32 s12, s13, 1')
        a('s_mul_i32 s14, %s, %d' % (sW, 28 * 1024))
        a('s_add_u32 s14, s14, %d' % WS_HH)
        for ra, r in enumerate(('s13', 's12')):
            a('s_mul_i32 %s, %s, %d' % (r, r, 112 * 1024))
            a('s_add_u32 s%d, %s, s14' % (68 + 8 * ra, r))
            for q in range(1, 7):
                a('s_add_u32 s%d, s%d, %d' % (68 + 8 * ra + q, 68 + 8 * ra, q * 4096))
        return o

    def p5(self):
        a = self.a
        ACC, HHF, NBUF = 128, 16, 24
        fl = lambda st: [('s20', (r * 16 + jj) * 4 + st) for r in range(2) for jj in range(4)]
        seq = [(jj * 7 + tau, ra) for tau in range(7) for jj in range(4) for ra in range(2)]
        ne = self.opt.get('ne', 16)
        seq = seq[:56 - ne] + [x for x in seq[56 - ne:] if x[1] == 1] + [x for x in seq[56 - ne:] if x[1] == 0]
        send = lambda rel: ['ds_write_b128 v%d, %s offset:%d' % (12 + rel, vr(ACC + 16 * rel + 4 * k), (rel - 1) * 4096 + k * 1024) for k in range(4)]
        early = send(1) + send(3) if ne >= 16 else []

        def load(i):
            f, ra = seq[i]
            return 'buffer_load_dwordx4 %s, %s, %s, s%d offen offset:%d sc1' % (
                vr(HHF + (i % NBUF) * 4), vL16, SRD_WS, 68 + 8 * ra + f // 4, (f % 4) * 1024)
        stg, pub = self.stg, self.pub
        rest_flags = lambda p: [x for q in range(p, len(stg)) for x in self.f4_set(q)]
        n6 = min(self.opt.get('n6', 10), 8 * stg[0])
        tail = [x for q, g in self.tail for x in g]
        if self.opt.get('ep', 1):
            a('s_waitcnt lgkmcnt(0)')
            for k in range(4):
                p = 's[%d:%d]' % (PT + 2 * k, PT + 2 * k + 1)
                a('s_xor_b64 %s, %s, %s' % (p, p, sEP2))
                if k:
                    a('s_or_b64 s[%d:%d], s[%d:%d], %s' % (PT, PT + 1, PT, PT + 1, p))
            a('s_cbranch_scc1 L_p5slow')
            self.emit(sprinkle(tail, [[load(i)] for i in range(n6)], 0.0, 0.9))
            a('L_p5join:')
            keep = self.a
            self.a = a2 = self.side
            a2('L_p5slow:')
            a2.fresh()
            a2('s_nop 15')
            self.emit(tail)
            a2('s_waitcnt vmcnt(0)')
            self.emit(rest_flags(pub))
            a2('s_add_u32 s20, s20, 128')
            self.emit(self.poll_loads(fl(0)))
            self.poll_check(fl(0), tries=1)
            a2('s_sub_u32 s20, s20, 128')
            self.emit([load(i) for i in range(n6)])
            a2('s_waitcnt vmcnt(0)')
            a2('s_branch L_p5join')
            self.a = keep
        else:
            self.emit(self.poll_loads(fl(0)))
            self.emit(tail)
            self.poll_check(fl(0), onfail=rest_flags(pub))
            self.emit([load(i) for i in range(n6)])
        self.stamp(22)
        self.unpack8(ACC, self.HRES)
        AHEAD = self.opt.get('ahead', 14)
        cur = min(AHEAD, 8 * stg[0])
        self.emit([load(i) for i in range(n6, cur)])
        self.stamp(23)
        misc = self.capture(self.res_voffset, 'v4', 's18')
        for rel in range(4):
            misc += ['s_xor_b32 s12, %s, %d' % (sW, rel), 's_mul_i32 s12, s12, 12288', 's_add_u32 s12, s12, %d' % (2 * SLOT),
                     'v_add_u32 v%d, s12, %s' % (12 + rel, vL16)]
        fi = self.opt.get('fi', 7)
        nxt = [max(cur, n6)]
        lead, dly = self.opt.get('lead', 20), self.opt.get('dly', 8)
        bnd = [8 * x for x in stg[:-1]]
        pi, ok = [], []
        for q, b_ in enumerate(bnd):
            p_ = max(b_ - lead, ok[-1] + 1 if ok else 0)
            pi.append(p_)
            ok.append(min(p_ + dly, b_ - 1))

        def issue_upto(n):
            while nxt[0] < min(n, len(seq)):
                i = nxt[0]
                if i in bnd:
                    self.poll_check(fl(bnd.index(i) + 1))
                    self.stamp(47 + bnd.index(i))
                a(load(i))
                nxt[0] += 1
        seen = set([(0, 0)])
        for i, (f, ra) in enumerate(seq):
            assert nxt[0] > i
            if i in pi:
                q = pi.index(i)
                assert q == 0 or nxt[0] > bnd[q - 1], (i, q, nxt[0])
                self.emit(self.poll_loads(fl(q + 1)))
            for rb in ((1, 0) if i == 55 else (0, 1)):
                if early and i > 56 - ne // 2 + 1:
                    a(early.pop(0))
                acc = vr(ACC + 16 * (ra + 2 * rb), 16)
                a('%s %s, %s, %s, %s' % (MFMA, acc, ar((((f % 7) * 4 + f // 7) * 2 + rb) * 4), vr(HHF + (i % NBUF) * 4),
                                         acc if (ra, rb) in seen else '0'))
                seen.add((ra, rb))
            if i == fi:
                assert fi <= ok[0]
                while pub < len(stg):
                    a.wait_tok('hh%d' % (stg[pub] - 1))
                    self.emit(self.f4_set(pub))
                    pub += 1
            if i >= 20:
                self.emit(misc[:3])
                del misc[:3]
            lim = min([b_ for b_, o_ in zip(bnd, ok) if i < o_] + [len(seq)])
            issue_upto(min(i + 1 + AHEAD, lim))
        self.stamp(24)
        assert not early
        self.emit(send(2) if ne >= 16 else send(2) + send(1) + send(3))
        a('s_waitcnt lgkmcnt(0)')
        a('s_barrier')
        for k in range(12):
            a('ds_read_b128 %s, v12 offset:%d' % (vr(HHF + 4 * k), k * 1024))
        for rel in range(3):
            for p in range(8):
                a('v_pk_add_f32 %s, %s, %s' % (vr(ACC + 2 * p, 2), vr(ACC + 2 * p, 2), vr(HHF + 16 * rel + 2 * p, 2)))
        for p in range(8):
            a('v_cvt_pk_bf16_f32 v%d, v%d, v%d' % (112 + p, ACC + 2 * p, ACC + 2 * p + 1))
            if p % 4 == 3:
                a('buffer_store_dwordx4 %s, v4, %s, s18 offen offset:%d' % (vr(112 + p - 3), SRD_OUT, (p // 4) * 32) + ['', ' sc1', ' nt', ' sc0 sc1'][self.opt.get('ost', 0)])
        self.stamp(25)

    def build(self):
        a = self.a
        nm = NAME + '_kernel'
        a('.globl %s\n.p2align 8\n.type %s,@function\n%s:' % (nm, nm, nm))
        self.prologue()
        a('s_cmp_ge_u32 %s, 7' % sN)
        a('s_cbranch_scc1 L_idle1')
        self.p1()
        self.stamp(5)
        self.poll_check(self.kflags(0), onfail=self.f1_set(2))
        self.k_issue()
        self.stamp(7)
        if not self.opt.get('ql', 0):
            self.emit(self.poll_loads(self.qflags() + self.fo_items()))
        a.wait_tok('q2')
        if self.opt.get('ql', 0):
            self.emit(self.poll_loads(self.qflags() + self.fo_items()))
        self.emit(self.f1_set(2))
        self.stamp(36)
        self.wd = self.wd_bulk()
        nl = self.opt.get('nl', 0)
        self.wd_late = self.wd[56 - nl:]
        del self.wd[56 - nl:]
        wo = self.wo_bulk()
        w2 = self.opt.get('w2', 0)
        assert w2 % 4 == 0
        self.res_voffset('v15', 's11')
        self.poll_check(self.qflags() + self.fo_items())
        a('L_join1:')
        self.q_issue()
        for t in range(2):
            a('buffer_load_dwordx4 %s, v15, %s, s11 offen offset:%d' % (vr(self.HRES + 4 * t), SRD_X, 32 * t))
        self.stamp(46)
        if w2 or self.opt.get('ro', 0) in (0, 1, 4):
            a('s_barrier')
        if self.opt.get('ro', 0) == 0:
            self.emit(self.rp_load()[1])
        self.emit(wo[:w2])
        if self.opt.get('ro', 0) == 1:
            self.emit(self.rp_load()[1])
        self.wo_rest = wo[w2:]
        self.rp_prep()
        if self.opt.get('pb', 1) == 0:
            self.emit(self.prewrite('B', 208))
        self.stamp(6)
        self.p2()
        if self.opt.get('ro', 0) == 3:
            self.rp_mm()
            self.rp_store()
        self.wo_read()
        self.p3_setup()
        a.wait_tok('o')
        self.emit(self.flag_set('s16', FL_F2))
        self.stamp(11)
        rpl = self.opt.get('rpl', 3)
        if rpl:
            a.wait_tok('rs')
            a('s_waitcnt lgkmcnt(0)')
            a('s_barrier')
            self.fg_set()
        else:
            self.poll(self.fg)
            a('s_barrier')
        self.stamp(37)
        b = [self.opt.get('b%d' % k, d) for k, d in ((2, 12), (4, 8), (5, 12))]
        if rpl or self.opt.get('h1wd'):
            self.emit(self.wd[:b[0]])
            del self.wd[:b[0]]
            b[0] = 0
        Q = [g for t in range(5) for g in self.gu_bulk(t)] + self.wd

        def take(n):
            self.emit(Q[:n])
            del Q[:n]
        take(b[0])
        self.stamp(38)
        a('s_cmp_ge_u32 %s, 7' % sN)
        a('s_cbranch_scc1 L_idle3')
        b3 = self.opt.get('b3', 8)
        self.early3 = Q[:b3]
        del Q[:b3]
        a.begin_cond('p3')
        self.p3(self.early3)
        a.end_cond()
        a('L_skip3:')
        self.stamp(14)
        if rpl and not b3:
            self.poll(self.fg)
        take(b[1])
        if not rpl:
            self.p4_cs_issue()
        a('s_cmp_ge_u32 %s, 7' % sN)
        a('s_cbranch_scc1 L_skip3b')
        a.begin_cond('p3')
        a.wait_tok('h')
        self.emit(self.flag_set('s17', FL_F3, 2))
        a.end_cond()
        a('L_skip3b:')
        self.stamp(15)
        if rpl:
            a('s_barrier')
            self.p4_cs_issue()
        take(b[2])
        assert 21 <= sum(b) + b3 <= 35
        self.p4_cs_finish()
        self.p4_setup()
        self.stamp(39)
        a('s_cmp_ge_u32 %s, 7' % sN)
        a('s_cbranch_scc1 L_idle3b')
        a('L_go4:')
        self.p4(Q)
        a('s_cmp_ge_u32 %s, 7' % sN)
        a('s_cbranch_scc1 L_idle5')
        self.p5()
        self.stamp_out()
        a('L_exit:')
        a('s_endpgm')
        a('L_idle5:')
        a.fresh()
        a('s_nop 15')
        a('s_waitcnt lgkmcnt(0)')
        self.emit([x for q, g in self.tail for x in g])
        for q in range(self.pub, len(self.stg)):
            a('s_waitcnt vmcnt(%d)' % (7 - self.stg[q] + q - self.pub if self.stg[q] > self.tail[0][0] else len(self.tail) + q - self.pub))
            self.emit(self.f4_set(q))
        a('s_lshl_b32 s11, s2, 2')
        a('s_add_u32 s11, s11, %s' % sW)
        a('s_cmp_lg_u32 s11, 1020')
        a('s_cbranch_scc1 L_noclr')
        a('v_lshlrev_b32 v2, %d, v0' % FSH)
        for k in range(4):
            a('s_mov_b32 s11, %d' % (WS_FL + (FL_FG + 64 * k) * FS))
            a('buffer_load_dword v%d, v2, %s, s11 offen sc1' % (4 + k, SRD_WS))
        for k in range(4):
            a('v_xor_b32 v%d, %s, v%d' % (4 + k, sEP, 4 + k))
        a('v_or3_b32 v4, v4, v5, v6')
        a('v_or_b32 v4, v4, v7')
        a('v_cmp_ne_u32 vcc, 0, v4')
        a('s_nop 4')
        a('s_cbranch_vccnz L_noclr')
        a('v_mov_b32 v2, 0')
        a('s_mov_b64 exec, 1')
        a('global_store_dword v2, v2, %s sc1' % DBGP)
        a('s_mov_b64 exec, -1')
        a('L_noclr:')
        self.stamp_out(True)
        a('s_endpgm')
        a('L_idle3:')
        a.fresh()
        self.prewait('s20')
        if self.early3:
            self.poll(self.fg)
            self.emit(self.early3)
            a('s_waitcnt vmcnt(0)')
        a('s_branch L_skip3')
        a('L_idle3b:')
        a.fresh()
        self.prewait('s20')
        a('s_branch L_go4')
        a('L_idle1:')
        a.fresh()
        a('s_waitcnt lgkmcnt(0)')
        self.idle1()
        a('s_branch L_join1')
        a.items += self.side.items
        for x in self.cold:
            a.raw(x)
        a('L_code_end:')
        a.raw('s_endpgm')
        hdr = open('cdna_kernels/%s.s.ref' % NAME).read().split('; Override launch')[0]
        hdr += '; @launch grid=(256,1,1) block=(256,1,1) lds=%d\n' % LDS_BYTES
        hdr += '.amdgcn_target "amdgcn-amd-amdhsa--gfx950"\n.text\n'
        body = a.finalize()
        tail = ('.section .rodata,"a"\n.p2align 6\n.amdhsa_kernel %s\n  .amdhsa_next_free_vgpr 512\n  .amdhsa_next_free_sgpr 102\n'
                '  .amdhsa_accum_offset 256\n  .amdhsa_group_segment_fixed_size 0\n  .amdhsa_kernarg_size 80\n'
                '  .amdhsa_user_sgpr_count 2\n  .amdhsa_user_sgpr_kernarg_segment_ptr 1\n'
                '  .amdhsa_system_sgpr_workgroup_id_x 1\n.end_amdhsa_kernel\n' % nm)
        return hdr + body + tail


if __name__ == '__main__':
    out = sys.argv[1]
    opt = {}
    for x in sys.argv[2:]:
        if '=' in x:
            k, v = x.split('=')
            opt[k] = int(v) if v.lstrip('-').isdigit() else v
    txt = Gen(stamps='--ts' in sys.argv, **opt).build()
    open(out, 'w').write(txt)
    print('wrote', out, len(txt), 'bytes')
```

```python
import sys, struct
from asmlib import Asm, weave, Pseudo

NAME = 'sequential_preLN__sliding_block__glu_gated_geglu__prompt'

WS_QKV = 0
WS_O = WS_QKV + 64 * 84 * 1024
WS_HB = WS_O + 64 * 32768
WS_ST = WS_HB + 64 * 28672
WS_HH = WS_ST + 64 * 4096
WS_WGU = WS_HH + 64 * 112 * 1024
WS_CS = WS_WGU + 112 * 28672
WS_WD = WS_CS + 112 * 896
WS_WO = WS_WD + 7 * 112 * 2048
WS_CQ = WS_WO + 7 * 32 * 2048
WS_FL = WS_CQ + 8192
FS, FSH = (512, 9) if 'fs=512' in sys.argv else (256, 8)
FL_F1 = 0
FL_F3 = 3
FL_F4 = 4096
FL_F2 = FL_F4 + 4096
FL_FG = FL_F2 + 1024
FL_FO = FL_FG + 224
FL_FD = FL_FO + 32
FL_END = FL_FD + 32
WS_EP = WS_FL + FL_END * FS
WS_TS = 28 << 20
WS_END = WS_TS + 256 * 4 * 256
OOB = 0x7ff00000

LDS_BYTES = 163840
SLOT = 28672
XTRA = 5 * SLOT

sW, sXCD, sI, sM, sN, sR, sHD, sCT = 's3', 's4', 's5', 's6', 's7', 's8', 's9', 's10'
SRD_X, SRD_WS, SRD_OUT = 's[36:39]', 's[40:43]', 's[44:47]'
SRD_WQKV, SRD_D, SRD_G, SRD_U = 's[52:55]', 's[56:59]', 's[60:63]', 's[64:67]'
PT = 52
sBK, sBK2, sR4, sJ = 's48', 's49', 's4', 's5'
sEP, sEP2 = 's50', 's[50:51]'
DBGP, WSP = 's[32:33]', 's[34:35]'
MASK0 = 68
vL16 = 'v1'
vXA, vXB, vFL = 'v248', 'v249', 250


DOC = '''; ---------------------------------------------------------------------------------------------
; One persistent launch, 256 workgroups x 4 waves (one workgroup per CU), generated by gen/fz.py.
;   P1  LayerNorm + QKV projection        64x192 tiles, K/Q/V column groups published in turn
;   P2  sliding-window attention          (head, 128 queries), true row max, P.V with a ones column
;   P3  output projection + residual      64x64 tiles, row sums / sums of squares for LayerNorm 2
;   P5  down projection + residual        64x64 tiles, K split over the four waves
; Hand-offs: write-through (sc1) stores, vmcnt drain, then a flag record holding this launch's
; epoch (previous epoch word in d_ws + 1, distributed through d_debug); consumers poll with
; ---------------------------------------------------------------------------------------------
'''


def f32(x):
    return '0x%08x' % struct.unpack('<I', struct.pack('<f', x))[0]


def vr(b, n=4, t='v'):
    return '%s[%d:%d]' % (t, b, b + n - 1)


def ar(b, n=4):
    return vr(b, n, 'a')


MFMA = 'v_mfma_f32_32x32x16_bf16'


def sprinkle(main, groups, lo=0.0, hi=1.0):
    n = len(main)
    a, b = int(n * lo), int(n * hi)
    out, k = [], 0
    for i, x in enumerate(main):
        while k < len(groups) and i >= a + (b - a) * k // max(len(groups), 1):
            out.extend(groups[k]); k += 1
        out.append(x)
    for g in groups[k:]:
        out.extend(g)
    return out


def cost(x):
    if isinstance(x, list):
        return sum(cost(y) for y in x)
    if isinstance(x, tuple):
        x = x[0]
    if not isinstance(x, str):
        return 4.2 if getattr(x, 'what', '') == 'wait_tok' else 0
    m = x.split()[0]
    if m.endswith(':'):
        return 0
    if m.startswith('v_mfma'):
        return 8
    if m in ('v_exp_f32', 'v_rcp_f32', 'v_rsq_f32'):
        return 8.4
    if m.startswith('buffer_'):
        return 10
    if m.startswith('v_pk_') or m.startswith('v_cvt_pk') or m.startswith('v_max3'):
        return 5.2
    if m.startswith('v_fma') and not m.startswith('v_fmac'):
        return 4.6
    return 4.2


def cweave(gaps, side, skip=0):
    n = len(gaps) - skip
    base = [cost(g) for g in gaps]
    tot = sum(base[skip:]) + cost(list(side))
    out, k, acc = [], 0, 0.0
    for i, g in enumerate(gaps):
        if i < skip:
            out += g
            continue
        acc += base[i]
        tgt = tot * (i - skip + 1) / n
        ins = []
        while k < len(side) and (acc + cost(side[k]) / 2 <= tgt or i == len(gaps) - 1):
            acc += cost(side[k]); ins.append(side[k]); k += 1
        out += g[:2] + ins + g[2:]
    return out


class Gen:
    def __init__(self, stamps=False, **opt):
        self.a = Asm()
        self.stamps = stamps
        self.nl = 0
        self.cold = []
        self.side = Asm()
        self.PT = PT
        self.opt = dict(p2map='C', p4map='B', rot=3, T0=3, nA=24, codepf=1, nt=3)
        self.opt.update(opt)

    def label(self, s):
        self.nl += 1
        return 'L_%s_%d' % (s, self.nl)

    def emit(self, lst):
        for x in lst:
            if isinstance(x, tuple):
                self.a(x[0], tok=x[1])
            elif isinstance(x, str):
                self.a(x)
            elif isinstance(x, list):
                self.emit(x)
            else:
                self.a.items.append(x)

    def capture(self, fn, *args):
        keep = self.a
        self.a = Asm()
        fn(*args)
        items = self.a.items
        self.a = keep
        return items

    def stamp(self, k):
        if self.opt.get('jit') and k in (1, 3, 29, 31, 5, 36, 8, 45, 10, 37, 13, 15, 40, 17, 20, 21, 23, 24):
            lab = self.label('jit')
            self.a('s_memtime s[100:101]\ns_waitcnt lgkmcnt(0)')
            self.a.raw('s_cselect_b32 s101, 1, 0')
            self.a.raw('s_lshr_b32 s100, s100, 2')
            self.a.raw('s_and_b32 s100, s100, %d' % self.opt['jit'])
            self.a.raw('s_cbranch_scc1 %s' % lab)
            self.a.raw('s_sleep 100')
            self.a.raw(lab + ':')
            self.a.raw('s_cmp_eq_u32 s101, 1')
            return
        rt = {3: 50, 32: 51, 9: 52, 10: 53, 40: 54, 17: 55, 21: 56, 23: 57, 24: 58}
        if self.stamps and self.opt.get('lite') == 2 and k in rt:
            self.a('s_memtime s[100:101]\ns_waitcnt lgkmcnt(0)\nv_writelane_b32 v254, s100, %d' % k)
            self.a('s_memrealtime s[100:101]\ns_waitcnt lgkmcnt(0)\nv_writelane_b32 v254, s100, %d' % rt[k])
        if self.stamps and (k == 0 or not self.opt.get('lite')):
            self.a('s_memtime s[100:101]\ns_waitcnt lgkmcnt(0)\nv_writelane_b32 v254, s100, %d' % k)

    def stamp_out(self, idle=False):
        if self.stamps:
            a = self.a
            a('s_waitcnt vmcnt(0)')
            a('s_memrealtime s[100:101]\ns_waitcnt lgkmcnt(0)\nv_writelane_b32 v254, s100, 62')
            a('s_memtime s[100:101]\ns_waitcnt lgkmcnt(0)\nv_writelane_b32 v254, s100, 61')
            if self.opt.get('spin') and not idle:
                lab = self.label('spin')
                a('v_readlane_b32 s12, v254, 63')
                a('v_readlane_b32 s13, v254, %d' % self.opt['spin'])
                a('v_readlane_b32 s14, v254, 62')
                a('s_nop 4')
                a('s_sub_u32 s13, s13, s12')
                a('s_lshl_b32 s13, s13, 1')
                a('s_min_u32 s13, s13, 20000')
                a(lab + ':')
                a('s_memrealtime s[100:101]')
                a('s_waitcnt lgkmcnt(0)')
                a('s_sub_u32 s12, s100, s14')
                a('s_cmp_lt_u32 s12, s13')
                a('s_cbranch_scc1 %s' % lab)
            a('s_lshl_b32 s11, s2, 2')
            a('s_add_u32 s11, s11, %s' % sW)
            a('s_lshl_b32 s11, s11, 8')
            a('s_add_u32 s11, s11, %d' % WS_TS)
            a('v_lshlrev_b32 v2, 2, v0')
            a('buffer_store_dword v254, v2, %s, s11 offen' % SRD_WS)
            if self.opt.get('dbg'):
                skip = self.label('dbg')
                a('s_memrealtime s[100:101]')
                a('s_lshl_b32 s11, s2, 2')
                a('s_add_u32 s11, s11, %s' % sW)
                a('s_cmp_lg_u32 s11, %d' % (self.opt['dbg'] * 4))
                a('s_cbranch_scc1 %s' % skip)
                a('v_readlane_b32 s12, v254, 0')
                a('v_readlane_b32 s14, v254, 63')
                for k, st in enumerate([1, 2, 4, 6, 7, 8, 9, 11, 12, 15, 16, 17, 22, 25]):
                    a('v_readlane_b32 s13, v254, %d' % st)
                    a('s_nop 3')
                    a('s_sub_u32 s13, s13, s12')
                    a('v_writelane_b32 v3, s13, %d' % (k + 1))
                a('s_waitcnt lgkmcnt(0)')
                a('s_sub_u32 s13, s100, s14')
                a('v_writelane_b32 v3, s13, 15')
                a('s_mov_b64 exec, 0xfffe')
                a('global_store_dword v2, v3, %s' % DBGP)
                a('s_mov_b64 exec, -1')
                a(skip + ':')

    def srd(self, d, p, size):
        a = self.a
        a('s_mov_b32 s%d, s%d' % (d, p))
        a('s_and_b32 s%d, s%d, 0xffff' % (d + 1, p + 1))
        a('s_mov_b32 s%d, %d' % (d + 2, size))
        a('s_mov_b32 s%d, 0x20000' % (d + 3))

    def flag_set(self, sidx, base, sh=0):
        return ['s_lshl_b32 %s, %s, %d' % (sidx, sidx, FSH + sh),
                's_add_u32 %s, %s, %d' % (sidx, sidx, WS_FL + base * FS),
                's_mov_b64 exec, 0xffff' if FS == 256 else 's_mov_b32 exec_hi, 0',
                'buffer_store_dwordx4 %s, %s, %s, %s offen sc1' % (vr(vFL), vL16, SRD_WS, sidx),
                's_mov_b64 exec, -1']

    def poll_loads(self, items, first=True):
        items = list(items)
        if len(items) % 2:
            items.append(items[-1])
        assert len(items) <= 16
        base = WSP if first else 's[14:15]'
        return ['s_load_dword s%d, %s, %s offset:%d' % (self.PT + k, base, so, imm * FS) for k, (so, imm) in enumerate(items)]

    def poll_check(self, items, onfail=None, tries=None):
        a = self.a
        n = (len(items) + 1) // 2
        top, done, slow = self.label('poll'), self.label('pdone'), self.label('pslow')
        a('s_mov_b64 s[14:15], %s' % WSP)
        a('s_mov_b32 s13, %d' % (tries if tries is not None else FS // 64 - 1))
        a(top + ':')
        a('s_waitcnt lgkmcnt(0)')
        for k in range(n):
            p = 's[%d:%d]' % (self.PT + 2 * k, self.PT + 2 * k + 1)
            a('s_xor_b64 %s, %s, %s' % (p, p, sEP2))
            if k:
                a('s_or_b64 s[%d:%d], s[%d:%d], %s' % (self.PT, self.PT + 1, self.PT, self.PT + 1, p))
        a('s_cbranch_scc0 %s' % done)
        if onfail:
            a.raw('s_cmp_lg_u32 s13, %d' % (FS // 64 - 1))
            a.raw('s_cbranch_scc1 %s_nf' % top)
            for x in ['s_waitcnt vmcnt(0)'] + onfail:
                a.raw(x)
            a.raw('%s_nf:' % top)
        a.raw('s_sub_u32 s13, s13, 1')
        a.raw('s_cbranch_scc1 %s' % slow)
        a.raw('s_sleep %d' % self.opt.get('sl1', 4))
        a.raw('s_add_u32 s14, s14, 64')
        a.raw('s_addc_u32 s15, s15, 0')
        for x in self.poll_loads(items, first=False):
            a.raw(x)
        a.raw('s_branch %s' % top)
        a(done + ':')
        o = [slow + ':', 'v_mov_b32 v255, 0']
        for k, (so, imm) in enumerate(items):
            o += ['s_add_u32 s13, %s, %d' % (so, imm * FS), 'v_writelane_b32 v255, s13, %d' % k]
        o += ['s_mov_b64 exec, 0x%x' % ((1 << len(items)) - 1), slow + '_l:',
              'buffer_load_dword v253, v255, %s, 0 offen sc1' % SRD_WS, 's_waitcnt vmcnt(0)',
              'v_cmp_ne_u32 vcc, %s, v253' % sEP, 's_nop 4', 's_cbranch_vccz %s_d' % slow,
              's_sub_u32 %s, %s, 1' % (sCT, sCT), 's_cbranch_scc1 L_exit', 's_sleep %d' % self.opt.get('sl2', 6), 's_branch %s_l' % slow,
              slow + '_d:', 'v_mov_b32 v253, %s' % sEP, 's_mov_b64 exec, -1', 's_nop 4', 's_branch %s' % done]
        self.cold += o

    def poll(self, items):
        self.emit(self.poll_loads(items))
        self.poll_check(items)

    def prewait(self, soff):
        a = self.a
        top, done = self.label('pw'), self.label('pwd')
        a('s_waitcnt vmcnt(0)')
        a(top + ':')
        a.raw('buffer_load_dword v255, off, %s, %s offset:%d sc1' % (SRD_WS, soff, FS - 64))
        a.raw('s_waitcnt vmcnt(0)')
        a.raw('v_cmp_ne_u32 vcc, %s, v255' % sEP)
        a.raw('s_nop 4')
        a.raw('s_cbranch_vccz %s' % done)
        a.raw('s_sub_u32 %s, %s, 1' % (sCT, sCT))
        a.raw('s_cbranch_scc1 L_exit')
        a.raw('s_sleep %d' % self.opt.get('sl3', 8))
        a.raw('s_branch %s' % top)
        a(done + ':')

    def epoch_issue(self):
        self.a('s_load_dword %s, %s, 0x0' % (sEP, DBGP))

    def flag_set_wg(self, sidx, base):
        o = self.flag_set(sidx, base)
        self.emit(o[:2] + ['s_cmp_eq_u32 %s, 0' % sW, 's_cselect_b32 %s, %s, %d' % (sidx, sidx, OOB)] + o[2:])

    def get_epoch(self, issued=False):
        a = self.a
        top, done = self.label('ep'), self.label('epd')
        if not issued:
            self.epoch_issue()
        a('s_waitcnt lgkmcnt(0)')
        a('s_cmp_lg_u32 %s, 0' % sEP)
        a('s_cbranch_scc0 %s' % top)
        a(done + ':')
        self.cold += [top + ':', 'v_mov_b32 v255, 0', top + '_l:', 'global_load_dword v253, v255, %s sc1' % DBGP,
                      's_waitcnt vmcnt(0)', 'v_readfirstlane_b32 %s, v253' % sEP, 's_nop 4', 's_cmp_lg_u32 %s, 0' % sEP,
                      's_cbranch_scc1 %s' % done, 's_sub_u32 %s, %s, 1' % (sCT, sCT), 's_cbranch_scc1 L_exit',
                      's_sleep 4', 's_branch %s_l' % top]
        a('s_mov_b32 s51, s50')
        for k in range(4):
            a('v_mov_b32 v%d, %s' % (vFL + k, sEP))

    def tr_lane_addr(self, dst, pitch, h16, t0, t1):
        a = self.a
        a('v_lshrrev_b32 %s, 5, v0' % t0)
        a('v_lshlrev_b32 %s, 3, %s' % (t0, t0))
        a('v_bfe_u32 %s, v0, 2, 2' % t1)
        a('v_add_u32 %s, %s, %s' % (t0, t0, t1))
        a('v_mul_u32_u24 %s, %d, %s' % (dst, pitch, t0))
        a('v_bfe_u32 %s, v0, 4, 1' % t0)
        a('v_mul_u32_u24 %s, %d, %s' % (t0, h16, t0))
        a('v_add_u32 %s, %s, %s' % (dst, dst, t0))
        a('v_and_b32 %s, 1, v0' % t0)
        a('v_lshl_add_u32 %s, %s, 4, %s' % (dst, t0, dst))
        a('v_bfe_u32 %s, v0, 1, 1' % t0)
        a('v_lshl_add_u32 %s, %s, 3, %s' % (dst, t0, dst))

    def prologue(self):
        a = self.a
        a.fresh()
        a('s_cmp_ge_u32 s2, 256')
        a('s_cbranch_scc1 L_exit')
        if self.stamps:
            a('v_mov_b32 v254, 0')
            a('s_memrealtime s[100:101]\ns_waitcnt lgkmcnt(0)\nv_writelane_b32 v254, s100, 63')
            self.stamp(0)
        a('s_load_dwordx16 s[16:31], s[0:1], 0')
        a('s_load_dwordx4 s[32:35], s[0:1], 64')
        self.code_prefetch(232)
        a('v_lshrrev_b32 v2, 6, v0')
        a('v_and_b32 v0, 63, v0')
        a('v_readfirstlane_b32 %s, v2' % sW)
        a('v_lshlrev_b32 %s, 4, v0' % vL16)
        a('s_and_b32 %s, s2, 7' % sXCD)
        a('s_lshr_b32 %s, s2, 3' % sI)
        a('s_and_b32 s11, %s, 3' % sI)
        a('s_lshl_b32 %s, %s, 2' % (sM, sXCD))
        a('s_add_u32 %s, %s, s11' % (sM, sM))
        a('s_lshr_b32 %s, %s, 2' % (sN, sI))
        a('s_mov_b32 %s, 0x40000' % sCT)

    def roles(self):
        a = self.a
        self.srd(40, 34, WS_END)
        self.srd(44, 30, 2048 * 896)
        a('s_and_b32 s11, %s, 1' % sI)
        a('s_lshl_b32 s12, %s, 1' % sN)
        a('s_add_u32 s12, s12, s11')
        a('s_lshr_b32 s13, %s, 1' % sM)
        if self.opt['p2map'] == 'A':
            a('s_mov_b32 %s, s13' % sR)
            a('s_mov_b32 %s, s12' % sHD)
        else:
            a('s_lshr_b32 %s, %s, 1' % (sR, sI))
            a('s_lshl_b32 %s, %s, 1' % (sHD, sXCD))
            a('s_add_u32 %s, %s, s11' % (sHD, sHD))
        if self.opt['p4map'] == 'A':
            a('s_mov_b32 %s, s13' % sR4)
            a('s_mov_b32 %s, s12' % sJ)
        else:
            a('s_and_b32 s11, %s, 1' % sXCD)
            a('s_lshl_b32 s11, s11, 3')
            a('s_add_u32 s11, s11, %s' % sN)
            a('s_lshr_b32 s12, %s, 1' % sXCD)
            a('s_lshl_b32 s12, s12, 2')
            a('s_and_b32 s13, %s, 3' % sI)
            a('s_add_u32 %s, s12, s13' % sR4)
            a('s_mov_b32 %s, s11' % sJ)
        a('s_lshr_b32 s11, %s, 1' % sW)
        a('s_lshl_b32 s11, s11, 10')
        a('v_xor_b32 %s, s11, %s' % (vXA, vL16))
        a('v_xor_b32 %s, 1024, %s' % (vXB, vXA))

    def code_prefetch(self, dst):
        if not self.opt['codepf']:
            return
        a = self.a
        a('s_getpc_b64 s[12:13]')
        a('L_code_pc:')
        a('s_lshr_b32 s11, s2, 3')
        a('s_lshl_b32 s11, s11, 12')
        a('v_lshl_add_u32 v%d, v0, 4, s11' % dst)
        a('v_min_u32 v%d, L_code_end-L_code_pc-16, v%d' % (dst, dst))
        a('v_mov_b32 v%d, s13' % (dst + 1))
        a('v_add_co_u32 v%d, vcc, s12, v%d' % (dst, dst))
        a('v_addc_co_u32 v%d, vcc, 0, v%d, vcc' % (dst + 1, dst + 1))
        a('global_load_dwordx4 %s, %s, off' % (vr(dst + 2), vr(dst, 2)))

    P1_X = 4 * SLOT
    P1_SL = [0, 1, 2, 3, 0, 1]
    RP_LDS = 3 * SLOT

    def p1_wdma(self, ss):
        g, h = ss // 2, ss % 2
        o = []
        for i in range(7):
            pre = ['s_add_u32 m0, s83, %d' % (self.P1_SL[ss] * SLOT + i * 1024)] if i % 4 == 0 else []
            o.append(pre + [('buffer_load_dwordx4 v%d, %s, s%d offen offset:%d lds' % (180 + g, SRD_WQKV, 68 + 7 * h + i, (i % 4) * 1024), 'w%d' % ss)])
        return o

    def p1(self):
        a = self.a
        XR, ACC, WF, PKR, T = 16, 72, 104, 136, 152
        VX, VX2 = 178, 179
        a('v_lshrrev_b32 v2, 3, v0')
        a('v_and_b32 v3, 7, v0')
        a('v_mul_u32_u24 v%d, 896, v2' % VX)
        a('v_lshl_add_u32 v%d, v3, 4, v%d' % (VX, VX))
        a('v_add_u32 v%d, %d, v%d' % (VX2, 8 * 896, VX))
        a('s_lshl_b32 s11, %s, 6' % sM)
        a('s_lshl_b32 s12, %s, 4' % sW)
        a('s_add_u32 s11, s11, s12')
        a('s_mul_i32 s14, s11, 896')
        a('s_add_u32 s15, %s, %s' % (sXCD if self.opt['rot'] == 3 else '0', sN))
        a('s_sub_u32 s13, s15, 7')
        a('s_cselect_b32 s15, s15, s13')
        a('s_lshl_b32 s15, s15, 7')
        for s in range(7):
            a('s_add_u32 s%d, s14, s15' % (92 + s))
            a('s_mul_i32 s%d, s15, 1344' % (84 + s))
            if s < 6:
                a('s_add_u32 s15, s15, 128')
                a('s_cmp_eq_u32 s15, 896')
                a('s_cselect_b32 s15, 0, s15')

        def wtab(h):
            for i in range(7):
                B = 28 * h + 4 * i
                a('s_add_u32 s%d, s%d, %d' % (68 + 7 * h + i, 84 + (B >> 3), (B & 7) * 8 * 2688 + 4096 - (i % 4) * 1024))
        wtab(0)
        a('s_mul_i32 s83, %s, 7168' % sW)
        a('s_mul_i32 s11, %s, %d' % (sW, 8 * 2688))
        a('s_lshl_b32 s12, %s, 7' % sN)
        a('s_add_u32 s11, s11, s12')
        a('v_bfe_u32 v176, v0, 4, 1')
        a('v_lshlrev_b32 v176, 2, v176')
        a('v_xor_b32 v176, v176, v3')
        a('v_mul_u32_u24 v177, 2688, v2')
        a('v_lshl_add_u32 v176, v176, 4, v177')
        a('v_add_u32 v181, s11, v176')
        a('v_add_u32 v180, 896, v181')
        self.srd(36, 16, 2048 * 896)
        self.stamp(34)
        NX0, NWF = self.opt.get('nx0', 5), self.opt.get('nwf', 0)

        def xload(s):
            return ['buffer_load_dwordx4 %s, v%d, %s, s%d offen%s' % (vr(XR + (s * 2 + q) * 4), VX2 if q else VX, SRD_X, 92 + s, ' nt' if self.opt['nt'] & 4 else '') for q in range(2)]
        for s in range(NX0):
            self.emit(xload(s))
        a('s_sub_u32 s18, s18, 4096')
        a('s_subb_u32 s19, s19, 0')
        self.srd(52, 18, 448 * 2688 + 4096)
        if self.opt.get('aw', 1):
            a('s_lshl_b32 s11, s2, 2')
            a('s_add_u32 s11, s11, %s' % sW)
            a('s_mul_i32 s11, s11, 1344')
            a('s_add_u32 s11, s11, 4096')
            a('v_lshlrev_b32 v190, 7, v0')
            a('s_mov_b64 exec, 0x7ff')
            a('buffer_load_dword v191, v190, %s, s11 offen' % SRD_WQKV)
            a('s_mov_b64 exec, -1')
        wg = self.p1_wdma(0) + self.p1_wdma(1) + self.p1_wdma(2) + self.p1_wdma(3)
        self.emit(wg[:min(NWF, 7)])
        wtab(1)
        self.emit(wg[7:NWF])
        self.stamp(26)
        self.srd(60, 24, 448 * 3584)
        self.srd(64, 26, 448 * 3584)
        self.roles()
        a('v_add_u32 v182, 1792, v181')
        a('v_lshrrev_b32 v10, 4, v0')
        a('v_xor_b32 v10, v3, v10')
        a('v_lshlrev_b32 v11, 7, v2')
        a('s_lshl_b32 s11, %s, 11' % sW)
        a('s_add_u32 s11, s11, %d' % self.P1_X)
        a('v_add_u32 v11, s11, v11')
        a('v_lshl_add_u32 v%d, v10, 4, v11' % T)
        a('v_xor_b32 v%d, 64, v%d' % (T + 1, T))
        a('v_add_u32 v%d, 1024, v%d' % (T + 1, T + 1))
        a('v_and_b32 v14, 31, v0')
        a('v_lshrrev_b32 v15, 5, v0')
        a('v_bfe_u32 v2, v0, 1, 3')
        a('v_xor_b32 v15, v15, v2')
        a('s_and_b32 s11, %s, 1' % sW)
        a('s_lshl_b32 s11, s11, 12')
        a('s_add_u32 s11, s11, %d' % self.P1_X)
        a('v_lshlrev_b32 v14, 7, v14')
        a('v_add_u32 v14, s11, v14')
        for u in range(4):
            a('v_xor_b32 v2, %d, v15' % (2 * u))
            a('v_lshl_add_u32 v%d, v2, 4, v14' % (T + 2 + u))
        self.tr_lane_addr('v14', 128, 32, 'v2', 'v3')
        a('v_bfe_u32 v2, v0, 3, 1')
        a('s_lshr_b32 s11, %s, 1' % sW)
        a('v_xor_b32 v2, s11, v2')
        a('v_lshl_add_u32 v%d, v2, 6, v14' % (T + 6))
        a('v_lshrrev_b32 v2, 5, v0')
        a('v_mul_u32_u24 v2, %d, v2' % (7168 - 1024))
        a('v_add_u32 v%d, v2, v%d' % (T + 6, T + 6))
        a('v_add_u32 v%d, %d, v%d' % (T + 7, 2 * SLOT, T + 6))
        ONE, SU, SQ, RS, NB, TMP = T + 9, ACC, ACC + 4, T + 10, T + 14, T + 18
        a('v_mov_b32 v%d, 0x3f803f80' % ONE)
        a('v_mov_b32 v%d, 0xffff0000' % TMP)
        st = []
        for s in range(7):
            for q in range(2):
                for d in range(4):
                    x = XR + (s * 2 + q) * 4 + d
                    k = q * 2 + (d & 1)
                    first = s == 0 and d < 2
                    st.append('v_dot2_f32_bf16 v%d, v%d, v%d, %s' % (SU + k, x, ONE, '0' if first else 'v%d' % (SU + k)))
                    st.append('v_dot2_f32_bf16 v%d, v%d, v%d, %s' % (SQ + k, x, x, '0' if first else 'v%d' % (SQ + k)))
        red = []
        for q in range(2):
            st.append('v_add_f32 v%d, v%d, v%d' % (SU + 2 * q, SU + 2 * q, SU + 2 * q + 1))
            st.append('v_add_f32 v%d, v%d, v%d' % (SQ + 2 * q, SQ + 2 * q, SQ + 2 * q + 1))
            red += [SU + 2 * q, SQ + 2 * q]
        for dpp in ('quad_perm:[1,0,3,2]', 'quad_perm:[2,3,0,1]', 'row_half_mirror'):
            for r in red:
                st.append('v_add_f32_dpp v%d, v%d, v%d %s row_mask:0xf bank_mask:0xf' % (r, r, r, dpp))
        for q in range(2):
            su, sq = SU + 2 * q, SQ + 2 * q
            st += ['v_mul_f32 v%d, %s, v%d' % (su, f32(1.0 / 448), su),
                   'v_mul_f32 v%d, %s, v%d' % (sq, f32(1.0 / 448), sq),
                   'v_fma_f32 v%d, -v%d, v%d, v%d' % (sq, su, su, sq),
                   'v_max_f32 v%d, 0, v%d' % (sq, sq),
                   'v_add_f32 v%d, %s, v%d' % (sq, f32(1e-5), sq),
                   'v_rsq_f32 v%d, v%d' % (RS + 2 * q, sq),
                   'v_mul_f32_e64 v%d, -v%d, v%d' % (NB + 2 * q, su, RS + 2 * q)]

        def norm(s, pk):
            o = []
            for q in range(2):
                b = XR + (s * 2 + q) * 4
                tb_ = PKR + q * 8
                for d in range(4):
                    o.append('v_lshlrev_b32 v%d, 16, v%d' % (tb_ + 2 * d, b + d))
                    o.append('v_and_b32 v%d, v%d, v%d' % (tb_ + 2 * d + 1, TMP, b + d))
                for d in range(4):
                    t0 = tb_ + 2 * d
                    if pk:
                        o.append('v_pk_fma_f32 %s, %s, %s, %s op_sel_hi:[1,0,0]' % (
                            vr(t0, 2), vr(t0, 2), vr(RS + 2 * q, 2), vr(NB + 2 * q, 2)))
                    else:
                        o.append('v_fma_f32 v%d, v%d, v%d, v%d' % (t0, t0, RS + 2 * q, NB + 2 * q))
                        o.append('v_fma_f32 v%d, v%d, v%d, v%d' % (t0 + 1, t0 + 1, RS + 2 * q, NB + 2 * q))
                for d in range(4):
                    o.append('v_cvt_pk_bf16_f32 v%d, v%d, v%d' % (b + d, tb_ + 2 * d, tb_ + 2 * d + 1))
                if s == 6 and q == 0:
                    o.append('s_barrier')
                o.append('ds_write_b128 v%d, %s offset:%d' % (T + q, vr(b), (s % 6) * 8192))
            return o

        def xread(ks):
            return 'ds_read_b128 %s, v%d offset:%d' % (ar(4 * ks), T + 2 + ks % 4, ((ks // 4) % 6) * 8192)

        cnt = [0]

        def wread(ss, k):
            b = WF + (cnt[0] % 8) * 4
            cnt[0] += 1
            sl = self.P1_SL[ss]
            return b, ['ds_read_b64_tr_b16 %s, v%d offset:%d' % (vr(b + 2 * z, 2), T + 6 + (sl >> 1), (sl & 1) * SLOT + (k & 1) * 14336 + (k >> 1) * 1024 + z * 512)
                       for z in range(2)]

        D = 6

        def store(g):
            so = ['s82', 'vcc_lo', 'vcc_hi'][g]
            o = []
            for h in range(2):
                pk = PKR + (g % 2) * 8 + 4 * h
                for d in range(4):
                    r = ACC + 16 * (g % 2) + 8 * h + 2 * d
                    o.append('v_cvt_pk_bf16_f32 v%d, v%d, v%d' % (pk + d, r, r + 1))
                o.append(('buffer_store_dwordx4 %s, %s, %s, %s offen offset:%d sc1' % (vr(pk), vL16, SRD_WS, so, h * 1024), 'q%d' % g))
            return o

        def sync(ss):
            return [Pseudo('wait_tok', 'w%d' % ss), 's_waitcnt lgkmcnt(0)', 's_barrier']
        a('s_lshl_b32 s13, %s, 1' % sM)
        a('s_and_b32 s12, %s, 1' % sW)
        a('s_add_u32 s13, s13, s12')
        a('s_lshr_b32 s12, %s, 1' % sW)
        a('s_lshl_b32 s11, %s, 1' % sN)
        a('s_add_u32 s12, s12, s11')
        a('s_mul_i32 vcc_lo, s13, %d' % (84 * 1024))
        a('s_lshl_b32 s11, s12, 11')
        a('s_add_u32 vcc_lo, vcc_lo, s11')
        a('s_add_u32 s82, vcc_lo, %d' % (28 * 1024))
        a('s_add_u32 vcc_hi, vcc_lo, %d' % (56 * 1024))
        a('s_lshl_b32 s16, s13, 4')
        a('s_add_u32 s16, s16, s12')
        a('s_lshl_b32 s16, s16, %d' % (FSH + 2))
        a('s_add_u32 s16, s16, %d' % (WS_FL + FL_F1 * FS))
        a('s_mov_b32 %s, s16' % sBK2)
        self.stamp(1)
        for s_ in range(NX0, 7):
            self.emit(xload(s_))
        self.emit(self.p2_setup_s())
        self.p2_setup_v()
        self.emit(self.rp_load()[0])
        if self.opt.get('pw', 3) == 2:
            self.emit(self.prewrite('A', 184))
        k = NWF
        for s in range(7):
            blk = st[16 * s:16 * s + 16]
            self.emit(blk[:9])
            if s in (0, 3, 6):
                self.stamp(42 + s // 3)
            if k + 2 <= self.opt.get('n0', 14):
                self.emit(wg[k] + blk[9:] + wg[k + 1])
                k += 2
            else:
                self.emit(blk[9:])
        n1 = self.opt.get('n1', 20)
        if self.opt.get('pw', 3) == 3:
            self.emit(self.prewrite('A', 184))
        nf, wl = self.opt.get('nf', 4), self.opt.get('wl', 0)
        pre = st[112:] + norm(0, True) + norm(1, True) + ['s_load_dword %s, %s, 0x0' % (sEP, DBGP)] + \
            [x for c_ in range(2, 7 if wl else nf) for x in norm(c_, True)]
        isw = lambda x: x.startswith('ds_write') or x == 's_barrier'
        late = []
        if wl:
            wr = [x for x in pre if isw(x)]
            pre = [x for x in pre if not isw(x)]
            late = wr[2 * nf:]
            self.emit(sprinkle(pre, wg[k:n1], 0.2, 1.0))
            self.stamp(58)
            if wl >= 2:
                a.wait_tok('w%d' % (wl - 1))
            self.emit(wr[:2 * nf])
        else:
            self.emit(sprinkle(pre, wg[k:n1], 0.3, 1.0))
        self.stamp(2)
        self.emit(sync(0))
        self.get_epoch(issued=True)
        self.stamp(3)
        seq = [(ss, kk) for ss in range(6) for kk in range(14)]

        def rds(i):
            ss, kk = seq[i]
            b, r = wread(ss, kk)
            o = sync(ss) if (kk == 0 and ss) else []
            if ss < 2:
                o.append(xread(14 * ss + kk))
            return b, o + r
        rd = [rds(i) for i in range(len(seq))]
        for i in range(D):
            self.emit(rd[i][1])
        self.stamp(57)
        for ss in range(6):
            g, h = ss // 2, ss % 2
            acc = vr(ACC + 16 * (g % 2), 16)
            A, B = [], []
            for kk in range(14):
                i = 14 * ss + kk
                m_ = '%s %s, %s, %s, %s' % (MFMA, acc, vr(rd[i][0]), ar(4 * (14 * h + kk)), acc if (kk or h) else '0')
                (A if kk <= 14 - D else B).append(m_)
                if i + D < len(seq):
                    (A if kk < 14 - D else B).extend(rd[i + D][1])
            sa, sb = [], []
            if ss == 0:
                sa = sprinkle([x for s in range(nf, 7) for x in norm(s, self.opt.get('pk0', 0))], wg[n1:], 0.0, 0.9) if not wl else [x for g_ in wg[n1:] for x in g_] + late
            if ss in (2, 4):
                sa = ['s_nop 0'] * 0 + store(ss // 2 - 1)
            fl = lambda gs: [x for g_ in gs for x in g_]
            if ss == 0:
                sb = fl(self.p1_wdma(4)[:4])
            if ss == 1:
                sa = fl(self.p1_wdma(4)[4:])
                sb = fl(self.p1_wdma(5)[:4])
            if ss == 2:
                sa = fl(self.p1_wdma(5)[4:]) + sa
            if ss == 2 and self.opt.get('rpl', 3) == 0:
                sb = self.rp_load()[0]
            if ss == 1 and self.opt.get('pw', 3) == 1:
                sa = sa + self.prewrite('A', 184)
            if ss == 3:
                sa = self.p2_masks()
            if ss == self.opt.get('kf', 3):
                sb = [[], [], [], [[Pseudo('wait_tok', 'q0')] + self.f1_set(0)]]
            A, r1 = weave(A, sa, start=1 if ss in (2, 4) else ((4 if wl else 2) if (ss == 0 and nf == 6) else 0))
            if ss == 5:
                B = B[:2] + ['s_waitcnt lgkmcnt(0)'] + self.poll_loads(self.kflags(0)) + B[2:] + [Pseudo('wait_tok', 'q1')] + self.f1_set(1)
                r2 = []
            else:
                B, r2 = weave(B, sb)
            self.emit(A + r1 + B + r2)
            self.stamp(27 + ss)
        self.emit(store(2))

    def p1b(self):
        a = self.a
        self.P1_X, self.P1_SL = 2 * SLOT, [0, 1, 4, 2, 3, 0]
        ACC, CA, CF, MB, WF, PKR, T, ST, ONE = 16, 64, 96, 100, 104, 136, 152, 192, 208
        VX, VX2 = 178, 179
        a('v_lshrrev_b32 v2, 3, v0')
        a('v_and_b32 v3, 7, v0')
        a('v_lshrrev_b32 v4, 4, v0')
        a('v_xor_b32 v4, v3, v4')
        a('v_mul_u32_u24 v%d, 896, v2' % VX)
        a('v_lshl_add_u32 v%d, v4, 4, v%d' % (VX, VX))
        a('v_xor_b32 v%d, 64, v%d' % (VX2, VX))
        a('v_add_u32 v%d, %d, v%d' % (VX2, 8 * 896 - 1024, VX2))
        a('s_lshl_b32 s11, %s, 6' % sM)
        a('s_lshl_b32 s12, %s, 4' % sW)
        a('s_add_u32 s11, s11, s12')
        a('s_mul_i32 s14, s11, 896')
        a('s_add_u32 s15, %s, %s' % (sXCD, sN))
        a('s_sub_u32 s13, s15, 7')
        a('s_cselect_b32 s15, s15, s13')
        a('s_lshl_b32 s15, s15, 7')
        for s in range(7):
            a('s_add_u32 s%d, s14, s15' % (92 + s))
            a('s_mul_i32 s%d, s15, 1344' % (84 + s))
            if s < 6:
                a('s_add_u32 s15, s15, 128')
                a('s_cmp_eq_u32 s15, 896')
                a('s_cselect_b32 s15, 0, s15')
        a('s_lshl_b32 s91, %s, 11' % sW)
        self.srd(36, 16, 2048 * 896)
        self.stamp(34)
        NX0 = self.opt.get('nx0', 5)

        def xload(s):
            return ['s_add_u32 m0, s91, %d' % (self.P1_X + s * 8192)] + \
                [('buffer_load_dwordx4 v%d, %s, s%d offen offset:%d lds' % (VX2 if q else VX, SRD_X, 92 + s, q * 1024), 'x') for q in range(2)]
        for s in range(NX0):
            self.emit(xload(s))
        a('s_sub_u32 s18, s18, 4096')
        a('s_subb_u32 s19, s19, 0')
        self.srd(52, 18, 448 * 2688 + 4096)
        a('s_lshl_b32 s11, s2, 2')
        a('s_add_u32 s11, s11, %s' % sW)
        a('s_mul_i32 s11, s11, 1344')
        a('s_add_u32 s11, s11, 4096')
        a('v_lshlrev_b32 v190, 7, v0')
        a('s_mov_b64 exec, 0x7ff')
        a('buffer_load_dword v191, v190, %s, s11 offen' % SRD_WQKV)
        a('s_mov_b64 exec, -1')
        self.stamp(26)
        for h in range(2):
            for i in range(7):
                B = 28 * h + 4 * i
                a('s_add_u32 s%d, s%d, %d' % (68 + 7 * h + i, 84 + (B >> 3), (B & 7) * 8 * 2688 + 4096 - (i % 4) * 1024))
        a('s_mul_i32 s83, %s, 7168' % sW)
        a('s_mul_i32 s11, %s, %d' % (sW, 8 * 2688))
        a('s_lshl_b32 s12, %s, 7' % sN)
        a('s_add_u32 s11, s11, s12')
        a('v_bfe_u32 v176, v0, 4, 1')
        a('v_lshlrev_b32 v176, 2, v176')
        a('v_xor_b32 v176, v176, v3')
        a('v_mul_u32_u24 v177, 2688, v2')
        a('v_lshl_add_u32 v176, v176, 4, v177')
        a('v_add_u32 v181, s11, v176')
        a('v_add_u32 v180, 896, v181')
        a('v_add_u32 v182, 1792, v181')
        self.srd(60, 24, 448 * 3584)
        self.srd(64, 26, 448 * 3584)
        self.roles()
        a('s_and_b32 s13, %s, 1' % sW)
        a('v_and_b32 v14, 31, v0')
        a('v_lshrrev_b32 v15, 5, v0')
        a('v_bfe_u32 v2, v0, 1, 3')
        a('v_xor_b32 v13, v15, v2')
        a('s_lshl_b32 s11, s13, 1')
        a('v_xor_b32 v13, s11, v13')
        a('s_lshl_b32 s11, s13, 12')
        a('s_add_u32 s11, s11, %d' % self.P1_X)
        a('v_lshl_add_u32 v12, v14, 7, s11')
        for u in range(4):
            a('v_xor_b32 v2, %d, v13' % (2 * u))
            a('v_lshl_add_u32 v%d, v2, 4, v12' % (T + u))
        a('s_lshl_b32 s11, %s, 8' % sW)
        a('s_add_u32 s12, s11, %d' % XTRA)
        a('v_lshl_add_u32 v%d, v14, 3, s12' % (T + 10))
        a('v_xor_b32 v%d, 512, v%d' % (T + 11, T + 10))
        a('s_add_u32 s12, s11, %d' % SLOT)
        a('v_lshl_add_u32 v%d, v0, 2, s12' % (T + 12))
        a('v_xor_b32 v%d, 256, v%d' % (T + 13, T + 12))
        self.tr_lane_addr('v14', 128, 32, 'v2', 'v3')
        a('v_bfe_u32 v2, v0, 3, 1')
        a('s_lshr_b32 s12, %s, 1' % sW)
        a('v_xor_b32 v2, s12, v2')
        a('v_lshl_add_u32 v14, v2, 6, v14')
        a('v_mul_u32_u24 v2, %d, v15' % (7168 - 1024))
        a('s_mul_i32 s11, s13, 14336')
        a('v_add3_u32 v%d, v2, v14, s11' % (T + 4))
        a('s_sub_u32 s11, 14336, s11')
        a('v_add3_u32 v%d, v2, v14, s11' % (T + 5))
        for st_ in (1, 2):
            for p in range(2):
                a('v_add_u32 v%d, %d, v%d' % (T + 4 + 2 * st_ + p, 2 * SLOT * st_, T + 4 + p))
        for d in range(4):
            a('v_mov_b32 v%d, 0x3f803f80' % (ONE + d))
        for r in (CF + 2, CF + 3, MB + 2, MB + 3):
            a('v_mov_b32 v%d, 0' % r)
        a('s_lshl_b32 s11, %s, 1' % sM)
        a('s_add_u32 s13, s13, s11')
        a('s_lshl_b32 s11, %s, 1' % sN)
        a('s_add_u32 s12, s12, s11')
        a('s_mul_i32 vcc_lo, s13, %d' % (84 * 1024))
        a('s_lshl_b32 s11, s12, 11')
        a('s_add_u32 vcc_lo, vcc_lo, s11')
        a('s_add_u32 s82, vcc_lo, %d' % (28 * 1024))
        a('s_add_u32 vcc_hi, vcc_lo, %d' % (56 * 1024))
        a('s_lshl_b32 s16, s13, 4')
        a('s_add_u32 s16, s16, s12')
        a('s_lshl_b32 s16, s16, %d' % (FSH + 2))
        a('s_add_u32 s16, s16, %d' % (WS_FL + FL_F1 * FS))
        a('s_mov_b32 s1, s82')
        self.stamp(1)
        for s_ in range(NX0, 7):
            self.emit(xload(s_))
        fl = lambda gs: [x for g_ in gs for x in g_]
        wg = self.p1_wdma(0) + self.p1_wdma(1) + self.p1_wdma(2)
        n0 = self.opt.get('n0', 12)
        pre = self.p2_setup_s() + self.capture(self.p2_setup_v) + self.rp_load()[0]
        self.emit(pre)
        self.emit(fl(wg[:n0]))
        self.stamp(2)
        a.wait_tok('x')
        a('s_barrier')
        self.stamp(42)
        SM = 'v_mfma_f32_4x4x4_16b_bf16'
        xread = lambda ks: 'ds_read_b128 %s, v%d offset:%d' % (ar(4 * ks), T + ks % 4, (ks // 4) * 8192)

        def stats(ks, first):
            o = []
            for h in range(2):
                x = ar(4 * ks + 2 * h, 2)
                o.append('%s %s, %s, %s, %s' % (SM, vr(ST + 8 * h), x, x, '0' if first else vr(ST + 8 * h)))
                o.append('%s %s, %s, %s, %s' % (SM, vr(ST + 4 + 8 * h), vr(ONE, 2), x, '0' if first else vr(ST + 4 + 8 * h)))
            return o
        self.emit(sprinkle([xread(k) for k in range(28)], wg[n0:], 0.0, 1.0))
        self.emit(self.prewrite('A', 184))
        a('s_waitcnt lgkmcnt(0)')
        self.epoch_issue()
        a('s_cmp_ge_u32 %s, 2' % sW)
        a('s_cbranch_scc1 L_st1')
        a.begin_cond('st0')
        self.emit([x for k in range(14) for x in stats(k, k == 0)])
        a('s_branch L_st2')
        a.end_cond()
        a('L_st1:')
        a.begin_cond('st1')
        self.emit([x for k in range(14, 28) for x in stats(k, k == 14)])
        a.end_cond()
        a('L_st2:')
        for r, v in (('s12', 0x22222222), ('s13', 0x22222222), ('s14', 0xcccccccc), ('s15', 0xcccccccc), ('s100', 0x88888888), ('s101', 0x88888888)):
            a('s_mov_b32 %s, 0x%x' % (r, v))
        for k in range(5):
            a('v_add_f32 v%d, v%d, v%d' % (ST + k, ST + k, ST + 8 + k))
        a('v_cndmask_b32 v%d, v%d, v%d, s[12:13]' % (ST, ST, ST + 1))
        a('v_cndmask_b32 v%d, v%d, v%d, s[100:101]' % (ST + 2, ST + 2, ST + 3))
        a('v_mov_b32 v%d, v%d' % (ST + 6, ST + 4))
        a('v_cndmask_b32 v%d, v%d, v%d, s[14:15]' % (ST + 5, ST, ST + 2))
        a('v_permlane32_swap_b32 v%d, v%d' % (ST + 4, ST + 6))
        a('v_mov_b32 v%d, v%d' % (ST + 7, ST + 5))
        a('v_add_f32 v%d, v%d, v%d' % (ST + 4, ST + 4, ST + 6))
        a('v_permlane32_swap_b32 v%d, v%d' % (ST + 5, ST + 7))
        a('v_add_f32 v%d, v%d, v%d' % (ST + 5, ST + 5, ST + 7))
        a('ds_write_b64 v%d, %s' % (T + 10, vr(ST + 4, 2)))
        self.stamp(43)
        sync = lambda ss: [Pseudo('wait_tok', 'w%d' % ss), 's_waitcnt lgkmcnt(0)', 's_barrier']
        self.emit(sync(0))
        self.get_epoch(issued=True)
        self.stamp(3)
        RS = T + 14
        fin = ['ds_read_b64 %s, v%d' % (vr(ST + 6, 2), T + 11), 's_mov_b32 s12, -1', 's_mov_b32 s13, 0', [], [], [], [], [],
               'v_add_f32 v%d, v%d, v%d' % (ST + 4, ST + 4, ST + 6), 'v_add_f32 v%d, v%d, v%d' % (ST + 5, ST + 5, ST + 7),
               'v_mul_f32 v%d, %s, v%d' % (ST + 4, f32(-1.0 / 448), ST + 4), 'v_mul_f32 v%d, %s, v%d' % (ST + 5, f32(1.0 / 448), ST + 5),
               'v_fma_f32 v%d, -v%d, v%d, v%d' % (ST + 5, ST + 4, ST + 4, ST + 5), 'v_max_f32 v%d, 0, v%d' % (ST + 5, ST + 5),
               'v_add_f32 v%d, %s, v%d' % (ST + 5, f32(1e-5), ST + 5), 'v_rsq_f32 v%d, v%d' % (RS, ST + 5),
               'v_cndmask_b32 v%d, 0, v%d, s[12:13]' % (ST + 4, ST + 4),
               'v_cvt_pk_bf16_f32 v%d, v%d, v%d' % (MB, ST + 4, ST + 4), 'v_lshlrev_b32 v%d, 16, v%d' % (ST + 6, MB),
               'v_sub_f32 v%d, v%d, v%d' % (ST + 6, ST + 4, ST + 6), 'v_cvt_pk_bf16_f32 v%d, v%d, 0' % (MB + 1, ST + 6)]
        cnt = [0]

        def wread(ss, k):
            b = WF + (cnt[0] % 8) * 4
            cnt[0] += 1
            sl = self.P1_SL[ss]
            return b, ['ds_read_b64_tr_b16 %s, v%d offset:%d' % (vr(b + 2 * z, 2), T + 4 + 2 * (sl >> 1) + (k & 1),
                                                                (sl & 1) * SLOT + (k >> 1) * 1024 + z * 512) for z in range(2)]
        D = 6
        cs_w = lambda g: ['ds_write_b32 v%d, v%d offset:%d' % (T + 12, CA + 16 * (g % 2), g * 1024)]

        def cs_r(g):
            c = CA + 16 * (g % 2)
            acc = vr(ACC + 16 * g, 16)
            return ['ds_read_b32 v%d, v%d offset:%d' % (c + 1, T + 13, g * 1024), [], [], [],
                    'v_add_f32 v%d, v%d, v%d' % (c, c, c + 1), 'v_cvt_pk_bf16_f32 v%d, v%d, 0' % (CF + 1, c),
                    'v_lshlrev_b32 v%d, 16, v%d' % (c + 1, CF + 1), 'v_sub_f32 v%d, v%d, v%d' % (c + 1, c, c + 1),
                    'v_cvt_pk_bf16_f32 v%d, v%d, v%d' % (CF, c, c + 1), [],
                    ' %s %s, %s, %s, %s' % (MFMA, acc, vr(CF), vr(MB), acc)]

        def store(g, pk):
            so = ['s1', 'vcc_lo', 'vcc_hi'][g]
            acc = ACC + 16 * g
            o = []
            for h in range(2):
                R = range(8 * h, 8 * h + 8)
                if pk:
                    o += ['v_pk_mul_f32 %s, %s, %s op_sel_hi:[1,0]' % (vr(acc + r, 2), vr(acc + r, 2), vr(RS, 2)) for r in R[::2]]
                else:
                    o += ['v_mul_f32 v%d, v%d, v%d' % (acc + r, acc + r, RS) for r in R]
                pkr = PKR + (g % 2) * 8 + 4 * h
                o += ['v_cvt_pk_bf16_f32 v%d, v%d, v%d' % (pkr + d, acc + 8 * h + 2 * d, acc + 8 * h + 2 * d + 1) for d in range(4)]
                o.append(('buffer_store_dwordx4 %s, %s, %s, %s offen offset:%d sc1' % (vr(pkr), vL16, SRD_WS, so, h * 1024), 'q%d' % g))
            return o
        seq = [(ss, kk) for ss in range(6) for kk in range(14)]

        def rds(i):
            ss, kk = seq[i]
            b, r = wread(ss, kk)
            return b, (sync(ss) if (kk == 0 and ss) else []) + r
        rd = [rds(i) for i in range(len(seq))]
        for i in range(D):
            self.emit(rd[i][1])
        for ss in range(6):
            g, h = ss // 2, ss % 2
            acc, ca = vr(ACC + 16 * g, 16), vr(CA + 16 * (g % 2), 16)
            A, B = [], []
            for kk in range(14):
                i = 14 * ss + kk
                m_ = ['%s %s, %s, %s, %s' % (MFMA, acc, vr(rd[i][0]), ar(4 * (14 * h + kk)), acc if (kk or h) else '0')]
                c_ = ['%s %s, %s, %s, %s' % (MFMA, ca, vr(ONE), vr(rd[i][0]), ca if (kk or h) else '0')] if kk % 2 == 0 else []
                r_ = rd[i + D][1] if i + D < len(seq) else []
                if kk == 14 - D:
                    A += c_ + m_
                    B += r_
                else:
                    (A if kk < 14 - D else B).extend(c_ + m_ + r_)
            sa, sb = [], []
            if ss == 0:
                sa = fl(self.p1_wdma(3)) + fin
                sb = fl(self.p1_wdma(4)[:4])
            if ss == 1:
                sa = fl(self.p1_wdma(4)[4:] + self.p1_wdma(5))
            if ss in (2, 4):
                sa = [[], cs_w(g - 1) + ['s_waitcnt lgkmcnt(0)', 's_barrier']] + cs_r(g - 1) + [[], [], [], []]
                sb = store(g - 1, 0)
            if ss == 3:
                sa = self.p2_masks()
            if ss == 4:
                sa = [[Pseudo('wait_tok', 'q0')] + self.f1_set(0)] + sa[1:]
            A, r1 = weave(A, sa)
            if ss == 5:
                B = B[:-2] + cs_w(2) + ['s_waitcnt lgkmcnt(0)', 's_barrier'] if False else B
                r2 = []
            else:
                B, r2 = weave(B, sb)
            self.emit(A + r1 + B + r2)
            self.stamp(27 + ss)
        self.emit(cs_w(2))
        a('s_waitcnt lgkmcnt(0)')
        a('s_barrier')
        cr = cs_r(2)
        self.emit(cr[:5])
        self.emit(self.poll_loads(self.kflags(0)))
        self.emit(cr[5:])
        a.wait_tok('q1')
        self.emit(self.f1_set(1))
        self.emit(store(2, 1))

    def kflags(self, part):
        return [('s%d' % (20 + g), k * 64 + part) for g in range(2) for k in range(3)]

    def qflags(self):
        return [('s22', 1), ('s23', 1)]

    def fo_items(self):
        return [('s18', k) for k in range(2)]

    def rp_load(self):
        o = ['v_lshrrev_b32 v220, 3, v0', 'v_and_b32 v221, 7, v0', 'v_mul_u32_u24 v220, 3584, v220',
             'v_lshl_add_u32 v220, v221, 4, v220', 'v_add_u32 v221, %d, v220' % (8 * 3584 - 1024),
             's_lshl_b32 s25, %s, 6' % sN, 's_lshl_b32 s28, %s, 4' % sW, 's_add_u32 s25, s25, s28', 's_mul_i32 s25, s25, 3584',
             's_lshl_b32 s28, %s, 7' % sM, 's_add_u32 s25, s25, s28',
             ['s_cmp_lt_u32 %s, 28' % sM, 's_cselect_b32 s25, s25, %d' % OOB], 's_lshl_b32 s28, %s, 11' % sW]
        d = []
        for img, srd in enumerate((SRD_G, SRD_U)):
            d.append('s_add_u32 m0, s28, %d' % (self.RP_LDS + img * 8192))
            for z in range(2):
                d.append(('buffer_load_dwordx4 v%d, %s, s25 offen offset:%d%s lds' % (220 + z, srd, z * 1024, ' nt' if self.opt['nt'] & 1 else ''), 'rp'))
        return o, d

    def rp_prep(self):
        a = self.a
        self.tr_lane_addr('v15', 128, 8192, 'v2', 'v3')
        a('s_lshl_b32 s11, %s, 5' % sW)
        a('s_add_u32 s11, s11, %d' % self.RP_LDS)
        a('v_add_u32 v15, s11, v15')
        a('s_lshl_b32 s13, %s, 2' % sM)
        a('s_add_u32 s13, s13, %s' % sW)
        a('s_mul_i32 s0, s13, 28672')
        a('s_lshl_b32 s12, %s, 12' % sN)
        a('s_add_u32 s0, s0, s12')
        a('s_add_u32 s0, s0, %d' % WS_WGU)
        a('s_mul_i32 s1, s13, 896')
        a('s_lshl_b32 s12, %s, 7' % sN)
        a('s_add_u32 s1, s1, s12')
        a('s_add_u32 s1, s1, %d' % WS_CS)
        a('s_lshl_b32 s12, %s, 2' % sN)
        a('s_max_u32 s12, s12, %s' % sM)
        a('s_cmp_lt_u32 s12, 28')
        a('s_cselect_b32 s0, s0, %d' % OOB)
        a('s_cselect_b32 s1, s1, %d' % OOB)

    def rp_frag(self):
        a = self.a
        for u in range(4):
            for z in range(2):
                a('ds_read_b64_tr_b16 %s, v15 offset:%d' % (ar(168 + u * 4 + z * 2, 2), (16 * u + 4 * z) * 128))
        for d in range(4):
            a('v_mov_b32 v%d, 0x3f803f80' % (160 + d))
        a('v_lshlrev_b32 v164, 2, v0')

    def rp_mm(self):
        for u in range(4):
            self.a('%s v[16:31], v[160:163], %s, %s' % (MFMA, ar(168 + u * 4), 'v[16:31]' if u else '0'))

    def rp_store(self):
        a = self.a
        for u in range(4):
            a('buffer_store_dwordx4 %s, %s, %s, s0 offen offset:%d sc1' % (ar(168 + u * 4), vL16, SRD_WS, u * 1024), tok='rs')
        a('s_mov_b32 exec_hi, 0')
        a('buffer_store_dword v16, v164, %s, s1 offen sc1' % SRD_WS, tok='rs')
        a('s_mov_b32 exec_hi, -1')

    def fg_set(self):
        a = self.a
        a('s_mul_i32 s11, %s, 7' % sM)
        a('s_add_u32 s11, s11, %s' % sN)
        a('s_cmp_ge_u32 %s, 7' % sN)
        a('s_cselect_b32 s11, %d, s11' % (FL_FD + 31 - FL_FG))
        self.flag_set_wg('s11', FL_FG)

    def prewrite(self, part, z):
        assert FS == 256
        st = lambda s_: 'buffer_store_dwordx4 %s, %s, %s, %s offen sc1' % (vr(z), vL16, SRD_WS, s_)
        o = ['v_mov_b32 v%d, 0' % (z + k) for k in range(4)]
        if part == 'A':
            return o + [st('s16')]
        o += ['s_lshl_b32 s12, %s, 2' % sR4, 's_add_u32 s12, s12, %s' % sW, 's_lshl_b32 s12, s12, 4', 's_add_u32 s12, s12, %s' % sJ,
              's_lshl_b32 s12, s12, 10', 's_add_u32 s12, s12, %d' % (WS_FL + FL_F4 * FS),
              ['s_mov_b32 exec_hi, 0xffff', st('s12'), 's_mov_b32 exec_hi, -1'] if self.opt.get('stg', 247) < 1000 else st('s12')]
        o += ['s_lshl_b32 s12, s24, 4', 's_add_u32 s12, s12, %s' % sHD,
              's_lshl_b32 s12, s12, 8', 's_add_u32 s12, s12, %d' % (WS_FL + FL_F2 * FS),
              ['s_mov_b64 exec, 0xffff', st('s12'), 's_mov_b64 exec, -1']]
        return o

    def prewrite_data(self, z):
        st = lambda s_, off: 'buffer_store_dwordx4 %s, %s, %s, %s offen offset:%d sc1' % (vr(z), vL16, SRD_WS, s_, off)
        o = ['s_lshl_b32 s11, s24, 4', 's_add_u32 s11, s11, %s' % sHD, 's_lshl_b32 s11, s11, 11', 's_add_u32 s11, s11, %d' % WS_O,
             st('s11', 0), st('s11', 1024),
             's_lshl_b32 s13, %s, 1' % sM, 's_and_b32 s12, %s, 1' % sW, 's_add_u32 s13, s13, s12', 's_mul_i32 s13, s13, 14',
             's_lshr_b32 s12, %s, 1' % sW, 's_add_u32 s13, s13, s12', 's_lshl_b32 s12, %s, 1' % sN, 's_add_u32 s13, s13, s12',
             's_lshl_b32 s13, s13, 11', 's_add_u32 s13, s13, %d' % WS_HB,
             's_cmp_ge_u32 %s, 7' % sN, 's_cselect_b32 s13, %d, s13' % OOB, st('s13', 0), st('s13', 1024)]
        return o

    def touch(self, v):
        sh = self.opt.get('tsh', 19)
        return ['v_lshlrev_b32 v%d, %d, v0' % (v, sh),
                'buffer_load_dword v%d, v%d, %s, 0 offen offset:2048' % (v + 1, v, SRD_WS),
                'buffer_load_dword v%d, v%d, %s, 0 offen offset:2048' % (v + 1, v, SRD_OUT)]

    def idle1(self):
        a = self.a
        self.srd(36, 16, 2048 * 896)
        self.srd(40, 34, WS_END)
        noep = self.label('noep')
        a('s_lshl_b32 s13, s2, 2')
        a('s_add_u32 s13, s13, %s' % sW)
        a('s_cmp_lg_u32 s13, 1020')
        a('s_cbranch_scc1 %s' % noep)
        a.begin_cond(noep)
        a('s_mov_b32 s13, %d' % WS_EP)
        a('s_load_dword s12, %s, s13 glc' % WSP)
        a('s_add_u32 s12, s12, 1')
        a('s_max_u32 s12, s12, 1')
        a('v_mov_b32 v8, s12')
        a('v_mov_b32 v9, 0')
        a('s_mov_b64 exec, 1')
        a('buffer_store_dword v8, off, %s, s13 sc1' % SRD_WS)
        a('global_store_dword v9, v8, %s sc1' % DBGP)
        a('s_mov_b64 exec, -1')
        a.end_cond()
        a(noep + ':')
        if self.opt.get('j0', 0):
            self.srd(52, 18, 448 * 2688)
            a('s_lshl_b32 s11, %s, 2' % sM)
            a('s_add_u32 s11, s11, %s' % sW)
            a('s_mul_i32 s11, s11, 9408')
            for k in range(10):
                if k and k % 4 == 0:
                    a('s_add_u32 s11, s11, 4096')
                a('buffer_load_dwordx4 v[40:43], %s, %s, s11 offen offset:%d' % (vL16, SRD_WQKV, (k % 4) * 1024))
        a('v_lshrrev_b32 v2, 3, v0')
        a('v_and_b32 v3, 7, v0')
        a('s_mul_i32 s17, %s, 40960' % sW)
        self.srd(60, 24, 448 * 3584)
        self.srd(64, 26, 448 * 3584)
        self.srd(52, 28, 1792 * 896)
        self.srd(56, 20, 448 * 896)
        self.roles()
        if self.opt.get('ti', 1):
            self.emit(self.touch(38))
            a('buffer_load_dword v39, v38, %s, 0 offen' % SRD_G)
            a('buffer_load_dword v39, v38, %s, 0 offen' % SRD_U)
        a('v_mul_u32_u24 v4, 896, v2')
        a('v_lshl_add_u32 v4, v3, 4, v4')
        a('s_and_b32 s12, %s, 3' % sM)
        a('s_mul_i32 s19, s12, 112')
        a('s_lshl_b32 s11, %s, 4' % sW)
        a('s_add_u32 s19, s19, s11')
        a('s_lshr_b32 s11, %s, 1' % sW)
        a('s_lshl_b32 s11, s11, 3')
        a('s_sub_u32 s19, s19, s11')
        a('s_mul_i32 s19, s19, 896')
        a('s_lshr_b32 s13, %s, 2' % sM)
        a('s_lshl_b32 s11, s13, 7')
        a('s_add_u32 s19, s19, s11')
        a('s_lshl_b32 s18, s13, 5')
        a('s_lshl_b32 s11, s12, 3')
        a('s_add_u32 s18, s18, s11')
        a('s_add_u32 s18, s18, %s' % sW)
        a('s_lshl_b32 s18, s18, 11')
        a('s_add_u32 s18, s18, %d' % WS_WO)
        a('s_lshl_b32 s20, %s, 2' % sM)
        a('s_add_u32 s20, s20, %s' % sW)
        a('s_lshl_b32 s21, s20, 11')
        a('s_add_u32 s21, s21, %d' % WS_WD)
        a('s_cmp_lt_u32 %s, 28' % sM)
        a('s_cselect_b32 s19, s19, %d' % OOB)
        a('s_cselect_b32 s18, s18, %d' % OOB)
        a('s_cselect_b32 s21, s21, %d' % OOB)
        for k in range(4):
            a('s_add_u32 m0, s17, %d' % (14336 + k * 1024))
            a('s_add_u32 s11, s19, %d' % (((k >> 1) * 56 + (k & 1) * 8) * 896))
            a('buffer_load_dwordx4 v4, %s, s11 offen%s lds' % (SRD_D, ' nt' if self.opt['nt'] & 2 else ''), tok='j2')
        self.tr_lane_addr('v6', 128, 32, 'v2', 'v3')
        a('v_add_u32 v6, s17, v6')
        self.tr_lane_addr('v7', 896, 32, 'v2', 'v3')
        a('v_add_u32 v7, s17, v7')

        def j3():
            a('s_lshl_b32 s11, %s, 2' % sM)
            a('s_add_u32 s11, s11, %s' % sW)
            a('s_mul_i32 s11, s11, 12544')
            for k in range(13):
                if k and k % 4 == 0:
                    a('s_add_u32 s11, s11, 4096')
                for srd in ((SRD_G, SRD_U) if self.opt.get('j3') in (1, 3) else (SRD_G,)):
                    a('buffer_load_dwordx4 v[40:43], %s, %s, s11 offen offset:%d' % (vL16, srd, (k % 4) * 1024))

        def j4():
            a('s_mul_i32 s22, s20, %d' % (16 * 896))
            for k in range(14):
                if k % 4 == 0:
                    a('s_add_u32 m0, s17, %d' % (18432 + k * 1024))
                    if k:
                        a('s_add_u32 s22, s22, 4096')
                a('buffer_load_dwordx4 %s, %s, s22 offen offset:%d%s lds' % (vL16, SRD_WQKV, (k % 4) * 1024, ' nt' if self.opt['nt'] & 2 else ''), tok='j4')

        def j2p():
            a.wait_tok('j2')
            for k in range(4):
                for z in range(2):
                    a('ds_read_b64_tr_b16 %s, v6 offset:%d' % (vr(24 + k * 4 + z * 2, 2), 14336 + (k >> 1) * 2048 + (k & 1) * 64 + z * 512))
            a('s_add_u32 s19, s18, 8192')
            for k in range(4):
                a('buffer_store_dwordx4 %s, %s, %s, s%d offen offset:%d sc1' % (vr(24 + k * 4), vL16, SRD_WS, 18 + (k >> 1), (k & 1) * 1024), tok='c2')

        def j4p():
            a.wait_tok('j4')
            for ct in range(14):
                for z in range(2):
                    a('ds_read_b64_tr_b16 %s, v110 offset:%d' % (vr(48 + ct * 4 + z * 2, 2), 18432 + ct * 64 + z * 4 * 896))
            for ct in range(14):
                if ct and ct % 2 == 0:
                    a('s_add_u32 s0, s0, %d' % (112 * 2048))
                a('buffer_store_dwordx4 %s, %s, %s, s0 offen offset:%d sc1' % (vr(48 + ct * 4), vL16, SRD_WS, (ct % 2) * 1024), tok='c4')

        def flag(tok, base):
            a.wait_tok(tok)
            a('s_barrier')
            a('s_mov_b32 s11, %s' % sM)
            self.flag_set_wg('s11', base)
        if self.opt.get('j4e', 0):
            j4()
            j2p()
        else:
            j2p()
            j4()
        a('v_mov_b32 v110, v7')
        a('s_mov_b32 s0, s21')
        self.p2_setup_v()
        self.emit(self.p2_masks())
        self.emit(self.p2_setup_s())
        self.res_voffset('v15', 's1')
        self.emit(self.rp_load()[0])
        self.get_epoch()
        flag('c2', FL_FO)
        self.stamp(1)
        if self.opt.get('j3', 0) in (3, 4):
            j3()
        j4p()
        self.stamp(2)
        a('s_lshl_b32 s0, %s, %d' % (sM, FSH + 7))
        a('s_add_u32 s0, s0, %d' % (WS_FL + (FL_F1 + 6 * 4 + self.opt.get('px', 1)) * FS))
        a('s_load_dword s12, %s, s0 offset:128' % WSP)
        flag('c4', FL_FD)
        if self.opt.get('j3', 0) in (1, 2):
            j3()
        self.stamp(3)
        a('s_cmp_eq_u32 s12, %s' % sEP)
        a('s_cbranch_scc1 L_nopw')
        a('s_cmp_lg_u32 %s, 0' % sW)
        a('s_cbranch_scc1 L_nopw')
        self.prewait('s0')
        a('L_nopw:')
        a('s_barrier')
        self.poll(self.kflags(0) + self.qflags())
        self.k_issue()
        a('s_mov_b32 s11, s1')

    KV_LDS = 4 * SLOT

    def p2_setup_s(self):
        o = []
        a = o.append
        a('s_mul_i32 s28, %s, 7' % sHD)
        a('s_lshr_b32 s28, s28, 1')
        a('s_lshl_b32 s11, %s, 2' % sR)
        a('s_add_u32 s12, s11, %s' % sW)
        a('s_mul_i32 s13, %s, 3' % sW)
        a('s_add_u32 s11, s11, s13')
        a('s_sub_i32 s18, s11, 8')
        a('s_max_i32 s13, s18, 0')
        a('s_lshl_b32 s13, s13, %d' % (FSH + 6))
        a('s_add_u32 s13, s13, %d' % (WS_FL + FL_F1 * FS))
        a('s_lshl_b32 s14, s12, %d' % (FSH + 6))
        a('s_add_u32 s14, s14, %d' % (WS_FL + FL_F1 * FS))
        for k, add in enumerate((0, 3)):
            a('s_add_u32 s15, s28, %d' % add)
            a('s_lshr_b32 s15, s15, 2')
            a('s_lshl_b32 s15, s15, %d' % (FSH + 2))
            a('s_add_u32 s%d, s15, s13' % (20 + k))
            a('s_add_u32 s%d, s15, s14' % (22 + k))
        a('s_mov_b32 s24, s12')
        a('s_lshl_b32 s28, s28, 9')
        a('s_mul_i32 s19, s12, %d' % (84 * 1024))
        a('s_add_u32 s19, s19, s28')
        for k in range(3):
            a('s_add_i32 s13, s18, %d' % k)
            a('s_mul_i32 s14, s13, %d' % (84 * 1024))
            a('s_add_u32 s14, s14, s28')
            a('s_add_u32 s14, s14, %d' % (56 * 512))
            a('s_cmp_lt_i32 s13, 0')
            a('s_cselect_b32 s%d, %d, s14' % (29 + k, OOB))
        a('s_mul_i32 s17, %s, %d' % (sW, 3 * 4096))
        a('v_lshrrev_b32 v5, 5, v0')
        a('v_lshlrev_b32 v5, 6, v5')
        a('v_xor_b32 v4, %s, v5' % vL16)
        a('v_xor_b32 v5, 128, v4')
        a('s_bitcmp1_b32 %s, 0' % sHD)
        a('s_cselect_b64 s[26:27], -1, 0')
        a('s_min_u32 s18, %s, 6' % sN)
        a('s_lshl_b32 s18, s18, 2')
        a('s_and_b32 s11, %s, 2' % sW)
        a('s_add_u32 s18, s18, s11')
        a('s_lshl_b32 s18, s18, %d' % FSH)
        a('s_add_u32 s18, s18, %d' % (WS_FL + FL_FO * FS))
        return o

    def p2_masks(self):
        o = ['v_and_b32 v2, 31, v0', 'v_lshrrev_b32 v3, 5, v0', 'v_lshlrev_b32 v3, 2, v3', 'v_sub_u32 v2, v2, v3']
        return o + ['v_cmp_le_i32 s[%d:%d], %d, v2' % (MASK0 + 2 * r, MASK0 + 2 * r + 1, (r & 3) + 8 * (r >> 2)) for r in range(16)]

    def p2_setup_v(self):
        a = self.a
        M = 224
        a('v_and_b32 v2, 31, v0')
        a('v_lshrrev_b32 v3, 5, v0')
        a('v_lshlrev_b32 v3, 2, v3')
        a('v_sub_u32 v2, v3, v2')
        a('s_mov_b32 s11, 0x03020706')
        for p in range(8):
            k0 = ((2 * p) & 3) + 8 * ((2 * p) >> 2)
            a('v_add_u32 v3, %d, v2' % (k0 - 1))
            a('v_add_u32 v8, %d, v2' % k0)
            a('v_perm_b32 v%d, v3, v8, s11' % (M + p))
        a('s_bitcmp1_b32 %s, 0' % sHD)
        a('s_cselect_b32 s12, -1, 0')
        a('s_mov_b32 s13, 0')
        a('v_cndmask_b32 v6, -1, 0, s[12:13]')
        a('s_cselect_b32 s13, 0, -1')
        a('s_mov_b32 s12, 0')
        a('v_cndmask_b32 v7, -1, 0, s[12:13]')
        a('s_cselect_b32 s11, 0, %d' % (3 * 512 + 8))
        a('s_mul_i32 s12, %s, %d' % (sW, 3 * 4096))
        a('s_add_u32 s11, s11, s12')
        a('s_add_u32 s11, s11, %d' % (self.KV_LDS + 2048))
        a('v_and_b32 v8, 31, v0')
        a('v_lshlrev_b32 v8, 4, v8')
        a('v_add_u32 v8, s11, v8')
        a('v_lshrrev_b32 v9, 5, v0')
        a('v_lshl_add_u32 v9, v9, 12, v8')
        a('v_mov_b32 v10, 0x3f80')
        a('v_mov_b32 v11, 0')
        a('s_lshl_b32 s11, %s, 12' % sW)
        a('s_add_u32 s11, s11, %d' % self.KV_LDS)
        a('v_add_u32 v12, s11, %s' % vL16)
        a('v_and_b32 v2, 1, v0')
        a('v_bfe_u32 v3, v0, 4, 1')
        a('v_lshrrev_b32 v13, 5, v0')
        a('v_xor_b32 v13, v13, v2')
        a('v_lshlrev_b32 v13, 6, v13')
        a('v_lshl_add_u32 v13, v3, 7, v13')
        a('v_lshl_add_u32 v13, v2, 9, v13')
        a('v_lshl_add_u32 v13, v3, 10, v13')
        a('v_bfe_u32 v2, v0, 2, 2')
        a('v_lshl_add_u32 v13, v2, 4, v13')
        a('v_bfe_u32 v2, v0, 1, 1')
        a('v_lshl_add_u32 v13, v2, 3, v13')
        a('v_xor_b32 v14, 128, v13')
        a('s_add_u32 s11, s11, 2048')
        a('v_add_u32 v13, s11, v13')
        a('v_add_u32 v14, s11, v14')

    def k_issue(self):
        a = self.a
        for k in range(3):
            a('s_add_u32 m0, s17, %d' % (self.KV_LDS + k * 4096))
            for t in range(2):
                a('buffer_load_dwordx4 %s, %s, s%d offen offset:%d sc1 lds' % (vL16, SRD_WS, 29 + k, t * 1024), tok='k')

    def q_issue(self):
        for t in range(2):
            self.a('buffer_load_dwordx4 %s, %s, %s, s19 offen offset:%d sc1' % (vr(232 + 4 * t), vL16, SRD_WS, t * 1024))

    def v_issue(self):
        a = self.a
        for k in range(3):
            a('s_add_u32 m0, s17, %d' % (self.KV_LDS + k * 4096 + 2048))
            a('s_add_u32 s13, s%d, %d' % (29 + k, 56 * 512))
            for t in range(2):
                a('buffer_load_dwordx4 v%d, %s, s13 offen offset:%d sc1 lds' % (4 + t, SRD_WS, t * 1024), tok='v')

    def p2(self):
        a = self.a
        S, KF, Q, VF, P, O, M = 16, 160, 232, 176, 192, 208, 224
        rpl = self.opt.get('rpl', 3)
        ve = self.opt.get('ve', 0)
        if ve:
            self.poll(self.kflags(2))
            self.v_issue()
            if self.opt.get('ro', 1) == 4:
                self.emit(self.rp_load()[1])
        a('v_and_b32 v%d, v%d, v6' % (Q, Q))
        a('v_and_b32 v%d, v%d, v6' % (Q + 1, Q + 1))
        a('v_and_b32 v%d, v%d, v7' % (Q + 6, Q + 6))
        a('v_and_b32 v%d, v%d, v7' % (Q + 7, Q + 7))
        a.wait_tok('k')
        a('s_barrier')
        self.stamp(8)
        order = [0, 8, 1, 2, 3, 4, 5, 6, 7]
        KB = [KF, KF + 8, VF, VF + 8]
        MX = 216

        def kread(i):
            return ['ds_read_b128 %s, v12 offset:%d' % (vr(KB[i % 4] + h * 4), order[i] * 4096 + h * 1024) for h in range(2)]

        def smm(i):
            t = order[i]
            return ['%s %s, %s, %s, %s' % (MFMA, vr(S + 16 * t, 16), vr(KB[i % 4] + h * 4), vr(Q + 4 * h),
                                           vr(S + 16 * t, 16) if h else '0') for h in range(2)]

        def fill(t):
            lab = self.label('fill')
            self.cold += [lab + ':', 's_nop 15'] + ['v_mov_b32 v%d, 0xff800000' % (S + 16 * t + r) for r in range(16)] + ['s_branch %s_r' % lab]
            return ['s_cmp_lt_u32 s24, %d' % (8 - t), 's_cbranch_scc1 %s' % lab, lab + '_r:']

        def mx(t):
            m3 = ['v_max3_f32 v%d, v%d, v%d, v%d' % (MX + k % 4, MX + k % 4, S + 2 * k, S + 2 * k + 1) for k in range(8 * t, 8 * t + 8)]
            if t == 0:
                o = fill(0)
                o += ['v_cndmask_b32 v%d, v%d, v%d, s[%d:%d]' % (S + r, S + r, S + 128 + r, MASK0 + 2 * r, MASK0 + 2 * r + 1) for r in range(16)]
                o += ['v_max_f32 v%d, v%d, v%d' % (MX + k, S + 2 * k, S + 2 * k + 1) for k in range(4)] + m3[4:]
                return o[:15], o[15:]
            la, lb = self.label('mxa'), self.label('mxb')
            c = 's_cmp_lt_u32 s24, %d' % (8 - t)
            return ([c, 's_cbranch_scc1 %s' % la, Pseudo('begin', la)] + m3[:4] + [Pseudo('end'), la + ':'],
                    ['s_cbranch_scc1 %s' % lb, Pseudo('begin', lb)] + m3[4:] + [Pseudo('end'), lb + ':'])

        def fill_rest():
            lab = self.label('fillr')
            o = [lab + ':', 's_nop 15']
            for t in range(1, 8):
                if t > 1:
                    o += ['s_cmp_lt_u32 s24, %d' % (8 - t), 's_cbranch_scc0 %s_r' % lab]
                o += ['v_mov_b32 v%d, 0xff800000' % (S + 16 * t + r) for r in range(16)]
            self.cold += o + ['s_branch %s_r' % lab]
            return ['s_cmp_lt_u32 s24, 7', 's_cbranch_scc1 %s' % lab, lab + '_r:']
        wo = self.wo_rest
        self.emit(kread(0) + kread(1) + kread(2))
        for i in range(9):
            m0_, m1_ = smm(i)
            va, vb = mx(i - 4) if i >= 4 else ([], [])
            sl_ = [wo.pop(0)] if (wo and i < self.opt.get('sw', 0)) else []
            self.emit([m0_] + (kread(i + 3) if i + 3 < 9 else []) + sl_ + va + [m1_] + vb)
        if self.opt.get('ro', 1) == 2:
            self.emit(self.rp_load()[1])
        if ve:
            self.p4_wsetup()
            fg, fd = self.fg_items()
            self.emit(self.poll_loads(fd))
        else:
            self.emit(self.poll_loads(self.kflags(2)))
        for t in range(5, 8):
            self.emit(list(mx(t)))
        self.emit(fill_rest())
        CC = S + 128
        a('v_max3_f32 v%d, v%d, v%d, v%d' % (MX, MX, MX + 1, MX + 2))
        a('v_max_f32 v%d, v%d, v%d' % (MX, MX, MX + 3))
        a('v_mov_b32 v%d, v%d' % (MX + 1, MX))
        c = 28 ** -0.5 * 1.4426950408889634
        a('v_mov_b32 v%d, %s' % (CC + 2, f32(c)))
        a('v_permlane32_swap_b32 v%d, v%d' % (MX, MX + 1))
        a('v_max_f32 v%d, v%d, v%d' % (MX, MX, MX + 1))
        a('v_mul_f32 v%d, %s, v%d' % (CC + 4, f32(-c), MX))
        self.stamp(9)
        VA = 184

        def vread(t):
            return ['ds_read_b64_tr_b16 %s, v%d offset:%d' % (ar(VA + t * 8 + k * 4 + z * 2, 2), 13 + z, t * 4096 + k * 256)
                    for k in range(2) for z in range(2)]

        def pkf(t):
            b = S + 16 * t
            return ['v_pk_fma_f32 %s, %s, %s, %s op_sel_hi:[1,0,0]' % (vr(b + 2 * p, 2), vr(b + 2 * p, 2), vr(CC + 2, 2), vr(CC + 4, 2))
                    for p in range(8)]

        def exps(t):
            return ['v_exp_f32 v%d, v%d' % (S + 16 * t + r, S + 16 * t + r) for r in range(16)]

        def cvt(t, pb):
            b = S + 16 * t
            return ['v_cvt_pk_bf16_f32 v%d, v%d, v%d' % (pb + p, b + 2 * p, b + 2 * p + 1) for p in range(8)]
        first = [True]

        def pv(t, pb):
            o = []
            for k in range(2):
                o.append('%s %s, %s, %s, %s' % (MFMA, vr(O, 16), ar(VA + t * 8 + k * 4), vr(pb + 4 * k), '0' if first[0] else vr(O, 16)))
                first[0] = False
            return o
        PB = lambda t: P if t == 0 else S + 16 * t
        vr_all = [x for t in order for x in vread(t)]
        vc, vb = self.opt.get('vc', 0), self.opt.get('vb', 3)
        nb = self.opt.get('nb', 4)
        assert vb >= 2
        pvq = [(0, P), (8, P + 8)] + [(t, PB(t)) for t in range(1, 8)]
        self.emit(pkf(0))
        for t in range(8):
            if ve and t == 0:
                self.poll_check(fd)
                self.emit(self.prewrite('B', 208))
            if t == vc and not ve:
                self.poll_check(self.kflags(2))
                self.v_issue()
                if self.opt.get('ro', 1) == 3:
                    self.emit(self.rp_load()[1])
                self.p4_wsetup()
                fg, fd = self.fg_items()
                self.emit(self.poll_loads(fd))
                if self.opt.get('pb', 0) == 1:
                    self.emit(self.prewrite('B', 208))
                if self.opt.get('pd', 0):
                    self.emit(self.prewrite_data(M))
                self.stamp(41)
            if t == vc + 2 and not ve:
                self.poll_check(fd)
            side = []
            if t >= 1:
                side += cvt(t - 1, PB(t - 1))
                if t == 1:
                    for p in range(8):
                        side.append('v_and_b32 v%d, v%d, v%d' % (P + 8 + p, P + p, M + p))
                        side.append('v_bfi_b32 v%d, v%d, 0, v%d' % (P + p, M + p, P + p))
            if t == vb:
                a.wait_tok('v')
                a.wait_tok('rp')
                a('ds_write_b64 v9, v[10:11]')
                a('ds_write_b64 v8, v[10:11] offset:8192')
                a('s_waitcnt lgkmcnt(0)')
                a('s_barrier')
                self.stamp(45)
            if vb <= t < vb + 3:
                side = vr_all[12 * (t - vb):12 * (t - vb) + 12] + side
            pk_ = pkf(t + 1) if t < 7 else []
            mm = []
            if t > vb:
                for _ in range(self.opt.get('npv', 2)):
                    if pvq and pvq[0][0] % 8 < t:
                        mm += pv(*pvq.pop(0))
            ex = exps(t)
            blk = []
            pre = pk_ + side
            n1_ = 16 - 3 * len(mm) if mm else 16
            for r in range(n1_):
                blk.append(ex[r])
                blk += pre[len(pre) * r // n1_:len(pre) * (r + 1) // n1_]
            for k, m_ in enumerate(mm):
                blk += [m_] + ex[n1_ + 3 * k:n1_ + 3 * k + 3]
            if t == vb and self.opt.get('ro', 1) != 3:
                blk = [x for x in self.capture(self.rp_frag)] + blk
                st_ = self.capture(self.rp_store)
                mm_ = self.capture(self.rp_mm)
                blk = sprinkle(blk, [[mm_[u], st_[u]] for u in range(4)], 0.7, 1.0)
            if t == vb + 1 and self.opt.get('ro', 1) != 3:
                blk = blk[:12] + [st_[4:]] + blk[12:]
            src = wo if wo else (self.wd if (ve or t >= vc + 2) else [])
            take_ = src[:nb] if vc <= t < self.opt.get('tb', 7) else []
            del src[:len(take_)]
            self.emit(sprinkle(blk, take_, 0.1, 0.95))
            if self.opt.get('bs'):
                self.stamp(50 + t)
        self.fg = fg
        assert not wo
        last = cvt(7, PB(7))
        rest = [m_ for x in pvq for m_ in pv(*x)]
        self.emit(sprinkle(last, [[m_] for m_ in rest[:-2]], 0.0, 1.0) + rest[-2:])
        a.wait_tok('wo')
        a.wait_tok('rp')
        a('s_barrier')
        if self.opt.get('ro', 1) == 3:
            self.rp_frag()
        self.stamp(10)
        a('v_cndmask_b32 v2, v%d, v%d, s[26:27]' % (O + 12, O))
        a('v_mov_b32 v3, v2')
        a('v_permlane32_swap_b32 v2, v3')
        a('v_cndmask_b32 v2, v3, v2, s[26:27]')
        a('v_rcp_f32 v2, v2')
        a('s_lshl_b32 s16, %s, 2' % sR)
        a('s_add_u32 s16, s16, %s' % sW)
        a('s_lshl_b32 s16, s16, 4')
        a('s_add_u32 s16, s16, %s' % sHD)
        a('s_lshl_b32 s11, s16, 11')
        a('s_add_u32 s11, s11, %d' % WS_O)
        for p in range(8):
            a('v_pk_mul_f32 %s, %s, v[2:3] op_sel_hi:[1,0]' % (vr(O + 2 * p, 2), vr(O + 2 * p, 2)))
        for p in range(8):
            a('v_cvt_pk_bf16_f32 v%d, v%d, v%d' % (P + p, O + 2 * p, O + 2 * p + 1))
        a('v_and_b32 v%d, v%d, v6' % (P, P))
        a('v_and_b32 v%d, v%d, v6' % (P + 1, P + 1))
        a('v_and_b32 v%d, v%d, v7' % (P + 6, P + 6))
        a('v_and_b32 v%d, v%d, v7' % (P + 7, P + 7))
        for t in range(2):
            a('buffer_store_dwordx4 %s, %s, %s, s11 offen offset:%d sc1' % (vr(P + 4 * t), vL16, SRD_WS, t * 1024), tok='o')

    WO_A = 112
    HRES = 240

    WO_LDS = 0

    def wo_bulk(self):
        g0 = ['s_lshl_b32 %s, %s, 14' % (sBK2, sW), 's_lshl_b32 %s, %s, 16' % (sBK, sN), 's_add_u32 %s, %s, %s' % (sBK, sBK, sBK2),
              's_add_u32 %s, %s, %d' % (sBK, sBK, WS_WO), 's_cmp_ge_u32 %s, 7' % sN, 's_cselect_b32 %s, %d, %s' % (sBK, OOB, sBK)]
        out = []
        for i in range(16):
            g = list(g0) if i == 0 else (['s_add_u32 %s, %s, 4096' % (sBK, sBK)] if i % 4 == 0 else [])
            if i % 4 == 0:
                g.append('s_add_u32 m0, %s, %d' % (sBK2, self.WO_LDS + i * 1024))
            out.append(g + [('buffer_load_dwordx4 %s, %s, %s offen offset:%d sc1 lds' % (vL16, SRD_WS, sBK, (i % 4) * 1024), 'wo')])
        return out

    def wo_read(self):
        a = self.a
        a('s_lshr_b32 s11, %s, 1' % sW)
        a('s_lshl_b32 s11, s11, 15')
        a('s_add_u32 s11, s11, %d' % self.WO_LDS)
        a('v_add_u32 v2, s11, %s' % vXA)
        a('v_add_u32 v3, s11, %s' % vXB)
        for f in range(16):
            for rel in range(2):
                a('ds_read_b128 %s, v%d offset:%d' % (vr(self.WO_A + (f * 2 + rel) * 4), 2 + rel, f * 2048))

    def wd_bulk(self):
        g0 = ['s_mul_i32 %s, %s, %d' % (sBK, sN, 112 * 2048), 's_mul_i32 %s, %s, %d' % (sBK2, sW, 28 * 2048),
              's_add_u32 %s, %s, %s' % (sBK, sBK, sBK2), 's_add_u32 %s, %s, %d' % (sBK, sBK, WS_WD),
              's_cmp_ge_u32 %s, 7' % sN, 's_cselect_b32 %s, %d, %s' % (sBK, OOB, sBK)]
        out = []
        cur = 0
        for slot in range(28):
            f = (slot % 4) * 7 + slot // 4
            for rel in range(2):
                g = list(g0) if (slot == 0 and rel == 0) else []
                if rel == 0 and f != cur:
                    d = (f - cur) * 2048
                    g.append('s_add_u32 %s, %s, %d' % (sBK, sBK, d) if d > 0 else 's_sub_u32 %s, %s, %d' % (sBK, sBK, -d))
                    cur = f
                out.append(g + ['buffer_load_dwordx4 %s, %s, %s, %s offen sc1' % (
                    ar((slot * 2 + rel) * 4), (vXA, vXB)[rel], SRD_WS, sBK)])
        return out

    def gu_bulk(self, tile):
        o = []
        for i in range(7):
            g = []
            if i % 4 == 0:
                g = ['s_add_u32 m0, s31, %d' % ((tile % 5) * SLOT + i * 1024),
                     's_add_u32 %s, s30, %d' % (sBK2, tile * 28672 + i * 1024)]
            o.append(g + [('buffer_load_dwordx4 %s, %s, %s offen offset:%d sc1 lds' % (vL16, SRD_WS, sBK2, (i % 4) * 1024), 'g%d' % tile)])
        return o

    def warm(self):
        return ['s_lshr_b32 s11, s2, 3', 's_and_b32 s11, s11, 3', 's_lshl_b32 s11, s11, 7',
                'v_lshlrev_b32 v15, 9, v0',
                's_mul_i32 s12, %s, %d' % (sJ, 7 * 28672), 's_lshl_b32 s13, %s, 15' % sW, 's_add_u32 s12, s12, s13',
                's_add_u32 s12, s12, s11', 's_add_u32 s12, s12, %d' % WS_WGU,
                'buffer_load_dword v2, v15, %s, s12 offen' % SRD_WS]

    def p4_wsetup(self):
        a = self.a
        a('s_mul_i32 s31, %s, 7168' % sW)
        a('s_mul_i32 s30, %s, %d' % (sJ, 7 * 28672))
        a('s_add_u32 s30, s30, s31')
        a('s_add_u32 s30, s30, %d' % WS_WGU)

    def seq_loads(self, dst, n, sreg):
        o = []
        for i in range(n):
            if i and i % 4 == 0:
                o.append('s_add_u32 %s, %s, 4096' % (sreg, sreg))
            o.append('buffer_load_dwordx4 %s, %s, %s, %s offen offset:%d sc1' % (
                vr(dst + 4 * i), vL16, SRD_WS, sreg, (i % 4) * 1024))
        return o

    def res_voffset(self, dst, sreg):
        a = self.a
        a('v_and_b32 %s, 31, v0' % dst)
        a('v_mul_u32_u24 %s, 896, %s' % (dst, dst))
        a('v_lshrrev_b32 v2, 5, v0')
        a('v_lshl_add_u32 %s, v2, 4, %s' % (dst, dst))
        a('s_lshl_b32 %s, %s, 1' % (sreg, sM))
        a('s_and_b32 s12, %s, 1' % sW)
        a('s_add_u32 %s, %s, s12' % (sreg, sreg))
        a('s_mul_i32 %s, %s, %d' % (sreg, sreg, 32 * 896))
        a('s_lshl_b32 s12, %s, 7' % sN)
        a('s_add_u32 %s, %s, s12' % (sreg, sreg))
        a('s_lshr_b32 s12, %s, 1' % sW)
        a('s_lshl_b32 s12, s12, 6')
        a('s_add_u32 %s, %s, s12' % (sreg, sreg))

    def unpack8(self, dst, src):
        for p in range(8):
            self.a('v_lshlrev_b32 v%d, 16, v%d' % (dst + 2 * p, src + p))
            self.a('v_and_b32 v%d, 0xffff0000, v%d' % (dst + 2 * p + 1, src + p))

    P3_ACC, P3_OF = 16, 48

    def p3_setup(self):
        a = self.a
        EX = XTRA + 1024
        self.unpack8(self.P3_ACC, self.HRES)
        a('s_lshl_b32 s13, %s, 1' % sM)
        a('s_and_b32 s12, %s, 1' % sW)
        a('s_add_u32 s13, s13, s12')
        a('s_lshr_b32 s12, %s, 1' % sW)
        a('s_lshl_b32 s18, s13, 1')
        a('s_add_u32 s18, s18, s12')
        a('s_lshl_b32 s20, s18, %d' % (FSH + 3))
        a('s_add_u32 s20, s20, %d' % (WS_FL + FL_F2 * FS))
        a('s_lshl_b32 s18, s18, 14')
        a('s_add_u32 s18, s18, %d' % WS_O)
        a('s_xor_b32 s11, %s, 2' % sW)
        a('s_lshl_b32 s11, s11, 12')
        a('s_add_u32 s11, s11, %d' % EX)
        a('v_add_u32 v4, s11, %s' % vL16)
        a('s_lshl_b32 s11, %s, 12' % sW)
        a('s_add_u32 s11, s11, %d' % EX)
        a('v_add_u32 v5, s11, %s' % vL16)
        a('s_lshl_b32 s14, %s, 1' % sN)
        a('s_add_u32 s14, s14, s12')
        a('s_mul_i32 s19, s13, 28672')
        a('s_lshl_b32 s12, s14, 11')
        a('s_add_u32 s19, s19, s12')
        a('s_add_u32 s19, s19, %d' % WS_HB)
        a('s_lshl_b32 s17, s13, 4')
        a('s_add_u32 s17, s17, s14')
        a('s_lshl_b32 s29, s17, 8')
        a('s_add_u32 s29, s29, %d' % WS_ST)
        a('v_mov_b32 v6, 0x3f803f80')
        a('v_lshlrev_b32 v7, 3, v0')

    def p3(self, early):
        a = self.a
        ACC, OF = self.P3_ACC, self.P3_OF
        self.poll([('s20', k) for k in range(8)])
        self.stamp(12)
        self.emit(self.seq_loads(OF, 16, 's18'))
        early = list(early)
        fc = self.opt.get('fc', 4)
        if early:
            self.emit(self.poll_loads(self.fg))
        for f in range(16):
            if early and f == fc:
                self.poll_check(self.fg)
            if early and f >= fc:
                n_ = -(-len(early) // (16 - f))
                self.emit(early[:n_])
                del early[:n_]
            for rel in (1, 0):
                a('%s %s, %s, %s, %s' % (MFMA, vr(ACC + 16 * rel, 16), vr(self.WO_A + (f * 2 + rel) * 4), vr(OF + 4 * f),
                                         '0' if (rel == 1 and f == 0) else vr(ACC + 16 * rel, 16)))
        self.stamp(13)
        for k in range(4):
            a('ds_write_b128 v4, %s offset:%d' % (vr(ACC + 16 + 4 * k), k * 1024))
        a('s_waitcnt lgkmcnt(0)')
        a('s_barrier')
        for k in range(4):
            a('ds_read_b128 %s, v5 offset:%d' % (vr(OF + 4 * k), k * 1024))
        H = self.HRES
        for p in range(8):
            a('v_pk_add_f32 %s, %s, %s' % (vr(ACC + 2 * p, 2), vr(ACC + 2 * p, 2), vr(OF + 2 * p, 2)))
            a('v_cvt_pk_bf16_f32 v%d, v%d, v%d' % (H + p, ACC + 2 * p, ACC + 2 * p + 1))
            if p % 4 == 3:
                a('buffer_store_dwordx4 %s, %s, %s, s19 offen offset:%d sc1' % (vr(H + p - 3), vL16, SRD_WS, (p // 4) * 1024), tok='h')
        for p in range(8):
            a('v_dot2_f32_bf16 v8, v%d, v6, %s' % (H + p, 'v8' if p else '0'))
            a('v_dot2_f32_bf16 v9, v%d, v%d, %s' % (H + p, H + p, 'v9' if p else '0'))
        a('v_mov_b32 v10, v8')
        a('v_mov_b32 v11, v9')
        a('v_permlane32_swap_b32 v8, v10')
        a('v_permlane32_swap_b32 v9, v11')
        a('v_add_f32 v8, v8, v10')
        a('v_add_f32 v9, v9, v11')
        a('s_mov_b32 exec_hi, 0')
        a('buffer_store_dwordx2 v[8:9], v7, %s, s29 offen sc1' % SRD_WS, tok='h')
        a('s_mov_b64 exec, -1')

    def p4_cs_issue(self):
        a = self.a
        a('s_lshl_b32 s11, %s, 1' % sW)
        a('v_lshrrev_b32 v112, 5, v0')
        a('v_add_u32 v112, s11, v112')
        a('v_min_u32 v113, 6, v112')
        a('v_mul_u32_u24 v113, 896, v113')
        a('v_and_b32 v114, 31, v0')
        a('v_lshl_add_u32 v113, v114, 2, v113')
        a('s_mul_i32 s11, %s, %d' % (sJ, 7 * 896))
        a('s_add_u32 s11, s11, %d' % WS_CS)
        for k in range(7):
            a('buffer_load_dword v%d, v113, %s, s11 offen offset:%d sc1' % (116 + k, SRD_WS, 128 * k))
        a('v_lshlrev_b32 v112, 9, v112')
        a('v_lshl_add_u32 v112, v114, 4, v112')
        a('v_add_u32 v112, %d, v112' % self.CF_LDS)

    CF_LDS = XTRA

    def split_bf16(self, x, hi, lo):
        raise NotImplementedError

    def p4_cs_finish(self):
        a = self.a
        for k in range(1, 7):
            a('v_add_f32 v116, v116, v%d' % (116 + k))
        a('v_mov_b32 v122, 0')
        a('v_mov_b32 v123, 0')
        a('v_cvt_pk_bf16_f32 v121, v116, 0')
        a('v_lshlrev_b32 v117, 16, v121')
        a('v_sub_f32 v117, v116, v117')
        a('v_cvt_pk_bf16_f32 v120, v116, v117')
        a('ds_write_b128 v112, v[120:123]')

    def fg_items(self):
        a = self.a
        a('s_mul_i32 s23, %s, 7' % sJ)
        a('s_lshr_b32 s23, s23, 2')
        a('s_min_u32 s23, s23, 25')
        a('s_mul_i32 s23, s23, 7')
        a('s_mul_i32 s11, %s, 7' % sW)
        a('s_lshr_b32 s11, s11, 2')
        a('s_min_u32 s11, s11, 4')
        a('s_add_u32 s23, s23, s11')
        a('s_lshl_b32 s23, s23, %d' % FSH)
        a('s_add_u32 s23, s23, %d' % (WS_FL + FL_FG * FS))
        a('s_mul_i32 s22, %s, %d' % (sW, 7 * FS))
        a('s_add_u32 s22, s22, %d' % (WS_FL + FL_FD * FS))
        return [('s23', 7 * g + k) for g in range(3) for k in range(3)], [('s22', k) for k in range(7)]

    def p4_setup(self):
        a = self.a
        a('s_lshl_b32 s13, %s, 2' % sR4)
        a('s_add_u32 s13, s13, %s' % sW)
        a('s_mul_i32 s18, s13, 28672')
        a('s_add_u32 s18, s18, %d' % WS_HB)
        a('s_lshl_b32 s20, s13, %d' % (FSH + 6))
        a('s_add_u32 s20, s20, %d' % (WS_FL + FL_F3 * FS))
        a('v_and_b32 v2, 31, v0')
        a('v_lshlrev_b32 v2, 3, v2')
        a('v_lshrrev_b32 v3, 5, v0')
        a('v_mul_u32_u24 v4, %d, v3' % (7 * 256))
        a('v_add_u32 v14, v2, v4')
        a('s_lshl_b32 s19, s13, 12')
        a('s_add_u32 s19, s19, %d' % WS_ST)
        a('v_add_u32 v5, %d, %s' % (2 * SLOT, vL16))
        a('v_add_u32 v6, %d, %s' % (4 * SLOT, vL16))
        a('v_and_b32 v7, 0x1f0, %s' % vL16)
        a('v_add_u32 v7, %d, v7' % self.CF_LDS)
        a('s_mul_i32 s29, s13, %d' % (112 * 1024))
        a('s_mul_i32 s12, %s, %d' % (sJ, 7 * 1024))
        a('s_add_u32 s29, s29, s12')
        a('s_add_u32 s29, s29, %d' % WS_HH)
        a('s_add_u32 s28, s29, 4096')
        a('s_lshl_b32 s27, s13, 4')
        a('s_add_u32 s27, s27, %s' % sJ)

    def f1_set(self, part):
        return ['s_mov_b64 exec, 0xffff',
                'buffer_store_dwordx4 %s, %s, %s, s16 offen offset:%d sc1' % (vr(vFL), vL16, SRD_WS, part * FS),
                's_mov_b64 exec, -1']

    def f4_set(self, stage):
        return ['s_mov_b32 s11, s27'] + self.flag_set('s11', FL_F4 + stage, 2)

    def p4(self, wd_rest):
        a = self.a
        T0 = self.opt['T0']
        HF, ACC, WF, CSR, TM, PK = 16, 128, 192, 208, 224, 232
        NACC = 5
        MB = CSR
        self.poll([('s20', 4 * k) for k in range(14)])
        self.stamp(16)
        hl = self.seq_loads(HF, 28, 's18')
        for k in range(7):
            hl.append('buffer_load_dwordx2 %s, v14, %s, s19 offen offset:%d sc1' % (vr(CSR + 2 * k, 2), SRD_WS, 256 * k))
        base = [vL16, 'v5', 'v6']
        cnt = [0]

        def wread(tile, k):
            s = tile % 5
            b = 224 + (cnt[0] % 8) * 4
            cnt[0] += 1
            if k == 28:
                return b, ('ds_read_b128 %s, v7 offset:%d' % (ar(b), tile * 512), 'wr%d' % cnt[0])
            return b, ('ds_read_b128 %s, %s offset:%d' % (ar(b), base[s >> 1], (s & 1) * SLOT + k * 1024), 'wr%d' % cnt[0])

        C1 = -2.0 * 1.4426950408889634 * 0.7978845608028654
        st = []
        for k in range(1, 7):
            st.append('v_add_f32 v%d, v%d, v%d' % (CSR, CSR, CSR + 2 * k))
            st.append('v_add_f32 v%d, v%d, v%d' % (CSR + 1, CSR + 1, CSR + 2 * k + 1))
        st += ['v_mov_b32 v12, v%d' % CSR, 'v_mov_b32 v13, v%d' % (CSR + 1),
               'v_permlane32_swap_b32 v%d, v12' % CSR, 'v_permlane32_swap_b32 v%d, v13' % (CSR + 1),
               'v_add_f32 v12, v12, v%d' % CSR, 'v_add_f32 v13, v13, v%d' % (CSR + 1),
               'v_mul_f32 v8, %s, v12' % f32(-1.0 / 448), 'v_mul_f32 v13, %s, v13' % f32(1.0 / 448),
               'v_fma_f32 v13, -v8, v8, v13', 'v_max_f32 v13, 0, v13', 'v_add_f32 v11, %s, v13' % f32(1e-5),
               'v_rsq_f32 v12, v11', 'v_mul_f32 v9, %s, v12' % f32(C1), 'v_mul_f32 v13, v12, v12',
               'v_mul_f32 v10, v9, v13', 'v_mul_f32 v10, %s, v10' % f32(0.044715),
               's_mov_b32 s12, -1', 's_mov_b32 s13, 0', 'v_cndmask_b32 v8, 0, v8, s[12:13]',
               'v_mov_b32 v%d, 0' % (MB + 2), 'v_mov_b32 v%d, 0' % (MB + 3),
               'v_cvt_pk_bf16_f32 v%d, v8, v8' % MB, 'v_lshlrev_b32 v12, 16, v%d' % MB,
               'v_sub_f32 v12, v8, v12', 'v_cvt_pk_bf16_f32 v%d, v12, 0' % (MB + 1)]

        def csread(tile):
            return ['ds_read_b128 %s, v7 offset:%d' % (vr(CSR + 4 * k), tile * 128 + 32 * k) for k in range(4)]

        def gelu(tile):
            b = ACC + 16 * (tile % NACC)
            pk = PK + (tile % 2) * 4
            o = []
            E = range(8)
            o += ['v_mul_f32 v%d, v%d, v%d' % (TM + e, b + e, b + e) for e in E]
            o += ['v_fma_f32 v%d, v%d, v10, v9' % (TM + e, TM + e) for e in E]
            o += ['v_mul_f32 v%d, v%d, v%d' % (TM + e, TM + e, b + e) for e in E]
            for e in E:
                o.append('v_exp_f32 v%d, v%d' % (TM + e, TM + e))
                o.append('v_mul_f32 v%d, v%d, v%d' % (b + e, b + e, b + 8 + e))
            for e in range(11):
                if e < 8:
                    o.append('v_fma_f32 v%d, v%d, v11, v11' % (TM + e, TM + e))
                if e >= 3:
                    o.append('v_rcp_f32 v%d, v%d' % (TM + e - 3, TM + e - 3))
            o += ['v_mul_f32 v%d, v%d, v%d' % (b + e, b + e, TM + e) for e in E]
            o += ['v_cvt_pk_bf16_f32 v%d, v%d, v%d' % (pk + p, b + 2 * p, b + 2 * p + 1) for p in range(4)]
            o.append(('buffer_store_dwordx4 %s, %s, %s, s%d offen offset:%d sc1' % (
                vr(pk), vL16, SRD_WS, 29 if tile < 4 else 28, (tile % 4) * 1024), 'hh%d' % tile))
            return o

        def gelu_pk(tile, csr):
            b = ACC + 16 * (tile % NACC)
            pk = PK + (tile % 2) * 4
            P2 = lambda r: vr(r, 2)
            o = []
            E = (0, 2, 4, 6)
            o += ['v_pk_mul_f32 %s, %s, %s' % (P2(csr + e), P2(b + e), P2(b + e)) for e in E]
            o += ['v_pk_fma_f32 %s, %s, v[10:11], v[8:9] op_sel:[0,0,1] op_sel_hi:[1,0,1]' % (P2(csr + e), P2(csr + e)) for e in E]
            o += ['v_pk_mul_f32 %s, %s, %s' % (P2(csr + e), P2(csr + e), P2(b + e)) for e in E]
            for e in E:
                o += ['v_exp_f32 v%d, v%d' % (csr + e, csr + e), 'v_exp_f32 v%d, v%d' % (csr + e + 1, csr + e + 1)]
            o += ['v_pk_fma_f32 %s, %s, v[10:11], v[10:11] op_sel:[0,1,1] op_sel_hi:[1,1,1]' % (P2(csr + e), P2(csr + e)) for e in E]
            for e in E:
                o += ['v_rcp_f32 v%d, v%d' % (csr + e, csr + e),
                      'v_pk_mul_f32 %s, %s, %s' % (P2(b + e), P2(b + e), P2(b + 8 + e)),
                      'v_rcp_f32 v%d, v%d' % (csr + e + 1, csr + e + 1)]
            o += ['v_pk_mul_f32 %s, %s, %s' % (P2(b + e), P2(b + e), P2(csr + e)) for e in E]
            o += ['v_cvt_pk_bf16_f32 v%d, v%d, v%d' % (pk + e // 2, b + e, b + e + 1) for e in E]
            o.append(('buffer_store_dwordx4 %s, %s, %s, s%d offen offset:%d sc1' % (
                vr(pk), vL16, SRD_WS, 29 if tile < 4 else 28, (tile % 4) * 1024), 'hh%d' % tile))
            return o
        nup = 15
        self.emit(hl[:nup])
        for t in range(3):
            a.wait_tok('g%d' % t)
        a('s_waitcnt lgkmcnt(0)')
        a('s_barrier')
        self.stamp(40)
        k3 = self.opt.get('k3', 4)
        seq = []
        done3 = 0
        for k in range(28):
            seq += [(t, k) for t in range(3)]
            if k >= k3:
                tgt = 28 * (k - k3 + 1) // (28 - k3)
                seq += [(3, kk) for kk in range(done3, tgt)]
                assert tgt <= k + 1
                done3 = tgt
        seq += [(t, 28) for t in range(4)]
        seq += [(t, k) for t in range(4, 7) for k in range(29)]
        rd = [wread(t, k) for t, k in seq]
        D, WE = 7, self.opt.get('we', 2)
        presync = {(t, 0): [Pseudo('wait_tok', 'g%d' % t)] + (['s_waitcnt lgkmcnt(0)'] if t == 4 else []) + ['s_barrier'] for t in range(3, 7)}
        self.emit([rd[i][1] for i in range(D)])
        gaps = []
        for i, (t, k) in enumerate(seq):
            acc = vr(ACC + 16 * (t % NACC), 16)
            g = ['%s %s, %s, %s, %s' % (MFMA, acc, ar(rd[i][0]), vr(HF + 4 * k if k < 28 else MB), acc if k else '0')]
            if i + D < len(seq):
                g.append([presync.get(seq[i + D], []), rd[i + D][1]])
            else:
                g.append([])
            if (i + 1) % WE == 0 and i + WE < len(seq):
                g.append(Pseudo('wait_tok', rd[i + WE][1][1]))
            gaps.append(g)
        n1 = 116
        isg = lambda g, t: isinstance(g[-1], tuple) and g[-1][1] == 'g%d' % t
        g3 = [g for g in wd_rest if isg(g, 3)]
        g4 = [g for g in wd_rest if isg(g, 4)]
        wdr = wd_rest[len(g3) + len(g4):]
        nw1 = self.opt.get('nw1', 2)
        hg = []
        for x in hl[nup:]:
            if hg and isinstance(hg[-1][-1], str) and hg[-1][-1].startswith('s_add'):
                hg[-1].append(x)
            else:
                hg.append([x])
        side = g3 + hg + g4 + wdr[:nw1]
        w1 = gaps[:n1]
        sp = self.opt.get('sp', 2)
        for i, x in enumerate(side):
            p_ = i * sp if i >= len(g3) else i
            p_ -= len(g3) * (sp - 1) if i >= len(g3) else 0
            w1[p_] = w1[p_][:2] + [x] + w1[p_][2:]
        assert p_ < n1 - D - 8
        m_ = n1 - 44
        self.emit(w1[:m_])
        self.emit(cweave(w1[m_:n1 - 6], st) + w1[n1 - 6:])
        self.stamp(17)
        bulk = self.gu_bulk(5) + self.gu_bulk(6) + wdr[nw1:]
        l6 = self.opt.get('l6', 6)
        share = [(len(bulk) - l6 + 1) // 2] * 2 + [l6]
        assert share[0] >= 12
        gw = [int(c) for c in str(self.opt.get('gw', 222))]
        self.stg = stg = [int(c) for c in str(self.opt.get('stg', 247))]
        nx, pub = 0, 0
        for t in range(4, 7):
            n = share[t - 4]
            assert nx >= t - 4 and nx + gw[t - 4] <= t
            gl = [x for q in range(nx, nx + gw[t - 4]) for x in gelu(q)]
            if pub < len(stg) and stg[pub] <= nx:
                c_ = len(gl) * self.opt.get('fpos', 50) // 100
                gl = gl[:c_] + [[Pseudo('wait_tok', 'hh%d' % (stg[pub] - 1))] + self.f4_set(pub)] + gl[c_:]
                pub += 1
            nx += gw[t - 4]
            side = sprinkle(gl, bulk[:n], 0.0, 0.9 if t < 6 else 0.5)
            bulk = bulk[n:]
            if t == 6:
                side = side[:20] + self.p5_setup() + side[20:]
            gp = gaps[29 * t:29 * t + 29]
            if t == 6 and self.opt.get('ep', 1):
                q_ = 29 - D + 2
                gp[q_] = gp[q_][:2] + [['s_waitcnt lgkmcnt(0)'] + self.poll_loads(self.f4_items(0))]
                for q2 in range(q_ + 1, 29):
                    gp[q2] = gp[q2][:2]
            self.emit(cweave(gp, side, skip=1))
            self.stamp(15 + t)
        assert not bulk
        self.tail = [(q, gelu_pk(q, TM)) for q in range(nx, 7)]
        self.pub = pub

    def f4_items(self, st):
        return [('s20', (r * 16 + jj) * 4 + st) for r in range(2) for jj in range(4)]

    def p5_setup(self):
        o = []
        a = o.append
        a('s_and_b32 s13, %s, 1' % sW)
        a('s_lshl_b32 s14, %s, 1' % sM)
        a('s_lshl_b32 s20, s14, %d' % (FSH + 6))
        a('s_lshl_b32 s15, %s, %d' % (sW, FSH + 4))
        a('s_add_u32 s20, s20, s15')
        a('s_add_u32 s20, s20, %d' % (WS_FL + FL_F4 * FS))
        a('s_add_u32 s13, s14, s13')
        a('s_xor_b32 s12, s13, 1')
        a('s_mul_i32 s14, %s, %d' % (sW, 28 * 1024))
        a('s_add_u32 s14, s14, %d' % WS_HH)
        for ra, r in enumerate(('s13', 's12')):
            a('s_mul_i32 %s, %s, %d' % (r, r, 112 * 1024))
            a('s_add_u32 s%d, %s, s14' % (68 + 8 * ra, r))
            for q in range(1, 7):
                a('s_add_u32 s%d, s%d, %d' % (68 + 8 * ra + q, 68 + 8 * ra, q * 4096))
        return o

    def p5(self):
        a = self.a
        ACC, HHF, NBUF = 128, 16, 24
        fl = lambda st: [('s20', (r * 16 + jj) * 4 + st) for r in range(2) for jj in range(4)]
        seq = [(jj * 7 + tau, ra) for tau in range(7) for jj in range(4) for ra in range(2)]
        ne = self.opt.get('ne', 16)
        seq = seq[:56 - ne] + [x for x in seq[56 - ne:] if x[1] == 1] + [x for x in seq[56 - ne:] if x[1] == 0]
        send = lambda rel: ['ds_write_b128 v%d, %s offset:%d' % (12 + rel, vr(ACC + 16 * rel + 4 * k), (rel - 1) * 4096 + k * 1024) for k in range(4)]
        early = send(1) + send(3) if ne >= 16 else []

        def load(i):
            f, ra = seq[i]
            return 'buffer_load_dwordx4 %s, %s, %s, s%d offen offset:%d sc1' % (
                vr(HHF + (i % NBUF) * 4), vL16, SRD_WS, 68 + 8 * ra + f // 4, (f % 4) * 1024)
        stg, pub = self.stg, self.pub
        rest_flags = lambda p: [x for q in range(p, len(stg)) for x in self.f4_set(q)]
        n6 = min(self.opt.get('n6', 10), 8 * stg[0])
        tail = [x for q, g in self.tail for x in g]
        if self.opt.get('ep', 1):
            a('s_waitcnt lgkmcnt(0)')
            for k in range(4):
                p = 's[%d:%d]' % (PT + 2 * k, PT + 2 * k + 1)
                a('s_xor_b64 %s, %s, %s' % (p, p, sEP2))
                if k:
                    a('s_or_b64 s[%d:%d], s[%d:%d], %s' % (PT, PT + 1, PT, PT + 1, p))
            a('s_cbranch_scc1 L_p5slow')
            self.emit(sprinkle(tail, [[load(i)] for i in range(n6)], 0.0, 0.9))
            a('L_p5join:')
            keep = self.a
            self.a = a2 = self.side
            a2('L_p5slow:')
            a2.fresh()
            a2('s_nop 15')
            self.emit(tail)
            a2('s_waitcnt vmcnt(0)')
            self.emit(rest_flags(pub))
            a2('s_add_u32 s20, s20, 128')
            self.emit(self.poll_loads(fl(0)))
            self.poll_check(fl(0), tries=1)
            a2('s_sub_u32 s20, s20, 128')
            self.emit([load(i) for i in range(n6)])
            a2('s_waitcnt vmcnt(0)')
            a2('s_branch L_p5join')
            self.a = keep
        else:
            self.emit(self.poll_loads(fl(0)))
            self.emit(tail)
            self.poll_check(fl(0), onfail=rest_flags(pub))
            self.emit([load(i) for i in range(n6)])
        self.stamp(22)
        self.unpack8(ACC, self.HRES)
        AHEAD = self.opt.get('ahead', 14)
        cur = min(AHEAD, 8 * stg[0])
        self.emit([load(i) for i in range(n6, cur)])
        self.stamp(23)
        misc = self.capture(self.res_voffset, 'v4', 's18')
        for rel in range(4):
            misc += ['s_xor_b32 s12, %s, %d' % (sW, rel), 's_mul_i32 s12, s12, 12288', 's_add_u32 s12, s12, %d' % (2 * SLOT),
                     'v_add_u32 v%d, s12, %s' % (12 + rel, vL16)]
        fi = self.opt.get('fi', 7)
        nxt = [max(cur, n6)]
        lead, dly = self.opt.get('lead', 20), self.opt.get('dly', 8)
        bnd = [8 * x for x in stg[:-1]]
        pi, ok = [], []
        for q, b_ in enumerate(bnd):
            p_ = max(b_ - lead, ok[-1] + 1 if ok else 0)
            pi.append(p_)
            ok.append(min(p_ + dly, b_ - 1))

        def issue_upto(n):
            while nxt[0] < min(n, len(seq)):
                i = nxt[0]
                if i in bnd:
                    self.poll_check(fl(bnd.index(i) + 1))
                    self.stamp(47 + bnd.index(i))
                a(load(i))
                nxt[0] += 1
        seen = set([(0, 0)])
        for i, (f, ra) in enumerate(seq):
            assert nxt[0] > i
            if i in pi:
                q = pi.index(i)
                assert q == 0 or nxt[0] > bnd[q - 1], (i, q, nxt[0])
                self.emit(self.poll_loads(fl(q + 1)))
            for rb in ((1, 0) if i == 55 else (0, 1)):
                if early and i > 56 - ne // 2 + 1:
                    a(early.pop(0))
                acc = vr(ACC + 16 * (ra + 2 * rb), 16)
                a('%s %s, %s, %s, %s' % (MFMA, acc, ar((((f % 7) * 4 + f // 7) * 2 + rb) * 4), vr(HHF + (i % NBUF) * 4),
                                         acc if (ra, rb) in seen else '0'))
                seen.add((ra, rb))
            if i == fi:
                assert fi <= ok[0]
                while pub < len(stg):
                    a.wait_tok('hh%d' % (stg[pub] - 1))
                    self.emit(self.f4_set(pub))
                    pub += 1
            if i >= 20:
                self.emit(misc[:3])
                del misc[:3]
            lim = min([b_ for b_, o_ in zip(bnd, ok) if i < o_] + [len(seq)])
            issue_upto(min(i + 1 + AHEAD, lim))
        self.stamp(24)
        assert not early
        self.emit(send(2) if ne >= 16 else send(2) + send(1) + send(3))
        a('s_waitcnt lgkmcnt(0)')
        a('s_barrier')
        for k in range(12):
            a('ds_read_b128 %s, v12 offset:%d' % (vr(HHF + 4 * k), k * 1024))
        for rel in range(3):
            for p in range(8):
                a('v_pk_add_f32 %s, %s, %s' % (vr(ACC + 2 * p, 2), vr(ACC + 2 * p, 2), vr(HHF + 16 * rel + 2 * p, 2)))
        for p in range(8):
            a('v_cvt_pk_bf16_f32 v%d, v%d, v%d' % (112 + p, ACC + 2 * p, ACC + 2 * p + 1))
            if p % 4 == 3:
                a('buffer_store_dwordx4 %s, v4, %s, s18 offen offset:%d' % (vr(112 + p - 3), SRD_OUT, (p // 4) * 32) + ['', ' sc1', ' nt', ' sc0 sc1'][self.opt.get('ost', 0)])
        self.stamp(25)

    def build(self):
        a = self.a
        nm = NAME + '_kernel'
        a('.globl %s\n.p2align 8\n.type %s,@function\n%s:' % (nm, nm, nm))
        self.prologue()
        a('s_cmp_ge_u32 %s, 7' % sN)
        a('s_cbranch_scc1 L_idle1')
        (self.p1b if self.opt.get('p1b', 0) else self.p1)()
        self.stamp(5)
        self.poll_check(self.kflags(0), onfail=self.f1_set(2))
        self.k_issue()
        self.stamp(7)
        if not self.opt.get('ql', 0):
            self.emit(self.poll_loads(self.qflags() + self.fo_items()))
        a.wait_tok('q2')
        if self.opt.get('ql', 0):
            self.emit(self.poll_loads(self.qflags() + self.fo_items()))
        self.emit(self.f1_set(2))
        self.stamp(36)
        self.wd = self.wd_bulk()
        nl = self.opt.get('nl', 0)
        self.wd_late = self.wd[56 - nl:]
        del self.wd[56 - nl:]
        wo = self.wo_bulk()
        w2 = self.opt.get('w2', 8)
        assert w2 % 4 == 0
        self.res_voffset('v15', 's11')
        self.poll_check(self.qflags() + self.fo_items())
        a('L_join1:')
        self.q_issue()
        for t in range(2):
            a('buffer_load_dwordx4 %s, v15, %s, s11 offen offset:%d' % (vr(self.HRES + 4 * t), SRD_X, 32 * t))
        self.stamp(46)
        if w2 or self.opt.get('ro', 1) in (0, 1, 4):
            a('s_barrier')
        if self.opt.get('ro', 1) == 0:
            self.emit(self.rp_load()[1])
        self.emit(wo[:w2])
        if self.opt.get('ro', 1) == 1:
            self.emit(self.rp_load()[1])
        self.wo_rest = wo[w2:]
        self.rp_prep()
        if self.opt.get('pb', 0) == 0:
            self.emit(self.prewrite('B', 208))
        self.stamp(6)
        self.p2()
        if self.opt.get('ro', 1) == 3:
            self.rp_mm()
            self.rp_store()
        self.wo_read()
        self.p3_setup()
        a.wait_tok('o')
        self.emit(self.flag_set('s16', FL_F2))
        self.stamp(11)
        rpl = self.opt.get('rpl', 3)
        if rpl:
            a.wait_tok('rs')
            a('s_waitcnt lgkmcnt(0)')
            a('s_barrier')
            self.fg_set()
        else:
            self.poll(self.fg)
            a('s_barrier')
        self.stamp(37)
        b = [self.opt.get('b%d' % k, d) for k, d in ((2, 12), (4, 8), (5, 12))]
        if rpl or self.opt.get('h1wd'):
            self.emit(self.wd[:b[0]])
            del self.wd[:b[0]]
            b[0] = 0
        Q = [g for t in range(5) for g in self.gu_bulk(t)] + self.wd

        def take(n):
            self.emit(Q[:n])
            del Q[:n]
        take(b[0])
        self.stamp(38)
        a('s_cmp_ge_u32 %s, 7' % sN)
        a('s_cbranch_scc1 L_idle3')
        b3 = self.opt.get('b3', 8)
        self.early3 = Q[:b3]
        del Q[:b3]
        a.begin_cond('p3')
        self.p3(self.early3)
        a.end_cond()
        a('L_skip3:')
        self.stamp(14)
        if rpl and not b3:
            self.poll(self.fg)
        take(b[1])
        if not rpl:
            self.p4_cs_issue()
        a('s_cmp_ge_u32 %s, 7' % sN)
        a('s_cbranch_scc1 L_skip3b')
        a.begin_cond('p3')
        a.wait_tok('h')
        self.emit(self.flag_set('s17', FL_F3, 2))
        a.end_cond()
        a('L_skip3b:')
        self.stamp(15)
        if rpl:
            a('s_barrier')
            self.p4_cs_issue()
        take(b[2])
        assert 21 <= sum(b) + b3 <= 35
        self.p4_cs_finish()
        self.p4_setup()
        self.stamp(39)
        a('s_cmp_ge_u32 %s, 7' % sN)
        a('s_cbranch_scc1 L_idle3b')
        a('L_go4:')
        self.p4(Q)
        a('s_cmp_ge_u32 %s, 7' % sN)
        a('s_cbranch_scc1 L_idle5')
        self.p5()
        self.stamp_out()
        a('L_exit:')
        a('s_endpgm')
        a('L_idle5:')
        a.fresh()
        a('s_nop 15')
        a('s_waitcnt lgkmcnt(0)')
        self.emit([x for q, g in self.tail for x in g])
        for q in range(self.pub, len(self.stg)):
            a('s_waitcnt vmcnt(%d)' % (7 - self.stg[q] + q - self.pub if self.stg[q] > self.tail[0][0] else len(self.tail) + q - self.pub))
            self.emit(self.f4_set(q))
        a('s_lshl_b32 s11, s2, 2')
        a('s_add_u32 s11, s11, %s' % sW)
        a('s_cmp_lg_u32 s11, 1020')
        a('s_cbranch_scc1 L_noclr')
        a('v_lshlrev_b32 v2, %d, v0' % FSH)
        for k in range(4):
            a('s_mov_b32 s11, %d' % (WS_FL + (FL_FG + 64 * k) * FS))
            a('buffer_load_dword v%d, v2, %s, s11 offen sc1' % (4 + k, SRD_WS))
        for k in range(4):
            a('v_xor_b32 v%d, %s, v%d' % (4 + k, sEP, 4 + k))
        a('v_or3_b32 v4, v4, v5, v6')
        a('v_or_b32 v4, v4, v7')
        a('v_cmp_ne_u32 vcc, 0, v4')
        a('s_nop 4')
        a('s_cbranch_vccnz L_noclr')
        a('v_mov_b32 v2, 0')
        a('s_mov_b64 exec, 1')
        a('global_store_dword v2, v2, %s sc1' % DBGP)
        a('s_mov_b64 exec, -1')
        a('L_noclr:')
        self.stamp_out(True)
        a('s_endpgm')
        a('L_idle3:')
        a.fresh()
        self.prewait('s20')
        if self.early3:
            self.poll(self.fg)
            self.emit(self.early3)
            a('s_waitcnt vmcnt(0)')
        a('s_branch L_skip3')
        a('L_idle3b:')
        a.fresh()
        self.prewait('s20')
        a('s_branch L_go4')
        a('L_idle1:')
        a.fresh()
        a('s_waitcnt lgkmcnt(0)')
        self.idle1()
        a('s_branch L_join1')
        a.items += self.side.items
        for x in self.cold:
            a.raw(x)
        a('L_code_end:')
        a.raw('s_endpgm')
        hdr = open('cdna_kernels/%s.s.ref' % NAME).read().split('; Override launch')[0]
        hdr += '; @launch grid=(256,1,1) block=(256,1,1) lds=%d\n' % LDS_BYTES
        hdr += '.amdgcn_target "amdgcn-amd-amdhsa--gfx950"\n' + DOC + '.text\n'
        body = a.finalize()
        tail = ('.section .rodata,"a"\n.p2align 6\n.amdhsa_kernel %s\n  .amdhsa_next_free_vgpr 512\n  .amdhsa_next_free_sgpr 102\n'
                '  .amdhsa_accum_offset 256\n  .amdhsa_group_segment_fixed_size 0\n  .amdhsa_kernarg_size 80\n'
                '  .amdhsa_user_sgpr_count 2\n  .amdhsa_user_sgpr_kernarg_segment_ptr 1\n'
                '  .amdhsa_system_sgpr_workgroup_id_x 1\n.end_amdhsa_kernel\n' % nm)
        return hdr + body + tail


if __name__ == '__main__':
    out = sys.argv[1]
    opt = {}
    for x in sys.argv[2:]:
        if '=' in x:
            k, v = x.split('=')
            opt[k] = int(v) if v.lstrip('-').isdigit() else v
    txt = Gen(stamps='--ts' in sys.argv, **opt).build()
    open(out, 'w').write(txt)
    print('wrote', out, len(txt), 'bytes')
```
